```python
import torch

def _softmax(x, axis=-1):
    return torch.softmax(x, dim=axis)

def _gelu(x):
    return torch.nn.functional.gelu(x, approximate='tanh')

def _silu(x):
    return torch.nn.functional.silu(x)

def _sigmoid(x):
    return torch.sigmoid(x)

def _layernorm(x, axis=-1, eps=1e-05):
    m = x.mean(dim=axis, keepdim=True)
    v = x.var(dim=axis, keepdim=True, unbiased=False)
    return (x - m) / torch.sqrt(v + eps)

def _scatter_add(tgt, idx, src, axis=0):
    return tgt.clone().index_add_(axis, idx, src)

def _segment_sum(src, seg, n):
    out = torch.zeros((n,) + src.shape[1:], dtype=src.dtype)
    return out.index_add_(0, seg, src)

def _pad(x, pw):
    flat = tuple((v for pair in reversed(pw) for v in pair))
    return torch.nn.functional.pad(x, flat)
kernel_name = 'parallel_sum__spectral_fnet__mixer_gmlp__prompt'

def setup_inputs():

    _w = lambda a: (lambda t: t.to(torch.bfloat16) if t.is_floating_point() else t)(torch.as_tensor(a))

    def _A_setup():
        B, S, D = (1, 2048, 512)
        ns = torch.arange(S)[:, None] * torch.arange(S)[None, :]
        nd = torch.arange(D)[:, None] * torch.arange(D)[None, :]
        Ws_re = torch.cos(-2.0 * torch.pi * ns / S).to(float)
        Ws_im = torch.sin(-2.0 * torch.pi * ns / S).to(float)
        Wd_re = torch.cos(-2.0 * torch.pi * nd / D).to(float)
        Wd_im = torch.sin(-2.0 * torch.pi * nd / D).to(float)
        return {'x': _w((lambda *s: torch.randn(*s, dtype=torch.bfloat16) * 0.05)(B, S, D)), 'dft_seq_re': _w(Ws_re), 'dft_seq_im': _w(Ws_im), 'dft_hid_re': _w(Wd_re), 'dft_hid_im': _w(Wd_im)}
    _A_in = _A_setup()

    def _B_setup():
        B, S, D, F = (1, 2048, 512, 1376)
        Fh = F // 2
        return {'x': _w((lambda *s: torch.randn(*s, dtype=torch.bfloat16) * 0.05)(B, S, D)), 'w_in': _w((lambda *s: torch.randn(*s, dtype=torch.bfloat16) * 1.6)(D, 2 * Fh)), 'w_sp': _w(0.01 * (lambda *s: torch.randn(*s, dtype=torch.bfloat16) * 1.6)(S, S)), 'b_sp': _w(1.0 + 0.01 * (lambda *s: torch.randn(*s, dtype=torch.bfloat16) * 0.8)(S)), 'w_out': _w((lambda *s: torch.randn(*s, dtype=torch.bfloat16) * 0.8)(Fh, D))}
    _B_in = _B_setup()
    return {'A_x': _A_in['x'], 'A_dft_seq_re': _A_in['dft_seq_re'], 'A_dft_seq_im': _A_in['dft_seq_im'], 'A_dft_hid_re': _A_in['dft_hid_re'], 'A_dft_hid_im': _A_in['dft_hid_im'], 'B_x': _B_in['x'], 'B_w_in': _B_in['w_in'], 'B_w_sp': _B_in['w_sp'], 'B_b_sp': _B_in['b_sp'], 'B_w_out': _B_in['w_out']}

def reference(A_x, A_dft_seq_re, A_dft_seq_im, A_dft_hid_re, A_dft_hid_im, B_x, B_w_in, B_w_sp, B_b_sp, B_w_out):

    def _A_ref(x, dft_seq_re, dft_seq_im, dft_hid_re, dft_hid_im):
        a = torch.einsum('bsd,ed->bse', x, dft_hid_re)
        b = torch.einsum('bsd,ed->bse', x, dft_hid_im)
        y = torch.einsum('ts,bse->bte', dft_seq_re, a) - torch.einsum('ts,bse->bte', dft_seq_im, b)
        return y

    def _B_ref(x, w_in, w_sp, b_sp, w_out):
        B, S, D = x.shape
        F = w_in.shape[-1]
        Fh = F // 2
        z = _gelu(torch.einsum('bsd,df->bsf', x, w_in))
        z1 = z[..., :Fh].clone()
        z2 = _layernorm(z[..., Fh:], axis=-1)
        g = torch.einsum('ts,bsf->btf', w_sp, z2) + b_sp[None, :, None]
        return torch.einsum('bsf,fd->bsd', z1 * g, w_out)
    x = A_x
    xn = _layernorm(x, axis=-1)
    return x + _A_ref(xn, A_dft_seq_re, A_dft_seq_im, A_dft_hid_re, A_dft_hid_im) + _B_ref(xn, B_w_in, B_w_sp, B_b_sp, B_w_out)
```

```python
import re, copy
TRANS = ("v_exp_f32","v_log_f32","v_rcp_f32","v_rsq_f32","v_sqrt_f32","v_sin_f32","v_cos_f32")
REG = re.compile(r"^-?([vas])(\d+)$|^-?([vas])\[(\d+):(\d+)\]$")
def regs(op):
    op = op.strip()
    if op in ("vcc",): return {("s","vcc")}
    if op == "m0": return {("s","m0")}
    if op == "exec": return {("s","exec")}
    m = REG.match(op)
    if not m: return set()
    if m.group(1): return {(m.group(1), int(m.group(2)))}
    return {(m.group(3), k) for k in range(int(m.group(4)), int(m.group(5))+1)}

class I:
    def __init__(s, text, tag=None):
        s.text = text; s.tag = tag
        t = text.split(";")[0].strip()
        s.label = t.endswith(":") or t.startswith(".")
        s.rd=set(); s.wr=set(); s.kind="other"; s.mn=""; s.srcc=set(); s.ab=set(); s.data=set(); s.ws=1
        if s.label or not t:
            s.ws=0; return
        p = t.split(None,1); mn=p[0]; s.mn=mn
        rest = p[1] if len(p)>1 else ""
        ops = [o.strip() for o in rest.split(",")] if rest else []
        mods = ""
        o2=[]
        depth_text = re.sub(r"\b(op_sel|op_sel_hi|neg_lo|neg_hi|quad_perm):\[[^\]]*\]", "", rest)
        ops = [o.strip() for o in depth_text.split(",")] if depth_text.strip() else []
        if ops:
            l = ops[-1].split()
            ops[-1] = l[0] if l else ""
            mods = " ".join(l[1:])
        s.mods = mods
        R = [regs(o) for o in ops]
        U = lambda L: set().union(*L) if L else set()
        if mn.startswith("v_mfma"):
            s.kind="mfma"; s.wr=R[0]; s.ab=R[1]|R[2]; s.srcc=R[3]; s.rd=s.ab|s.srcc
            s.passes = 8 if "32x32x16" in mn else 4
        elif mn.startswith("v_"):
            s.kind="valu"; s.wr=R[0]; s.rd=U(R[1:])
            if mn.startswith(("v_fmac","v_pk_fmac")): s.rd|=R[0]
            if "swap" in mn: s.wr=R[0]|R[1]; s.rd=R[0]|R[1]
            if mn.startswith(("v_add_co","v_addc_co")): s.wr=R[0]|R[1]; s.rd=U(R[2:])
            s.dpp = "row_" in mods or "quad_perm" in rest
            if s.dpp: s.rd|=R[0]
        elif mn.startswith("ds_"):
            s.kind="ds"
            if mn.startswith(("ds_read","ds_bperm","ds_perm","ds_swiz")): s.wr=R[0]; s.rd=U(R[1:])
            else: s.rd=U(R)
        elif mn.startswith(("buffer_","global_")):
            s.kind="vm"
            s.lds = "lds" in mods.split()
            if "load" in mn and not s.lds:
                s.wr=R[0]; s.rd=U(R[1:])
                if "d16" in mn: s.rd|=R[0]
            elif "atomic" in mn:
                s.rd=U(R)
                if "sc0" in mods.split(): s.wr=R[0]
            else:
                s.rd=U(R)
                if s.lds: s.rd |= {("s","m0")}
                if "store" in mn and ("x4" in mn or "x3" in mn): s.data = R[0] if mn.startswith("buffer") else R[1]
        elif mn.startswith("s_"):
            s.kind="salu"
            if mn=="s_nop": s.ws=int(ops[0])+1
            elif mn.startswith(("s_cmp","s_waitcnt","s_barrier","s_branch","s_cbranch","s_endpgm","s_setprio","s_bitcmp")):
                s.rd=U(R)
            else:
                s.wr=R[0]; s.rd=U(R[1:])
            if mn.startswith(("s_load","s_memtime","s_buffer_load")): s.kind="smem"

class W:
    def __init__(s, kind, tag=None): s.kind=kind; s.tag=tag
class Raw:
    def __init__(s, text): s.text=text
class Var:
    def __init__(s, bodies): s.bodies=bodies

class St:
    def __init__(s):
        s.vm=[]; s.lg=[]; s.hist=[]; s.maxvm=0; s.nops=0
def need_ws(p, c):
    n=0
    if p.kind=="valu":
        vw = {r for r in p.wr if r[0] in "va"}; sw = {r for r in p.wr if r[0]=="s"}
        if c.kind=="mfma" and vw & c.rd: n=max(n,2)
        if c.kind=="valu":
            if vw & c.rd:
                if "permlane" in c.mn or c.dpp: n=max(n,2)
                if c.mn.startswith(("v_readfirstlane","v_readlane")): n=max(n,1)
                if p.mn in TRANS and c.mn not in TRANS: n=max(n,1)
            if sw & c.rd: n=max(n,4 if "lane" in c.mn else 2)
        if c.kind=="vm" and sw & c.rd: n=max(n,5)
    if p.kind=="mfma":
        big = 12 if p.passes==8 else 8
        if c.kind=="mfma":
            if p.wr & c.ab: n=max(n,big)
            if p.wr & c.srcc and not (p.wr==c.srcc and p.passes==c.passes): n=max(n,big-2)
            if p.wr & c.wr and not (p.wr==c.srcc): n=max(n,big-2)
        elif c.kind in ("valu","vm","ds"):
            if p.wr & (c.rd|c.wr): n=max(n,big)
            if p.srcc & c.wr: n=max(n, 7 if p.passes==8 else 3)
    if p.kind=="salu" and ("s","m0") in p.wr and c.kind=="vm" and ("s","m0") in c.rd: n=max(n,1)
    if p.kind=="vm" and p.data & c.wr: n=max(n, 2)
    return n

def run(items, st, out):
    def emit(i):
        if not i.label:
            d=0; pad=0
            for p in reversed(st.hist):
                if d>=14: break
                pad=max(pad, need_ws(p,i)-d)
                d+=p.ws
            if pad>0:
                n=I(f"s_nop {pad-1}"); out.append(n.text); st.hist.append(n); st.nops+=pad
            st.hist.append(i); st.hist=st.hist[-20:]
        out.append(i.text)
    def wait(vm=None, lg=None):
        t=[]
        if vm is not None and vm < len(st.vm):
            vm=min(vm,63); t.append(f"vmcnt({vm})"); st.vm=st.vm[len(st.vm)-vm:] if vm else []
        if lg is not None and lg < len(st.lg):
            lg=min(lg,15)
            t.append(f"lgkmcnt({lg})"); st.lg=st.lg[len(st.lg)-lg:] if lg else []
        if t: emit(I("s_waitcnt "+" ".join(t)))
    def cnt(q, pred):
        idx=[k for k,e in enumerate(q) if pred(e)]
        return None if not idx else len(q)-1-idx[-1]
    for it in items:
        if isinstance(it,str): it=I(it)
        if isinstance(it,list): run(it,st,out); continue
        if isinstance(it,Raw): out.append(it.text); continue
        if isinstance(it,W):
            if it.kind=="vm": wait(vm=cnt(st.vm, lambda e: e.tag==it.tag))
            elif it.kind=="lg": wait(lg=cnt(st.lg, lambda e: e.tag==it.tag))
            elif it.kind=="vm0": wait(vm=0)
            elif it.kind=="lg0": wait(lg=0)
            elif it.kind=="vmlg0": wait(vm=cnt(st.vm, lambda e: e.tag==it.tag), lg=0)
            elif it.kind=="reset": st.vm=[]
            elif it.kind=="resetlg": st.lg=[]
            continue
        if isinstance(it,Var):
            ends=[]
            for b in it.bodies:
                s2=copy.deepcopy(st); run(b,s2,out); ends.append(s2)
            for e in ends[1:]:
                assert [x.text for x in e.vm]==[x.text for x in ends[0].vm]
                assert [x.text for x in e.lg]==[x.text for x in ends[0].lg]
            e=ends[-1]; st.vm=e.vm; st.lg=e.lg; st.hist=e.hist; st.maxvm=e.maxvm; st.nops=e.nops
            continue
        touch = it.rd|it.wr
        if touch:
            v=cnt(st.vm, lambda e: e.wr & touch)
            if it.kind=="ds":
                l=cnt(st.lg, lambda e: e.wr & it.rd)
            else: l=cnt(st.lg, lambda e: e.wr & touch)
            if it.kind=="vm" and v is not None and not any(e.wr & it.rd for e in st.vm): v=None
            wait(vm=v, lg=l)
        emit(it)
        if it.kind=="vm":
            st.vm.append(it); st.maxvm=max(st.maxvm,len(st.vm))
            assert len(st.vm)<=63, "vmcnt overflow"
        if it.kind=="ds": st.lg.append(it)

def flat(L):
    o=[]
    for x in L:
        if isinstance(x,list): o+=flat(x)
        else: o.append(x)
    return o
def mix(main, fill, start=0, end=None):
    if end is None: end=len(main)
    n=end-start; m=len(fill); out=list(main[:start]); k=0
    for x in range(n):
        out.append(main[start+x])
        while k<m and (k*n)//m <= x if m else False:
            out.append(fill[k]); k+=1
    out+=fill[k:]
    out+=main[end:]
    return out

class Alloc:
    def __init__(s, n, lo=0):
        s.free=set(range(lo,n)); s.names={}; s.peak=0; s.n=n
    def a(s, name, k=1, al=None):
        al = al or (1 if k==1 else 2)
        for b in range(0,s.n,al):
            if all((b+x) in s.free for x in range(k)):
                for x in range(k): s.free.discard(b+x)
                assert name not in s.names, name
                s.names[name]=(b,k); s.peak=max(s.peak, s.n-len(s.free)); return b
        raise Exception(f"out of regs for {name} ({k}); live: {s.names}")
    def at(s, name, b, k):
        assert all((b+x) in s.free for x in range(k)), name
        for x in range(k): s.free.discard(b+x)
        s.names[name]=(b,k); return b
    def f(s, *names):
        for n in names:
            b,k=s.names.pop(n)
            for x in range(k): s.free.add(b+x)
```

```python
import sys, struct, math
from fw import *
NAME="parallel_sum__spectral_fnet__mixer_gmlp__prompt_kernel"
def fl(x): return "0x%08x" % struct.unpack("<I", struct.pack("<f", x))[0]
F2=0x1000; F3=0x10000; STATS=0x40000; Z2N=0x100000; VB=0x400000; VP=65536+256; HB=0x700000; DIAG=0xA00000; WSSZ=0xB00000
OOB=0x7ff00000
WB=0; XB=73728; STG=73728; STGW=17408; RED=0; RING=32768; WO1=98304; WO2=32768; VL=65536; TRB=81920
sX,sWIN,sWSP,sWOUT,sOUT,sWS,sBSP = 8,12,16,20,24,28,32
sI,sJ,sW,sSH,sFH,sF0,sNOCT,sNON,sR,sXM,sWM,sT0,sT1,sT2,sT3,sSIG,sCNT,sSTM,sRM,sZ = range(36,56)
sN1,sN2,sN3,sFF,sHM = 56,57,58,59,60
sMA,sMB = 62,64
sTS=66
def srd(b): return f"s[{b}:{b+3}]"
def v(b,k=1): return f"v{b}" if k==1 else f"v[{b}:{b+k-1}]"
def a(b,k=1): return f"a{b}" if k==1 else f"a[{b}:{b+k-1}]"
def f0(j): return 88*j - (8 if j==7 else 0)

def gen(MAPB=2, NT="", DIAGON=False, SPIN=20000, PF=True, PRE=3, stop=None):
    V=Alloc(256); C=[]; e=C.append
    nts=[0]; tsn=[]
    def ts(name):
        if not DIAGON: return []
        k=nts[0]; nts[0]+=1; tsn.append(name); assert k<17
        return [W("lg0"), f"s_memtime s[{sTS+2*k}:{sTS+2*k+1}]", "s_waitcnt lgkmcnt(0)"]
    V.at("tid",0,1)
    XF=V.at("XF",128,128)
    e("s_cmp_ge_u32 s2, 256"); e("s_cbranch_scc1 L_end")
    for s,o in ((sX,0),(sWIN,48),(sWS,96),(sWSP,56),(sBSP,64),(sWOUT,72),(sOUT,80)):
        e(f"s_load_dwordx2 s[{s}:{s+1}], s[0:1], {o}")
    if DIAGON:
        e(f"s_memtime s[{sTS}:{sTS+1}]"); nts[0]=1; tsn.append("start")
    vL=V.a("L"); vN=V.a("n"); vG=V.a("g"); vL16=V.a("L16")
    t0=V.a("t0",2); t1=t0+1; t2=V.a("t2",2); t3=t2+1; t4=V.a("t4",2); t5=t4+1; t6=V.a("t6",2); t7=t6+1
    e(f"v_lshrrev_b32 v{t0}, 6, v0")
    e(f"v_and_b32 v{vL}, 63, v0")
    e(f"v_readfirstlane_b32 s{sW}, v{t0}")
    if MAPB==2:
        e(f"s_bfe_u32 s{sT0}, s2, 0x20001"); e(f"s_lshl_b32 s{sT0}, s{sT0}, 3")
        e(f"s_lshr_b32 s{sT1}, s2, 5"); e(f"s_add_u32 s{sI}, s{sT0}, s{sT1}")
        e(f"s_and_b32 s{sT0}, s2, 1"); e(f"s_lshl_b32 s{sT0}, s{sT0}, 2")
        e(f"s_bfe_u32 s{sT1}, s2, 0x20003"); e(f"s_add_u32 s{sJ}, s{sT0}, s{sT1}")
    else:
        e(f"s_and_b32 s{sT0}, s2, 7"); e(f"s_lshl_b32 s{sT0}, s{sT0}, 2")
        e(f"s_lshr_b32 s{sT1}, s2, 6"); e(f"s_add_u32 s{sI}, s{sT0}, s{sT1}")
        e(f"s_bfe_u32 s{sJ}, s2, 0x30003")
    e(f"v_and_b32 v{vN}, 15, v0"); e(f"v_bfe_u32 v{vG}, v0, 4, 2"); e(f"v_lshlrev_b32 v{vL16}, 4, v{vL}")
    e(f"s_lshr_b32 s{sSH}, s{sW}, 1"); e(f"s_and_b32 s{sFH}, s{sW}, 1")
    e(f"s_mul_i32 s{sF0}, s{sJ}, 88"); e(f"s_cmp_eq_u32 s{sJ}, 7"); e(f"s_cselect_b32 s{sT0}, 8, 0"); e(f"s_sub_u32 s{sF0}, s{sF0}, s{sT0}")
    e(f"s_cmp_lt_u32 s{sJ}, 6"); e(f"s_cselect_b32 s{sNOCT}, 11, 10")
    for s,n in ((sX,2097152),(sWIN,512*2752),(sWS,WSSZ),(sWSP,8388608),(sBSP,4096),(sWOUT,688*1024),(sOUT,2097152)):
        e(f"s_mov_b32 s{s+2}, {n}"); e(f"s_mov_b32 s{s+3}, 0x20000")
    xd0=V.a("xd0"); xd1=V.a("xd1")
    e(f"s_lshl_b32 s{sT0}, s{sFH}, 10"); e(f"s_lshl_b32 s{sT1}, s{sSH}, 5"); e(f"s_add_u32 s{sZ}, s{sT1}, s{sI}")
    e(f"s_add_u32 s{sT0}, s{sT0}, s{sZ}"); e(f"s_lshl_b32 s{sT2}, s{sT0}, 10")
    e(f"v_lshrrev_b32 v{t0}, 3, v{vL}"); e(f"v_and_b32 v{t1}, 7, v{vL}"); e(f"v_xor_b32 v{t1}, v{t1}, v{vG}")
    e(f"v_lshlrev_b32 v{t1}, 4, v{t1}"); e(f"v_lshl_add_u32 v{t1}, v{t0}, 16, v{t1}"); e(f"v_add_u32 v{xd0}, s{sT2}, v{t1}")
    e(f"v_xor_b32 v{xd1}, 64, v{xd0}"); e(f"v_add_u32 v{xd1}, {8*65536-1024}, v{xd1}")
    e(f"s_lshl_b32 s{sXM}, s{sW}, 11"); e(f"s_add_u32 s{sXM}, s{sXM}, {XB}")
    e(f"s_mul_i32 s{sWM}, s{sW}, 3072")
    wd=[V.a(f"wd{q}") for q in range(3)]
    e(f"s_mul_i32 s{sT0}, s{sW}, {16*2752}"); e(f"s_lshl_b32 s{sT1}, s{sF0}, 1"); e(f"s_add_u32 s{sT0}, s{sT0}, s{sT1}")
    e(f"v_mov_b32 v{t4}, {OOB}")
    for q in range(3):
        if q: e(f"v_add_u32 v{t0}, {64*q}, v{vL}")
        idx = t0 if q else vL
        e(f"v_mul_u32_u24 v{t1}, 171, v{idx}"); e(f"v_lshrrev_b32 v{t1}, 11, v{t1}")
        e(f"v_mad_i32_i24 v{t2}, v{t1}, -12, v{idx}")
        if q==1:
            e(f"v_lshrrev_b32 v{t3}, 2, v{t1}"); e(f"v_and_b32 v{t3}, 2, v{t3}"); e(f"v_xor_b32 v{t2}, v{t2}, v{t3}")
        if q==2: e(f"v_xor_b32 v{t2}, 2, v{t2}")
        e(f"v_cmp_gt_u32 vcc, s{sNOCT}, v{t2}")
        e(f"v_mul_u32_u24 v{t1}, 2752, v{t1}"); e(f"v_lshl_add_u32 v{t1}, v{t2}, 4, v{t1}")
        if q: e(f"s_sub_u32 s{sT0}, s{sT0}, 1024")
        e(f"v_add_u32 v{t1}, s{sT0}, v{t1}")
        e(f"v_cndmask_b32 v{wd[q]}, v{t4}, v{t1}, vcc")
    e("s_waitcnt lgkmcnt(0)")
    e(f"s_load_dword s{sNON}, s[{sWS}:{sWS+1}], 0")
    def issue_x(kk):
        return [[f"s_add_u32 m0, s{sXM}, {kk*8192}", f"s_movk_i32 s{sT3}, {kk*128}",
                 I(f"buffer_load_dwordx4 v{xd0}, {srd(sX)}, s{sT3} offen {NT} lds", f"st{kk}")],
                I(f"buffer_load_dwordx4 v{xd1}, {srd(sX)}, s{sT3} offen offset:1024 {NT} lds", f"st{kk}")]
    def issue_w(q):
        so=(q%8)*64*2752 + (1376 if q<8 else 0)
        return [[f"s_add_u32 m0, s{sWM}, {WB+(q%6)*12288}", f"s_mov_b32 s{sT3}, {so}",
                 I(f"buffer_load_dwordx4 v{wd[0]}, {srd(sWIN)}, s{sT3} offen {NT} lds", f"st{q}")],
                I(f"buffer_load_dwordx4 v{wd[1]}, {srd(sWIN)}, s{sT3} offen offset:1024 {NT} lds", f"st{q}"),
                I(f"buffer_load_dwordx4 v{wd[2]}, {srd(sWIN)}, s{sT3} offen offset:2048 {NT} lds", f"st{q}")]
    for kk in range(PRE):
        e(issue_x(kk)); e(issue_w(kk))
        if kk==0 and PF:
            e(f"s_getpc_b64 s[4:5]"); e("L_pc:")
            e(f"v_lshlrev_b32 v{t0}, 7, v0")
            e(f"v_min_u32 v{t1}, L_end-L_pc, v{t0}")
            e(f"global_load_dword v{t6}, v{t1}, s[4:5]")
    xa=[V.a("xa0"),V.a("xa1")]; wa=[V.a("wa0"),V.a("wa1")]
    e(f"v_lshrrev_b32 v{t0}, 1, v{vN}"); e(f"v_xor_b32 v{t0}, v{t0}, v{vG}"); e(f"v_lshlrev_b32 v{t0}, 4, v{t0}")
    e(f"v_lshl_add_u32 v{t0}, v{vN}, 7, v{t0}")
    e(f"s_lshl_b32 s{sT0}, s{sSH}, 12"); e(f"s_add_u32 s{sT0}, s{sT0}, {XB}")
    e(f"v_add_u32 v{xa[0]}, s{sT0}, v{t0}"); e(f"v_xor_b32 v{xa[1]}, 64, v{xa[0]}")
    e(f"v_lshrrev_b32 v{t0}, 2, v{vN}"); e(f"v_lshl_add_u32 v{t0}, v{vG}, 3, v{t0}"); e(f"v_mul_u32_u24 v{t0}, 192, v{t0}")
    e(f"v_and_b32 v{t1}, 1, v{vG}"); e(f"v_xor_b32 v{t1}, s{sFH}, v{t1}"); e(f"v_lshl_add_u32 v{t0}, v{t1}, 5, v{t0}")
    e(f"v_and_b32 v{t1}, 3, v{vL}"); e(f"v_lshl_add_u32 v{wa[0]}, v{t1}, 3, v{t0}"); e(f"v_add_u32 v{wa[1]}, 36864, v{wa[0]}")
    e(f"v_and_b32 v{t0}, 1, v{vL}"); e(f"v_cmp_ne_u32 s[{sMA}:{sMA+1}], 0, v{t0}")
    e(f"v_and_b32 v{t0}, 2, v{vL}"); e(f"v_cmp_ne_u32 s[{sMB}:{sMB+1}], 0, v{t0}")
    ONES=V.a("ONES",4)
    for k in range(4): e(f"v_mov_b32 v{ONES+k}, 0x3f803f80")
    SP=V.a("SP",52)
    aFC,aFS,aAC,aAS=192,208,224,232
    e(f"s_and_b32 s{sT0}, s{sJ}, 1"); e(f"s_lshl_b32 s{sT0}, s{sT0}, 1"); e(f"s_add_u32 s{sR}, s{sT0}, s{sFH}")
    e(f"s_lshr_b32 s{sT0}, s{sJ}, 1"); e(f"s_lshl_b32 s{sT0}, s{sT0}, 6"); e(f"s_add_u32 s{sT0}, s{sT0}, s{sR}")
    e(f"s_cmp_eq_u32 s{sR}, 0"); e(f"s_cselect_b32 s{sSIG}, 1.0, -1.0")
    e(f"v_lshl_add_u32 v{t0}, v{vN}, 2, s{sT0}")
    e(f"v_subrev_u32 v{t0}, 1, v{t0}"); e(f"v_and_b32 v{t0}, 0xff, v{t0}"); e(f"v_add_u32 v{t0}, 1, v{t0}")
    e(f"v_cvt_f32_u32 v{t0}, v{t0}"); e(f"v_mul_f32 v{t0}, {fl(-1/512)}, v{t0}")
    e(f"v_lshlrev_b32 v{t1}, 3, v{vG}"); e(f"v_cvt_f32_u32 v{t1}, v{t1}"); e(f"v_mul_f32 v{t1}, v{t1}, v{t0}")
    def sincos(step, base, k0, dc, ds, u):
        b=SP+8*(u%2)
        return [f"v_fmamk_f32 v{b}, v{step}, {fl(k0)}, v{base}", f"v_add_f32 v{b+1}, v{b}, v{step}",
                f"v_cos_f32 v{b+2}, v{b}", f"v_cos_f32 v{b+3}, v{b+1}", f"v_sin_f32 v{b+4}, v{b}", f"v_sin_f32 v{b+5}, v{b+1}",
                f"v_cvt_pk_bf16_f32 v{b+2}, v{b+2}, v{b+3}", f"v_accvgpr_write_b32 a{dc}, v{b+2}",
                f"v_cvt_pk_bf16_f32 v{b+4}, v{b+4}, v{b+5}", f"v_accvgpr_write_b32 a{ds}, v{b+4}"]
    for ks in range(4):
        for pr in range(4): e(sincos(t0,t1,32*ks+2*pr,aFC+4*ks+pr,aFS+4*ks+pr,pr))
    for th in range(2):
        e(f"v_add_u32 v{t0}, {16*th}, v{vN}"); e(f"v_cvt_f32_u32 v{t0}, v{t0}"); e(f"v_mul_f32 v{t0}, {fl(1/32)}, v{t0}")
        e(f"v_lshlrev_b32 v{t1}, 2, v{vG}"); e(f"v_cvt_f32_u32 v{t1}, v{t1}"); e(f"v_mul_f32 v{t1}, v{t1}, v{t0}")
        for pr in range(4): e(sincos(t0,t1,16*(pr//2)+2*(pr%2),aAC+4*th+pr,aAS+4*th+pr,pr))
    e("s_waitcnt lgkmcnt(0)")
    e(f"s_mul_i32 s{sNON}, s{sNON}, 1664525"); e(f"s_add_u32 s{sNON}, s{sNON}, 1013904223")
    e(f"s_lshr_b32 s{sN1}, s{sNON}, 8"); e(f"s_lshr_b32 s{sN2}, s{sNON}, 16"); e(f"s_lshr_b32 s{sN3}, s{sNON}, 24"); e(f"s_movk_i32 s{sFF}, 0xff")
    e(ts("init"))
    ZA=V.a("ZA",24); CS=SP; SUM=SP+12; SQ=SP+20; WF=SP+28
    def xf(ks,t): return XF+(ks*2+t)*4
    def rd_x(ks):
        kk,kp=divmod(ks,2)
        return [f"ds_read_b128 {v(xf(ks,t),4)}, v{xa[kp]} offset:{kk*8192+t*2048}" for t in range(2)]
    def rd_w(q,kp):
        sl=q%6; b=WF+12*kp
        return [f"ds_read_b64_tr_b16 {v(b+4*c+2*r,2)}, v{wa[sl//3]} offset:{(sl%3)*12288+kp*6144+r*768+c*64}" for c in range(3) for r in range(2)]
    def mm(d,A,B,first): return f"v_mfma_f32_16x16x32_bf16 {v(d,4)}, {A}, {B}, {'0' if first else v(d,4)}"
    def mf_z(ks,stats):
        o=[]; b=WF+12*(ks%2); f=ks==0
        if stats:
            for t in range(2):
                o.append(mm(SQ+4*t, v(xf(ks,t),4), v(xf(ks,t),4), f)); o.append(mm(SUM+4*t, v(ONES,4), v(xf(ks,t),4), f))
        for c in range(3):
            for t in range(2): o.append(mm(ZA+(c*2+t)*4, v(b+4*c,4), v(xf(ks,t),4), f))
            o.append(mm(CS+4*c, v(b+4*c,4), v(ONES,4), f))
        return o
    RES=V.a("RES",8)
    for ks in range(17):
        kk,kp=divmod(ks,2); pre=[]; fill=[]
        if ks<16:
            if kp==0:
                pre=[W("vm",f"st{kk}"), "s_barrier"]
                if kk==0: pre+=ts("st0")
                q=kk+PRE
                dm=(issue_x(q) if q<8 else [])+issue_w(q)
            else: dm=[]
            fill=rd_x(ks)+rd_w(kk,kp)+dm
        if ks==15:
            fill+= [[f"v_lshrrev_b32 v{t0}, 1, v{vG}", f"v_lshrrev_b32 v{t1}, 1, v{vN}", f"v_xor_b32 v{t0}, v{t0}, v{t1}"],
                    [f"v_lshlrev_b32 v{t0}, 4, v{t0}", f"v_lshl_add_u32 v{t0}, v{vN}, 7, v{t0}", f"v_and_b32 v{t1}, 1, v{vG}"],
                    [f"v_lshl_add_u32 v{t0}, v{t1}, 3, v{t0}", f"s_lshl_b32 s{sT0}, s{sJ}, 13", f"s_add_u32 s{sT0}, s{sT0}, s{sXM}", f"v_add_u32 v{t0}, s{sT0}, v{t0}"],
                    [f"ds_read_b64 {v(RES,2)}, v{t0}", f"v_xor_b32 v{t1}, 32, v{t0}", f"ds_read_b64 {v(RES+2,2)}, v{t1}"],
                    [f"v_xor_b32 v{t1}, 64, v{t0}", f"ds_read_b64 {v(RES+4,2)}, v{t1}", f"v_xor_b32 v{t1}, 0x60, v{t0}", f"ds_read_b64 {v(RES+6,2)}, v{t1}"]]
        if ks==16:
            pre=[W("lg0"), "s_barrier"]
            fill=flat([issue_w(q) for q in range(8+PRE,14)])
            fill=[issue for q in range(8+PRE,14) for issue in issue_w(q)]
        e(pre)
        if ks==0: e(fill)
        else: e(mix(mf_z(ks-1,True), fill))
    V.f("xd0","xd1","xa0","xa1")
    e(ts("z2gemm"))
    vsp=V.a("vsp"); ra=[V.a(f"ra{k}") for k in range(4)]
    spinit=[f"v_xor_b32 v{t0}, v{vN}, v{vG}", f"v_lshlrev_b32 v{t0}, 4, v{t0}", f"v_lshl_add_u32 v{t0}, v{vG}, 18, v{t0}",
            f"s_lshl_b32 s{sT0}, s{sI}, 2", f"s_add_u32 s{sT0}, s{sT0}, s{sW}", f"s_lshl_b32 s{sT0}, s{sT0}, 10", f"v_add_u32 v{vsp}, s{sT0}, v{t0}",
            f"s_mul_i32 s{sSTM}, s{sW}, {STGW}", f"s_add_u32 s{sSTM}, s{sSTM}, {STG}",
            f"v_bfe_u32 v{t0}, v{vL}, 2, 3", f"v_mul_u32_u24 v{t0}, 1088, v{t0}", f"v_and_b32 v{t1}, 3, v{vL}", f"v_lshl_add_u32 v{t0}, v{t1}, 8, v{t0}",
            f"v_lshl_add_u32 v{t0}, v{t1}, 4, v{t0}", f"v_lshrrev_b32 v{t1}, 5, v{vL}", f"v_lshl_add_u32 v{t0}, v{t1}, 7, v{t0}",
            f"v_add_u32 v{ra[0]}, s{sSTM}, v{t0}"]+[f"v_xor_b32 v{ra[k]}, {16*k}, v{ra[0]}" for k in range(1,4)]
    def sp_issue(q):
        kap,tb=divmod(q,2)
        return [[f"s_add_u32 m0, s{sSTM}, {(q%2)*8704+ins*1088}", f"s_mov_b32 s{sT3}, {ins*1048576+tb*131072+kap*256}",
                 I(f"buffer_load_dwordx4 v{vsp}, {srd(sWSP)}, s{sT3} offen {NT} lds", f"sp{q}")] for ins in range(8)]
    def sp_read(q):
        r=[I(f"ds_read_b128 {a((q*8+x)*4,4)}, v{ra[x%4]} offset:{(q%2)*8704+(x//4)*64}", f"spr{q}") for x in range(8)]
        r[0]=[W("vm",f"sp{q}"), r[0]]
        return r
    def sp_step(q):
        o=sp_read(q)
        if q+2<8:
            i2=sp_issue(q+2); i2[0]=[W("lg",f"spr{q}")]+i2[0]; o+=i2
        return o
    e(spinit)
    NM=V.a("NM",2); K1=V.a("K1",2); K0=V.a("K0",2); IR=V.a("IR",2); RS=V.a("RS",2)
    k0=-2*math.log2(math.e)*math.sqrt(2/math.pi); k1=k0*0.044715
    e(f"v_lshrrev_b32 v{t0}, 2, v{vN}"); e(f"v_lshl_add_u32 v{t0}, v{t0}, 4, v{vN}"); e(f"v_lshlrev_b32 v{t0}, 2, v{t0}")
    for t in range(2):
        s=SQ+4*t
        e(f"v_cndmask_b32 v{s}, v{s}, v{s+1}, s[{sMA}:{sMA+1}]"); e(f"v_cndmask_b32 v{s+2}, v{s+2}, v{s+3}, s[{sMA}:{sMA+1}]")
        e(f"v_cndmask_b32 v{s}, v{s}, v{s+2}, s[{sMB}:{sMB+1}]")
        e(f"ds_bpermute_b32 v{s+1}, v{t0}, v{s}")
    for t in range(2):
        e(f"v_mul_f32 v{NM+t}, {fl(-1/512)}, v{SUM+4*t}")
        e(f"v_mul_f32 v{t2+t}, v{NM+t}, v{NM+t}"); e(f"v_sub_f32 v{t2+t}, {fl(1e-5)}, v{t2+t}")
    for t in range(2):
        e(f"v_fmamk_f32 v{t2+t}, v{SQ+4*t+1}, {fl(1/512)}, v{t2+t}"); e(f"v_max_f32 v{t2+t}, {fl(1e-5)}, v{t2+t}")
    for t in range(2): e(f"v_rsq_f32 v{RS+t}, v{t2+t}")
    for t in range(2): e(f"v_sqrt_f32 v{IR+t}, v{t2+t}")
    for t in range(2):
        e(f"v_mul_f32 v{K0+t}, {fl(k0)}, v{RS+t}"); e(f"v_mul_f32 v{t2+t}, v{RS+t}, v{RS+t}")
    for t in range(2):
        e(f"v_mul_f32 v{t2+t}, {fl(0.044715)}, v{t2+t}"); e(f"v_mul_f32 v{K1+t}, v{K0+t}, v{t2+t}")
    TM=SP+28
    S2=SP+40; Q2=SP+44
    def gelu(stats):
        o=[]
        for c in range(3):
            P=[(ZA+(c*2+t)*4+2*h, CS+4*c+2*h, t, TM+2*(t*2+h), h) for t in range(2) for h in range(2)]
            for z,cs,t,u,h in P: o.append(f"v_pk_fma_f32 {v(z,2)}, {v(NM,2)}, {v(cs,2)}, {v(z,2)} op_sel:[{t},0,0] op_sel_hi:[{t},1,1]")
            for z,cs,t,u,h in P: o.append(f"v_pk_mul_f32 {v(u,2)}, {v(z,2)}, {v(z,2)}")
            for z,cs,t,u,h in P: o.append(f"v_pk_fma_f32 {v(u,2)}, {v(u,2)}, {v(K1,2)}, {v(K0,2)} op_sel:[0,{t},{t}] op_sel_hi:[1,{t},{t}]")
            for z,cs,t,u,h in P: o.append(f"v_pk_mul_f32 {v(u,2)}, {v(u,2)}, {v(z,2)}")
            for z,cs,t,u,h in P: o+= [f"v_exp_f32 v{u}, v{u}", f"v_exp_f32 v{u+1}, v{u+1}"]
            for z,cs,t,u,h in P: o.append(f"v_pk_fma_f32 {v(u,2)}, {v(u,2)}, {v(IR,2)}, {v(IR,2)} op_sel:[0,{t},{t}] op_sel_hi:[1,{t},{t}]")
            for z,cs,t,u,h in P: o+= [f"v_rcp_f32 v{u}, v{u}", f"v_rcp_f32 v{u+1}, v{u+1}"]
            for z,cs,t,u,h in P: o.append(f"v_pk_mul_f32 {v(z,2)}, {v(z,2)}, {v(u,2)}")
            if stats:
                for z,cs,t,u,h in P:
                    if c==0 and h==0:
                        o.append(f"v_pk_add_f32 {v(S2+2*t,2)}, {v(z,2)}, {v(z+2,2)}"); o.append(f"v_pk_mul_f32 {v(Q2+2*t,2)}, {v(z,2)}, {v(z,2)}")
                    else:
                        if c: o.append(f"v_pk_add_f32 {v(S2+2*t,2)}, {v(S2+2*t,2)}, {v(z,2)}")
                        o.append(f"v_pk_fma_f32 {v(Q2+2*t,2)}, {v(z,2)}, {v(z,2)}, {v(Q2+2*t,2)}")
        return o
    e(mix(gelu(True), sp_issue(0)))
    e(f"v_add_f32 v{t0}, v{S2}, v{S2+1}"); e(f"v_add_f32 v{t2}, v{S2+2}, v{S2+3}")
    e(f"v_add_f32 v{t1}, v{Q2}, v{Q2+1}"); e(f"v_add_f32 v{t3}, v{Q2+2}, v{Q2+3}")
    e(f"v_lshlrev_b32 v{t4}, 3, v{vG}"); e(f"v_lshrrev_b32 v{t4}, v{t4}, s{sNON}")
    e(f"v_permlane32_swap_b32 v{t0}, v{t2}"); e(f"v_permlane32_swap_b32 v{t1}, v{t3}")
    e(f"v_add_f32 v{t0}, v{t0}, v{t2}"); e(f"v_add_f32 v{t1}, v{t1}, v{t3}")
    e(f"v_lshlrev_b32 v{t5}, 2, v{vG}"); e(f"v_lshl_add_u32 v{t5}, v{vN}, 4, v{t5}")
    e(f"v_permlane16_swap_b32 v{t0}, v{t1}")
    e(f"s_lshl_b32 s{sT0}, s{sI}, 1"); e(f"s_add_u32 s{sT0}, s{sT0}, s{sSH}"); e(f"s_lshl_b32 s{sT0}, s{sT0}, 12"); e(f"s_add_u32 s{sT2}, s{sT0}, {STATS}")
    e(f"s_lshl_b32 s{sT0}, s{sJ}, 1"); e(f"s_add_u32 s{sT0}, s{sT0}, s{sFH}"); e(f"s_lshl_b32 s{sT0}, s{sT0}, 8"); e(f"s_add_u32 s{sT0}, s{sT0}, s{sT2}")
    e(f"v_add_f32 v{t0}, v{t0}, v{t1}")
    e(f"v_bfi_b32 v{t0}, s{sFF}, v{t4}, v{t0}")
    e(I(f"buffer_store_dword v{t0}, v{t5}, {srd(sWS)}, s{sT0} offen sc1","stat"))
    e(ts("statpub"))
    UA=SP; RR=SP+32; TR=SP+40; TI=SP+44; TN=SP+48
    def acc(uw,ri,t): return UA+((uw*2+ri)*2+t)*4
    vVS=V.a("vVS"); vZ=V.a("vZ"); vZ2=V.a("vZ2")
    fillD=[[f"v_lshlrev_b32 v{t0}, 4, v{vG}"]+[f"ds_bpermute_b32 v{RR+4*t+r}, v{t0}, v{RS+t} offset:{4*r}" for t in range(2) for r in range(4)]]
    fillD+=sp_issue(1)
    fillD+=[[f"v_permlane16_swap_b32 v{ZA+8*c+r}, v{ZA+8*c+4+r}" for r in range(2*h,2*h+2)] for c in range(3) for h in range(2)]
    fillD+=[[f"s_lshr_b32 s{sT0}, s{sR}, 1", f"s_bfe_u32 s{sT1}, s{sI}, 0x10002", f"s_lshl_b32 s{sT1}, s{sT1}, 1", f"s_xor_b32 s{sT0}, s{sT0}, s{sT1}", f"v_xor_b32 v{t1}, s{sT0}, v{vG}"],
            [f"v_lshlrev_b32 v{t1}, 4, v{t1}", f"v_mul_u32_u24 v{t2}, {VP}, v{vN}"],
            [f"s_lshr_b32 s{sT0}, s{sJ}, 1", f"s_lshl_b32 s{sT0}, s{sT0}, 6", f"s_add_u32 s{sT0}, s{sT0}, s{sZ}", f"s_lshl_b32 s{sT0}, s{sT0}, 2", f"s_add_u32 s{sT0}, s{sT0}, s{sR}",
             f"s_lshl_b32 s{sT0}, s{sT0}, 6", f"v_add3_u32 v{vVS}, v{t1}, v{t2}, s{sT0}"]]
    fillD+=[[f"v_lshrrev_b32 v{t1}, 5, v{vL}", f"s_lshl_b32 s{sT0}, s{sFH}, 1", f"v_add_u32 v{t1}, s{sT0}, v{t1}"],
            [f"s_bfe_u32 s{sT0}, s{sI}, 0x10001", f"v_lshl_add_u32 v{t2}, v{t1}, 1, s{sT0}", f"v_and_b32 v{t3}, 7, v{vL}"],
            [f"v_xor_b32 v{t2}, v{t2}, v{t3}", f"v_lshlrev_b32 v{t2}, 4, v{t2}"],
            [f"v_lshl_add_u32 v{t2}, v{t1}, 10, v{t2}", f"v_bfe_u32 v{t3}, v{vL}, 3, 2"],
            [f"v_mul_u32_u24 v{t3}, 98304, v{t3}", f"s_mul_i32 s{sT0}, s{sJ}, 393216", f"s_lshl_b32 s{sT1}, s{sSH}, 14", f"s_add_u32 s{sT0}, s{sT0}, s{sT1}",
             f"s_lshr_b32 s{sT1}, s{sI}, 3", f"s_lshl_b32 s{sT1}, s{sT1}, 12", f"s_add_u32 s{sT0}, s{sT0}, s{sT1}",
             f"s_and_b32 s{sT1}, s{sI}, 7", f"s_lshl_b32 s{sT1}, s{sT1}, 7", f"s_add_u32 s{sT0}, s{sT0}, s{sT1}", f"v_add3_u32 v{vZ}, v{t2}, v{t3}, s{sT0}"],
            [f"v_add_u32 v{t1}, 8, v{t1}", f"v_cmp_gt_u32 s[{sHM}:{sHM+1}], s{sNOCT}, v{t1}"],
            [f"v_mov_b32 v{t1}, {OOB}"], [f"v_cndmask_b32 v{vZ2}, v{t1}, v{vZ}, s[{sHM}:{sHM+1}]"]]
    fillD+=[f"v_mov_b32 v{t4}, s{sSIG}"]+sp_step(0)
    def fftv(var):
        o=[]; seen=set()
        tab={0:[((0,0),(0,1)),((1,0),(1,1)),((0,0),(0,1)),((1,0),(1,1))],
             1:[((0,0),(0,1)),((1,1),(0,0)),((1,0),(1,1)),((0,1),(1,0))],
             3:[((0,0),(0,1)),((0,1),(1,0)),((1,0),(1,1)),((1,1),(0,0))]}[var]
        for ks in range(16):
            D,k=divmod(ks,4)
            for which,base in ((0,aFC),(1,aFS)):
                uw,ri=tab[D][which]
                for t in range(2):
                    d=acc(uw,ri,t); o.append(mm(d, v(xf(ks,t),4), a(base+4*k,4), d not in seen)); seen.add(d)
        return o
    e(f"s_cmp_eq_u32 s{sR}, 1"); e("s_cbranch_scc1 L_f1"); e(f"s_cmp_eq_u32 s{sR}, 3"); e("s_cbranch_scc1 L_f3")
    e(Var([mix(fftv(0),fillD,0,60)+["s_nop 6","s_branch L_fj"], ["L_f1:"]+mix(fftv(1),fillD,0,60)+["s_nop 6","s_branch L_fj"], ["L_f3:"]+mix(fftv(3),fillD,0,60)+["s_nop 7"]]))
    e("L_fj:")
    for ri in range(2):
        for t in range(2):
            for h in range(2):
                u=acc(0,ri,t)+2*h; w_=acc(1,ri,t)+2*h
                e(f"v_pk_fma_f32 {v(u,2)}, {v(t4,2)}, {v(w_,2)}, {v(u,2)} op_sel_hi:[0,1,1]")
    for ri in range(2):
        for t in range(2):
            for h in range(2):
                u=acc(0,ri,t)+2*h; e(f"v_pk_mul_f32 {v(u,2)}, {v(u,2)}, {v(RR+4*t+2*h,2)}")
    for t in range(2):
        for h in range(2):
            u=acc(0,0,t)+2*h; e(f"v_cvt_pk_bf16_f32 v{TR+2*t+h}, v{u}, v{u+1}"); e(f"v_cvt_pk_bf16_f32 v{TN+2*t+h}, -v{u}, -v{u+1}")
            u=acc(0,1,t)+2*h; e(f"v_cvt_pk_bf16_f32 v{TI+2*t+h}, v{u}, v{u+1}")
    VA=SP+16
    for th in range(2):
        e(mm(VA+8*th, v(TR,4), a(aAC+4*th,4), True)); e(mm(VA+8*th+4, v(TI,4), a(aAC+4*th,4), True))
        e(mm(VA+8*th, v(TI,4), a(aAS+4*th,4), False)); e(mm(VA+8*th+4, v(TN,4), a(aAS+4*th,4), False))
    VK=SP+32
    for th in range(2):
        for r in range(4): e(f"v_cvt_pk_bf16_f32 v{VK+4*th+r}, v{VA+8*th+r}, v{VA+8*th+4+r}")
    e(ts("fft"))
    PL=SP; ZP=SP+16
    def spin(name, body_loads, check):
        o=[f"s_mov_b32 s{sCNT}, 0", f"L_{name}:"]+body_loads+["s_waitcnt vmcnt(0)", W("reset")]+check
        o+=["s_cmp_eq_u64 vcc, 0", f"s_cbranch_scc1 L_{name}_d", f"s_add_u32 s{sCNT}, s{sCNT}, 1", f"s_cmp_lt_u32 s{sCNT}, {SPIN}", f"s_cbranch_scc1 L_{name}", f"L_{name}_d:"]
        return o
    sn=[sNON,sN1,sN2,sN3]
    chk=[f"v_xor_b32 v{t0}, s{sNON}, v{PL}", f"v_xor_b32 v{t1}, s{sN1}, v{PL+1}"]
    chk+=[f"v_bitop3_b32 v{t0+k%2}, v{PL+k}, s{sn[k%4]}, v{t0+k%2} bitop3:0xbe" for k in range(2,16)]
    chk+=[f"v_bitop3_b32 v{t0}, v{t0}, v{t1}, s{sFF} bitop3:0xa8", f"v_cmp_ne_u32 vcc, 0, v{t0}"]
    e(spin("s1", [f"buffer_load_dwordx4 {v(PL+4*k,4)}, v{vL16}, {srd(sWS)}, s{sT2} offen offset:{1024*k} sc1" for k in range(4)], chk))
    e(ts("s1"))
    for h in range(2):
        e(f"v_pk_add_f32 {v(PL+2*h,2)}, {v(PL+2*h,2)}, {v(PL+4+2*h,2)}"); e(f"v_pk_add_f32 {v(PL+8+2*h,2)}, {v(PL+8+2*h,2)}, {v(PL+12+2*h,2)}")
    for h in range(2): e(f"v_pk_add_f32 {v(PL+2*h,2)}, {v(PL+2*h,2)}, {v(PL+8+2*h,2)}")
    e(f"v_permlane16_swap_b32 v{PL}, v{PL+2}"); e(f"v_permlane16_swap_b32 v{PL+1}, v{PL+3}")
    e(f"v_pk_add_f32 {v(PL+4,2)}, {v(PL,2)}, {v(PL+2,2)}"); e(f"v_pk_add_f32 {v(PL,2)}, {v(PL,2)}, {v(PL+2,2)}")
    e(f"v_permlane32_swap_b32 v{PL}, v{PL+4}"); e(f"v_permlane32_swap_b32 v{PL+1}, v{PL+5}")
    e(f"v_pk_add_f32 {v(PL,2)}, {v(PL,2)}, {v(PL+4,2)}")
    e(f"v_mul_f32 v{t0}, {fl(-1/688)}, v{PL}"); e(f"v_mul_f32 v{t1}, v{t0}, v{t0}"); e(f"v_sub_f32 v{t1}, {fl(1e-5)}, v{t1}")
    e(f"v_fmamk_f32 v{t1}, v{PL+1}, {fl(1/688)}, v{t1}"); e(f"v_max_f32 v{t1}, {fl(1e-5)}, v{t1}")
    e(f"v_rsq_f32 v{t2}, v{t1}"); e(f"v_mul_f32 v{t3}, v{t0}, v{t2}")
    for c in range(3):
        for k in range(4):
            z=ZA+8*c+2*k; e(f"v_pk_fma_f32 {v(z,2)}, {v(z,2)}, {v(t2,2)}, {v(t2,2)} op_sel:[0,0,1] op_sel_hi:[1,0,1]")
        for k in range(4):
            z=ZA+8*c+2*k; e(f"v_cvt_pk_bf16_f32 v{ZP+4*c+k}, v{z}, v{z+1}")
        e(f"s_mov_b32 s{sT3}, {Z2N+c*32768}")
        e(I(f"buffer_store_dwordx4 {v(ZP+4*c,4)}, v{vZ2 if c==2 else vZ}, {srd(sWS)}, s{sT3} offen sc1","z2n"))
    for th in range(2):
        e(f"s_mov_b32 s{sT3}, {VB+th*16*VP}")
        e(I(f"buffer_store_dwordx4 {v(VK+4*th,4)}, v{vVS}, {srd(sWS)}, s{sT3} offen sc1","z2n"))
    e(ts("z2npub"))
    V.f("vVS","vZ","vZ2")
    vFO=V.a("vFO"); vNV=V.a("vNV"); vBT=V.a("vBT",2)
    e(f"v_lshlrev_b32 v{t0}, 2, v0"); e(f"v_cmp_gt_u32 vcc, 32, v0"); e(f"v_mov_b32 v{t1}, {OOB}"); e(f"v_mov_b32 v{vNV}, s{sNON}"); e(f"v_cndmask_b32 v{vFO}, v{t1}, v{t0}, vcc")
    e(f"v_and_b32 v{t0}, 31, v{vL}"); e(f"v_lshlrev_b32 v{t0}, 7, v{t0}"); e(f"s_lshl_b32 s{sT0}, s{sZ}, 1")
    e(f"buffer_load_ushort v{vBT}, v{t0}, {srd(sBSP)}, s{sT0} offen")
    e("s_barrier")
    FLAGKS=8
    spq={1:1, 4:2, 7:3, 10:4, 13:5}
    for ks in range(17):
        kk,kp=divmod(ks,2); pre=[]; fill=[]
        if ks<16: fill=rd_w(8+kk,kp)
        if ks==4:
            pre=[W("lg0"),"s_barrier"]; fill+=issue_w(14)+issue_w(15)
        if ks==12: pre=[W("vm","st15"),"s_barrier"]
        if ks==FLAGKS:
            pre=[W("vm","z2n"),"s_barrier", f"s_lshl_b32 s{sT0}, s{sJ}, 5", f"s_add_u32 s{sT0}, s{sT0}, s{sI}", f"s_lshl_b32 s{sT0}, s{sT0}, 7", f"s_add_u32 s{sT0}, s{sT0}, {F2}",
                 f"buffer_store_dword v{vNV}, v{vFO}, {srd(sWS)}, s{sT0} offen sc1"]+ts("s2flag")
        if ks in spq: fill+=sp_step(spq[ks])[:8]
        if ks-1 in spq: fill+=sp_step(spq[ks-1])[8:]
        e(pre)
        if ks==0: e(fill)
        else: e(mix(mf_z(ks-1,False), fill))
    V.f("XF","wd0","wd1","wd2","wa0","wa1","ONES")
    e(ts("z1gemm"))
    Z1=V.a("Z1",12)
    e(mix(gelu(False), sp_step(6)+sp_step(7)))
    for c in range(3):
        for t in range(2):
            for h in range(2):
                z=ZA+(c*2+t)*4+2*h; e(f"v_cvt_pk_bf16_f32 v{Z1+4*c+2*t+h}, v{z}, v{z+1}")
    for c in range(3):
        for h in range(2): e(f"v_permlane16_swap_b32 v{Z1+4*c+h}, v{Z1+4*c+2+h}")
    V.f("ZA","SP","NM","K1","K0","IR","RS","vsp","ra0","ra1","ra2","ra3")
    e(f"v_lshlrev_b32 v{vBT}, 16, v{vBT}")
    za=[V.a(f"za{k}") for k in range(4)]; vZL=V.a("vZL"); vRW=V.a("vRW"); vRR=V.a("vRR"); vH=V.a("vH"); vH2=V.a("vH2")
    e(f"v_and_b32 v{t0}, 1, v{vG}"); e(f"v_and_b32 v{t1}, 1, v{vL}"); e(f"v_lshl_add_u32 v{t0}, v{t0}, 1, v{t1}")
    e(f"v_mul_u32_u24 v{t0}, {1024+32}, v{t0}")
    e(f"v_lshrrev_b32 v{t1}, 2, v{vN}"); e(f"v_lshl_add_u32 v{t0}, v{t1}, 7, v{t0}")
    e(f"v_lshrrev_b32 v{t1}, 3, v{vN}"); e(f"v_lshrrev_b32 v{t2}, 1, v{vG}"); e(f"v_xor_b32 v{t1}, v{t1}, v{t2}"); e(f"v_lshl_add_u32 v{t0}, v{t1}, 4, v{t0}")
    e(f"v_bfe_u32 v{t1}, v{vL}, 1, 1"); e(f"v_lshl_add_u32 v{t0}, v{t1}, 3, v{t0}")
    e(f"s_lshl_b32 s{sRM}, s{sW}, 14"); e(f"s_add_u32 s{sRM}, s{sRM}, {RING}"); e(f"v_add_u32 v{za[0]}, s{sRM}, v{t0}")
    for k in range(1,4): e(f"v_xor_b32 v{za[k]}, {32*k}, v{za[0]}")
    e(f"s_lshl_b32 s{sT0}, s{sJ}, 2"); e(f"s_add_u32 s{sT0}, s{sT0}, s{sW}"); e(f"s_mul_i32 s{sT0}, s{sT0}, 98304"); e(f"v_add_u32 v{vZL}, s{sT0}, v{vL16}")
    e(f"s_lshl_b32 s{sT0}, s{sW}, 11"); e(f"v_add_u32 v{vRW}, s{sT0}, v{vL16}"); e(f"s_lshl_b32 s{sT0}, s{sW}, 13"); e(f"v_add_u32 v{vRR}, s{sT0}, v{vL16}")
    e(f"v_and_b32 v{t0}, 1, v{vG}"); e(f"v_lshlrev_b32 v{t0}, 13, v{t0}"); e(f"v_lshl_add_u32 v{t0}, v{vN}, 4, v{t0}")
    e(f"v_lshrrev_b32 v{t1}, 1, v{vG}"); e(f"v_lshl_add_u32 v{t0}, v{t1}, 8, v{t0}")
    e(f"s_mul_i32 s{sT0}, s{sI}, 98304"); e(f"s_lshl_b32 s{sT1}, s{sSH}, 14"); e(f"s_add_u32 s{sT0}, s{sT0}, s{sT1}"); e(f"s_lshl_b32 s{sT1}, s{sFH}, 9"); e(f"s_add_u32 s{sT0}, s{sT0}, s{sT1}")
    e(f"s_lshl_b32 s{sT1}, s{sJ}, 10"); e(f"s_add_u32 s{sT1}, s{sT1}, s{sT0}"); e(f"v_add_u32 v{vH}, s{sT1}, v{t0}")
    e(f"s_mul_i32 s{sT1}, s{sJ}, 768"); e(f"s_min_u32 s{sT1}, s{sT1}, {20*256}"); e(f"s_add_u32 s{sT1}, s{sT1}, s{sT0}"); e(f"v_add_u32 v{t0}, s{sT1}, v{t0}")
    e(f"v_mov_b32 v{t1}, {OOB}"); e(f"v_cndmask_b32 v{vH2}, v{t1}, v{t0}, s[{sHM}:{sHM+1}]")
    vP8=V.a("vP8")
    e(f"v_and_b32 v{t0}, 7, v{vL}"); e(f"v_lshlrev_b32 v{vP8}, 7, v{t0}")
    e(f"s_lshl_b32 s{sT0}, s{sJ}, 2"); e(f"s_add_u32 s{sT0}, s{sT0}, s{sW}"); e(f"s_lshl_b32 s{sT0}, s{sT0}, 10"); e(f"s_add_u32 s{sT2}, s{sT0}, {F2}")
    e(ts("z1done"))
    e(spin("s2", [f"buffer_load_dword v{t0}, v{vP8}, {srd(sWS)}, s{sT2} offen sc1"], [f"v_cmp_ne_u32 vcc, s{sNON}, v{t0}"]))
    e(W("lg0")); e("s_barrier")
    e(ts("s2"))
    AC=V.a("AC",64); ZF=V.a("ZF",16); RD=V.a("RD",32); HP=V.a("HP",4); HT=V.a("HT",8)
    vWO=V.a("vWO"); wo=[[V.a(f"wo{r}{p}") for p in range(2)] for r in range(2)]
    def zdma(g,o):
        if g>=24 or (g>=16 and o==3): return []
        r=[]
        if o==0: r=[f"s_add_u32 m0, s{sRM}, {(g%4)*4096}", f"s_mov_b32 s{sT3}, {Z2N+g*4096}"]
        return r+[I(f"buffer_load_dwordx4 v{vZL}, {srd(sWS)}, s{sT3} offen offset:{o*1024} sc1 lds", f"z{g}")]
    def zrd(x):
        g,k=divmod(x,4); b=ZF+4*(x%4)
        r=[W("vm",f"z{g}")] if k==0 else []
        return [r+[f"ds_read_b64_tr_b16 {v(b,2)}, v{za[k]} offset:{(g%4)*4096}"], f"ds_read_b64_tr_b16 {v(b+2,2)}, v{za[k]} offset:{(g%4)*4096+512}"]
    def wo_dma(kap):
        r=[]
        m=(WO1+4*kap*1088) if kap<15 else (WO2+4*(kap-15)*1088)
        r.append(f"s_add_u32 m0, s{sWM}, {m}")
        if kap<16:
            r.append(f"s_mov_b32 s{sT3}, {(f0(kap%8)+32*(kap//8))*1024}")
        elif kap<21:
            k=kap-16
            r+=[f"s_add_u32 s{sT3}, s{sW}, {4*k}", f"s_mul_i32 s{sT3}, s{sT3}, 43", f"s_lshr_b32 s{sT3}, s{sT3}, 7", f"s_lshl_b32 s{sT3}, s{sT3}, 16", f"s_add_u32 s{sT3}, s{sT3}, {(32*k+64)*1024}"]
        else: r.append(f"s_mov_b32 s{sT3}, {672*1024}")
        return r+[I(f"buffer_load_dwordx4 v{vWO}, {srd(sWOUT)}, s{sT3} offen {NT} lds", f"wo{kap}")]
    woinit=[[f"s_mul_i32 s{sWM}, s{sW}, 1088", f"v_lshrrev_b32 v{t0}, 3, v{vL}", f"v_and_b32 v{t1}, 2, v{t0}"],
            [f"v_and_b32 v{t2}, 7, v{vL}", f"v_xor_b32 v{t1}, v{t1}, v{t2}"],
            [f"v_lshlrev_b32 v{t1}, 4, v{t1}", f"v_lshl_add_u32 v{t1}, v{t0}, 10, v{t1}"],
            [f"s_lshl_b32 s{sT0}, s{sW}, 6", f"s_add_u32 s{sT0}, s{sT0}, s{sJ}", f"s_lshl_b32 s{sT0}, s{sT0}, 7", f"v_add_u32 v{vWO}, s{sT0}, v{t1}"],
            [f"v_mul_u32_u24 v{t0}, 1088, v{vG}", f"v_lshrrev_b32 v{t1}, 2, v{vN}"],
            [f"v_lshl_add_u32 v{t0}, v{t1}, 7, v{t0}", f"v_and_b32 v{t1}, 3, v{vL}"],
            [f"v_lshl_add_u32 v{t0}, v{t1}, 3, v{t0}", f"v_lshrrev_b32 v{t1}, 3, v{vN}"],
            [f"v_lshl_add_u32 v{t0}, v{t1}, 5, v{t0}", f"v_xor_b32 v{t1}, 32, v{t0}"],
            [f"v_add_u32 v{wo[0][0]}, {WO1}, v{t0}", f"v_add_u32 v{wo[0][1]}, {WO1}, v{t1}"],
            [f"v_add_u32 v{wo[1][0]}, {WO2}, v{t0}", f"v_add_u32 v{wo[1][1]}, {WO2}, v{t1}"]]
    def red_wr(c):
        return [I(f"ds_write_b128 v{vRW}, {v(AC+32*(c%2)+4*x,4)} offset:{(x//2)*8192+(x%2)*1024}", f"rw{c}") for x in range(8)]
    def red_rd(c):
        return [f"ds_read_b128 {v(RD+4*x,4)}, v{vRR} offset:{x*1024}" for x in range(8)]
    def red_alu(c, pk):
        o=[]
        if pk:
            for k in range(4): o.append(f"v_pk_add_f32 {v(RD+2*k,2)}, {v(RD+2*k,2)}, {v(vBT,2)} op_sel_hi:[1,0]")
            for s in range(1,4):
                for k in range(4): o.append(f"v_pk_add_f32 {v(RD+2*k,2)}, {v(RD+2*k,2)}, {v(RD+8*s+2*k,2)}")
            for k in range(4): o.append(f"v_pk_mul_f32 {v(RD+2*k,2)}, {v(RD+2*k,2)}, {v(HT+2*k,2)}")
        else:
            for k in range(8): o.append(f"v_add_f32 v{RD+k}, v{RD+k}, v{vBT}")
            for s in range(1,4):
                for k in range(8): o.append(f"v_add_f32 v{RD+k}, v{RD+k}, v{RD+8*s+k}")
            for k in range(8): o.append(f"v_mul_f32 v{RD+k}, v{RD+k}, v{HT+k}")
        for k in range(4): o.append(f"v_cvt_pk_bf16_f32 v{HP+k}, v{RD+2*k}, v{RD+2*k+1}")
        return o
    def z1_unp(c):
        return [x for k in range(4) for x in (f"v_lshlrev_b32 v{HT+2*k}, 16, v{Z1+4*c+k}", f"v_and_b32 v{HT+2*k+1}, 0xffff0000, v{Z1+4*c+k}")]
    def h_st(c):
        return [f"s_mov_b32 s{sT0}, {HB+c*32768}", I(f"buffer_store_dwordx4 {v(HP,4)}, v{vH2 if c==2 else vH}, {srd(sWS)}, s{sT0} offen sc1", f"h{c}")]
    def f3flag(cf):
        return [f"s_lshl_b32 s{sT0}, s{sI}, 4", f"s_add_u32 s{sT0}, s{sT0}, s{sJ}", f"s_lshl_b32 s{sT0}, s{sT0}, 7", f"s_add_u32 s{sT0}, s{sT0}, {F3+cf*1024}",
                f"buffer_store_dword v{vNV}, v{vFO}, {srd(sWS)}, s{sT0} offen sc1"]
    for g in range(3):
        for o in range(4): e(zdma(g,o))
    e(zrd(0)); e(zrd(1))
    ex={x:[] for x in range(96)}
    def spread(units, x0, per):
        for k,u in enumerate(units): ex[x0+k//per].append(u)
    spread(woinit,4,1)
    ex[2].append([f"s_cmp_eq_u32 s2, 0", f"s_cselect_b32 s{sT0}, 0, {OOB}", f"buffer_store_dword v{vNV}, v{vFO}, {srd(sWS)}, s{sT0} offen sc1"])
    for c in range(2):
        b=32*(c+1)
        spread(red_wr(c), b+1, 2); spread(z1_unp(c), b+5, 4)
        ex[b+6].insert(0,[W("lg",f"rw{c}"),"s_barrier"])
        spread(red_rd(c), b+7, 3); spread(red_alu(c,False), b+10, 5); ex[b+19].append(h_st(c))
        ex[b+31].append(["s_barrier"] if c==0 else [W("vm","h1"),"s_barrier"]+f3flag(0))
    spread([wo_dma(k) for k in range(12)], 84, 1)
    for x in range(96):
        g,k=divmod(x,4); c=g//8; first = x%32==0
        m=[]
        for tb in range(2):
            d=AC+32*(c%2)+16*tb
            m.append(f"v_mfma_f32_32x32x16_bf16 {v(d,16)}, {v(ZF+4*(x%4),4)}, {a(((k*2+tb)*8+g%8)*4,4)}, {'0' if first else v(d,16)}")
        r=zrd(x+2) if x+2<96 else [[],[]]
        xs=ex[x]; h=len(xs)//2
        e([r[0], r[1], m[0], zdma(g+3,k), xs[:h], m[1], xs[h:]])
    e(ts("p2"))
    V.f("ZF","za0","za1","za2","za3","vZL")
    e(z1_unp(2)); e(wo_dma(12)); e(red_wr(2)); e(W("lg0")); e("s_barrier"); e(red_rd(2)); e(wo_dma(13)); e(wo_dma(14)); e(red_alu(2,True)); e(h_st(2))
    e(ts("h2st"))
    V.f("AC","RD","HT","Z1","vRW","vRR","vH","vH2","vBT")
    for k in range(15,22): e(wo_dma(k))
    OA=V.a("OA",16); TW=V.a("TW",16); HF=V.a("HF",64); H2=V.a("H2",24); WR=V.a("WR",32); va=[V.a(f"va{k}") for k in range(4)]
    vPA=V.a("vPA"); vPV=V.a("vPV"); vHL=V.a("vHL"); vHL5=V.a("vHL5")
    sMI,sRHO,sVB=sXM,sSTM,sRM
    for k in range(8):
        e(f"v_lshlrev_b32 v{OA+2*k}, 16, v{RES+k}"); e(f"v_and_b32 v{OA+2*k+1}, 0xffff0000, v{RES+k}")
    e(f"s_cmp_ge_u32 s{sJ}, 4"); e(f"s_cselect_b32 s{sMI}, -1, 0"); e(f"s_and_b32 s{sT0}, s{sMI}, 0x80000000"); e(f"s_or_b32 s{sT0}, s{sT0}, {fl(1/2048)}")
    e(f"s_lshl_b32 s{sT1}, s{sFH}, 10"); e(f"s_add_u32 s{sT1}, s{sT1}, s{sZ}")
    e(f"v_lshl_add_u32 v{t0}, v{vN}, 6, s{sT1}"); e(f"v_cvt_f32_u32 v{t0}, v{t0}"); e(f"v_mul_f32 v{t0}, s{sT0}, v{t0}")
    e(f"v_lshlrev_b32 v{t1}, 2, v{vG}"); e(f"v_cvt_f32_u32 v{t1}, v{t1}"); e(f"v_mul_f32 v{t1}, v{t1}, v{t0}")
    for kv in range(4):
        for q in range(4):
            e(f"v_fmamk_f32 v{WR+q}, v{t0}, {fl(16*kv+q)}, v{t1}")
        for q in range(4): e(f"v_cos_f32 v{WR+4+q}, v{WR+q}"); e(f"v_sin_f32 v{WR+q}, v{WR+q}")
        for q in range(4): e(f"v_cvt_pk_bf16_f32 v{TW+4*kv+q}, v{WR+4+q}, v{WR+q}")
    e(f"s_xor_b32 s{sT0}, s{sI}, s{sMI}"); e(f"s_sub_u32 s{sT0}, s{sT0}, s{sMI}"); e(f"s_and_b32 s{sT0}, s{sT0}, 31"); e(f"s_mul_i32 s{sVB}, s{sT0}, {VP}"); e(f"s_add_u32 s{sVB}, s{sVB}, {VB}")
    e(f"s_xor_b32 s{sRHO}, s{sJ}, s{sMI}"); e(f"s_and_b32 s{sRHO}, s{sRHO}, 3")
    e(f"v_and_b32 v{t4}, 1, v{vG}"); e(f"v_lshlrev_b32 v{t4}, 1, v{t4}"); e(f"v_lshlrev_b32 v{t5}, 10, v{vG}"); e(f"v_add_u32 v{t5}, {VL}, v{t5}")
    for ct in range(4):
        e(f"v_add_u32 v{t0}, {16*ct}, v{vN}"); e(f"v_xor_b32 v{t0}, s{sMI}, v{t0}"); e(f"v_subrev_u32 v{t0}, s{sMI}, v{t0}")
        e(f"v_bfe_u32 v{t1}, v{t0}, 4, 2"); e(f"v_bfe_u32 v{t2}, v{t0}, 1, 1"); e(f"v_bitop3_b32 v{t1}, v{t1}, v{t2}, v{t4} bitop3:0x96")
        e(f"v_lshl_add_u32 v{t1}, v{t1}, 4, v{t5}"); e(f"v_and_b32 v{t2}, 3, v{t0}"); e(f"v_lshl_add_u32 v{t1}, v{t2}, 6, v{t1}")
        e(f"v_and_b32 v{t2}, 12, v{t0}"); e(f"v_add_u32 v{va[ct]}, v{t1}, v{t2}")
    e(f"v_bfe_u32 v{t0}, v{vN}, 2, 1"); e(f"v_lshlrev_b32 v{t0}, 5, v{t0}"); e(f"v_lshl_add_u32 v{t0}, v{vN}, 8, v{t0}"); e(f"s_lshl_b32 s{sT0}, s{sW}, 12"); e(f"v_add_u32 v{vPA}, s{sT0}, v{t0}")
    e(f"s_mul_i32 s{sT0}, s{sI}, 12"); e(f"s_add_u32 s{sT0}, s{sT0}, s{sW}"); e(f"s_lshl_b32 s{sT0}, s{sT0}, 13"); e(f"v_add_u32 v{vHL}, s{sT0}, v{vL16}")
    e(f"v_cmp_gt_u32 vcc, 32, v{vL}"); e(f"v_mov_b32 v{t1}, {OOB}"); e(f"v_cndmask_b32 v{vHL5}, v{t1}, v{vHL}, vcc")
    e(f"s_lshl_b32 s{sT2}, s{sI}, 11"); e(f"s_add_u32 s{sT2}, s{sT2}, {F3}")
    e(W("vm","h2")); e("s_barrier"); e(f3flag(1))
    e(ts("c2flag"))
    e(spin("s3a", [f"buffer_load_dword v{t0}, v{vP8}, {srd(sWS)}, s{sT2} offen sc1"], [f"v_cmp_ne_u32 vcc, s{sNON}, v{t0}"]))
    e(ts("s3a"))
    e(f"s_lshl_b32 s{sT0}, s{sRHO}, 2"); e(f"s_add_u32 s{sT0}, s{sT0}, s{sW}"); e(f"s_lshl_b32 s{sT0}, s{sT0}, 12"); e(f"s_add_u32 s{sT0}, s{sT0}, s{sVB}")
    e(f"s_lshl_b32 s{sT1}, s{sW}, 12"); e(f"s_add_u32 m0, s{sT1}, {VL}")
    for k in range(4): e(I(f"buffer_load_dwordx4 v{vL16}, {srd(sWS)}, s{sT0} offen offset:{1024*k} sc1 lds","v"))
    e(f"s_sub_u32 s{sT0}, s{sRHO}, s{sMI}"); e(f"s_and_b32 s{sT0}, s{sT0}, 3"); e(f"s_lshl_b32 s{sT0}, s{sT0}, 14"); e(f"s_add_u32 s{sT0}, s{sT0}, s{sVB}")
    e(f"s_cmp_eq_u32 s{sJ}, 0"); e(f"s_cselect_b32 s{sT0}, {OOB}, s{sT0}")
    e(f"buffer_load_dword v{vPV}, v{vPA}, {srd(sWS)}, s{sT0} offen sc1")
    for kap in range(16):
        if kap%4==0: e(f"s_mov_b32 s{sT3}, {HB+(kap//8)*32768+(kap%8)*1024}")
        e(f"buffer_load_dwordx4 {v(HF+4*kap,4)}, v{vHL}, {srd(sWS)}, s{sT3} offen offset:{(kap%4)*1024} sc1")
    e(f"v_add_u32 v{vPA}, {VL}, v{vPA}")
    e(f"ds_write_b32 v{vPA}, v{vPV}")
    e(W("lg0")); e("s_barrier")
    def wrd(kap, dst):
        rg=0 if kap<15 else 1; ko=(kap if kap<15 else kap-15)*4352
        return [f"ds_read_b64_tr_b16 {dst(ct*4+2*r,2)}, v{wo[rg][ct&1]} offset:{ko+r*512+(ct>>1)*64}" for ct in range(4) for r in range(2)]
    def vrd(kv,dst):
        return [f"ds_read2st64_b32 {dst(ct*4+2*r,2)}, v{va[ct]} offset0:{16*kv+2*r} offset1:{16*kv+2*r+1}" for ct in range(4) for r in range(2)]
    steps=[("v",k) for k in range(4)]+[("w",k) for k in range(16)]
    def rds(n):
        ty,k=steps[n]; d=lambda o,c: v(WR+16*(n%2)+o,c)
        return vrd(k,d) if ty=="v" else wrd(k,d)
    e(rds(0))
    for n,(ty,k) in enumerate(steps):
        B = v(TW+4*k,4) if ty=="v" else v(HF+4*k,4)
        m=[mm(OA+4*ct, v(WR+16*(n%2)+4*ct,4), B, False) for ct in range(4)]
        e(mix(m, rds(n+1) if n+1<len(steps) else []))
    for k in range(6): e(wrd(16+k, lambda o,c: a(16*k+o,c)))
    vTW=V.a("vTW"); vTR=V.a("vTR"); vO=V.a("vO")
    e(f"s_mul_i32 s{sT0}, s{sW}, 2304"); e(f"s_add_u32 s{sT0}, s{sT0}, {TRB}")
    e(f"v_mul_u32_u24 v{t0}, 144, v{vN}"); e(f"v_lshl_add_u32 v{t0}, v{vG}, 3, v{t0}"); e(f"v_add_u32 v{vTW}, s{sT0}, v{t0}")
    e(f"v_lshrrev_b32 v{t0}, 3, v{vL}"); e(f"v_and_b32 v{t1}, 7, v{vL}"); e(f"v_lshlrev_b32 v{t1}, 4, v{t1}")
    e(f"v_mul_u32_u24 v{t2}, 144, v{t0}"); e(f"v_add3_u32 v{vTR}, v{t2}, v{t1}, s{sT0}")
    e(f"s_lshl_b32 s{sT0}, s{sFH}, 10"); e(f"s_add_u32 s{sT0}, s{sT0}, s{sZ}"); e(f"s_lshl_b32 s{sT0}, s{sT0}, 3"); e(f"s_add_u32 s{sT0}, s{sT0}, s{sJ}"); e(f"s_lshl_b32 s{sT0}, s{sT0}, 7")
    e(f"v_lshlrev_b32 v{t0}, 16, v{t0}"); e(f"v_add3_u32 v{vO}, v{t0}, v{t1}, s{sT0}")
    e(ts("g3a"))
    e(spin("s3b", [f"buffer_load_dword v{t0}, v{vP8}, {srd(sWS)}, s{sT2} offen offset:1024 sc1"], [f"v_cmp_ne_u32 vcc, s{sNON}, v{t0}"]))
    e(ts("s3b"))
    for k in range(6):
        if k%4==0: e(f"s_mov_b32 s{sT3}, {HB+2*32768+k*1024}")
        e(f"buffer_load_dwordx4 {v(H2+4*k,4)}, v{vHL5 if k==5 else vHL}, {srd(sWS)}, s{sT3} offen offset:{(k%4)*1024} sc1")
    for k in range(6):
        for ct in range(4): e(mm(OA+4*ct, a(16*k+4*ct,4), v(H2+4*k,4), False))
    for ct in range(4):
        for h in range(2): e(f"v_cvt_pk_bf16_f32 v{WR+2*ct+h}, v{OA+4*ct+2*h}, v{OA+4*ct+2*h+1}")
        e(f"ds_write_b64 v{vTW}, {v(WR+2*ct,2)} offset:{32*ct}")
    e(f"s_mov_b32 s{sT3}, {8*65536}")
    for p in range(2): e(f"ds_read_b128 {v(WR+8+4*p,4)}, v{vTR} offset:{1152*p}")
    e(f"buffer_store_dwordx4 {v(WR+8,4)}, v{vO}, {srd(sOUT)}, 0 offen")
    e(f"buffer_store_dwordx4 {v(WR+12,4)}, v{vO}, {srd(sOUT)}, s{sT3} offen")
    if DIAGON:
        e(W("vm0")); e(ts("end"))
        e(f"v_mov_b32 v{t0}, 0")
        for k in range(nts[0]): e(f"v_writelane_b32 v{t0}, s{sTS+2*k}, {k}")
        e(f"s_lshl_b32 s{sT0}, s2, 2"); e(f"s_add_u32 s{sT0}, s{sT0}, s{sW}"); e(f"s_lshl_b32 s{sT0}, s{sT0}, 8"); e(f"s_add_u32 s{sT0}, s{sT0}, {DIAG}")
        e(f"v_lshlrev_b32 v{t1}, 2, v{vL}")
        e(f"buffer_store_dword v{t0}, v{t1}, {srd(sWS)}, s{sT0} offen")
    e("L_end:"); e("s_endpgm")
    st=St(); out=[]; run(C,st,out)
    ref=open("stub.txt").read()
    head=ref[:ref.index(NAME+":")].replace("grid=(4096,1,1) block=(256,1,1) lds=0","grid=(256,1,1) block=(256,1,1) lds=163840")
    tail=ref[ref.index(".section .rodata"):].replace("next_free_vgpr 256","next_free_vgpr 512")
    body="\n".join(x if x.endswith(":") else "    "+x for x in out)
    info=dict(n=len(out), maxvm=st.maxvm, nops=st.nops, peak=V.peak, ts=tsn)
    return head+NAME+":\n"+body+"\n"+tail, info

if __name__=="__main__":
    kw={}
    for x in sys.argv[2:]:
        k,val=x.split("="); kw[k]=eval(val)
    s,info=gen(**kw); open(sys.argv[1],"w").write(s); print(info)
```

```python
import sys, struct, math
from fw import *
NAME="parallel_sum__spectral_fnet__mixer_gmlp__prompt_kernel"
def fl(x): return "0x%08x" % struct.unpack("<I", struct.pack("<f", x))[0]
F2=0x1000; F3=0x80000; STATS=0x40000; Z2N=0x100000; VB=0x400000; VP=65536+256; HB=0x700000; DIAG=0xA00000; WSSZ=0xB00000
OOB=0x7ff00000
WB=0; XB=73728; STG=73728; STGW=17408; RED=114688; VL=65536; TRB=114688
sX,sWIN,sWSP,sWOUT,sOUT,sWS,sBSP = 8,12,16,20,24,28,32
sI,sJ,sW,sSH,sFH,sF0,sNOCT,sNON,sR,sXM,sWM,sT0,sT1,sT2,sT3,sSIG,sCNT,sSTM,sRM,sZ = range(36,56)
sN1,sN2,sN3,sFF,sHM = 56,57,58,59,60
sMA,sMB = 62,64
sROT,sKX,sKW = 3,4,5
sTS=66
def srd(b): return f"s[{b}:{b+3}]"
def v(b,k=1): return f"v{b}" if k==1 else f"v[{b}:{b+k-1}]"
def a(b,k=1): return f"a{b}" if k==1 else f"a[{b}:{b+k-1}]"
def f0(j): return 88*j - (8 if j==7 else 0)

def gen(MAPB=2, NT="", DIAGON=False, SPIN=20000, PF=True, PRE=3, DBG=None, ROT=True, NS=7, NP=5, GAP=(0,0,0), RW=1, FX=(111,175), PX=(137,168), VR=.5, FN=5, PN=15, WL=1, CN=4, P2S=False, IST=False, IFR=0.8, BARS=(0,1,2,3,4,5,6,7)):
    V=Alloc(256); C=[]; e=C.append
    nts=[0]; tsn=[]; SLOW=[]
    def ts(name):
        if not DIAGON: return []
        k=nts[0]; nts[0]+=1; tsn.append(name); assert k<33
        return [W("lg0"), f"s_memtime s[6:7]", "s_waitcnt lgkmcnt(0)", f"s_mov_b32 s{sTS+1+k}, s6"]
    V.at("tid",0,1)
    XF=V.at("XF",128,128)
    e("s_cmp_ge_u32 s2, 256"); e("s_cbranch_scc1 L_end")
    for s,o in ((sX,0),(sWIN,48),(sWS,96),(sWSP,56),(sBSP,64),(sWOUT,72),(sOUT,80)):
        e(f"s_load_dwordx2 s[{s}:{s+1}], s[0:1], {o}")
    if DIAGON:
        e(f"s_memtime s[{sTS}:{sTS+1}]"); nts[0]=1; tsn.append("start")
        e("s_memrealtime s[100:101]")
    vL=V.a("L"); vN=V.a("n"); vG=V.a("g"); vL16=V.a("L16")
    t0=V.a("t0",2); t1=t0+1; t2=V.a("t2",2); t3=t2+1; t4=V.a("t4",2); t5=t4+1; t6=V.a("t6",2); t7=t6+1
    e(f"v_lshrrev_b32 v{t0}, 6, v0")
    e(f"v_and_b32 v{vL}, 63, v0")
    e(f"v_readfirstlane_b32 s{sW}, v{t0}")
    if MAPB==2:
        e(f"s_bfe_u32 s{sT0}, s2, 0x20001"); e(f"s_lshl_b32 s{sT0}, s{sT0}, 3")
        e(f"s_lshr_b32 s{sT1}, s2, 5"); e(f"s_add_u32 s{sI}, s{sT0}, s{sT1}")
        e(f"s_and_b32 s{sT0}, s2, 1"); e(f"s_lshl_b32 s{sT0}, s{sT0}, 2")
        e(f"s_bfe_u32 s{sT1}, s2, 0x20003"); e(f"s_add_u32 s{sJ}, s{sT0}, s{sT1}")
    else:
        e(f"s_and_b32 s{sT0}, s2, 7"); e(f"s_lshl_b32 s{sT0}, s{sT0}, 2")
        e(f"s_lshr_b32 s{sT1}, s2, 6"); e(f"s_add_u32 s{sI}, s{sT0}, s{sT1}")
        e(f"s_bfe_u32 s{sJ}, s2, 0x30003")
    e(f"v_and_b32 v{vN}, 15, v0"); e(f"v_bfe_u32 v{vG}, v0, 4, 2"); e(f"v_lshlrev_b32 v{vL16}, 4, v{vL}")
    e(f"s_lshr_b32 s{sSH}, s{sW}, 1"); e(f"s_and_b32 s{sFH}, s{sW}, 1")
    e(f"s_mul_i32 s{sF0}, s{sJ}, 88"); e(f"s_cmp_eq_u32 s{sJ}, 7"); e(f"s_cselect_b32 s{sT0}, 8, 0"); e(f"s_sub_u32 s{sF0}, s{sF0}, s{sT0}")
    e(f"s_cmp_lt_u32 s{sJ}, 6"); e(f"s_cselect_b32 s{sNOCT}, 11, 10")
    for s,n in ((sX,2097152),(sWIN,512*2752),(sWS,WSSZ),(sWSP,8388608),(sBSP,4096),(sWOUT,688*1024),(sOUT,2097152)):
        e(f"s_mov_b32 s{s+2}, {n}"); e(f"s_mov_b32 s{s+3}, 0x20000")
    if ROT:
        if MAPB==2: e(f"s_lshl_b32 s{sROT}, s{sJ}, 1"); e(f"s_add_u32 s{sROT}, s{sROT}, s{sI}")
        else: e(f"s_lshl_b32 s{sROT}, s{sI}, 1"); e(f"s_add_u32 s{sROT}, s{sROT}, s{sJ}")
        e(f"s_and_b32 s{sROT}, s{sROT}, 7")
    else: e(f"s_mov_b32 s{sROT}, 0")
    xd0=V.a("xd0"); xd1=V.a("xd1")
    e(f"s_lshl_b32 s{sT0}, s{sFH}, 10"); e(f"s_lshl_b32 s{sT1}, s{sSH}, 5"); e(f"s_add_u32 s{sZ}, s{sT1}, s{sI}")
    e(f"s_add_u32 s{sT0}, s{sT0}, s{sZ}"); e(f"s_lshl_b32 s{sT2}, s{sT0}, 10")
    e(f"v_lshrrev_b32 v{t0}, 3, v{vL}"); e(f"v_and_b32 v{t1}, 7, v{vL}"); e(f"v_xor_b32 v{t1}, v{t1}, v{vG}")
    e(f"v_lshlrev_b32 v{t1}, 4, v{t1}"); e(f"v_lshl_add_u32 v{t1}, v{t0}, 16, v{t1}"); e(f"v_add_u32 v{xd0}, s{sT2}, v{t1}")
    e(f"v_xor_b32 v{xd1}, 64, v{xd0}"); e(f"v_add_u32 v{xd1}, {8*65536-1024}, v{xd1}")
    e(f"s_lshl_b32 s{sXM}, s{sW}, 11"); e(f"s_add_u32 s{sXM}, s{sXM}, {XB}")
    e(f"s_mul_i32 s{sWM}, s{sW}, 3072")
    wd=[V.a(f"wd{q}") for q in range(3)]
    e(f"s_mul_i32 s{sT0}, s{sW}, {16*2752}"); e(f"s_lshl_b32 s{sT1}, s{sF0}, 1"); e(f"s_add_u32 s{sT0}, s{sT0}, s{sT1}")
    e(f"v_mov_b32 v{t4}, {OOB}")
    for q in range(3):
        if q: e(f"v_add_u32 v{t0}, {64*q}, v{vL}")
        idx = t0 if q else vL
        e(f"v_mul_u32_u24 v{t1}, 171, v{idx}"); e(f"v_lshrrev_b32 v{t1}, 11, v{t1}")
        e(f"v_mad_i32_i24 v{t2}, v{t1}, -12, v{idx}")
        if q==1:
            e(f"v_lshrrev_b32 v{t3}, 2, v{t1}"); e(f"v_and_b32 v{t3}, 2, v{t3}"); e(f"v_xor_b32 v{t2}, v{t2}, v{t3}")
        if q==2: e(f"v_xor_b32 v{t2}, 2, v{t2}")
        e(f"v_cmp_gt_u32 vcc, s{sNOCT}, v{t2}")
        e(f"v_mul_u32_u24 v{t1}, 2752, v{t1}"); e(f"v_lshl_add_u32 v{t1}, v{t2}, 4, v{t1}")
        if q: e(f"s_sub_u32 s{sT0}, s{sT0}, 1024")
        e(f"v_add_u32 v{t1}, s{sT0}, v{t1}")
        e(f"v_cndmask_b32 v{wd[q]}, v{t4}, v{t1}, vcc")
    e("s_waitcnt lgkmcnt(0)")
    e(ts("karg"))
    def issue_x(kk):
        return [[f"s_add_u32 m0, s{sXM}, {kk*8192}", f"s_add_u32 s{sKX}, s{sROT}, {kk}", f"s_and_b32 s{sKX}, s{sKX}, 7", f"s_lshl_b32 s{sKX}, s{sKX}, 7",
                 I(f"buffer_load_dwordx4 v{xd0}, {srd(sX)}, s{sKX} offen {NT} lds", f"st{kk}")],
                I(f"buffer_load_dwordx4 v{xd1}, {srd(sX)}, s{sKX} offen offset:1024 {NT} lds", f"st{kk}")]
    def issue_w(q):
        return [[f"s_add_u32 m0, s{sWM}, {WB+(q%6)*12288}", f"s_add_u32 s{sKW}, s{sROT}, {q%8}", f"s_and_b32 s{sKW}, s{sKW}, 7", f"s_mul_i32 s{sKW}, s{sKW}, {64*2752}"]+([f"s_add_u32 s{sKW}, s{sKW}, 1376"] if q<8 else [])+
                [I(f"buffer_load_dwordx4 v{wd[0]}, {srd(sWIN)}, s{sKW} offen {NT} lds", f"st{q}")],
                I(f"buffer_load_dwordx4 v{wd[1]}, {srd(sWIN)}, s{sKW} offen offset:1024 {NT} lds", f"st{q}"),
                I(f"buffer_load_dwordx4 v{wd[2]}, {srd(sWIN)}, s{sKW} offen offset:2048 {NT} lds", f"st{q}")]
    dmas=[]; vNV=V.a('vNV')
    for kk in range(PRE):
        dmas+=issue_x(kk)+issue_w(kk)
        if IST: dmas.append(ts(f"d{kk}"))
        if kk==PRE-1: dmas.append(f"buffer_load_dword v{vNV}, off, {srd(sWS)}, 0 sc1")
        if kk==0 and PF:
            dmas.append([f"s_getpc_b64 s[6:7]", "L_pc:", f"s_lshr_b32 s{sT3}, s2, 3", f"s_mul_i32 s{sT3}, s{sT3}, 1280", f"v_lshrrev_b32 v{t6}, 4, v0", f"v_min_u32 v{t6}, 9, v{t6}", f"v_lshl_add_u32 v{t6}, v{t6}, 7, s{sT3}", f"v_min_u32 v{t6}, L_end-L_pc, v{t6}", f"global_load_dword v{t7}, v{t6}, s[6:7]"])
    C0=C; C=[]; e=C.append
    xa=[V.a("xa0"),V.a("xa1")]; wa=[V.a("wa0"),V.a("wa1")]
    e(f"v_lshrrev_b32 v{t0}, 1, v{vN}"); e(f"v_xor_b32 v{t0}, v{t0}, v{vG}"); e(f"v_lshlrev_b32 v{t0}, 4, v{t0}")
    e(f"v_lshl_add_u32 v{t0}, v{vN}, 7, v{t0}")
    e(f"s_lshl_b32 s{sT0}, s{sSH}, 12"); e(f"s_add_u32 s{sT0}, s{sT0}, {XB}")
    e(f"v_add_u32 v{xa[0]}, s{sT0}, v{t0}"); e(f"v_xor_b32 v{xa[1]}, 64, v{xa[0]}")
    e(f"v_lshrrev_b32 v{t0}, 2, v{vN}"); e(f"v_lshl_add_u32 v{t0}, v{vG}, 3, v{t0}"); e(f"v_mul_u32_u24 v{t0}, 192, v{t0}")
    e(f"v_and_b32 v{t1}, 1, v{vG}"); e(f"v_xor_b32 v{t1}, s{sFH}, v{t1}"); e(f"v_lshl_add_u32 v{t0}, v{t1}, 5, v{t0}")
    e(f"v_and_b32 v{t1}, 3, v{vL}"); e(f"v_lshl_add_u32 v{wa[0]}, v{t1}, 3, v{t0}"); e(f"v_add_u32 v{wa[1]}, 36864, v{wa[0]}")
    e(f"v_and_b32 v{t0}, 1, v{vL}"); e(f"v_cmp_ne_u32 s[{sMA}:{sMA+1}], 0, v{t0}")
    e(f"v_and_b32 v{t0}, 2, v{vL}"); e(f"v_cmp_ne_u32 s[{sMB}:{sMB+1}], 0, v{t0}")
    ONES=V.a("ONES",4)
    for k in range(4): e(f"v_mov_b32 v{ONES+k}, 0x3f803f80")
    SP=V.a("SP",52)
    aFC,aFS,aAC,aAS=192,208,224,232
    e(f"s_and_b32 s{sT0}, s{sJ}, 1"); e(f"s_lshl_b32 s{sT0}, s{sT0}, 1"); e(f"s_add_u32 s{sR}, s{sT0}, s{sFH}")
    e(f"s_lshr_b32 s{sT0}, s{sJ}, 1"); e(f"s_lshl_b32 s{sT0}, s{sT0}, 6"); e(f"s_add_u32 s{sT0}, s{sT0}, s{sR}")
    e(f"v_lshl_add_u32 v{t0}, v{vN}, 2, s{sT0}")
    e(f"v_subrev_u32 v{t0}, 1, v{t0}"); e(f"v_and_b32 v{t0}, 0xff, v{t0}"); e(f"v_add_u32 v{t0}, 1, v{t0}")
    e(f"v_cvt_f32_u32 v{t0}, v{t0}"); e(f"v_mul_f32 v{t0}, {fl(-1/512)}, v{t0}")
    e(f"s_lshl_b32 s{sT0}, s{sROT}, 6"); e(f"v_lshl_add_u32 v{t1}, v{vG}, 3, s{sT0}"); e(f"v_cvt_f32_u32 v{t1}, v{t1}"); e(f"v_mul_f32 v{t1}, v{t1}, v{t0}"); e(f"v_fract_f32 v{t1}, v{t1}")
    def sincos(step, base, k0, dc, ds, u):
        b=SP+8*(u%2)
        return [f"v_fmamk_f32 v{b}, v{step}, {fl(k0)}, v{base}", f"v_add_f32 v{b+1}, v{b}, v{step}",
                f"v_cos_f32 v{b+2}, v{b}", f"v_cos_f32 v{b+3}, v{b+1}", f"v_sin_f32 v{b+4}, v{b}", f"v_sin_f32 v{b+5}, v{b+1}",
                f"v_cvt_pk_bf16_f32 v{b+2}, v{b+2}, v{b+3}", f"v_accvgpr_write_b32 a{dc}, v{b+2}",
                f"v_cvt_pk_bf16_f32 v{b+4}, v{b+4}, v{b+5}", f"v_accvgpr_write_b32 a{ds}, v{b+4}"]
    for ks in range(4):
        for pr in range(4): e(sincos(t0,t1,32*ks+2*pr,aFC+4*ks+pr,aFS+4*ks+pr,pr))
    for th in range(2):
        e(f"v_add_u32 v{t0}, {16*th}, v{vN}"); e(f"v_cvt_f32_u32 v{t0}, v{t0}"); e(f"v_mul_f32 v{t0}, {fl(1/32)}, v{t0}")
        e(f"v_lshlrev_b32 v{t1}, 2, v{vG}"); e(f"v_cvt_f32_u32 v{t1}, v{t1}"); e(f"v_mul_f32 v{t1}, v{t1}, v{t0}")
        for pr in range(4): e(sincos(t0,t1,16*(pr//2)+2*(pr%2),aAC+4*th+pr,aAS+4*th+pr,pr))
    cons=flat(C); C=C0; e=C.append
    e(dmas[0]); e(mix(cons, dmas[1:], 0, int(len(cons)*IFR)))
    e(f"s_cmp_eq_u32 s{sR}, 0"); e(f"s_cselect_b32 s{sSIG}, 1.0, -1.0")
    e(ts("init"))
    ZA=V.a("ZA",24); CS=SP; SUM=SP+12; SQ=SP+20; WF=SP+28
    def xf(ks,t): return XF+(ks*2+t)*4
    def rd_x(ks):
        kk,kp=divmod(ks,2)
        return [f"ds_read_b128 {v(xf(ks,t),4)}, v{xa[kp]} offset:{kk*8192+t*2048}" for t in range(2)]
    def rd_w(q,kp):
        sl=q%6; b=WF+12*kp
        return [f"ds_read_b64_tr_b16 {v(b+4*c+2*r,2)}, v{wa[sl//3]} offset:{(sl%3)*12288+kp*6144+r*768+c*64}" for c in range(3) for r in range(2)]
    def mm(d,A,B,first): return f"v_mfma_f32_16x16x32_bf16 {v(d,4)}, {A}, {B}, {'0' if first else v(d,4)}"
    def mf_z(ks,stats):
        o=[]; b=WF+12*(ks%2); f=ks==0
        if stats:
            for t in range(2):
                o.append(mm(SQ+4*t, v(xf(ks,t),4), v(xf(ks,t),4), f)); o.append(mm(SUM+4*t, v(ONES,4), v(xf(ks,t),4), f))
        for c in range(3):
            for t in range(2): o.append(mm(ZA+(c*2+t)*4, v(b+4*c,4), v(xf(ks,t),4), f))
            o.append(mm(CS+4*c, v(b+4*c,4), v(ONES,4), f))
        return o
    RES=V.a("RES",8)
    pend=[]; nxt=PRE
    for ks in range(17):
        kk,kp=divmod(ks,2); pre=[]; fill=[]
        if ks<16:
            if kp==0 and kk in BARS:
                nb=min([b for b in BARS if b>kk]+[8])
                pre=[W("vm",f"st{nb-1}"), "s_barrier"]
                if kk==0: pre+=ts("st0")
                hi=min(nb+PRE, kk+5)
                while nxt<hi:
                    pend+=(issue_x(nxt) if nxt<8 else [])+issue_w(nxt); nxt+=1
                per=-(-len(pend)//(2*(nb-kk)))
            dm=pend[:per]; pend=pend[per:]
            rd=rd_x(ks)+rd_w(kk,kp)
            fill=mix(rd, dm, 2)
        if ks==15:
            fill+= [[f"v_lshrrev_b32 v{t0}, 1, v{vG}", f"v_lshrrev_b32 v{t1}, 1, v{vN}", f"v_xor_b32 v{t0}, v{t0}, v{t1}"],
                    [f"v_lshlrev_b32 v{t0}, 4, v{t0}", f"v_lshl_add_u32 v{t0}, v{vN}, 7, v{t0}", f"v_and_b32 v{t1}, 1, v{vG}"],
                    [f"v_lshl_add_u32 v{t0}, v{t1}, 3, v{t0}", f"s_sub_u32 s{sT0}, s{sJ}, s{sROT}", f"s_and_b32 s{sT0}, s{sT0}, 7", f"s_lshl_b32 s{sT0}, s{sT0}, 13", f"s_add_u32 s{sT0}, s{sT0}, s{sXM}", f"v_add_u32 v{t0}, s{sT0}, v{t0}"],
                    [f"ds_read_b64 {v(RES,2)}, v{t0}", f"v_xor_b32 v{t1}, 32, v{t0}", f"ds_read_b64 {v(RES+2,2)}, v{t1}"],
                    [f"v_xor_b32 v{t1}, 64, v{t0}", f"ds_read_b64 {v(RES+4,2)}, v{t1}", f"v_xor_b32 v{t1}, 0x60, v{t0}", f"ds_read_b64 {v(RES+6,2)}, v{t1}"]]
        if ks==16:
            pre=[W("lg0"), "s_barrier"]
            assert not pend
            fill=[issue for q in range(nxt,14) for issue in issue_w(q)]
        e(pre)
        if ks==0: e(fill)
        else: e(mix(mf_z(ks-1,True), fill))
    V.f("xd0","xd1","xa0","xa1")
    e(ts("z2gemm"))
    vsp=V.a("vsp"); ra=[V.a(f"ra{k}") for k in range(4)]
    spinit=[f"v_xor_b32 v{t0}, v{vN}, v{vG}", f"v_lshlrev_b32 v{t0}, 4, v{t0}", f"v_lshl_add_u32 v{t0}, v{vG}, 18, v{t0}",
            f"s_lshl_b32 s{sT0}, s{sZ}, 1", f"s_add_u32 s{sT0}, s{sT0}, s{sFH}", f"s_lshl_b32 s{sT0}, s{sT0}, 11", f"v_add_u32 v{vsp}, s{sT0}, v{t0}",
            f"s_mul_i32 s{sSTM}, s{sW}, {STGW}", f"s_add_u32 s{sSTM}, s{sSTM}, {STG}",
            f"v_bfe_u32 v{t0}, v{vL}, 2, 3", f"v_mul_u32_u24 v{t0}, 1088, v{t0}", f"v_and_b32 v{t1}, 3, v{vL}", f"v_lshl_add_u32 v{t0}, v{t1}, 8, v{t0}",
            f"v_lshl_add_u32 v{t0}, v{t1}, 4, v{t0}", f"v_lshrrev_b32 v{t1}, 5, v{vL}", f"v_lshl_add_u32 v{t0}, v{t1}, 7, v{t0}",
            f"v_add_u32 v{ra[0]}, s{sSTM}, v{t0}"]+[f"v_xor_b32 v{ra[k]}, {16*k}, v{ra[0]}" for k in range(1,4)]
    def sp_issue(q):
        kap,tb=divmod(q,2)
        return [[f"s_add_u32 m0, s{sSTM}, {(q%2)*8704+ins*1088}", f"s_mov_b32 s{sT3}, {ins*1048576+tb*1024+kap*256}",
                 I(f"buffer_load_dwordx4 v{vsp}, {srd(sWSP)}, s{sT3} offen {NT} lds", f"sp{q}")] for ins in range(8)]
    def sp_read(q):
        r=[I(f"ds_read_b128 {a((q*8+x)*4,4)}, v{ra[x%4]} offset:{(q%2)*8704+(x//4)*64}", f"spr{q}") for x in range(8)]
        r[0]=[W("vm",f"sp{q}"), r[0]]
        return r
    def sp_step(q):
        o=sp_read(q)
        if q+2<8:
            i2=sp_issue(q+2); i2[0]=[W("lg",f"spr{q}")]+i2[0]; o+=i2
        return o
    e(f"v_readfirstlane_b32 s{sNON}, v{vNV}")
    e(spinit)
    e(f"s_mul_i32 s{sNON}, s{sNON}, 1664525"); e(f"s_add_u32 s{sNON}, s{sNON}, 1013904223")
    e(f"s_lshr_b32 s{sN1}, s{sNON}, 8"); e(f"s_lshr_b32 s{sN2}, s{sNON}, 16"); e(f"s_lshr_b32 s{sN3}, s{sNON}, 24"); e(f"s_movk_i32 s{sFF}, 0xff")
    NM=V.a("NM",2); K1=V.a("K1",2); K0=V.a("K0",2); IR=V.a("IR",2); RS=V.a("RS",2)
    k0=-2*math.log2(math.e)*math.sqrt(2/math.pi); k1=k0*0.044715
    e(f"v_lshrrev_b32 v{t0}, 2, v{vN}"); e(f"v_lshl_add_u32 v{t0}, v{t0}, 4, v{vN}"); e(f"v_lshlrev_b32 v{t0}, 2, v{t0}")
    for t in range(2):
        s=SQ+4*t
        e(f"v_cndmask_b32 v{s}, v{s}, v{s+1}, s[{sMA}:{sMA+1}]"); e(f"v_cndmask_b32 v{s+2}, v{s+2}, v{s+3}, s[{sMA}:{sMA+1}]")
        e(f"v_cndmask_b32 v{s}, v{s}, v{s+2}, s[{sMB}:{sMB+1}]")
        e(f"ds_bpermute_b32 v{s+1}, v{t0}, v{s}")
    for t in range(2):
        e(f"v_mul_f32 v{NM+t}, {fl(-1/512)}, v{SUM+4*t}")
        e(f"v_mul_f32 v{t2+t}, v{NM+t}, v{NM+t}"); e(f"v_sub_f32 v{t2+t}, {fl(1e-5)}, v{t2+t}")
    for t in range(2):
        e(f"v_fmamk_f32 v{t2+t}, v{SQ+4*t+1}, {fl(1/512)}, v{t2+t}"); e(f"v_max_f32 v{t2+t}, {fl(1e-5)}, v{t2+t}")
    for t in range(2): e(f"v_rsq_f32 v{RS+t}, v{t2+t}")
    for t in range(2): e(f"v_sqrt_f32 v{IR+t}, v{t2+t}")
    for t in range(2):
        e(f"v_mul_f32 v{K0+t}, {fl(k0)}, v{RS+t}"); e(f"v_mul_f32 v{t2+t}, v{RS+t}, v{RS+t}")
    for t in range(2):
        e(f"v_mul_f32 v{t2+t}, {fl(0.044715)}, v{t2+t}"); e(f"v_mul_f32 v{K1+t}, v{K0+t}, v{t2+t}")
    TM=SP+28
    S2=SP+40; Q2=SP+44
    def gelu(stats):
        o=[]
        for c in range(3):
            P=[(ZA+(c*2+t)*4+2*h, CS+4*c+2*h, t, TM+2*(t*2+h), h) for t in range(2) for h in range(2)]
            for z,cs,t,u,h in P: o.append(f"v_pk_fma_f32 {v(z,2)}, {v(NM,2)}, {v(cs,2)}, {v(z,2)} op_sel:[{t},0,0] op_sel_hi:[{t},1,1]")
            for z,cs,t,u,h in P: o.append(f"v_pk_mul_f32 {v(u,2)}, {v(z,2)}, {v(z,2)}")
            for z,cs,t,u,h in P: o.append(f"v_pk_fma_f32 {v(u,2)}, {v(u,2)}, {v(K1,2)}, {v(K0,2)} op_sel:[0,{t},{t}] op_sel_hi:[1,{t},{t}]")
            for z,cs,t,u,h in P: o.append(f"v_pk_mul_f32 {v(u,2)}, {v(u,2)}, {v(z,2)}")
            for z,cs,t,u,h in P: o+= [f"v_exp_f32 v{u}, v{u}", f"v_exp_f32 v{u+1}, v{u+1}"]
            for z,cs,t,u,h in P: o.append(f"v_pk_fma_f32 {v(u,2)}, {v(u,2)}, {v(IR,2)}, {v(IR,2)} op_sel:[0,{t},{t}] op_sel_hi:[1,{t},{t}]")
            for z,cs,t,u,h in P: o+= [f"v_rcp_f32 v{u}, v{u}", f"v_rcp_f32 v{u+1}, v{u+1}"]
            for z,cs,t,u,h in P: o.append(f"v_pk_mul_f32 {v(z,2)}, {v(z,2)}, {v(u,2)}")
            if stats:
                for z,cs,t,u,h in P:
                    if c==0 and h==0:
                        o.append(f"v_pk_add_f32 {v(S2+2*t,2)}, {v(z,2)}, {v(z+2,2)}"); o.append(f"v_pk_mul_f32 {v(Q2+2*t,2)}, {v(z,2)}, {v(z,2)}")
                    else:
                        if c: o.append(f"v_pk_add_f32 {v(S2+2*t,2)}, {v(S2+2*t,2)}, {v(z,2)}")
                        o.append(f"v_pk_fma_f32 {v(Q2+2*t,2)}, {v(z,2)}, {v(z,2)}, {v(Q2+2*t,2)}")
        return o
    e(mix(gelu(True), sp_issue(0)))
    e(f"v_add_f32 v{t0}, v{S2}, v{S2+1}"); e(f"v_add_f32 v{t2}, v{S2+2}, v{S2+3}")
    e(f"v_add_f32 v{t1}, v{Q2}, v{Q2+1}"); e(f"v_add_f32 v{t3}, v{Q2+2}, v{Q2+3}")
    e(f"v_lshlrev_b32 v{t4}, 3, v{vG}"); e(f"v_lshrrev_b32 v{t4}, v{t4}, s{sNON}")
    e(f"v_permlane32_swap_b32 v{t0}, v{t2}"); e(f"v_permlane32_swap_b32 v{t1}, v{t3}")
    e(f"v_add_f32 v{t0}, v{t0}, v{t2}"); e(f"v_add_f32 v{t1}, v{t1}, v{t3}")
    e(f"v_lshlrev_b32 v{t5}, 2, v{vG}"); e(f"v_lshl_add_u32 v{t5}, v{vN}, 4, v{t5}")
    e(f"v_permlane16_swap_b32 v{t0}, v{t1}")
    e(f"s_lshl_b32 s{sT0}, s{sI}, 1"); e(f"s_add_u32 s{sT0}, s{sT0}, s{sSH}"); e(f"s_lshl_b32 s{sT0}, s{sT0}, 12"); e(f"s_add_u32 s{sT2}, s{sT0}, {STATS}")
    e(f"s_lshl_b32 s{sT0}, s{sJ}, 1"); e(f"s_add_u32 s{sT0}, s{sT0}, s{sFH}"); e(f"s_lshl_b32 s{sT0}, s{sT0}, 8"); e(f"s_add_u32 s{sT0}, s{sT0}, s{sT2}")
    e(f"v_add_f32 v{t0}, v{t0}, v{t1}")
    e(f"v_bfi_b32 v{t0}, s{sFF}, v{t4}, v{t0}")
    e(I(f"buffer_store_dword v{t0}, v{t5}, {srd(sWS)}, s{sT0} offen sc1","stat"))
    e(ts("statpub"))
    UA=SP; RR=SP+32; TR=SP+40; TI=SP+44; TN=SP+48
    def acc(uw,ri,t): return UA+((uw*2+ri)*2+t)*4
    vVS=V.a("vVS"); vZ=V.a("vZ"); vZ2=V.a("vZ2")
    fillD=[[f"v_lshlrev_b32 v{t0}, 4, v{vG}"]+[f"ds_bpermute_b32 v{RR+4*t+r}, v{t0}, v{RS+t} offset:{4*r}" for t in range(2) for r in range(4)]]
    fillD+=sp_issue(1)
    fillD+=[[f"v_permlane16_swap_b32 v{ZA+8*c+r}, v{ZA+8*c+4+r}" for r in range(2*h,2*h+2)] for c in range(3) for h in range(2)]
    fillD+=[[f"s_lshr_b32 s{sT0}, s{sR}, 1", f"s_bfe_u32 s{sT1}, s{sI}, 0x10002", f"s_lshl_b32 s{sT1}, s{sT1}, 1", f"s_xor_b32 s{sT0}, s{sT0}, s{sT1}", f"v_xor_b32 v{t1}, s{sT0}, v{vG}"],
            [f"v_lshlrev_b32 v{t1}, 4, v{t1}", f"v_mul_u32_u24 v{t2}, {VP}, v{vN}"],
            [f"s_lshr_b32 s{sT0}, s{sJ}, 1", f"s_lshl_b32 s{sT0}, s{sT0}, 6", f"s_add_u32 s{sT0}, s{sT0}, s{sZ}", f"s_lshl_b32 s{sT0}, s{sT0}, 2", f"s_add_u32 s{sT0}, s{sT0}, s{sR}",
             f"s_lshl_b32 s{sT0}, s{sT0}, 6", f"v_add3_u32 v{vVS}, v{t1}, v{t2}, s{sT0}"]]
    fillD+=[[f"v_lshrrev_b32 v{t1}, 5, v{vL}", f"s_lshl_b32 s{sT0}, s{sFH}, 1", f"v_add_u32 v{t1}, s{sT0}, v{t1}"],
            [f"s_bfe_u32 s{sT0}, s{sI}, 0x10001", f"v_lshl_add_u32 v{t2}, v{t1}, 1, s{sT0}", f"v_and_b32 v{t3}, 7, v{vL}"],
            [f"v_xor_b32 v{t2}, v{t2}, v{t3}", f"v_lshlrev_b32 v{t2}, 4, v{t2}"],
            [f"v_lshl_add_u32 v{t2}, v{t1}, 10, v{t2}", f"v_bfe_u32 v{t3}, v{vL}, 3, 2"],
            [f"v_mul_u32_u24 v{t3}, 98304, v{t3}", f"s_mul_i32 s{sT0}, s{sJ}, 393216", f"s_lshl_b32 s{sT1}, s{sSH}, 14", f"s_add_u32 s{sT0}, s{sT0}, s{sT1}",
             f"s_lshr_b32 s{sT1}, s{sI}, 3", f"s_lshl_b32 s{sT1}, s{sT1}, 12", f"s_add_u32 s{sT0}, s{sT0}, s{sT1}",
             f"s_and_b32 s{sT1}, s{sI}, 7", f"s_lshl_b32 s{sT1}, s{sT1}, 7", f"s_add_u32 s{sT0}, s{sT0}, s{sT1}", f"v_add3_u32 v{vZ}, v{t2}, v{t3}, s{sT0}"],
            [f"v_add_u32 v{t1}, 8, v{t1}", f"v_cmp_gt_u32 s[{sHM}:{sHM+1}], s{sNOCT}, v{t1}"],
            [f"v_mov_b32 v{t1}, {OOB}"], [f"v_cndmask_b32 v{vZ2}, v{t1}, v{vZ}, s[{sHM}:{sHM+1}]"]]
    fillD+=[f"v_mov_b32 v{t4}, s{sSIG}"]+sp_step(0)
    def fftv(var):
        o=[]; seen=set()
        tab={0:[((0,0),(0,1)),((1,0),(1,1)),((0,0),(0,1)),((1,0),(1,1))],
             1:[((0,0),(0,1)),((1,1),(0,0)),((1,0),(1,1)),((0,1),(1,0))],
             3:[((0,0),(0,1)),((0,1),(1,0)),((1,0),(1,1)),((1,1),(0,0))]}[var]
        for ks in range(16):
            D,k=divmod(ks,4)
            for which,base in ((0,aFC),(1,aFS)):
                uw,ri=tab[D][which]
                for t in range(2):
                    d=acc(uw,ri,t); o.append(mm(d, v(xf(ks,t),4), a(base+4*k,4), d not in seen)); seen.add(d)
        return o
    e(f"s_cmp_eq_u32 s{sR}, 1"); e("s_cbranch_scc1 L_f1"); e(f"s_cmp_eq_u32 s{sR}, 3"); e("s_cbranch_scc1 L_f3")
    e(Var([mix(fftv(0),fillD,0,60)+["s_nop 6","s_branch L_fj"], ["L_f1:"]+mix(fftv(1),fillD,0,60)+["s_nop 6","s_branch L_fj"], ["L_f3:"]+mix(fftv(3),fillD,0,60)+["s_nop 7"]]))
    e("L_fj:")
    for ri in range(2):
        for t in range(2):
            for h in range(2):
                u=acc(0,ri,t)+2*h; w_=acc(1,ri,t)+2*h
                e(f"v_pk_fma_f32 {v(u,2)}, {v(t4,2)}, {v(w_,2)}, {v(u,2)} op_sel_hi:[0,1,1]")
    for ri in range(2):
        for t in range(2):
            for h in range(2):
                u=acc(0,ri,t)+2*h; e(f"v_pk_mul_f32 {v(u,2)}, {v(u,2)}, {v(RR+4*t+2*h,2)}")
    for t in range(2):
        for h in range(2):
            u=acc(0,0,t)+2*h; e(f"v_cvt_pk_bf16_f32 v{TR+2*t+h}, v{u}, v{u+1}"); e(f"v_cvt_pk_bf16_f32 v{TN+2*t+h}, -v{u}, -v{u+1}")
            u=acc(0,1,t)+2*h; e(f"v_cvt_pk_bf16_f32 v{TI+2*t+h}, v{u}, v{u+1}")
    VA=SP+16
    for th in range(2):
        e(mm(VA+8*th, v(TR,4), a(aAC+4*th,4), True)); e(mm(VA+8*th+4, v(TI,4), a(aAC+4*th,4), True))
        e(mm(VA+8*th, v(TI,4), a(aAS+4*th,4), False)); e(mm(VA+8*th+4, v(TN,4), a(aAS+4*th,4), False))
    VK=SP+32
    for th in range(2):
        for r in range(4): e(f"v_cvt_pk_bf16_f32 v{VK+4*th+r}, v{VA+8*th+r}, v{VA+8*th+4+r}")
    e(ts("fft"))
    PL=SP; ZP=SP+16
    def spin(name, body_loads, check):
        o=[f"s_mov_b32 s{sCNT}, 0", f"L_{name}:"]+body_loads+["s_waitcnt vmcnt(0)", W("reset")]+check
        o+=["s_cmp_eq_u64 vcc, 0", f"s_cbranch_scc1 L_{name}_d", f"s_add_u32 s{sCNT}, s{sCNT}, 1", f"s_cmp_lt_u32 s{sCNT}, {SPIN}", f"s_cbranch_scc1 L_{name}", f"L_{name}_d:"]
        return o
    sn=[sNON,sN1,sN2,sN3]
    chk=[f"v_xor_b32 v{t0}, s{sNON}, v{PL}", f"v_xor_b32 v{t1}, s{sN1}, v{PL+1}"]
    chk+=[f"v_bitop3_b32 v{t0+k%2}, v{PL+k}, s{sn[k%4]}, v{t0+k%2} bitop3:0xbe" for k in range(2,16)]
    chk+=[f"v_bitop3_b32 v{t0}, v{t0}, v{t1}, s{sFF} bitop3:0xa8", f"v_cmp_ne_u32 vcc, 0, v{t0}"]
    e(spin("s1", [f"buffer_load_dwordx4 {v(PL+4*k,4)}, v{vL16}, {srd(sWS)}, s{sT2} offen offset:{1024*k} sc1" for k in range(4)], chk))
    e(ts("s1"))
    for h in range(2):
        e(f"v_pk_add_f32 {v(PL+2*h,2)}, {v(PL+2*h,2)}, {v(PL+4+2*h,2)}"); e(f"v_pk_add_f32 {v(PL+8+2*h,2)}, {v(PL+8+2*h,2)}, {v(PL+12+2*h,2)}")
    for h in range(2): e(f"v_pk_add_f32 {v(PL+2*h,2)}, {v(PL+2*h,2)}, {v(PL+8+2*h,2)}")
    e(f"v_permlane16_swap_b32 v{PL}, v{PL+2}"); e(f"v_permlane16_swap_b32 v{PL+1}, v{PL+3}")
    e(f"v_pk_add_f32 {v(PL+4,2)}, {v(PL,2)}, {v(PL+2,2)}"); e(f"v_pk_add_f32 {v(PL,2)}, {v(PL,2)}, {v(PL+2,2)}")
    e(f"v_permlane32_swap_b32 v{PL}, v{PL+4}"); e(f"v_permlane32_swap_b32 v{PL+1}, v{PL+5}")
    e(f"v_pk_add_f32 {v(PL,2)}, {v(PL,2)}, {v(PL+4,2)}")
    e(f"v_mul_f32 v{t0}, {fl(-1/688)}, v{PL}"); e(f"v_mul_f32 v{t1}, v{t0}, v{t0}"); e(f"v_sub_f32 v{t1}, {fl(1e-5)}, v{t1}")
    e(f"v_fmamk_f32 v{t1}, v{PL+1}, {fl(1/688)}, v{t1}"); e(f"v_max_f32 v{t1}, {fl(1e-5)}, v{t1}")
    e(f"v_rsq_f32 v{t2}, v{t1}"); e(f"v_mul_f32 v{t3}, v{t0}, v{t2}")
    for c in range(3):
        for k in range(4):
            z=ZA+8*c+2*k; e(f"v_pk_fma_f32 {v(z,2)}, {v(z,2)}, {v(t2,2)}, {v(t2,2)} op_sel:[0,0,1] op_sel_hi:[1,0,1]")
        for k in range(4):
            z=ZA+8*c+2*k; e(f"v_cvt_pk_bf16_f32 v{ZP+4*c+k}, v{z}, v{z+1}")
        e(f"s_mov_b32 s{sT3}, {Z2N+c*32768}")
        e(I(f"buffer_store_dwordx4 {v(ZP+4*c,4)}, v{vZ2 if c==2 else vZ}, {srd(sWS)}, s{sT3} offen sc1","z2n"))
    for th in range(2):
        e(f"s_mov_b32 s{sT3}, {VB+th*16*VP}")
        e(I(f"buffer_store_dwordx4 {v(VK+4*th,4)}, v{vVS}, {srd(sWS)}, s{sT3} offen sc1","z2n"))
    e(ts("z2npub"))
    V.f("vVS","vZ","vZ2")
    vFO=V.a("vFO"); vBT=V.a("vBT",2)
    e(f"v_lshlrev_b32 v{t0}, 2, v0"); e(f"v_cmp_gt_u32 vcc, 32, v0"); e(f"v_mov_b32 v{t1}, {OOB}"); e(f"v_mov_b32 v{vNV}, s{sNON}"); e(f"v_cndmask_b32 v{vFO}, v{t1}, v{t0}, vcc")
    e(f"v_and_b32 v{t0}, 31, v{vL}"); e(f"v_lshlrev_b32 v{t0}, 7, v{t0}"); e(f"s_lshl_b32 s{sT0}, s{sZ}, 1")
    e(f"buffer_load_ushort v{vBT}, v{t0}, {srd(sBSP)}, s{sT0} offen")
    e("s_barrier")
    FLAGKS=8
    spq={1:1, 4:2, 7:3, 10:4, 13:5}
    for ks in range(17):
        kk,kp=divmod(ks,2); pre=[]; fill=[]
        if ks<16: fill=rd_w(8+kk,kp)
        if ks==4:
            pre=[W("lg0"),"s_barrier"]; fill+=issue_w(14)+issue_w(15)
        if ks==12: pre=[W("vm","st15"),"s_barrier"]
        if ks==FLAGKS:
            pre=[W("vm","z2n"),"s_barrier", f"s_lshl_b32 s{sT0}, s{sJ}, 5", f"s_add_u32 s{sT0}, s{sT0}, s{sI}", f"s_lshl_b32 s{sT0}, s{sT0}, 7", f"s_add_u32 s{sT0}, s{sT0}, {F2}",
                 f"buffer_store_dword v{vNV}, v{vFO}, {srd(sWS)}, s{sT0} offen sc1"]+ts("s2flag")
        if ks in spq: fill+=sp_step(spq[ks])[:8]
        if ks-1 in spq: fill+=sp_step(spq[ks-1])[8:]
        e(pre)
        if ks==0: e(fill)
        else: e(mix(mf_z(ks-1,False), fill))
    V.f("XF","wd0","wd1","wd2","wa0","wa1","ONES")
    e(ts("z1gemm"))
    Z1=V.a("Z1",12)
    e(mix(gelu(False), sp_step(6)+sp_step(7)))
    for c in range(3):
        for t in range(2):
            for h in range(2):
                z=ZA+(c*2+t)*4+2*h; e(f"v_cvt_pk_bf16_f32 v{Z1+4*c+2*t+h}, v{z}, v{z+1}")
    for c in range(3):
        for h in range(2): e(f"v_permlane16_swap_b32 v{Z1+4*c+h}, v{Z1+4*c+2+h}")
    V.f("ZA","SP","NM","K1","K0","IR","RS","vsp","ra0","ra1","ra2","ra3")
    e(f"v_lshlrev_b32 v{vBT}, 16, v{vBT}")
    SL=16384
    za=[V.a(f"za{k}") for k in range(8)]; vZL=V.a("vZL"); vRW=V.a("vRW"); vRR=V.a("vRR"); vH=V.a("vH"); vH2=V.a("vH2")
    e(f"s_lshl_b32 s{sT0}, s{sJ}, 2"); e(f"s_add_u32 s{sT0}, s{sT0}, s{sW}"); e(f"s_mul_i32 s{sT0}, s{sT0}, 98304"); e(f"v_add_u32 v{vZL}, s{sT0}, v{vL16}")
    e(f"s_lshl_b32 s{sRM}, s{sW}, 12")
    vP8=V.a("vP8")
    e(f"v_and_b32 v{t0}, 7, v{vL}"); e(f"v_lshlrev_b32 v{vP8}, 7, v{t0}")
    e(f"s_lshl_b32 s{sT0}, s{sJ}, 2"); e(f"s_add_u32 s{sT0}, s{sT0}, s{sW}"); e(f"s_lshl_b32 s{sT0}, s{sT0}, 10"); e(f"s_add_u32 s{sT2}, s{sT0}, {F2}")
    e(ts("z1done"))
    e(spin("s2", [f"buffer_load_dword v{t0}, v{vP8}, {srd(sWS)}, s{sT2} offen sc1"], [f"v_cmp_ne_u32 vcc, s{sNON}, v{t0}"]))
    e(W("lg0")); e("s_barrier")
    e(ts("s2"))
    def zdma(g,o):
        if g>=24 or (g>=16 and o==3): return []
        r=[]
        if o==0: r=[f"s_add_u32 m0, s{sRM}, {(g%NS)*SL}", f"s_mov_b32 s{sKX}, {Z2N+g*4096}"]
        return r+[I(f"buffer_load_dwordx4 v{vZL}, {srd(sWS)}, s{sKX} offen offset:{o*1024} sc1 lds", f"z{g}")]
    C0=C; C=[]; e=C.append
    e(f"v_and_b32 v{t0}, 1, v{vG}"); e(f"v_xor_b32 v{t0}, s{sFH}, v{t0}"); e(f"v_and_b32 v{t1}, 1, v{vL}"); e(f"v_lshl_add_u32 v{t0}, v{t0}, 1, v{t1}")
    e(f"v_mul_u32_u24 v{t0}, {1024+32}, v{t0}")
    e(f"v_lshrrev_b32 v{t1}, 2, v{vN}"); e(f"v_lshl_add_u32 v{t0}, v{t1}, 7, v{t0}")
    e(f"v_lshrrev_b32 v{t1}, 3, v{vN}"); e(f"v_lshrrev_b32 v{t2}, 1, v{vG}"); e(f"v_xor_b32 v{t1}, v{t1}, v{t2}"); e(f"v_lshl_add_u32 v{t0}, v{t1}, 4, v{t0}")
    e(f"v_bfe_u32 v{t1}, v{vL}, 1, 1"); e(f"v_lshl_add_u32 v{t0}, v{t1}, 3, v{t0}")
    e(f"v_lshl_add_u32 v{za[0]}, s{sFH}, 13, v{t0}")
    for k in range(1,4): e(f"v_xor_b32 v{za[k]}, {32*k}, v{za[0]}")
    for k in range(4): e(f"v_add_u32 v{za[4+k]}, {4*SL}, v{za[k]}")
    e(f"s_lshl_b32 s{sT0}, s{sW}, 11"); e(f"s_add_u32 s{sT0}, s{sT0}, {RED}"); e(f"v_add_u32 v{vRR}, s{sT0}, v{vL16}")
    e(f"v_xor_b32 v{vRW}, 2048, v{vRR}")
    e(f"v_and_b32 v{t0}, 1, v{vG}"); e(f"v_lshlrev_b32 v{t0}, 13, v{t0}"); e(f"v_lshl_add_u32 v{t0}, v{vN}, 4, v{t0}")
    e(f"v_lshrrev_b32 v{t1}, 1, v{vG}"); e(f"v_lshl_add_u32 v{t0}, v{t1}, 8, v{t0}")
    e(f"s_mul_i32 s{sT0}, s{sI}, 98304"); e(f"s_lshl_b32 s{sT1}, s{sSH}, 14"); e(f"s_add_u32 s{sT0}, s{sT0}, s{sT1}"); e(f"s_lshl_b32 s{sT1}, s{sFH}, 9"); e(f"s_add_u32 s{sT0}, s{sT0}, s{sT1}")
    e(f"s_lshl_b32 s{sT1}, s{sJ}, 10"); e(f"s_add_u32 s{sT1}, s{sT1}, s{sT0}"); e(f"v_add_u32 v{vH}, s{sT1}, v{t0}")
    e(f"s_mul_i32 s{sT1}, s{sJ}, 768"); e(f"s_min_u32 s{sT1}, s{sT1}, {20*256}"); e(f"s_add_u32 s{sT1}, s{sT1}, s{sT0}"); e(f"v_add_u32 v{t0}, s{sT1}, v{t0}")
    e(f"v_mov_b32 v{t1}, {OOB}"); e(f"v_cndmask_b32 v{vH2}, v{t1}, v{t0}, s[{sHM}:{sHM+1}]")
    AC=V.a("AC0",16); AC1=V.a("AC1",16); ACS=[AC,AC1]; ZF=V.a("ZF",32); RD=V.a("RD",8); HP=V.a("HP",4); HT=V.a("HT",8); BZ=V.a("BZ",8)
    vWO=V.a("vWO"); wo=[[V.a(f"wo{r}{p}") for p in range(4)] for r in range(2)]
    e(f"v_lshrrev_b32 v{t0}, 3, v{vL}"); e(f"v_and_b32 v{t1}, 2, v{t0}"); e(f"v_and_b32 v{t2}, 7, v{vL}")
    e(f"s_lshl_b32 s{sT0}, s{sFH}, 2"); e(f"v_bitop3_b32 v{t1}, v{t1}, v{t2}, s{sT0} bitop3:0x96")
    e(f"v_lshlrev_b32 v{t1}, 4, v{t1}"); e(f"v_lshl_add_u32 v{t1}, v{t0}, 10, v{t1}")
    e(f"s_lshl_b32 s{sT0}, s{sW}, 6"); e(f"s_add_u32 s{sT0}, s{sT0}, s{sJ}"); e(f"s_lshl_b32 s{sT0}, s{sT0}, 7"); e(f"v_add_u32 v{vWO}, s{sT0}, v{t1}")
    e(f"v_lshlrev_b32 v{t0}, 12, v{vG}"); e(f"v_lshrrev_b32 v{t1}, 2, v{vN}"); e(f"v_lshl_add_u32 v{t0}, v{t1}, 7, v{t0}")
    e(f"v_and_b32 v{t1}, 3, v{vL}"); e(f"v_lshl_add_u32 v{t0}, v{t1}, 3, v{t0}"); e(f"v_lshrrev_b32 v{t1}, 3, v{vN}"); e(f"v_lshl_add_u32 v{t0}, v{t1}, 5, v{t0}")
    e(f"v_and_b32 v{t1}, 1, v{vG}"); e(f"v_lshl_add_u32 v{wo[1][0]}, v{t1}, 6, v{t0}")
    for ct in range(1,4): e(f"v_xor_b32 v{wo[1][ct]}, {32*ct}, v{wo[1][0]}")
    for ct in range(4): e(f"v_add_u32 v{wo[0][ct]}, {8*SL}, v{wo[1][ct]}")
    TW=V.a("TW",16); H0=V.a("H0",32); va=[V.a(f"va{k}") for k in range(4)]; WR=H0
    vPA=V.a("vPA"); vPV=V.a("vPV"); vHL=V.a("vHL"); vHL5=V.a("vHL5"); vPC=V.a("vPC")
    sMI,sRHO,sVB,sFP,sFS=sXM,sSTM,sWM,sN1,sN2
    e([f"s_cmp_ge_u32 s{sJ}, 4", f"s_cselect_b32 s{sMI}, -1, 0"]); e(f"s_and_b32 s{sT0}, s{sMI}, 0x80000000"); e(f"s_or_b32 s{sT0}, s{sT0}, {fl(1/2048)}")
    e(f"s_lshl_b32 s{sT1}, s{sFH}, 10"); e(f"s_add_u32 s{sT1}, s{sT1}, s{sZ}")
    e(f"v_lshl_add_u32 v{t0}, v{vN}, 6, s{sT1}"); e(f"v_cvt_f32_u32 v{t0}, v{t0}"); e(f"v_mul_f32 v{t0}, s{sT0}, v{t0}")
    e(f"v_lshlrev_b32 v{t1}, 2, v{vG}"); e(f"v_cvt_f32_u32 v{t1}, v{t1}"); e(f"v_mul_f32 v{t1}, v{t1}, v{t0}")
    for kv in range(4):
        for q in range(4):
            e(f"v_fmamk_f32 v{WR+q}, v{t0}, {fl(16*kv+q)}, v{t1}")
        for q in range(4): e(f"v_cos_f32 v{WR+4+q}, v{WR+q}"); e(f"v_sin_f32 v{WR+q}, v{WR+q}")
        for q in range(4): e(f"v_cvt_pk_bf16_f32 v{TW+4*kv+q}, v{WR+4+q}, v{WR+q}")
    e(f"s_xor_b32 s{sT0}, s{sI}, s{sMI}"); e(f"s_sub_u32 s{sT0}, s{sT0}, s{sMI}"); e(f"s_and_b32 s{sT0}, s{sT0}, 31"); e(f"s_mul_i32 s{sVB}, s{sT0}, {VP}"); e(f"s_add_u32 s{sVB}, s{sVB}, {VB}")
    e(f"s_xor_b32 s{sRHO}, s{sJ}, s{sMI}"); e(f"s_and_b32 s{sRHO}, s{sRHO}, 3")
    e(f"v_and_b32 v{t4}, 1, v{vG}"); e(f"v_lshlrev_b32 v{t4}, 1, v{t4}"); e(f"v_lshlrev_b32 v{t5}, 10, v{vG}"); e(f"v_add_u32 v{t5}, {VL}, v{t5}")
    for ct in range(4):
        e(f"v_add_u32 v{t0}, {16*ct}, v{vN}"); e(f"v_xor_b32 v{t0}, s{sMI}, v{t0}"); e(f"v_subrev_u32 v{t0}, s{sMI}, v{t0}")
        e(f"v_bfe_u32 v{t1}, v{t0}, 4, 2"); e(f"v_bfe_u32 v{t2}, v{t0}, 1, 1"); e(f"v_bitop3_b32 v{t1}, v{t1}, v{t2}, v{t4} bitop3:0x96")
        e(f"v_lshl_add_u32 v{t1}, v{t1}, 4, v{t5}"); e(f"v_and_b32 v{t2}, 3, v{t0}"); e(f"v_lshl_add_u32 v{t1}, v{t2}, 6, v{t1}")
        e(f"v_and_b32 v{t2}, 12, v{t0}"); e(f"v_add_u32 v{va[ct]}, v{t1}, v{t2}")
    e(f"v_bfe_u32 v{t0}, v{vN}, 2, 1"); e(f"v_lshlrev_b32 v{t0}, 5, v{t0}"); e(f"v_lshl_add_u32 v{t0}, v{vN}, 8, v{t0}"); e(f"v_add_u32 v{vPA}, s{sRM}, v{t0}")
    e(f"s_mul_i32 s{sT0}, s{sI}, 12"); e(f"s_add_u32 s{sT0}, s{sT0}, s{sW}"); e(f"s_lshl_b32 s{sT0}, s{sT0}, 13"); e(f"v_add_u32 v{vHL}, s{sT0}, v{vL16}")
    e(f"v_cmp_gt_u32 vcc, 32, v{vL}"); e(f"v_mov_b32 v{t1}, {OOB}"); e(f"v_lshlrev_b32 v{t0}, 2, v{vL}"); e(f"v_cndmask_b32 v{vHL5}, v{t1}, v{vHL}, vcc"); e(f"v_cndmask_b32 v{vFO}, v{t1}, v{t0}, vcc")
    e(f"v_lshlrev_b32 v{vP8}, 7, v{vN}")
    e(f"s_lshl_b32 s{sT0}, s{sI}, 1"); e(f"s_add_u32 s{sT0}, s{sT0}, s{sSH}"); e(f"s_lshl_b32 s{sT0}, s{sT0}, 11"); e(f"s_add_u32 s{sFP}, s{sT0}, {F3}")
    e(f"s_lshl_b32 s{sT0}, s{sJ}, 1"); e(f"s_add_u32 s{sT0}, s{sT0}, s{sFH}"); e(f"s_lshl_b32 s{sT0}, s{sT0}, 7"); e(f"s_add_u32 s{sFS}, s{sT0}, s{sFP}")
    setup=C; C=C0; e=C.append
    pro=[zdma(g,o) for g in range(NP) for o in range(4)]
    e(pro[0]); e(mix(setup, pro[1:], 0, int(len(setup)*0.9)))
    e([f"s_lshl_b32 s{sT0}, s2, 2", f"s_or_b32 s{sT0}, s{sT0}, s{sW}", f"s_cmp_eq_u32 s{sT0}, 0", f"s_cselect_b32 s{sT0}, 0, {OOB}", f"buffer_store_dword v{vNV}, v{vFO}, {srd(sWS)}, s{sT0} offen sc1"])
    def zrd(x):
        g,k=divmod(x,4); sl=g%NS; r_=za[k+4*(sl//4)]; of=(sl%4)*SL
        r=[I(f"ds_read_b64_tr_b16 {v(ZF+8*(x%4)+2*n,2)}, v{r_} offset:{of+(n//2)*4096+(n%2)*512}", f"zr{x}") for n in range(4)]
        if k==0: r[0]=[W("vm",f"z{g}"), "s_barrier", r[0]]
        return r
    def wo_lds(kap): return (8*SL+(kap//4)*SL+(kap%4)*1024) if kap<8 else (((kap-8)//4)*SL+(kap%4)*1024)
    def wo_dma(kap):
        r=[f"s_add_u32 m0, s{sRM}, {wo_lds(kap)}"]
        if kap<16:
            r.append(f"s_mov_b32 s{sT3}, {(f0(kap%8)+32*(kap//8))*1024}")
        elif kap<21:
            k=kap-16
            r+=[f"s_add_u32 s{sT3}, s{sW}, {4*k}", f"s_mul_i32 s{sT3}, s{sT3}, 43", f"s_lshr_b32 s{sT3}, s{sT3}, 7", f"s_lshl_b32 s{sT3}, s{sT3}, 16", f"s_add_u32 s{sT3}, s{sT3}, {(32*k+64)*1024}"]
        else: r.append(f"s_mov_b32 s{sT3}, {672*1024}")
        return r+[I(f"buffer_load_dwordx4 v{vWO}, {srd(sWOUT)}, s{sT3} offen {NT} lds", f"wo{kap}")]
    def red_wr(c):
        return [I(f"ds_write_b128 v{vRW}, {v(ACS[c%2]+8+4*x,4)} offset:{x*1024}", f"rw{c}") for x in range(2)]
    def red_rd(c):
        return [f"ds_read_b128 {v(RD+4*x,4)}, v{vRR} offset:{x*1024}" for x in range(2)]
    def red_own(c, pk):
        A=ACS[c%2]
        if pk: return [f"v_pk_fma_f32 {v(A+2*k,2)}, {v(A+2*k,2)}, {v(HT+2*k,2)}, {v(BZ+2*k,2)}" for k in range(4)]
        return [f"v_fma_f32 v{A+k}, v{A+k}, v{HT+k}, v{BZ+k}" for k in range(8)]
    def red_alu(c, pk):
        o=[]; A=ACS[c%2]
        if pk: o+=[f"v_pk_fma_f32 {v(A+2*k,2)}, {v(RD+2*k,2)}, {v(HT+2*k,2)}, {v(A+2*k,2)}" for k in range(4)]
        else: o+=[f"v_fmac_f32 v{A+k}, v{RD+k}, v{HT+k}" for k in range(8)]
        for k in range(4): o.append(f"v_cvt_pk_bf16_f32 v{HP+k}, v{A+2*k}, v{A+2*k+1}")
        return o
    def z1_unp(c):
        return [x for k in range(4) for x in (f"v_lshlrev_b32 v{HT+2*k}, 16, v{Z1+4*c+k}", f"v_and_b32 v{HT+2*k+1}, 0xffff0000, v{Z1+4*c+k}")]+[f"v_mul_f32 v{BZ+k}, v{vBT}, v{HT+k}" for k in range(8)]
    def h_st(c):
        return [f"s_mov_b32 s{sT0}, {HB+c*32768}", I(f"buffer_store_dwordx4 {v(HP,4)}, v{vH2 if c==2 else vH}, {srd(sWS)}, s{sT0} offen sc1", f"h{c}")]
    def f3flag(c):
        return [f"s_add_u32 s{sT0}, s{sFS}, {c*131072}", W("vm",f"h{c}"), f"buffer_store_dword v{vNV}, v{vFO}, {srd(sWS)}, s{sT0} offen sc1"]
    def f3poll(c):
        return [f"s_add_u32 s{sT2}, s{sFP}, {c*131072}", f"buffer_load_dword v{vPC}, v{vP8}, {srd(sWS)}, s{sT2} offen sc1"]
    def f3chk(c):
        n=f"c{c}"
        SLOW.extend([f"L_s{n}:", f"s_mov_b32 s{sCNT}, 0", f"L_l{n}:", f"buffer_load_dword v{vPC}, v{vP8}, {srd(sWS)}, s{sT2} offen sc1", "s_waitcnt vmcnt(0)",
                     f"v_cmp_ne_u32 vcc, s{sNON}, v{vPC}", f"s_cbranch_vccz L_b{n}", f"s_add_u32 s{sCNT}, s{sCNT}, 1", f"s_cmp_lt_u32 s{sCNT}, {SPIN}", f"s_cbranch_scc1 L_l{n}", f"s_branch L_b{n}"])
        return [f"v_cmp_ne_u32 vcc, s{sNON}, v{vPC}", f"s_cbranch_vccnz L_s{n}", f"L_b{n}:"]
    vdma=[[f"s_lshl_b32 s{sT1}, s{sRHO}, 14", f"s_add_u32 m0, s{sRM}, {VL}", f"s_add_u32 s{sT1}, s{sT1}, s{sRM}", f"s_add_u32 s{sT1}, s{sT1}, s{sVB}",
           I(f"buffer_load_dwordx4 v{vL16}, {srd(sWS)}, s{sT1} offen sc1 lds","v")]]
    vdma+=[I(f"buffer_load_dwordx4 v{vL16}, {srd(sWS)}, s{sT1} offen offset:{1024*k} sc1 lds","v") for k in range(1,4)]
    vdma+=[[f"s_sub_u32 s{sT1}, s{sRHO}, s{sMI}", f"s_and_b32 s{sT1}, s{sT1}, 3", f"s_lshl_b32 s{sT1}, s{sT1}, 14", f"s_add_u32 s{sT1}, s{sT1}, s{sVB}"],
           [f"s_cmp_eq_u32 s{sJ}, 0", f"s_cselect_b32 s{sT1}, {OOB}, s{sT1}", f"buffer_load_dword v{vPV}, v{vPA}, {srd(sWS)}, s{sT1} offen sc1"]]
    def hld(c, dst):
        return [([f"s_mov_b32 s{sKW}, {HB+c*32768+k*1024}"] if k%4==0 else [])+[f"buffer_load_dwordx4 {v(dst+4*k,4)}, v{vHL5 if (c,k)==(2,5) else vHL}, {srd(sWS)}, s{sKW} offen offset:{(k%4)*1024} sc1"] for k in range(8 if c<2 else 6)]
    e(ts("p2pro"))
    LA=4; e(zrd(0)); e(zrd(1))
    ex={y:[] for y in range(193)}; dx={y:[] for y in range(193)}
    def spread(units, y0, per, d=None):
        for k,u in enumerate(units): (ex if d is None else d)[min(192,y0+int(k/per))].append(u)
        return y0+int((len(units)-1)/per)
    yy=0
    for G in range(NP,24):
        yy=max(yy, 8*(G-NS+2)-LA+2)
        for o in range(4):
            while any(g0<=yy<g0+2*GAP[2] for g0 in GAP[:2]): yy+=2
            if zdma(G,o): dx[yy].append(zdma(G,o)); yy+=2
    zend=yy
    spread(z1_unp(0), 21, .5)
    for c in range(2):
        b=64*(c+1)
        spread(red_wr(c), b+RW, 1)
        yb=b+8-LA
        if yb<b+RW+3: yb+=8
        ex[yb-1].append(W("lg",f"rw{c}"))
        spread(red_own(c,False), b+RW+2, 2)
        spread(red_rd(c), yb, 1); ye=spread(red_alu(c,False), max(yb+3,b+RW+6), 2); dx[(ye+1)|1].append(h_st(c))
        spread(z1_unp(c+1), ye+3, .5)
        dx[FX[c]].append(f3flag(c))
    dx[PX[0]].append(f3poll(0))
    spread([wo_dma(k) for k in range(8)], zend, .5, dx)
    assert PX[1]>=zend+16
    ex[PX[1]-1].append(f3chk(0))
    spread(vdma+hld(0,H0), PX[1], VR, dx)
    for y in range(192):
        x,q=divmod(y,2); g,k=divmod(x,4); c=g//8; d=ACS[c%2]
        if q==0: e(W("lg",f"zr{x}"))
        e(f"v_mfma_f32_32x32x16_bf16 {v(d,16)}, {v(ZF+4*(y%8),4)}, {a(((k*2+q)*8+g%8)*4,4)}, {'0' if y%64==0 else v(d,16)}")
        e(dx[y])
        if x+2<96: e(zrd(x+2)[1:] if q else zrd(x+2)[0])
        e(ex[y])
        if P2S and q==1 and x in P2S: e(ts(f"x{x}"))
    e(ts("p2"))
    V.f("ZF","vZL","AC1",*[f"za{k}" for k in range(8)])
    assert not ex[192]; e(dx[192][:2]); e(red_wr(2)); e(red_own(2,True)); e(W("lg0")); e("s_barrier"); e(red_rd(2)); e(dx[192][2:4]); e(red_alu(2,True)); e(h_st(2)); e(dx[192][4:])
    e(f3poll(1))
    e(ts("h2st"))
    H1=V.a("H1",32); OA=V.a("OA",16)
    oa=[x for k in range(8) for x in (f"v_lshlrev_b32 v{OA+2*k}, 16, v{RES+k}", f"v_and_b32 v{OA+2*k+1}, 0xffff0000, v{RES+k}")]
    e(mix(oa, [wo_dma(k) for k in range(8,16)]))
    V.f("AC0","RD","HT","BZ","Z1","vRW","vRR","vH","vH2","vBT")
    H2=V.a("H2",24); WR=V.a("WR",16)
    e(f"v_add_u32 v{vPA}, {VL}, v{vPA}")
    e(f"ds_write_b32 v{vPA}, v{vPV}")
    e(W("lg0")); e("s_barrier")
    e(ts("vbar"))
    def wrd(kap, d):
        rg=0 if kap<8 else 1; ko=wo_lds(kap)-(8*SL if kap<8 else 0)
        return [f"ds_read_b64_tr_b16 {a(d+ct*4+2*r,2)}, v{wo[rg][ct]} offset:{ko+r*512}" for ct in range(4) for r in range(2)]
    def vrd(kv,d):
        return [f"ds_read2st64_b32 {a(d+ct*4+2*r,2)}, v{va[ct]} offset0:{16*kv+2*r} offset1:{16*kv+2*r+1}" for ct in range(4) for r in range(2)]
    steps=[("v",k) for k in range(4)]+[("w",k) for k in range(22)]
    def rds(n):
        ty,k=steps[n]; return vrd(k,16*(n%16)) if ty=="v" else wrd(k,16*(n%16))
    def mms(n):
        ty,k=steps[n]; B = v(TW+4*k,4) if ty=="v" else v((H0,H1,H2)[k//8]+4*(k%8),4)
        return [mm(OA+4*ct, a(16*(n%16)+4*ct,4), B, False) for ct in range(4)]
    e(rds(0)); e(rds(1))
    for n in range(12):
        if n==FN: e(f3flag(2)); e(ts("c2flag")); e(f3chk(1)); e(hld(1,H1))
        e(mix(mms(n), rds(n+2) if n+2<12 else []))
    if FN==12: e(f3flag(2)); e(ts("c2flag")); e(f3chk(1)); e(hld(1,H1))
    e(ts("g3c0"))
    if WL==0: e([wo_dma(k) for k in range(16,22)])
    e(W("vm","wo15")); e("s_barrier")
    for n in range(12,20):
        e(rds(n))
        if n==PN:
            e(f3poll(2))
            if WL==1: e([wo_dma(k) for k in range(16,22)])
    vTW=V.a("vTW"); vTR=V.a("vTR"); vO=V.a("vO")
    fin=[[f"s_mul_i32 s{sT0}, s{sW}, 2304", f"s_add_u32 s{sT0}, s{sT0}, {TRB}"],
         f"v_mul_u32_u24 v{t0}, 144, v{vN}", f"v_lshl_add_u32 v{t0}, v{vG}, 3, v{t0}", f"v_add_u32 v{vTW}, s{sT0}, v{t0}",
         f"v_lshrrev_b32 v{t0}, 3, v{vL}", f"v_and_b32 v{t1}, 7, v{vL}", f"v_lshlrev_b32 v{t1}, 4, v{t1}",
         f"v_mul_u32_u24 v{t2}, 144, v{t0}", f"v_add3_u32 v{vTR}, v{t2}, v{t1}, s{sT0}",
         [f"s_lshl_b32 s{sT0}, s{sFH}, 10", f"s_add_u32 s{sT0}, s{sT0}, s{sZ}"], [f"s_lshl_b32 s{sT0}, s{sT0}, 3", f"s_add_u32 s{sT0}, s{sT0}, s{sJ}"], f"s_lshl_b32 s{sT0}, s{sT0}, 7",
         f"v_lshlrev_b32 v{t0}, 16, v{t0}", f"v_add3_u32 v{vO}, v{t0}, v{t1}, s{sT0}"]
    c1=flat([mms(n) for n in range(12,20)])
    e(mix(c1[:4*CN], fin))
    e(f3chk(2)); e(ts("s3b")); e(hld(2,H2))
    e(W("vm","wo21")); e("s_barrier")
    e(mix(c1[4*CN:], flat([rds(n) for n in range(20,26)])) if CN<8 else [rds(n) for n in range(20,26)])
    e(ts("g3c1"))
    for n in range(20,26): e(mms(n))
    for ct in range(4):
        for h in range(2): e(f"v_cvt_pk_bf16_f32 v{WR+2*ct+h}, v{OA+4*ct+2*h}, v{OA+4*ct+2*h+1}")
        e(f"ds_write_b64 v{vTW}, {v(WR+2*ct,2)} offset:{32*ct}")
    e(f"s_mov_b32 s{sT3}, {8*65536}")
    for p in range(2): e(f"ds_read_b128 {v(WR+8+4*p,4)}, v{vTR} offset:{1152*p}")
    e(f"buffer_store_dwordx4 {v(WR+8,4)}, v{vO}, {srd(sOUT)}, 0 offen")
    e(f"buffer_store_dwordx4 {v(WR+12,4)}, v{vO}, {srd(sOUT)}, s{sT3} offen")
    if DIAGON:
        e(W("vm0")); e(ts("end"))
        e(f"v_mov_b32 v{t0}, 0")
        for k in range(nts[0]): e(f"v_writelane_b32 v{t0}, s{sTS+1+k if k else sTS}, {k}")
        e("s_memrealtime s[6:7]"); e("s_waitcnt lgkmcnt(0)"); e(f"v_writelane_b32 v{t0}, s100, 40"); e(f"v_writelane_b32 v{t0}, s6, 41")
        e(f"s_lshl_b32 s{sT0}, s2, 2"); e(f"s_add_u32 s{sT0}, s{sT0}, s{sW}"); e(f"s_lshl_b32 s{sT0}, s{sT0}, 8"); e(f"s_add_u32 s{sT0}, s{sT0}, {DIAG}")
        e(f"v_lshlrev_b32 v{t1}, 2, v{vL}")
        e(f"buffer_store_dword v{t0}, v{t1}, {srd(sWS)}, s{sT0} offen")
    if DBG is not None:
        e("s_memrealtime s[6:7]"); e(f"s_load_dwordx2 s[{sBSP}:{sBSP+1}], s[0:1], 88"); e("s_waitcnt lgkmcnt(0)")
        e(f"s_mov_b32 s{sBSP+2}, 256"); e(f"s_mov_b32 s{sBSP+3}, 0x20000")
        e(f"v_subrev_u32 v{t0}, s{sTS}, v{t0}"); e("s_sub_u32 s6, s6, s100"); e(f"v_writelane_b32 v{t0}, s6, 3")
        e(f"s_lshl_b32 s{sT0}, s2, 2"); e(f"s_add_u32 s{sT0}, s{sT0}, s{sW}"); e(f"s_cmp_eq_u32 s{sT0}, {DBG*4}"); e(f"s_cselect_b32 s{sT0}, 0, {OOB}")
        e(f"v_subrev_u32 v{t1}, 12, v{t1}"); e(f"v_min_u32 v{t1}, {OOB}, v{t1}")
        e(f"buffer_store_dword v{t0}, v{t1}, {srd(sBSP)}, s{sT0} offen")
    e("L_end:"); e("s_endpgm")
    for x in SLOW: e(Raw(x))
    st=St(); out=[]; run(C,st,out)
    ref=open("stub.txt").read()
    head=ref[:ref.index(NAME+":")].replace("grid=(4096,1,1) block=(256,1,1) lds=0","grid=(256,1,1) block=(256,1,1) lds=163840")
    tail=ref[ref.index(".section .rodata"):].replace("next_free_vgpr 256","next_free_vgpr 512")
    body="\n".join(x if x.endswith(":") else "    "+x for x in out)
    info=dict(n=len(out), maxvm=st.maxvm, nops=st.nops, peak=V.peak, ts=tsn)
    return head+NAME+":\n"+body+"\n"+tail, info

if __name__=="__main__":
    kw={}
    for x in sys.argv[2:]:
        k,val=x.split("="); kw[k]=eval(val)
    s,info=gen(**kw); open(sys.argv[1],"w").write(s); print(info)
```

```python
import sys, struct, math
from fw import *
NAME="parallel_sum__spectral_fnet__mixer_gmlp__prompt_kernel"
def fl(x): return "0x%08x" % struct.unpack("<I", struct.pack("<f", x))[0]
F2=0x1000; F3=0x80000; STATS=0x40000; Z2N=0x100000; VB=0x400000; VP=65536+256; HB=0x700000; DIAG=0xA00000; WSSZ=0xB00000
OOB=0x7ff00000
WB=0; XB=73728; STG=73728; STGW=17408; RED=114688; VL=65536; TRB=114688
sX,sWIN,sWSP,sWOUT,sOUT,sWS,sBSP = 8,12,16,20,24,28,32
sI,sJ,sW,sSH,sFH,sF0,sNOCT,sNON,sR,sXM,sWM,sT0,sT1,sT2,sT3,sSIG,sCNT,sSTM,sRM,sZ = range(36,56)
sN1,sN2,sN3,sFF,sHM = 56,57,58,59,60
sMA,sMB = 62,64
sROT,sKX,sKW = 3,4,5
sTS=66
def srd(b): return f"s[{b}:{b+3}]"
def v(b,k=1): return f"v{b}" if k==1 else f"v[{b}:{b+k-1}]"
def a(b,k=1): return f"a{b}" if k==1 else f"a[{b}:{b+k-1}]"
def f0(j): return 88*j - (8 if j==7 else 0)

def gen(MAPB=2, NT="", DIAGON=False, SPIN=20000, PF=True, PRE=3, DBG=None, ROT=True, NS=7, NP=5, GAP=(0,0,0), RW=1, FX=(111,175), PX=(137,168), VR=.5, FN=5, PN=15, WL=1, CN=4, P2S=False, IST=False, IFR=0.8, DEP=2, BARS=(0,1,2,3,4,5,6,7)):
    V=Alloc(256); C=[]; e=C.append
    nts=[0]; tsn=[]; SLOW=[]
    def ts(name):
        if not DIAGON: return []
        k=nts[0]; nts[0]+=1; tsn.append(name); assert k<33
        return [W("lg0"), f"s_memtime s[6:7]", "s_waitcnt lgkmcnt(0)", f"s_mov_b32 s{sTS+1+k}, s6"]
    V.at("tid",0,1)
    XF=V.at("XF",128,128)
    e("s_cmp_ge_u32 s2, 256"); e("s_cbranch_scc1 L_end")
    for s,o in ((sX,0),(sWIN,48),(sWS,96),(sWSP,56),(sBSP,64),(sWOUT,72),(sOUT,80)):
        e(f"s_load_dwordx2 s[{s}:{s+1}], s[0:1], {o}")
    if DIAGON:
        e(f"s_memtime s[{sTS}:{sTS+1}]"); nts[0]=1; tsn.append("start")
        e("s_memrealtime s[100:101]")
    vL=V.a("L"); vN=V.a("n"); vG=V.a("g"); vL16=V.a("L16")
    t0=V.a("t0",2); t1=t0+1; t2=V.a("t2",2); t3=t2+1; t4=V.a("t4",2); t5=t4+1; t6=V.a("t6",2); t7=t6+1
    e(f"v_lshrrev_b32 v{t0}, 6, v0")
    e(f"v_and_b32 v{vL}, 63, v0")
    e(f"v_readfirstlane_b32 s{sW}, v{t0}")
    if MAPB==2:
        e(f"s_bfe_u32 s{sT0}, s2, 0x20001"); e(f"s_lshl_b32 s{sT0}, s{sT0}, 3")
        e(f"s_lshr_b32 s{sT1}, s2, 5"); e(f"s_add_u32 s{sI}, s{sT0}, s{sT1}")
        e(f"s_and_b32 s{sT0}, s2, 1"); e(f"s_lshl_b32 s{sT0}, s{sT0}, 2")
        e(f"s_bfe_u32 s{sT1}, s2, 0x20003"); e(f"s_add_u32 s{sJ}, s{sT0}, s{sT1}")
    else:
        e(f"s_and_b32 s{sT0}, s2, 7"); e(f"s_lshl_b32 s{sT0}, s{sT0}, 2")
        e(f"s_lshr_b32 s{sT1}, s2, 6"); e(f"s_add_u32 s{sI}, s{sT0}, s{sT1}")
        e(f"s_bfe_u32 s{sJ}, s2, 0x30003")
    e(f"v_and_b32 v{vN}, 15, v0"); e(f"v_bfe_u32 v{vG}, v0, 4, 2"); e(f"v_lshlrev_b32 v{vL16}, 4, v{vL}")
    e(f"s_lshr_b32 s{sSH}, s{sW}, 1"); e(f"s_and_b32 s{sFH}, s{sW}, 1")
    e(f"s_mul_i32 s{sF0}, s{sJ}, 88"); e(f"s_cmp_eq_u32 s{sJ}, 7"); e(f"s_cselect_b32 s{sT0}, 8, 0"); e(f"s_sub_u32 s{sF0}, s{sF0}, s{sT0}")
    e(f"s_cmp_lt_u32 s{sJ}, 6"); e(f"s_cselect_b32 s{sNOCT}, 11, 10")
    for s,n in ((sX,2097152),(sWIN,512*2752),(sWS,WSSZ),(sWSP,8388608),(sBSP,4096),(sWOUT,688*1024),(sOUT,2097152)):
        e(f"s_mov_b32 s{s+2}, {n}"); e(f"s_mov_b32 s{s+3}, 0x20000")
    if isinstance(ROT,tuple):
        si,mi,mj,mx=ROT
        e(f"s_lshr_b32 s{sROT}, s{sI}, {si}"); e(f"s_mul_i32 s{sROT}, s{sROT}, {mi}")
        if mj: e(f"s_mul_i32 s{sT0}, s{sJ}, {mj}"); e(f"s_add_u32 s{sROT}, s{sROT}, s{sT0}")
        if mx: e(f"s_mul_i32 s{sT0}, s2, {mx}"); e(f"s_add_u32 s{sROT}, s{sROT}, s{sT0}")
        e(f"s_and_b32 s{sROT}, s{sROT}, 7")
    elif ROT:
        if MAPB==2: e(f"s_lshl_b32 s{sROT}, s{sJ}, 1"); e(f"s_add_u32 s{sROT}, s{sROT}, s{sI}")
        else: e(f"s_lshl_b32 s{sROT}, s{sI}, 1"); e(f"s_add_u32 s{sROT}, s{sROT}, s{sJ}")
        e(f"s_and_b32 s{sROT}, s{sROT}, 7")
    else: e(f"s_mov_b32 s{sROT}, 0")
    xd0=V.a("xd0"); xd1=V.a("xd1")
    e(f"s_lshl_b32 s{sT0}, s{sFH}, 10"); e(f"s_lshl_b32 s{sT1}, s{sSH}, 5"); e(f"s_add_u32 s{sZ}, s{sT1}, s{sI}")
    e(f"s_add_u32 s{sT0}, s{sT0}, s{sZ}"); e(f"s_lshl_b32 s{sT2}, s{sT0}, 10")
    e(f"v_lshrrev_b32 v{t0}, 3, v{vL}"); e(f"v_and_b32 v{t1}, 7, v{vL}"); e(f"v_xor_b32 v{t1}, v{t1}, v{vG}")
    e(f"v_lshlrev_b32 v{t1}, 4, v{t1}"); e(f"v_lshl_add_u32 v{t1}, v{t0}, 16, v{t1}"); e(f"v_add_u32 v{xd0}, s{sT2}, v{t1}")
    e(f"v_xor_b32 v{xd1}, 64, v{xd0}"); e(f"v_add_u32 v{xd1}, {8*65536-1024}, v{xd1}")
    e(f"s_lshl_b32 s{sXM}, s{sW}, 11"); e(f"s_add_u32 s{sXM}, s{sXM}, {XB}")
    e(f"s_mul_i32 s{sWM}, s{sW}, 3072")
    wd=[V.a(f"wd{q}") for q in range(3)]
    e(f"s_mul_i32 s{sT0}, s{sW}, {16*2752}"); e(f"s_lshl_b32 s{sT1}, s{sF0}, 1"); e(f"s_add_u32 s{sT0}, s{sT0}, s{sT1}")
    e(f"v_mov_b32 v{t4}, {OOB}")
    for q in range(3):
        if q: e(f"v_add_u32 v{t0}, {64*q}, v{vL}")
        idx = t0 if q else vL
        e(f"v_mul_u32_u24 v{t1}, 171, v{idx}"); e(f"v_lshrrev_b32 v{t1}, 11, v{t1}")
        e(f"v_mad_i32_i24 v{t2}, v{t1}, -12, v{idx}")
        if q==1:
            e(f"v_lshrrev_b32 v{t3}, 2, v{t1}"); e(f"v_and_b32 v{t3}, 2, v{t3}"); e(f"v_xor_b32 v{t2}, v{t2}, v{t3}")
        if q==2: e(f"v_xor_b32 v{t2}, 2, v{t2}")
        e(f"v_cmp_gt_u32 vcc, s{sNOCT}, v{t2}")
        e(f"v_mul_u32_u24 v{t1}, 2752, v{t1}"); e(f"v_lshl_add_u32 v{t1}, v{t2}, 4, v{t1}")
        if q: e(f"s_sub_u32 s{sT0}, s{sT0}, 1024")
        e(f"v_add_u32 v{t1}, s{sT0}, v{t1}")
        e(f"v_cndmask_b32 v{wd[q]}, v{t4}, v{t1}, vcc")
    e("s_waitcnt lgkmcnt(0)")
    e(ts("karg"))
    def issue_x(kk):
        return [[f"s_add_u32 m0, s{sXM}, {kk*8192}", f"s_add_u32 s{sKX}, s{sROT}, {kk}", f"s_and_b32 s{sKX}, s{sKX}, 7", f"s_lshl_b32 s{sKX}, s{sKX}, 7",
                 I(f"buffer_load_dwordx4 v{xd0}, {srd(sX)}, s{sKX} offen {NT} lds", f"st{kk}")],
                I(f"buffer_load_dwordx4 v{xd1}, {srd(sX)}, s{sKX} offen offset:1024 {NT} lds", f"st{kk}")]
    def issue_w(q):
        return [[f"s_add_u32 m0, s{sWM}, {WB+(q%6)*12288}", f"s_add_u32 s{sKW}, s{sROT}, {q%8}", f"s_and_b32 s{sKW}, s{sKW}, 7", f"s_mul_i32 s{sKW}, s{sKW}, {64*2752}"]+([f"s_add_u32 s{sKW}, s{sKW}, 1376"] if q<8 else [])+
                [I(f"buffer_load_dwordx4 v{wd[0]}, {srd(sWIN)}, s{sKW} offen {NT} lds", f"st{q}")],
                I(f"buffer_load_dwordx4 v{wd[1]}, {srd(sWIN)}, s{sKW} offen offset:1024 {NT} lds", f"st{q}"),
                I(f"buffer_load_dwordx4 v{wd[2]}, {srd(sWIN)}, s{sKW} offen offset:2048 {NT} lds", f"st{q}")]
    dmas=[]; vNV=V.a('vNV')
    for kk in range(PRE):
        dmas+=issue_x(kk)+issue_w(kk)
        if IST: dmas.append(ts(f"d{kk}"))
        if kk==PRE-1: dmas.append(f"buffer_load_dword v{vNV}, off, {srd(sWS)}, 0 sc1")
        if kk==0 and PF:
            dmas.append([f"s_getpc_b64 s[6:7]", "L_pc:", f"s_lshr_b32 s{sT3}, s2, 3", f"s_mul_i32 s{sT3}, s{sT3}, 1280", f"v_lshrrev_b32 v{t6}, 4, v0", f"v_min_u32 v{t6}, 9, v{t6}", f"v_lshl_add_u32 v{t6}, v{t6}, 7, s{sT3}", f"v_min_u32 v{t6}, L_end-L_pc, v{t6}", f"global_load_dword v{t7}, v{t6}, s[6:7]"])
    C0=C; C=[]; e=C.append
    xa=[V.a("xa0"),V.a("xa1")]; wa=[V.a("wa0"),V.a("wa1")]
    e(f"v_lshrrev_b32 v{t0}, 1, v{vN}"); e(f"v_xor_b32 v{t0}, v{t0}, v{vG}"); e(f"v_lshlrev_b32 v{t0}, 4, v{t0}")
    e(f"v_lshl_add_u32 v{t0}, v{vN}, 7, v{t0}")
    e(f"s_lshl_b32 s{sT0}, s{sSH}, 12"); e(f"s_add_u32 s{sT0}, s{sT0}, {XB}")
    e(f"v_add_u32 v{xa[0]}, s{sT0}, v{t0}"); e(f"v_xor_b32 v{xa[1]}, 64, v{xa[0]}")
    e(f"v_lshrrev_b32 v{t0}, 2, v{vN}"); e(f"v_lshl_add_u32 v{t0}, v{vG}, 3, v{t0}"); e(f"v_mul_u32_u24 v{t0}, 192, v{t0}")
    e(f"v_and_b32 v{t1}, 1, v{vG}"); e(f"v_xor_b32 v{t1}, s{sFH}, v{t1}"); e(f"v_lshl_add_u32 v{t0}, v{t1}, 5, v{t0}")
    e(f"v_and_b32 v{t1}, 3, v{vL}"); e(f"v_lshl_add_u32 v{wa[0]}, v{t1}, 3, v{t0}"); e(f"v_add_u32 v{wa[1]}, 36864, v{wa[0]}")
    e(f"v_and_b32 v{t0}, 1, v{vL}"); e(f"v_cmp_ne_u32 s[{sMA}:{sMA+1}], 0, v{t0}")
    e(f"v_and_b32 v{t0}, 2, v{vL}"); e(f"v_cmp_ne_u32 s[{sMB}:{sMB+1}], 0, v{t0}")
    ONES=V.a("ONES",4)
    for k in range(4): e(f"v_mov_b32 v{ONES+k}, 0x3f803f80")
    SP=V.a("SP",52)
    aFC,aFS,aAC,aAS=192,208,224,232
    e(f"s_and_b32 s{sT0}, s{sJ}, 1"); e(f"s_lshl_b32 s{sT0}, s{sT0}, 1"); e(f"s_add_u32 s{sR}, s{sT0}, s{sFH}")
    e(f"s_lshr_b32 s{sT0}, s{sJ}, 1"); e(f"s_lshl_b32 s{sT0}, s{sT0}, 6"); e(f"s_add_u32 s{sT0}, s{sT0}, s{sR}")
    e(f"v_lshl_add_u32 v{t0}, v{vN}, 2, s{sT0}")
    e(f"v_subrev_u32 v{t0}, 1, v{t0}"); e(f"v_and_b32 v{t0}, 0xff, v{t0}"); e(f"v_add_u32 v{t0}, 1, v{t0}")
    e(f"v_cvt_f32_u32 v{t0}, v{t0}"); e(f"v_mul_f32 v{t0}, {fl(-1/512)}, v{t0}")
    e(f"s_lshl_b32 s{sT0}, s{sROT}, 6"); e(f"v_lshl_add_u32 v{t1}, v{vG}, 3, s{sT0}"); e(f"v_cvt_f32_u32 v{t1}, v{t1}"); e(f"v_mul_f32 v{t1}, v{t1}, v{t0}"); e(f"v_fract_f32 v{t1}, v{t1}")
    def sincos(step, base, k0, dc, ds, u):
        b=SP+8*(u%2)
        return [f"v_fmamk_f32 v{b}, v{step}, {fl(k0)}, v{base}", f"v_add_f32 v{b+1}, v{b}, v{step}",
                f"v_cos_f32 v{b+2}, v{b}", f"v_cos_f32 v{b+3}, v{b+1}", f"v_sin_f32 v{b+4}, v{b}", f"v_sin_f32 v{b+5}, v{b+1}",
                f"v_cvt_pk_bf16_f32 v{b+2}, v{b+2}, v{b+3}", f"v_accvgpr_write_b32 a{dc}, v{b+2}",
                f"v_cvt_pk_bf16_f32 v{b+4}, v{b+4}, v{b+5}", f"v_accvgpr_write_b32 a{ds}, v{b+4}"]
    for ks in range(4):
        for pr in range(4): e(sincos(t0,t1,32*ks+2*pr,aFC+4*ks+pr,aFS+4*ks+pr,pr))
    for th in range(2):
        e(f"v_add_u32 v{t0}, {16*th}, v{vN}"); e(f"v_cvt_f32_u32 v{t0}, v{t0}"); e(f"v_mul_f32 v{t0}, {fl(1/32)}, v{t0}")
        e(f"v_lshlrev_b32 v{t1}, 2, v{vG}"); e(f"v_cvt_f32_u32 v{t1}, v{t1}"); e(f"v_mul_f32 v{t1}, v{t1}, v{t0}")
        for pr in range(4): e(sincos(t0,t1,16*(pr//2)+2*(pr%2),aAC+4*th+pr,aAS+4*th+pr,pr))
    cons=flat(C); C=C0; e=C.append
    e(dmas[0]); e(mix(cons, dmas[1:], 0, int(len(cons)*IFR)))
    e(f"s_cmp_eq_u32 s{sR}, 0"); e(f"s_cselect_b32 s{sSIG}, 1.0, -1.0")
    e(ts("init"))
    ZA=V.a("ZA",24); CS=SP; SUM=SP+12; SQ=SP+20; WF=SP+28
    def xf(ks,t): return XF+(ks*2+t)*4
    def rd_x(ks):
        kk,kp=divmod(ks,2)
        return [f"ds_read_b128 {v(xf(ks,t),4)}, v{xa[kp]} offset:{kk*8192+t*2048}" for t in range(2)]
    def rd_w(q,kp):
        sl=q%6; b=WF+12*kp
        return [f"ds_read_b64_tr_b16 {v(b+4*c+2*r,2)}, v{wa[sl//3]} offset:{(sl%3)*12288+kp*6144+r*768+c*64}" for c in range(3) for r in range(2)]
    def mm(d,A,B,first): return f"v_mfma_f32_16x16x32_bf16 {v(d,4)}, {A}, {B}, {'0' if first else v(d,4)}"
    def mf_z(ks,stats):
        o=[]; b=WF+12*(ks%2); f=ks==0
        if stats:
            for t in range(2):
                o.append(mm(SQ+4*t, v(xf(ks,t),4), v(xf(ks,t),4), f)); o.append(mm(SUM+4*t, v(ONES,4), v(xf(ks,t),4), f))
        for c in range(3):
            for t in range(2): o.append(mm(ZA+(c*2+t)*4, v(b+4*c,4), v(xf(ks,t),4), f))
            o.append(mm(CS+4*c, v(b+4*c,4), v(ONES,4), f))
        return o
    RES=V.a("RES",8)
    pend=[]; nxt=PRE
    for ks in range(17):
        kk,kp=divmod(ks,2); pre=[]; fill=[]
        if ks<16:
            if kp==0 and kk in BARS:
                nb=min([b for b in BARS if b>kk]+[8])
                pre=[W("vm",f"st{nb-1}"), "s_barrier"]
                if kk==0: pre+=ts("st0")
                hi=min(nb+max(PRE,min(DEP,PRE+kk)), kk+5)
                while nxt<hi:
                    pend+=(issue_x(nxt) if nxt<8 else [])+issue_w(nxt); nxt+=1
                per=-(-len(pend)//(2*(nb-kk)))
            dm=pend[:per]; pend=pend[per:]
            rd=rd_x(ks)+rd_w(kk,kp)
            fill=mix(rd, dm, 2)
        if ks==15:
            fill+= [[f"v_lshrrev_b32 v{t0}, 1, v{vG}", f"v_lshrrev_b32 v{t1}, 1, v{vN}", f"v_xor_b32 v{t0}, v{t0}, v{t1}"],
                    [f"v_lshlrev_b32 v{t0}, 4, v{t0}", f"v_lshl_add_u32 v{t0}, v{vN}, 7, v{t0}", f"v_and_b32 v{t1}, 1, v{vG}"],
                    [f"v_lshl_add_u32 v{t0}, v{t1}, 3, v{t0}", f"s_sub_u32 s{sT0}, s{sJ}, s{sROT}", f"s_and_b32 s{sT0}, s{sT0}, 7", f"s_lshl_b32 s{sT0}, s{sT0}, 13", f"s_add_u32 s{sT0}, s{sT0}, s{sXM}", f"v_add_u32 v{t0}, s{sT0}, v{t0}"],
                    [f"ds_read_b64 {v(RES,2)}, v{t0}", f"v_xor_b32 v{t1}, 32, v{t0}", f"ds_read_b64 {v(RES+2,2)}, v{t1}"],
                    [f"v_xor_b32 v{t1}, 64, v{t0}", f"ds_read_b64 {v(RES+4,2)}, v{t1}", f"v_xor_b32 v{t1}, 0x60, v{t0}", f"ds_read_b64 {v(RES+6,2)}, v{t1}"]]
        if ks==16:
            pre=[W("lg0"), "s_barrier"]
            assert not pend
            fill=[issue for q in range(nxt,14) for issue in issue_w(q)]
        e(pre)
        if ks==0: e(fill)
        else: e(mix(mf_z(ks-1,True), fill))
    V.f("xd0","xd1","xa0","xa1")
    e(ts("z2gemm"))
    vsp=V.a("vsp"); ra=[V.a(f"ra{k}") for k in range(4)]
    spinit=[f"v_xor_b32 v{t0}, v{vN}, v{vG}", f"v_lshlrev_b32 v{t0}, 4, v{t0}", f"v_lshl_add_u32 v{t0}, v{vG}, 18, v{t0}",
            f"s_lshl_b32 s{sT0}, s{sZ}, 1", f"s_add_u32 s{sT0}, s{sT0}, s{sFH}", f"s_lshl_b32 s{sT0}, s{sT0}, 11", f"v_add_u32 v{vsp}, s{sT0}, v{t0}",
            f"s_mul_i32 s{sSTM}, s{sW}, {STGW}", f"s_add_u32 s{sSTM}, s{sSTM}, {STG}",
            f"v_bfe_u32 v{t0}, v{vL}, 2, 3", f"v_mul_u32_u24 v{t0}, 1088, v{t0}", f"v_and_b32 v{t1}, 3, v{vL}", f"v_lshl_add_u32 v{t0}, v{t1}, 8, v{t0}",
            f"v_lshl_add_u32 v{t0}, v{t1}, 4, v{t0}", f"v_lshrrev_b32 v{t1}, 5, v{vL}", f"v_lshl_add_u32 v{t0}, v{t1}, 7, v{t0}",
            f"v_add_u32 v{ra[0]}, s{sSTM}, v{t0}"]+[f"v_xor_b32 v{ra[k]}, {16*k}, v{ra[0]}" for k in range(1,4)]
    def sp_issue(q):
        kap,tb=divmod(q,2)
        return [[f"s_add_u32 m0, s{sSTM}, {(q%2)*8704+ins*1088}", f"s_mov_b32 s{sT3}, {ins*1048576+tb*1024+kap*256}",
                 I(f"buffer_load_dwordx4 v{vsp}, {srd(sWSP)}, s{sT3} offen {NT} lds", f"sp{q}")] for ins in range(8)]
    def sp_read(q):
        r=[I(f"ds_read_b128 {a((q*8+x)*4,4)}, v{ra[x%4]} offset:{(q%2)*8704+(x//4)*64}", f"spr{q}") for x in range(8)]
        r[0]=[W("vm",f"sp{q}"), r[0]]
        return r
    def sp_step(q):
        o=sp_read(q)
        if q+2<8:
            i2=sp_issue(q+2); i2[0]=[W("lg",f"spr{q}")]+i2[0]; o+=i2
        return o
    e(f"v_readfirstlane_b32 s{sNON}, v{vNV}")
    e(spinit)
    e(f"s_mul_i32 s{sNON}, s{sNON}, 1664525"); e(f"s_add_u32 s{sNON}, s{sNON}, 1013904223")
    e(f"s_lshr_b32 s{sN1}, s{sNON}, 8"); e(f"s_lshr_b32 s{sN2}, s{sNON}, 16"); e(f"s_lshr_b32 s{sN3}, s{sNON}, 24"); e(f"s_movk_i32 s{sFF}, 0xff")
    NM=V.a("NM",2); K1=V.a("K1",2); K0=V.a("K0",2); IR=V.a("IR",2); RS=V.a("RS",2)
    k0=-2*math.log2(math.e)*math.sqrt(2/math.pi); k1=k0*0.044715
    e(f"v_lshrrev_b32 v{t0}, 2, v{vN}"); e(f"v_lshl_add_u32 v{t0}, v{t0}, 4, v{vN}"); e(f"v_lshlrev_b32 v{t0}, 2, v{t0}")
    for t in range(2):
        s=SQ+4*t
        e(f"v_cndmask_b32 v{s}, v{s}, v{s+1}, s[{sMA}:{sMA+1}]"); e(f"v_cndmask_b32 v{s+2}, v{s+2}, v{s+3}, s[{sMA}:{sMA+1}]")
        e(f"v_cndmask_b32 v{s}, v{s}, v{s+2}, s[{sMB}:{sMB+1}]")
        e(f"ds_bpermute_b32 v{s+1}, v{t0}, v{s}")
    for t in range(2):
        e(f"v_mul_f32 v{NM+t}, {fl(-1/512)}, v{SUM+4*t}")
        e(f"v_mul_f32 v{t2+t}, v{NM+t}, v{NM+t}"); e(f"v_sub_f32 v{t2+t}, {fl(1e-5)}, v{t2+t}")
    for t in range(2):
        e(f"v_fmamk_f32 v{t2+t}, v{SQ+4*t+1}, {fl(1/512)}, v{t2+t}"); e(f"v_max_f32 v{t2+t}, {fl(1e-5)}, v{t2+t}")
    for t in range(2): e(f"v_rsq_f32 v{RS+t}, v{t2+t}")
    for t in range(2): e(f"v_sqrt_f32 v{IR+t}, v{t2+t}")
    for t in range(2):
        e(f"v_mul_f32 v{K0+t}, {fl(k0)}, v{RS+t}"); e(f"v_mul_f32 v{t2+t}, v{RS+t}, v{RS+t}")
    for t in range(2):
        e(f"v_mul_f32 v{t2+t}, {fl(0.044715)}, v{t2+t}"); e(f"v_mul_f32 v{K1+t}, v{K0+t}, v{t2+t}")
    TM=SP+28
    S2=SP+40; Q2=SP+44
    def gelu(stats):
        o=[]
        for c in range(3):
            P=[(ZA+(c*2+t)*4+2*h, CS+4*c+2*h, t, TM+2*(t*2+h), h) for t in range(2) for h in range(2)]
            for z,cs,t,u,h in P: o.append(f"v_pk_fma_f32 {v(z,2)}, {v(NM,2)}, {v(cs,2)}, {v(z,2)} op_sel:[{t},0,0] op_sel_hi:[{t},1,1]")
            for z,cs,t,u,h in P: o.append(f"v_pk_mul_f32 {v(u,2)}, {v(z,2)}, {v(z,2)}")
            for z,cs,t,u,h in P: o.append(f"v_pk_fma_f32 {v(u,2)}, {v(u,2)}, {v(K1,2)}, {v(K0,2)} op_sel:[0,{t},{t}] op_sel_hi:[1,{t},{t}]")
            for z,cs,t,u,h in P: o.append(f"v_pk_mul_f32 {v(u,2)}, {v(u,2)}, {v(z,2)}")
            for z,cs,t,u,h in P: o+= [f"v_exp_f32 v{u}, v{u}", f"v_exp_f32 v{u+1}, v{u+1}"]
            for z,cs,t,u,h in P: o.append(f"v_pk_fma_f32 {v(u,2)}, {v(u,2)}, {v(IR,2)}, {v(IR,2)} op_sel:[0,{t},{t}] op_sel_hi:[1,{t},{t}]")
            for z,cs,t,u,h in P: o+= [f"v_rcp_f32 v{u}, v{u}", f"v_rcp_f32 v{u+1}, v{u+1}"]
            for z,cs,t,u,h in P: o.append(f"v_pk_mul_f32 {v(z,2)}, {v(z,2)}, {v(u,2)}")
            if stats:
                for z,cs,t,u,h in P:
                    if c==0 and h==0:
                        o.append(f"v_pk_add_f32 {v(S2+2*t,2)}, {v(z,2)}, {v(z+2,2)}"); o.append(f"v_pk_mul_f32 {v(Q2+2*t,2)}, {v(z,2)}, {v(z,2)}")
                    else:
                        if c: o.append(f"v_pk_add_f32 {v(S2+2*t,2)}, {v(S2+2*t,2)}, {v(z,2)}")
                        o.append(f"v_pk_fma_f32 {v(Q2+2*t,2)}, {v(z,2)}, {v(z,2)}, {v(Q2+2*t,2)}")
        return o
    e(mix(gelu(True), sp_issue(0)))
    e(f"v_add_f32 v{t0}, v{S2}, v{S2+1}"); e(f"v_add_f32 v{t2}, v{S2+2}, v{S2+3}")
    e(f"v_add_f32 v{t1}, v{Q2}, v{Q2+1}"); e(f"v_add_f32 v{t3}, v{Q2+2}, v{Q2+3}")
    e(f"v_lshlrev_b32 v{t4}, 3, v{vG}"); e(f"v_lshrrev_b32 v{t4}, v{t4}, s{sNON}")
    e(f"v_permlane32_swap_b32 v{t0}, v{t2}"); e(f"v_permlane32_swap_b32 v{t1}, v{t3}")
    e(f"v_add_f32 v{t0}, v{t0}, v{t2}"); e(f"v_add_f32 v{t1}, v{t1}, v{t3}")
    e(f"v_lshlrev_b32 v{t5}, 2, v{vG}"); e(f"v_lshl_add_u32 v{t5}, v{vN}, 4, v{t5}")
    e(f"v_permlane16_swap_b32 v{t0}, v{t1}")
    e(f"s_lshl_b32 s{sT0}, s{sI}, 1"); e(f"s_add_u32 s{sT0}, s{sT0}, s{sSH}"); e(f"s_lshl_b32 s{sT0}, s{sT0}, 12"); e(f"s_add_u32 s{sT2}, s{sT0}, {STATS}")
    e(f"s_lshl_b32 s{sT0}, s{sJ}, 1"); e(f"s_add_u32 s{sT0}, s{sT0}, s{sFH}"); e(f"s_lshl_b32 s{sT0}, s{sT0}, 8"); e(f"s_add_u32 s{sT0}, s{sT0}, s{sT2}")
    e(f"v_add_f32 v{t0}, v{t0}, v{t1}")
    e(f"v_bfi_b32 v{t0}, s{sFF}, v{t4}, v{t0}")
    e(I(f"buffer_store_dword v{t0}, v{t5}, {srd(sWS)}, s{sT0} offen sc1","stat"))
    e(ts("statpub"))
    UA=SP; RR=SP+32; TR=SP+40; TI=SP+44; TN=SP+48
    def acc(uw,ri,t): return UA+((uw*2+ri)*2+t)*4
    vVS=V.a("vVS"); vZ=V.a("vZ"); vZ2=V.a("vZ2")
    fillD=[[f"v_lshlrev_b32 v{t0}, 4, v{vG}"]+[f"ds_bpermute_b32 v{RR+4*t+r}, v{t0}, v{RS+t} offset:{4*r}" for t in range(2) for r in range(4)]]
    fillD+=sp_issue(1)
    fillD+=[[f"v_permlane16_swap_b32 v{ZA+8*c+r}, v{ZA+8*c+4+r}" for r in range(2*h,2*h+2)] for c in range(3) for h in range(2)]
    fillD+=[[f"s_lshr_b32 s{sT0}, s{sR}, 1", f"s_bfe_u32 s{sT1}, s{sI}, 0x10002", f"s_lshl_b32 s{sT1}, s{sT1}, 1", f"s_xor_b32 s{sT0}, s{sT0}, s{sT1}", f"v_xor_b32 v{t1}, s{sT0}, v{vG}"],
            [f"v_lshlrev_b32 v{t1}, 4, v{t1}", f"v_mul_u32_u24 v{t2}, {VP}, v{vN}"],
            [f"s_lshr_b32 s{sT0}, s{sJ}, 1", f"s_lshl_b32 s{sT0}, s{sT0}, 6", f"s_add_u32 s{sT0}, s{sT0}, s{sZ}", f"s_lshl_b32 s{sT0}, s{sT0}, 2", f"s_add_u32 s{sT0}, s{sT0}, s{sR}",
             f"s_lshl_b32 s{sT0}, s{sT0}, 6", f"v_add3_u32 v{vVS}, v{t1}, v{t2}, s{sT0}"]]
    fillD+=[[f"v_lshrrev_b32 v{t1}, 5, v{vL}", f"s_lshl_b32 s{sT0}, s{sFH}, 1", f"v_add_u32 v{t1}, s{sT0}, v{t1}"],
            [f"s_bfe_u32 s{sT0}, s{sI}, 0x10001", f"v_lshl_add_u32 v{t2}, v{t1}, 1, s{sT0}", f"v_and_b32 v{t3}, 7, v{vL}"],
            [f"v_xor_b32 v{t2}, v{t2}, v{t3}", f"v_lshlrev_b32 v{t2}, 4, v{t2}"],
            [f"v_lshl_add_u32 v{t2}, v{t1}, 10, v{t2}", f"v_bfe_u32 v{t3}, v{vL}, 3, 2"],
            [f"v_mul_u32_u24 v{t3}, 98304, v{t3}", f"s_mul_i32 s{sT0}, s{sJ}, 393216", f"s_lshl_b32 s{sT1}, s{sSH}, 14", f"s_add_u32 s{sT0}, s{sT0}, s{sT1}",
             f"s_lshr_b32 s{sT1}, s{sI}, 3", f"s_lshl_b32 s{sT1}, s{sT1}, 12", f"s_add_u32 s{sT0}, s{sT0}, s{sT1}",
             f"s_and_b32 s{sT1}, s{sI}, 7", f"s_lshl_b32 s{sT1}, s{sT1}, 7", f"s_add_u32 s{sT0}, s{sT0}, s{sT1}", f"v_add3_u32 v{vZ}, v{t2}, v{t3}, s{sT0}"],
            [f"v_add_u32 v{t1}, 8, v{t1}", f"v_cmp_gt_u32 s[{sHM}:{sHM+1}], s{sNOCT}, v{t1}"],
            [f"v_mov_b32 v{t1}, {OOB}"], [f"v_cndmask_b32 v{vZ2}, v{t1}, v{vZ}, s[{sHM}:{sHM+1}]"]]
    fillD+=[f"v_mov_b32 v{t4}, s{sSIG}"]+sp_step(0)
    def fftv(var):
        o=[]; seen=set()
        tab={0:[((0,0),(0,1)),((1,0),(1,1)),((0,0),(0,1)),((1,0),(1,1))],
             1:[((0,0),(0,1)),((1,1),(0,0)),((1,0),(1,1)),((0,1),(1,0))],
             3:[((0,0),(0,1)),((0,1),(1,0)),((1,0),(1,1)),((1,1),(0,0))]}[var]
        for ks in range(16):
            D,k=divmod(ks,4)
            for which,base in ((0,aFC),(1,aFS)):
                uw,ri=tab[D][which]
                for t in range(2):
                    d=acc(uw,ri,t); o.append(mm(d, v(xf(ks,t),4), a(base+4*k,4), d not in seen)); seen.add(d)
        return o
    e(f"s_cmp_eq_u32 s{sR}, 1"); e("s_cbranch_scc1 L_f1"); e(f"s_cmp_eq_u32 s{sR}, 3"); e("s_cbranch_scc1 L_f3")
    e(Var([mix(fftv(0),fillD,0,60)+["s_nop 6","s_branch L_fj"], ["L_f1:"]+mix(fftv(1),fillD,0,60)+["s_nop 6","s_branch L_fj"], ["L_f3:"]+mix(fftv(3),fillD,0,60)+["s_nop 7"]]))
    e("L_fj:")
    for ri in range(2):
        for t in range(2):
            for h in range(2):
                u=acc(0,ri,t)+2*h; w_=acc(1,ri,t)+2*h
                e(f"v_pk_fma_f32 {v(u,2)}, {v(t4,2)}, {v(w_,2)}, {v(u,2)} op_sel_hi:[0,1,1]")
    for ri in range(2):
        for t in range(2):
            for h in range(2):
                u=acc(0,ri,t)+2*h; e(f"v_pk_mul_f32 {v(u,2)}, {v(u,2)}, {v(RR+4*t+2*h,2)}")
    for t in range(2):
        for h in range(2):
            u=acc(0,0,t)+2*h; e(f"v_cvt_pk_bf16_f32 v{TR+2*t+h}, v{u}, v{u+1}"); e(f"v_cvt_pk_bf16_f32 v{TN+2*t+h}, -v{u}, -v{u+1}")
            u=acc(0,1,t)+2*h; e(f"v_cvt_pk_bf16_f32 v{TI+2*t+h}, v{u}, v{u+1}")
    VA=SP+16
    for th in range(2):
        e(mm(VA+8*th, v(TR,4), a(aAC+4*th,4), True)); e(mm(VA+8*th+4, v(TI,4), a(aAC+4*th,4), True))
        e(mm(VA+8*th, v(TI,4), a(aAS+4*th,4), False)); e(mm(VA+8*th+4, v(TN,4), a(aAS+4*th,4), False))
    VK=SP+32
    for th in range(2):
        for r in range(4): e(f"v_cvt_pk_bf16_f32 v{VK+4*th+r}, v{VA+8*th+r}, v{VA+8*th+4+r}")
    e(ts("fft"))
    PL=SP; ZP=SP+16
    def spin(name, body_loads, check):
        o=[f"s_mov_b32 s{sCNT}, 0", f"L_{name}:"]+body_loads+["s_waitcnt vmcnt(0)", W("reset")]+check
        o+=["s_cmp_eq_u64 vcc, 0", f"s_cbranch_scc1 L_{name}_d", f"s_add_u32 s{sCNT}, s{sCNT}, 1", f"s_cmp_lt_u32 s{sCNT}, {SPIN}", f"s_cbranch_scc1 L_{name}", f"L_{name}_d:"]
        return o
    sn=[sNON,sN1,sN2,sN3]
    chk=[f"v_xor_b32 v{t0}, s{sNON}, v{PL}", f"v_xor_b32 v{t1}, s{sN1}, v{PL+1}"]
    chk+=[f"v_bitop3_b32 v{t0+k%2}, v{PL+k}, s{sn[k%4]}, v{t0+k%2} bitop3:0xbe" for k in range(2,16)]
    chk+=[f"v_bitop3_b32 v{t0}, v{t0}, v{t1}, s{sFF} bitop3:0xa8", f"v_cmp_ne_u32 vcc, 0, v{t0}"]
    e(spin("s1", [f"buffer_load_dwordx4 {v(PL+4*k,4)}, v{vL16}, {srd(sWS)}, s{sT2} offen offset:{1024*k} sc1" for k in range(4)], chk))
    e(ts("s1"))
    for h in range(2):
        e(f"v_pk_add_f32 {v(PL+2*h,2)}, {v(PL+2*h,2)}, {v(PL+4+2*h,2)}"); e(f"v_pk_add_f32 {v(PL+8+2*h,2)}, {v(PL+8+2*h,2)}, {v(PL+12+2*h,2)}")
    for h in range(2): e(f"v_pk_add_f32 {v(PL+2*h,2)}, {v(PL+2*h,2)}, {v(PL+8+2*h,2)}")
    e(f"v_permlane16_swap_b32 v{PL}, v{PL+2}"); e(f"v_permlane16_swap_b32 v{PL+1}, v{PL+3}")
    e(f"v_pk_add_f32 {v(PL+4,2)}, {v(PL,2)}, {v(PL+2,2)}"); e(f"v_pk_add_f32 {v(PL,2)}, {v(PL,2)}, {v(PL+2,2)}")
    e(f"v_permlane32_swap_b32 v{PL}, v{PL+4}"); e(f"v_permlane32_swap_b32 v{PL+1}, v{PL+5}")
    e(f"v_pk_add_f32 {v(PL,2)}, {v(PL,2)}, {v(PL+4,2)}")
    e(f"v_mul_f32 v{t0}, {fl(-1/688)}, v{PL}"); e(f"v_mul_f32 v{t1}, v{t0}, v{t0}"); e(f"v_sub_f32 v{t1}, {fl(1e-5)}, v{t1}")
    e(f"v_fmamk_f32 v{t1}, v{PL+1}, {fl(1/688)}, v{t1}"); e(f"v_max_f32 v{t1}, {fl(1e-5)}, v{t1}")
    e(f"v_rsq_f32 v{t2}, v{t1}"); e(f"v_mul_f32 v{t3}, v{t0}, v{t2}")
    for c in range(3):
        for k in range(4):
            z=ZA+8*c+2*k; e(f"v_pk_fma_f32 {v(z,2)}, {v(z,2)}, {v(t2,2)}, {v(t2,2)} op_sel:[0,0,1] op_sel_hi:[1,0,1]")
        for k in range(4):
            z=ZA+8*c+2*k; e(f"v_cvt_pk_bf16_f32 v{ZP+4*c+k}, v{z}, v{z+1}")
        e(f"s_mov_b32 s{sT3}, {Z2N+c*32768}")
        e(I(f"buffer_store_dwordx4 {v(ZP+4*c,4)}, v{vZ2 if c==2 else vZ}, {srd(sWS)}, s{sT3} offen sc1","z2n"))
    for th in range(2):
        e(f"s_mov_b32 s{sT3}, {VB+th*16*VP}")
        e(I(f"buffer_store_dwordx4 {v(VK+4*th,4)}, v{vVS}, {srd(sWS)}, s{sT3} offen sc1","z2n"))
    e(ts("z2npub"))
    V.f("vVS","vZ","vZ2")
    vFO=V.a("vFO"); vBT=V.a("vBT",2)
    e(f"v_lshlrev_b32 v{t0}, 2, v0"); e(f"v_cmp_gt_u32 vcc, 32, v0"); e(f"v_mov_b32 v{t1}, {OOB}"); e(f"v_mov_b32 v{vNV}, s{sNON}"); e(f"v_cndmask_b32 v{vFO}, v{t1}, v{t0}, vcc")
    e(f"v_and_b32 v{t0}, 31, v{vL}"); e(f"v_lshlrev_b32 v{t0}, 7, v{t0}"); e(f"s_lshl_b32 s{sT0}, s{sZ}, 1")
    e(f"buffer_load_ushort v{vBT}, v{t0}, {srd(sBSP)}, s{sT0} offen")
    e("s_barrier")
    FLAGKS=8
    spq={1:1, 4:2, 7:3, 10:4, 13:5}
    for ks in range(17):
        kk,kp=divmod(ks,2); pre=[]; fill=[]
        if ks<16: fill=rd_w(8+kk,kp)
        if ks==4:
            pre=[W("lg0"),"s_barrier"]; fill+=issue_w(14)+issue_w(15)
        if ks==12: pre=[W("vm","st15"),"s_barrier"]
        if ks==FLAGKS:
            pre=[W("vm","z2n"),"s_barrier", f"s_lshl_b32 s{sT0}, s{sJ}, 5", f"s_add_u32 s{sT0}, s{sT0}, s{sI}", f"s_lshl_b32 s{sT0}, s{sT0}, 7", f"s_add_u32 s{sT0}, s{sT0}, {F2}",
                 f"buffer_store_dword v{vNV}, v{vFO}, {srd(sWS)}, s{sT0} offen sc1"]+ts("s2flag")
        if ks in spq: fill+=sp_step(spq[ks])[:8]
        if ks-1 in spq: fill+=sp_step(spq[ks-1])[8:]
        e(pre)
        if ks==0: e(fill)
        else: e(mix(mf_z(ks-1,False), fill))
    V.f("XF","wd0","wd1","wd2","wa0","wa1","ONES")
    e(ts("z1gemm"))
    Z1=V.a("Z1",12)
    e(mix(gelu(False), sp_step(6)+sp_step(7)))
    for c in range(3):
        for t in range(2):
            for h in range(2):
                z=ZA+(c*2+t)*4+2*h; e(f"v_cvt_pk_bf16_f32 v{Z1+4*c+2*t+h}, v{z}, v{z+1}")
    for c in range(3):
        for h in range(2): e(f"v_permlane16_swap_b32 v{Z1+4*c+h}, v{Z1+4*c+2+h}")
    V.f("ZA","SP","NM","K1","K0","IR","RS","vsp","ra0","ra1","ra2","ra3")
    e(f"v_lshlrev_b32 v{vBT}, 16, v{vBT}")
    SL=16384
    za=[V.a(f"za{k}") for k in range(8)]; vZL=V.a("vZL"); vRW=V.a("vRW"); vRR=V.a("vRR"); vH=V.a("vH"); vH2=V.a("vH2")
    e(f"s_lshl_b32 s{sT0}, s{sJ}, 2"); e(f"s_add_u32 s{sT0}, s{sT0}, s{sW}"); e(f"s_mul_i32 s{sT0}, s{sT0}, 98304"); e(f"v_add_u32 v{vZL}, s{sT0}, v{vL16}")
    e(f"s_lshl_b32 s{sRM}, s{sW}, 12")
    vP8=V.a("vP8")
    e(f"v_and_b32 v{t0}, 7, v{vL}"); e(f"v_lshlrev_b32 v{vP8}, 7, v{t0}")
    e(f"s_lshl_b32 s{sT0}, s{sJ}, 2"); e(f"s_add_u32 s{sT0}, s{sT0}, s{sW}"); e(f"s_lshl_b32 s{sT0}, s{sT0}, 10"); e(f"s_add_u32 s{sT2}, s{sT0}, {F2}")
    e(ts("z1done"))
    e(spin("s2", [f"buffer_load_dword v{t0}, v{vP8}, {srd(sWS)}, s{sT2} offen sc1"], [f"v_cmp_ne_u32 vcc, s{sNON}, v{t0}"]))
    e(W("lg0")); e("s_barrier")
    e(ts("s2"))
    def zdma(g,o):
        if g>=24 or (g>=16 and o==3): return []
        r=[]
        if o==0: r=[f"s_add_u32 m0, s{sRM}, {(g%NS)*SL}", f"s_mov_b32 s{sKX}, {Z2N+g*4096}"]
        return r+[I(f"buffer_load_dwordx4 v{vZL}, {srd(sWS)}, s{sKX} offen offset:{o*1024} sc1 lds", f"z{g}")]
    C0=C; C=[]; e=C.append
    e(f"v_and_b32 v{t0}, 1, v{vG}"); e(f"v_xor_b32 v{t0}, s{sFH}, v{t0}"); e(f"v_and_b32 v{t1}, 1, v{vL}"); e(f"v_lshl_add_u32 v{t0}, v{t0}, 1, v{t1}")
    e(f"v_mul_u32_u24 v{t0}, {1024+32}, v{t0}")
    e(f"v_lshrrev_b32 v{t1}, 2, v{vN}"); e(f"v_lshl_add_u32 v{t0}, v{t1}, 7, v{t0}")
    e(f"v_lshrrev_b32 v{t1}, 3, v{vN}"); e(f"v_lshrrev_b32 v{t2}, 1, v{vG}"); e(f"v_xor_b32 v{t1}, v{t1}, v{t2}"); e(f"v_lshl_add_u32 v{t0}, v{t1}, 4, v{t0}")
    e(f"v_bfe_u32 v{t1}, v{vL}, 1, 1"); e(f"v_lshl_add_u32 v{t0}, v{t1}, 3, v{t0}")
    e(f"v_lshl_add_u32 v{za[0]}, s{sFH}, 13, v{t0}")
    for k in range(1,4): e(f"v_xor_b32 v{za[k]}, {32*k}, v{za[0]}")
    for k in range(4): e(f"v_add_u32 v{za[4+k]}, {4*SL}, v{za[k]}")
    e(f"s_lshl_b32 s{sT0}, s{sW}, 11"); e(f"s_add_u32 s{sT0}, s{sT0}, {RED}"); e(f"v_add_u32 v{vRR}, s{sT0}, v{vL16}")
    e(f"v_xor_b32 v{vRW}, 2048, v{vRR}")
    e(f"v_and_b32 v{t0}, 1, v{vG}"); e(f"v_lshlrev_b32 v{t0}, 13, v{t0}"); e(f"v_lshl_add_u32 v{t0}, v{vN}, 4, v{t0}")
    e(f"v_lshrrev_b32 v{t1}, 1, v{vG}"); e(f"v_lshl_add_u32 v{t0}, v{t1}, 8, v{t0}")
    e(f"s_mul_i32 s{sT0}, s{sI}, 98304"); e(f"s_lshl_b32 s{sT1}, s{sSH}, 14"); e(f"s_add_u32 s{sT0}, s{sT0}, s{sT1}"); e(f"s_lshl_b32 s{sT1}, s{sFH}, 9"); e(f"s_add_u32 s{sT0}, s{sT0}, s{sT1}")
    e(f"s_lshl_b32 s{sT1}, s{sJ}, 10"); e(f"s_add_u32 s{sT1}, s{sT1}, s{sT0}"); e(f"v_add_u32 v{vH}, s{sT1}, v{t0}")
    e(f"s_mul_i32 s{sT1}, s{sJ}, 768"); e(f"s_min_u32 s{sT1}, s{sT1}, {20*256}"); e(f"s_add_u32 s{sT1}, s{sT1}, s{sT0}"); e(f"v_add_u32 v{t0}, s{sT1}, v{t0}")
    e(f"v_mov_b32 v{t1}, {OOB}"); e(f"v_cndmask_b32 v{vH2}, v{t1}, v{t0}, s[{sHM}:{sHM+1}]")
    AC=V.a("AC0",16); AC1=V.a("AC1",16); ACS=[AC,AC1]; ZF=V.a("ZF",32); RD=V.a("RD",8); HP=V.a("HP",4); HT=V.a("HT",8); BZ=V.a("BZ",8)
    vWO=V.a("vWO"); wo=[[V.a(f"wo{r}{p}") for p in range(4)] for r in range(2)]
    e(f"v_lshrrev_b32 v{t0}, 3, v{vL}"); e(f"v_and_b32 v{t1}, 2, v{t0}"); e(f"v_and_b32 v{t2}, 7, v{vL}")
    e(f"s_lshl_b32 s{sT0}, s{sFH}, 2"); e(f"v_bitop3_b32 v{t1}, v{t1}, v{t2}, s{sT0} bitop3:0x96")
    e(f"v_lshlrev_b32 v{t1}, 4, v{t1}"); e(f"v_lshl_add_u32 v{t1}, v{t0}, 10, v{t1}")
    e(f"s_lshl_b32 s{sT0}, s{sW}, 6"); e(f"s_add_u32 s{sT0}, s{sT0}, s{sJ}"); e(f"s_lshl_b32 s{sT0}, s{sT0}, 7"); e(f"v_add_u32 v{vWO}, s{sT0}, v{t1}")
    e(f"v_lshlrev_b32 v{t0}, 12, v{vG}"); e(f"v_lshrrev_b32 v{t1}, 2, v{vN}"); e(f"v_lshl_add_u32 v{t0}, v{t1}, 7, v{t0}")
    e(f"v_and_b32 v{t1}, 3, v{vL}"); e(f"v_lshl_add_u32 v{t0}, v{t1}, 3, v{t0}"); e(f"v_lshrrev_b32 v{t1}, 3, v{vN}"); e(f"v_lshl_add_u32 v{t0}, v{t1}, 5, v{t0}")
    e(f"v_and_b32 v{t1}, 1, v{vG}"); e(f"v_lshl_add_u32 v{wo[1][0]}, v{t1}, 6, v{t0}")
    for ct in range(1,4): e(f"v_xor_b32 v{wo[1][ct]}, {32*ct}, v{wo[1][0]}")
    for ct in range(4): e(f"v_add_u32 v{wo[0][ct]}, {8*SL}, v{wo[1][ct]}")
    TW=V.a("TW",16); H0=V.a("H0",32); va=[V.a(f"va{k}") for k in range(4)]; WR=H0
    vPA=V.a("vPA"); vPV=V.a("vPV"); vHL=V.a("vHL"); vHL5=V.a("vHL5"); vPC=V.a("vPC")
    sMI,sRHO,sVB,sFP,sFS=sXM,sSTM,sWM,sN1,sN2
    e([f"s_cmp_ge_u32 s{sJ}, 4", f"s_cselect_b32 s{sMI}, -1, 0"]); e(f"s_and_b32 s{sT0}, s{sMI}, 0x80000000"); e(f"s_or_b32 s{sT0}, s{sT0}, {fl(1/2048)}")
    e(f"s_lshl_b32 s{sT1}, s{sFH}, 10"); e(f"s_add_u32 s{sT1}, s{sT1}, s{sZ}")
    e(f"v_lshl_add_u32 v{t0}, v{vN}, 6, s{sT1}"); e(f"v_cvt_f32_u32 v{t0}, v{t0}"); e(f"v_mul_f32 v{t0}, s{sT0}, v{t0}")
    e(f"v_lshlrev_b32 v{t1}, 2, v{vG}"); e(f"v_cvt_f32_u32 v{t1}, v{t1}"); e(f"v_mul_f32 v{t1}, v{t1}, v{t0}")
    for kv in range(4):
        for q in range(4):
            e(f"v_fmamk_f32 v{WR+q}, v{t0}, {fl(16*kv+q)}, v{t1}")
        for q in range(4): e(f"v_cos_f32 v{WR+4+q}, v{WR+q}"); e(f"v_sin_f32 v{WR+q}, v{WR+q}")
        for q in range(4): e(f"v_cvt_pk_bf16_f32 v{TW+4*kv+q}, v{WR+4+q}, v{WR+q}")
    e(f"s_xor_b32 s{sT0}, s{sI}, s{sMI}"); e(f"s_sub_u32 s{sT0}, s{sT0}, s{sMI}"); e(f"s_and_b32 s{sT0}, s{sT0}, 31"); e(f"s_mul_i32 s{sVB}, s{sT0}, {VP}"); e(f"s_add_u32 s{sVB}, s{sVB}, {VB}")
    e(f"s_xor_b32 s{sRHO}, s{sJ}, s{sMI}"); e(f"s_and_b32 s{sRHO}, s{sRHO}, 3")
    e(f"v_and_b32 v{t4}, 1, v{vG}"); e(f"v_lshlrev_b32 v{t4}, 1, v{t4}"); e(f"v_lshlrev_b32 v{t5}, 10, v{vG}"); e(f"v_add_u32 v{t5}, {VL}, v{t5}")
    for ct in range(4):
        e(f"v_add_u32 v{t0}, {16*ct}, v{vN}"); e(f"v_xor_b32 v{t0}, s{sMI}, v{t0}"); e(f"v_subrev_u32 v{t0}, s{sMI}, v{t0}")
        e(f"v_bfe_u32 v{t1}, v{t0}, 4, 2"); e(f"v_bfe_u32 v{t2}, v{t0}, 1, 1"); e(f"v_bitop3_b32 v{t1}, v{t1}, v{t2}, v{t4} bitop3:0x96")
        e(f"v_lshl_add_u32 v{t1}, v{t1}, 4, v{t5}"); e(f"v_and_b32 v{t2}, 3, v{t0}"); e(f"v_lshl_add_u32 v{t1}, v{t2}, 6, v{t1}")
        e(f"v_and_b32 v{t2}, 12, v{t0}"); e(f"v_add_u32 v{va[ct]}, v{t1}, v{t2}")
    e(f"v_bfe_u32 v{t0}, v{vN}, 2, 1"); e(f"v_lshlrev_b32 v{t0}, 5, v{t0}"); e(f"v_lshl_add_u32 v{t0}, v{vN}, 8, v{t0}"); e(f"v_add_u32 v{vPA}, s{sRM}, v{t0}")
    e(f"s_mul_i32 s{sT0}, s{sI}, 12"); e(f"s_add_u32 s{sT0}, s{sT0}, s{sW}"); e(f"s_lshl_b32 s{sT0}, s{sT0}, 13"); e(f"v_add_u32 v{vHL}, s{sT0}, v{vL16}")
    e(f"v_cmp_gt_u32 vcc, 32, v{vL}"); e(f"v_mov_b32 v{t1}, {OOB}"); e(f"v_lshlrev_b32 v{t0}, 2, v{vL}"); e(f"v_cndmask_b32 v{vHL5}, v{t1}, v{vHL}, vcc"); e(f"v_cndmask_b32 v{vFO}, v{t1}, v{t0}, vcc")
    e(f"v_lshlrev_b32 v{vP8}, 7, v{vN}")
    e(f"s_lshl_b32 s{sT0}, s{sI}, 1"); e(f"s_add_u32 s{sT0}, s{sT0}, s{sSH}"); e(f"s_lshl_b32 s{sT0}, s{sT0}, 11"); e(f"s_add_u32 s{sFP}, s{sT0}, {F3}")
    e(f"s_lshl_b32 s{sT0}, s{sJ}, 1"); e(f"s_add_u32 s{sT0}, s{sT0}, s{sFH}"); e(f"s_lshl_b32 s{sT0}, s{sT0}, 7"); e(f"s_add_u32 s{sFS}, s{sT0}, s{sFP}")
    setup=C; C=C0; e=C.append
    pro=[zdma(g,o) for g in range(NP) for o in range(4)]
    e(pro[0]); e(mix(setup, pro[1:], 0, int(len(setup)*0.9)))
    e([f"s_lshl_b32 s{sT0}, s2, 2", f"s_or_b32 s{sT0}, s{sT0}, s{sW}", f"s_cmp_eq_u32 s{sT0}, 0", f"s_cselect_b32 s{sT0}, 0, {OOB}", f"buffer_store_dword v{vNV}, v{vFO}, {srd(sWS)}, s{sT0} offen sc1"])
    def zrd(x):
        g,k=divmod(x,4); sl=g%NS; r_=za[k+4*(sl//4)]; of=(sl%4)*SL
        r=[I(f"ds_read_b64_tr_b16 {v(ZF+8*(x%4)+2*n,2)}, v{r_} offset:{of+(n//2)*4096+(n%2)*512}", f"zr{x}") for n in range(4)]
        if k==0: r[0]=[W("vm",f"z{g}"), "s_barrier", r[0]]
        return r
    def wo_lds(kap): return (8*SL+(kap//4)*SL+(kap%4)*1024) if kap<8 else (((kap-8)//4)*SL+(kap%4)*1024)
    def wo_dma(kap):
        r=[f"s_add_u32 m0, s{sRM}, {wo_lds(kap)}"]
        if kap<16:
            r.append(f"s_mov_b32 s{sT3}, {(f0(kap%8)+32*(kap//8))*1024}")
        elif kap<21:
            k=kap-16
            r+=[f"s_add_u32 s{sT3}, s{sW}, {4*k}", f"s_mul_i32 s{sT3}, s{sT3}, 43", f"s_lshr_b32 s{sT3}, s{sT3}, 7", f"s_lshl_b32 s{sT3}, s{sT3}, 16", f"s_add_u32 s{sT3}, s{sT3}, {(32*k+64)*1024}"]
        else: r.append(f"s_mov_b32 s{sT3}, {672*1024}")
        return r+[I(f"buffer_load_dwordx4 v{vWO}, {srd(sWOUT)}, s{sT3} offen {NT} lds", f"wo{kap}")]
    def red_wr(c):
        return [I(f"ds_write_b128 v{vRW}, {v(ACS[c%2]+8+4*x,4)} offset:{x*1024}", f"rw{c}") for x in range(2)]
    def red_rd(c):
        return [f"ds_read_b128 {v(RD+4*x,4)}, v{vRR} offset:{x*1024}" for x in range(2)]
    def red_own(c, pk):
        A=ACS[c%2]
        if pk: return [f"v_pk_fma_f32 {v(A+2*k,2)}, {v(A+2*k,2)}, {v(HT+2*k,2)}, {v(BZ+2*k,2)}" for k in range(4)]
        return [f"v_fma_f32 v{A+k}, v{A+k}, v{HT+k}, v{BZ+k}" for k in range(8)]
    def red_alu(c, pk):
        o=[]; A=ACS[c%2]
        if pk: o+=[f"v_pk_fma_f32 {v(A+2*k,2)}, {v(RD+2*k,2)}, {v(HT+2*k,2)}, {v(A+2*k,2)}" for k in range(4)]
        else: o+=[f"v_fmac_f32 v{A+k}, v{RD+k}, v{HT+k}" for k in range(8)]
        for k in range(4): o.append(f"v_cvt_pk_bf16_f32 v{HP+k}, v{A+2*k}, v{A+2*k+1}")
        return o
    def z1_unp(c):
        return [x for k in range(4) for x in (f"v_lshlrev_b32 v{HT+2*k}, 16, v{Z1+4*c+k}", f"v_and_b32 v{HT+2*k+1}, 0xffff0000, v{Z1+4*c+k}")]+[f"v_mul_f32 v{BZ+k}, v{vBT}, v{HT+k}" for k in range(8)]
    def h_st(c):
        return [f"s_mov_b32 s{sT0}, {HB+c*32768}", I(f"buffer_store_dwordx4 {v(HP,4)}, v{vH2 if c==2 else vH}, {srd(sWS)}, s{sT0} offen sc1", f"h{c}")]
    def f3flag(c):
        return [f"s_add_u32 s{sT0}, s{sFS}, {c*131072}", W("vm",f"h{c}"), f"buffer_store_dword v{vNV}, v{vFO}, {srd(sWS)}, s{sT0} offen sc1"]
    def f3poll(c):
        return [f"s_add_u32 s{sT2}, s{sFP}, {c*131072}", f"buffer_load_dword v{vPC}, v{vP8}, {srd(sWS)}, s{sT2} offen sc1"]
    def f3chk(c):
        n=f"c{c}"
        SLOW.extend([f"L_s{n}:", f"s_mov_b32 s{sCNT}, 0", f"L_l{n}:", f"buffer_load_dword v{vPC}, v{vP8}, {srd(sWS)}, s{sT2} offen sc1", "s_waitcnt vmcnt(0)",
                     f"v_cmp_ne_u32 vcc, s{sNON}, v{vPC}", f"s_cbranch_vccz L_b{n}", f"s_add_u32 s{sCNT}, s{sCNT}, 1", f"s_cmp_lt_u32 s{sCNT}, {SPIN}", f"s_cbranch_scc1 L_l{n}", f"s_branch L_b{n}"])
        return [f"v_cmp_ne_u32 vcc, s{sNON}, v{vPC}", f"s_cbranch_vccnz L_s{n}", f"L_b{n}:"]
    vdma=[[f"s_lshl_b32 s{sT1}, s{sRHO}, 14", f"s_add_u32 m0, s{sRM}, {VL}", f"s_add_u32 s{sT1}, s{sT1}, s{sRM}", f"s_add_u32 s{sT1}, s{sT1}, s{sVB}",
           I(f"buffer_load_dwordx4 v{vL16}, {srd(sWS)}, s{sT1} offen sc1 lds","v")]]
    vdma+=[I(f"buffer_load_dwordx4 v{vL16}, {srd(sWS)}, s{sT1} offen offset:{1024*k} sc1 lds","v") for k in range(1,4)]
    vdma+=[[f"s_sub_u32 s{sT1}, s{sRHO}, s{sMI}", f"s_and_b32 s{sT1}, s{sT1}, 3", f"s_lshl_b32 s{sT1}, s{sT1}, 14", f"s_add_u32 s{sT1}, s{sT1}, s{sVB}"],
           [f"s_cmp_eq_u32 s{sJ}, 0", f"s_cselect_b32 s{sT1}, {OOB}, s{sT1}", f"buffer_load_dword v{vPV}, v{vPA}, {srd(sWS)}, s{sT1} offen sc1"]]
    def hld(c, dst):
        return [([f"s_mov_b32 s{sKW}, {HB+c*32768+k*1024}"] if k%4==0 else [])+[f"buffer_load_dwordx4 {v(dst+4*k,4)}, v{vHL5 if (c,k)==(2,5) else vHL}, {srd(sWS)}, s{sKW} offen offset:{(k%4)*1024} sc1"] for k in range(8 if c<2 else 6)]
    e(ts("p2pro"))
    LA=4; e(zrd(0)); e(zrd(1))
    ex={y:[] for y in range(193)}; dx={y:[] for y in range(193)}
    def spread(units, y0, per, d=None):
        for k,u in enumerate(units): (ex if d is None else d)[min(192,y0+int(k/per))].append(u)
        return y0+int((len(units)-1)/per)
    yy=0
    for G in range(NP,24):
        yy=max(yy, 8*(G-NS+2)-LA+2)
        for o in range(4):
            while any(g0<=yy<g0+2*GAP[2] for g0 in GAP[:2]): yy+=2
            if zdma(G,o): dx[yy].append(zdma(G,o)); yy+=2
    zend=yy
    spread(z1_unp(0), 21, .5)
    for c in range(2):
        b=64*(c+1)
        spread(red_wr(c), b+RW, 1)
        yb=b+8-LA
        if yb<b+RW+3: yb+=8
        ex[yb-1].append(W("lg",f"rw{c}"))
        spread(red_own(c,False), b+RW+2, 2)
        spread(red_rd(c), yb, 1); ye=spread(red_alu(c,False), max(yb+3,b+RW+6), 2); dx[(ye+1)|1].append(h_st(c))
        spread(z1_unp(c+1), ye+3, .5)
        dx[FX[c]].append(f3flag(c))
    dx[PX[0]].append(f3poll(0))
    spread([wo_dma(k) for k in range(8)], zend, .5, dx)
    assert PX[1]>=zend+16
    ex[PX[1]-1].append(f3chk(0))
    spread(vdma+hld(0,H0), PX[1], VR, dx)
    for y in range(192):
        x,q=divmod(y,2); g,k=divmod(x,4); c=g//8; d=ACS[c%2]
        if q==0: e(W("lg",f"zr{x}"))
        e(f"v_mfma_f32_32x32x16_bf16 {v(d,16)}, {v(ZF+4*(y%8),4)}, {a(((k*2+q)*8+g%8)*4,4)}, {'0' if y%64==0 else v(d,16)}")
        e(dx[y])
        if x+2<96: e(zrd(x+2)[1:] if q else zrd(x+2)[0])
        e(ex[y])
        if P2S and q==1 and x in P2S: e(ts(f"x{x}"))
    e(ts("p2"))
    V.f("ZF","vZL","AC1",*[f"za{k}" for k in range(8)])
    assert not ex[192]; e(dx[192][:2]); e(red_wr(2)); e(red_own(2,True)); e(W("lg0")); e("s_barrier"); e(red_rd(2)); e(dx[192][2:4]); e(red_alu(2,True)); e(h_st(2)); e(dx[192][4:])
    e(f3poll(1))
    e(ts("h2st"))
    H1=V.a("H1",32); OA=V.a("OA",16)
    oa=[x for k in range(8) for x in (f"v_lshlrev_b32 v{OA+2*k}, 16, v{RES+k}", f"v_and_b32 v{OA+2*k+1}, 0xffff0000, v{RES+k}")]
    e(mix(oa, [wo_dma(k) for k in range(8,16)]))
    V.f("AC0","RD","HT","BZ","Z1","vRW","vRR","vH","vH2","vBT")
    H2=V.a("H2",24); WR=V.a("WR",16)
    e(f"v_add_u32 v{vPA}, {VL}, v{vPA}")
    e(f"ds_write_b32 v{vPA}, v{vPV}")
    e(W("lg0")); e("s_barrier")
    e(ts("vbar"))
    def wrd(kap, d):
        rg=0 if kap<8 else 1; ko=wo_lds(kap)-(8*SL if kap<8 else 0)
        return [f"ds_read_b64_tr_b16 {a(d+ct*4+2*r,2)}, v{wo[rg][ct]} offset:{ko+r*512}" for ct in range(4) for r in range(2)]
    def vrd(kv,d):
        return [f"ds_read2st64_b32 {a(d+ct*4+2*r,2)}, v{va[ct]} offset0:{16*kv+2*r} offset1:{16*kv+2*r+1}" for ct in range(4) for r in range(2)]
    steps=[("v",k) for k in range(4)]+[("w",k) for k in range(22)]
    def rds(n):
        ty,k=steps[n]; return vrd(k,16*(n%16)) if ty=="v" else wrd(k,16*(n%16))
    def mms(n):
        ty,k=steps[n]; B = v(TW+4*k,4) if ty=="v" else v((H0,H1,H2)[k//8]+4*(k%8),4)
        return [mm(OA+4*ct, a(16*(n%16)+4*ct,4), B, False) for ct in range(4)]
    e(rds(0)); e(rds(1))
    for n in range(12):
        if n==FN: e(f3flag(2)); e(ts("c2flag")); e(f3chk(1)); e(hld(1,H1))
        e(mix(mms(n), rds(n+2) if n+2<12 else []))
    if FN==12: e(f3flag(2)); e(ts("c2flag")); e(f3chk(1)); e(hld(1,H1))
    e(ts("g3c0"))
    if WL==0: e([wo_dma(k) for k in range(16,22)])
    e(W("vm","wo15")); e("s_barrier")
    for n in range(12,20):
        e(rds(n))
        if n==PN:
            e(f3poll(2))
            if WL==1: e([wo_dma(k) for k in range(16,22)])
    vTW=V.a("vTW"); vTR=V.a("vTR"); vO=V.a("vO")
    fin=[[f"s_mul_i32 s{sT0}, s{sW}, 2304", f"s_add_u32 s{sT0}, s{sT0}, {TRB}"],
         f"v_mul_u32_u24 v{t0}, 144, v{vN}", f"v_lshl_add_u32 v{t0}, v{vG}, 3, v{t0}", f"v_add_u32 v{vTW}, s{sT0}, v{t0}",
         f"v_lshrrev_b32 v{t0}, 3, v{vL}", f"v_and_b32 v{t1}, 7, v{vL}", f"v_lshlrev_b32 v{t1}, 4, v{t1}",
         f"v_mul_u32_u24 v{t2}, 144, v{t0}", f"v_add3_u32 v{vTR}, v{t2}, v{t1}, s{sT0}",
         [f"s_lshl_b32 s{sT0}, s{sFH}, 10", f"s_add_u32 s{sT0}, s{sT0}, s{sZ}"], [f"s_lshl_b32 s{sT0}, s{sT0}, 3", f"s_add_u32 s{sT0}, s{sT0}, s{sJ}"], f"s_lshl_b32 s{sT0}, s{sT0}, 7",
         f"v_lshlrev_b32 v{t0}, 16, v{t0}", f"v_add3_u32 v{vO}, v{t0}, v{t1}, s{sT0}"]
    c1=flat([mms(n) for n in range(12,20)])
    e(mix(c1[:4*CN], fin))
    e(f3chk(2)); e(ts("s3b")); e(hld(2,H2))
    e(W("vm","wo21")); e("s_barrier")
    e(mix(c1[4*CN:], flat([rds(n) for n in range(20,26)])) if CN<8 else [rds(n) for n in range(20,26)])
    e(ts("g3c1"))
    for n in range(20,26): e(mms(n))
    for ct in range(4):
        for h in range(2): e(f"v_cvt_pk_bf16_f32 v{WR+2*ct+h}, v{OA+4*ct+2*h}, v{OA+4*ct+2*h+1}")
        e(f"ds_write_b64 v{vTW}, {v(WR+2*ct,2)} offset:{32*ct}")
    e(f"s_mov_b32 s{sT3}, {8*65536}")
    for p in range(2): e(f"ds_read_b128 {v(WR+8+4*p,4)}, v{vTR} offset:{1152*p}")
    e(f"buffer_store_dwordx4 {v(WR+8,4)}, v{vO}, {srd(sOUT)}, 0 offen")
    e(f"buffer_store_dwordx4 {v(WR+12,4)}, v{vO}, {srd(sOUT)}, s{sT3} offen")
    if DIAGON:
        e(W("vm0")); e(ts("end"))
        e(f"v_mov_b32 v{t0}, 0")
        for k in range(nts[0]): e(f"v_writelane_b32 v{t0}, s{sTS+1+k if k else sTS}, {k}")
        e("s_memrealtime s[6:7]"); e("s_waitcnt lgkmcnt(0)"); e(f"v_writelane_b32 v{t0}, s100, 40"); e(f"v_writelane_b32 v{t0}, s6, 41")
        e(f"s_lshl_b32 s{sT0}, s2, 2"); e(f"s_add_u32 s{sT0}, s{sT0}, s{sW}"); e(f"s_lshl_b32 s{sT0}, s{sT0}, 8"); e(f"s_add_u32 s{sT0}, s{sT0}, {DIAG}")
        e(f"v_lshlrev_b32 v{t1}, 2, v{vL}")
        e(f"buffer_store_dword v{t0}, v{t1}, {srd(sWS)}, s{sT0} offen")
    if DBG is not None:
        e("s_memrealtime s[6:7]"); e(f"s_load_dwordx2 s[{sBSP}:{sBSP+1}], s[0:1], 88"); e("s_waitcnt lgkmcnt(0)")
        e(f"s_mov_b32 s{sBSP+2}, 256"); e(f"s_mov_b32 s{sBSP+3}, 0x20000")
        e(f"v_subrev_u32 v{t0}, s{sTS}, v{t0}"); e("s_sub_u32 s6, s6, s100"); e(f"v_writelane_b32 v{t0}, s6, 3")
        e(f"s_lshl_b32 s{sT0}, s2, 2"); e(f"s_add_u32 s{sT0}, s{sT0}, s{sW}"); e(f"s_cmp_eq_u32 s{sT0}, {DBG*4}"); e(f"s_cselect_b32 s{sT0}, 0, {OOB}")
        e(f"v_subrev_u32 v{t1}, 12, v{t1}"); e(f"v_min_u32 v{t1}, {OOB}, v{t1}")
        e(f"buffer_store_dword v{t0}, v{t1}, {srd(sBSP)}, s{sT0} offen")
    e("L_end:"); e("s_endpgm")
    for x in SLOW: e(Raw(x))
    st=St(); out=[]; run(C,st,out)
    ref=open("stub.txt").read()
    head=ref[:ref.index(NAME+":")].replace("grid=(4096,1,1) block=(256,1,1) lds=0","grid=(256,1,1) block=(256,1,1) lds=163840")
    tail=ref[ref.index(".section .rodata"):].replace("next_free_vgpr 256","next_free_vgpr 512")
    body="\n".join(x if x.endswith(":") else "    "+x for x in out)
    info=dict(n=len(out), maxvm=st.maxvm, nops=st.nops, peak=V.peak, ts=tsn)
    return head+NAME+":\n"+body+"\n"+tail, info

if __name__=="__main__":
    kw={}
    for x in sys.argv[2:]:
        k,val=x.split("="); kw[k]=eval(val)
    s,info=gen(**kw); open(sys.argv[1],"w").write(s); print(info)
```

```python
import sys, struct, math
from fw import *
NAME="parallel_sum__spectral_fnet__mixer_gmlp__prompt_kernel"
def fl(x): return "0x%08x" % struct.unpack("<I", struct.pack("<f", x))[0]
F2=0x1000; F3=0x80000; STATS=0x40000; Z2N=0x100000; VB=0x400000; VP=65536+256; HB=0x700000; DIAG=0xA00000; WSSZ=0xB00000
OOB=0x7ff00000
WB=0; XB=73728; STG=73728; STGW=21760; RED=114688; VL=65536; TRB=114688
sX,sWIN,sWSP,sWOUT,sOUT,sWS,sBSP = 8,12,16,20,24,28,32
sI,sJ,sW,sSH,sFH,sF0,sNOCT,sNON,sR,sXM,sWM,sT0,sT1,sT2,sT3,sSIG,sCNT,sSTM,sRM,sZ = range(36,56)
sN1,sN2,sN3,sFF,sHM = 56,57,58,59,60
sMA,sMB = 62,64
sROT,sKX,sKW = 3,4,5
sTS=66
def srd(b): return f"s[{b}:{b+3}]"
def v(b,k=1): return f"v{b}" if k==1 else f"v[{b}:{b+k-1}]"
def a(b,k=1): return f"a{b}" if k==1 else f"a[{b}:{b+k-1}]"
def f0(j): return 88*j - (8 if j==7 else 0)

def gen(MAPB=2, NT="", DIAGON=False, SPIN=20000, PF=True, PRE=2, DBG=None, ROT=True, NS=7, NP=5, GAP=(0,0,0), RW=1, FX=(111,175), PX=(137,168), VR=.5, FN=5, PN=15, WL=1, CN=4, P2S=False, IST=False, IFR=0.8, DEP=3, SB='w11', SC0='w12', SC='w13 h0 h1', SD='h2 h3 h4 r0 h5 h6 p1', SD2='r1 h7', SE='h8', SF='r2 h9 h10 r3 h11 w14 w15 h12 r4 h13 p2 h14 r5 h15', SG='r6 c2 z0 z1', SG2='r7', FK=6, RX=(-1,-1,-1), GS=(0,1.), FS=(0,1.), BARS=(0,1,2,3,4,5,6,7)):
    V=Alloc(256); C=[]; e=C.append
    nts=[0]; tsn=[]; SLOW=[]
    def ts(name):
        if not DIAGON: return []
        k=nts[0]; nts[0]+=1; tsn.append(name); assert k<33
        return [W("lg0"), f"s_memtime s[6:7]", "s_waitcnt lgkmcnt(0)", f"s_mov_b32 s{sTS+1+k}, s6"]
    V.at("tid",0,1)
    XF=V.at("XF",128,128)
    e("s_cmp_ge_u32 s2, 256"); e("s_cbranch_scc1 L_end")
    for s,o in ((sX,0),(sWIN,48),(sWS,96),(sWSP,56),(sBSP,64),(sWOUT,72),(sOUT,80)):
        e(f"s_load_dwordx2 s[{s}:{s+1}], s[0:1], {o}")
    if DIAGON:
        e(f"s_memtime s[{sTS}:{sTS+1}]"); nts[0]=1; tsn.append("start")
        e("s_memrealtime s[100:101]")
    vL=V.a("L"); vN=V.a("n"); vG=V.a("g"); vL16=V.a("L16")
    t0=V.a("t0",2); t1=t0+1; t2=V.a("t2",2); t3=t2+1; t4=V.a("t4",2); t5=t4+1; t6=V.a("t6",2); t7=t6+1
    e(f"v_lshrrev_b32 v{t0}, 6, v0")
    e(f"v_and_b32 v{vL}, 63, v0")
    e(f"v_readfirstlane_b32 s{sW}, v{t0}")
    if MAPB==2:
        e(f"s_bfe_u32 s{sT0}, s2, 0x20001"); e(f"s_lshl_b32 s{sT0}, s{sT0}, 3")
        e(f"s_lshr_b32 s{sT1}, s2, 5"); e(f"s_add_u32 s{sI}, s{sT0}, s{sT1}")
        e(f"s_and_b32 s{sT0}, s2, 1"); e(f"s_lshl_b32 s{sT0}, s{sT0}, 2")
        e(f"s_bfe_u32 s{sT1}, s2, 0x20003"); e(f"s_add_u32 s{sJ}, s{sT0}, s{sT1}")
    else:
        e(f"s_and_b32 s{sT0}, s2, 7"); e(f"s_lshl_b32 s{sT0}, s{sT0}, 2")
        e(f"s_lshr_b32 s{sT1}, s2, 6"); e(f"s_add_u32 s{sI}, s{sT0}, s{sT1}")
        e(f"s_bfe_u32 s{sJ}, s2, 0x30003")
    e(f"v_and_b32 v{vN}, 15, v0"); e(f"v_bfe_u32 v{vG}, v0, 4, 2"); e(f"v_lshlrev_b32 v{vL16}, 4, v{vL}")
    e(f"s_lshr_b32 s{sSH}, s{sW}, 1"); e(f"s_and_b32 s{sFH}, s{sW}, 1")
    e(f"s_mul_i32 s{sF0}, s{sJ}, 88"); e(f"s_cmp_eq_u32 s{sJ}, 7"); e(f"s_cselect_b32 s{sT0}, 8, 0"); e(f"s_sub_u32 s{sF0}, s{sF0}, s{sT0}")
    e(f"s_cmp_lt_u32 s{sJ}, 6"); e(f"s_cselect_b32 s{sNOCT}, 11, 10")
    for s,n in ((sX,2097152),(sWIN,512*2752),(sWS,WSSZ),(sWSP,8388608),(sBSP,4096),(sWOUT,688*1024),(sOUT,2097152)):
        e(f"s_mov_b32 s{s+2}, {n}"); e(f"s_mov_b32 s{s+3}, 0x20000")
    if isinstance(ROT,tuple):
        si,mi,mj,mx=ROT
        e(f"s_lshr_b32 s{sROT}, s{sI}, {si}"); e(f"s_mul_i32 s{sROT}, s{sROT}, {mi}")
        if mj: e(f"s_mul_i32 s{sT0}, s{sJ}, {mj}"); e(f"s_add_u32 s{sROT}, s{sROT}, s{sT0}")
        if mx: e(f"s_mul_i32 s{sT0}, s2, {mx}"); e(f"s_add_u32 s{sROT}, s{sROT}, s{sT0}")
        e(f"s_and_b32 s{sROT}, s{sROT}, 7")
    elif ROT:
        if MAPB==2: e(f"s_lshl_b32 s{sROT}, s{sJ}, 1"); e(f"s_add_u32 s{sROT}, s{sROT}, s{sI}")
        else: e(f"s_lshl_b32 s{sROT}, s{sI}, 1"); e(f"s_add_u32 s{sROT}, s{sROT}, s{sJ}")
        e(f"s_and_b32 s{sROT}, s{sROT}, 7")
    else: e(f"s_mov_b32 s{sROT}, 0")
    xd0=V.a("xd0"); xd1=V.a("xd1")
    e(f"s_lshl_b32 s{sT0}, s{sFH}, 10"); e(f"s_lshl_b32 s{sT1}, s{sSH}, 5"); e(f"s_add_u32 s{sZ}, s{sT1}, s{sI}")
    e(f"s_add_u32 s{sT0}, s{sT0}, s{sZ}"); e(f"s_lshl_b32 s{sT2}, s{sT0}, 10")
    e(f"v_lshrrev_b32 v{t0}, 3, v{vL}"); e(f"v_and_b32 v{t1}, 7, v{vL}"); e(f"v_xor_b32 v{t1}, v{t1}, v{vG}")
    e(f"v_lshlrev_b32 v{t1}, 4, v{t1}"); e(f"v_lshl_add_u32 v{t1}, v{t0}, 16, v{t1}"); e(f"v_add_u32 v{xd0}, s{sT2}, v{t1}")
    e(f"v_xor_b32 v{xd1}, 64, v{xd0}"); e(f"v_add_u32 v{xd1}, {8*65536-1024}, v{xd1}")
    e(f"s_lshl_b32 s{sXM}, s{sW}, 11"); e(f"s_add_u32 s{sXM}, s{sXM}, {XB}")
    e(f"s_mul_i32 s{sWM}, s{sW}, 3072")
    wd=[V.a(f"wd{q}") for q in range(3)]
    e(f"s_mul_i32 s{sT0}, s{sW}, {16*2752}"); e(f"s_lshl_b32 s{sT1}, s{sF0}, 1"); e(f"s_add_u32 s{sT0}, s{sT0}, s{sT1}")
    e(f"v_mov_b32 v{t4}, {OOB}")
    for q in range(3):
        if q: e(f"v_add_u32 v{t0}, {64*q}, v{vL}")
        idx = t0 if q else vL
        e(f"v_mul_u32_u24 v{t1}, 171, v{idx}"); e(f"v_lshrrev_b32 v{t1}, 11, v{t1}")
        e(f"v_mad_i32_i24 v{t2}, v{t1}, -12, v{idx}")
        if q==1:
            e(f"v_lshrrev_b32 v{t3}, 2, v{t1}"); e(f"v_and_b32 v{t3}, 2, v{t3}"); e(f"v_xor_b32 v{t2}, v{t2}, v{t3}")
        if q==2: e(f"v_xor_b32 v{t2}, 2, v{t2}")
        e(f"v_cmp_gt_u32 vcc, s{sNOCT}, v{t2}")
        e(f"v_mul_u32_u24 v{t1}, 2752, v{t1}"); e(f"v_lshl_add_u32 v{t1}, v{t2}, 4, v{t1}")
        if q: e(f"s_sub_u32 s{sT0}, s{sT0}, 1024")
        e(f"v_add_u32 v{t1}, s{sT0}, v{t1}")
        e(f"v_cndmask_b32 v{wd[q]}, v{t4}, v{t1}, vcc")
    e("s_waitcnt lgkmcnt(0)")
    e(ts("karg"))
    def issue_x(kk):
        return [[f"s_add_u32 m0, s{sXM}, {kk*8192}", f"s_add_u32 s{sKX}, s{sROT}, {kk}", f"s_and_b32 s{sKX}, s{sKX}, 7", f"s_lshl_b32 s{sKX}, s{sKX}, 7",
                 I(f"buffer_load_dwordx4 v{xd0}, {srd(sX)}, s{sKX} offen {NT} lds", f"st{kk}")],
                I(f"buffer_load_dwordx4 v{xd1}, {srd(sX)}, s{sKX} offen offset:1024 {NT} lds", f"st{kk}")]
    def issue_w(q):
        return [[f"s_add_u32 m0, s{sWM}, {WB+(q%6)*12288}", f"s_add_u32 s{sKW}, s{sROT}, {q%8}", f"s_and_b32 s{sKW}, s{sKW}, 7", f"s_mul_i32 s{sKW}, s{sKW}, {64*2752}"]+([f"s_add_u32 s{sKW}, s{sKW}, 1376"] if q<8 else [])+
                [I(f"buffer_load_dwordx4 v{wd[0]}, {srd(sWIN)}, s{sKW} offen {NT} lds", f"st{q}")],
                I(f"buffer_load_dwordx4 v{wd[1]}, {srd(sWIN)}, s{sKW} offen offset:1024 {NT} lds", f"st{q}"),
                I(f"buffer_load_dwordx4 v{wd[2]}, {srd(sWIN)}, s{sKW} offen offset:2048 {NT} lds", f"st{q}")]
    dmas=[]; vNV=V.a('vNV')
    for kk in range(PRE):
        dmas+=issue_x(kk)+issue_w(kk)
        if IST: dmas.append(ts(f"d{kk}"))
        if kk==PRE-1: dmas.append(f"buffer_load_dword v{vNV}, off, {srd(sWS)}, 0 sc1")
        if kk==0 and PF:
            dmas.append([f"s_getpc_b64 s[6:7]", "L_pc:", f"s_lshr_b32 s{sT3}, s2, 3", f"s_mul_i32 s{sT3}, s{sT3}, 1280", f"v_lshrrev_b32 v{t6}, 4, v0", f"v_min_u32 v{t6}, 9, v{t6}", f"v_lshl_add_u32 v{t6}, v{t6}, 7, s{sT3}", f"v_min_u32 v{t6}, L_end-L_pc, v{t6}", f"global_load_dword v{t7}, v{t6}, s[6:7]"])
    C0=C; C=[]; e=C.append
    xa=[V.a("xa0"),V.a("xa1")]; wa=[V.a("wa0"),V.a("wa1")]
    e(f"v_lshrrev_b32 v{t0}, 1, v{vN}"); e(f"v_xor_b32 v{t0}, v{t0}, v{vG}"); e(f"v_lshlrev_b32 v{t0}, 4, v{t0}")
    e(f"v_lshl_add_u32 v{t0}, v{vN}, 7, v{t0}")
    e(f"s_lshl_b32 s{sT0}, s{sSH}, 12"); e(f"s_add_u32 s{sT0}, s{sT0}, {XB}")
    e(f"v_add_u32 v{xa[0]}, s{sT0}, v{t0}"); e(f"v_xor_b32 v{xa[1]}, 64, v{xa[0]}")
    e(f"v_lshrrev_b32 v{t0}, 2, v{vN}"); e(f"v_lshl_add_u32 v{t0}, v{vG}, 3, v{t0}"); e(f"v_mul_u32_u24 v{t0}, 192, v{t0}")
    e(f"v_and_b32 v{t1}, 1, v{vG}"); e(f"v_xor_b32 v{t1}, s{sFH}, v{t1}"); e(f"v_lshl_add_u32 v{t0}, v{t1}, 5, v{t0}")
    e(f"v_and_b32 v{t1}, 3, v{vL}"); e(f"v_lshl_add_u32 v{wa[0]}, v{t1}, 3, v{t0}"); e(f"v_add_u32 v{wa[1]}, 36864, v{wa[0]}")
    e(f"v_and_b32 v{t0}, 1, v{vL}"); e(f"v_cmp_ne_u32 s[{sMA}:{sMA+1}], 0, v{t0}")
    e(f"v_and_b32 v{t0}, 2, v{vL}"); e(f"v_cmp_ne_u32 s[{sMB}:{sMB+1}], 0, v{t0}")
    ONES=V.a("ONES",4)
    for k in range(4): e(f"v_mov_b32 v{ONES+k}, 0x3f803f80")
    SP=V.a("SP",52)
    aFC,aFS,aAC,aAS=192,208,224,232
    e(f"s_and_b32 s{sT0}, s{sJ}, 1"); e(f"s_lshl_b32 s{sT0}, s{sT0}, 1"); e(f"s_add_u32 s{sR}, s{sT0}, s{sFH}")
    e(f"s_lshr_b32 s{sT0}, s{sJ}, 1"); e(f"s_lshl_b32 s{sT0}, s{sT0}, 6"); e(f"s_add_u32 s{sT0}, s{sT0}, s{sR}")
    e(f"v_lshl_add_u32 v{t0}, v{vN}, 2, s{sT0}")
    e(f"v_subrev_u32 v{t0}, 1, v{t0}"); e(f"v_and_b32 v{t0}, 0xff, v{t0}"); e(f"v_add_u32 v{t0}, 1, v{t0}")
    e(f"v_cvt_f32_u32 v{t0}, v{t0}"); e(f"v_mul_f32 v{t0}, {fl(-1/512)}, v{t0}")
    e(f"s_lshl_b32 s{sT0}, s{sROT}, 6"); e(f"v_lshl_add_u32 v{t1}, v{vG}, 3, s{sT0}"); e(f"v_cvt_f32_u32 v{t1}, v{t1}"); e(f"v_mul_f32 v{t1}, v{t1}, v{t0}"); e(f"v_fract_f32 v{t1}, v{t1}")
    def sincos(step, base, k0, dc, ds, u):
        b=SP+8*(u%2)
        return [f"v_fmamk_f32 v{b}, v{step}, {fl(k0)}, v{base}", f"v_add_f32 v{b+1}, v{b}, v{step}",
                f"v_cos_f32 v{b+2}, v{b}", f"v_cos_f32 v{b+3}, v{b+1}", f"v_sin_f32 v{b+4}, v{b}", f"v_sin_f32 v{b+5}, v{b+1}",
                f"v_cvt_pk_bf16_f32 v{b+2}, v{b+2}, v{b+3}", f"v_accvgpr_write_b32 a{dc}, v{b+2}",
                f"v_cvt_pk_bf16_f32 v{b+4}, v{b+4}, v{b+5}", f"v_accvgpr_write_b32 a{ds}, v{b+4}"]
    for ks in range(4):
        for pr in range(4): e(sincos(t0,t1,32*ks+2*pr,aFC+4*ks+pr,aFS+4*ks+pr,pr))
    for th in range(2):
        e(f"v_add_u32 v{t0}, {16*th}, v{vN}"); e(f"v_cvt_f32_u32 v{t0}, v{t0}"); e(f"v_mul_f32 v{t0}, {fl(1/32)}, v{t0}")
        e(f"v_lshlrev_b32 v{t1}, 2, v{vG}"); e(f"v_cvt_f32_u32 v{t1}, v{t1}"); e(f"v_mul_f32 v{t1}, v{t1}, v{t0}")
        for pr in range(4): e(sincos(t0,t1,16*(pr//2)+2*(pr%2),aAC+4*th+pr,aAS+4*th+pr,pr))
    cons=flat(C); C=C0; e=C.append
    e(dmas[0]); e(mix(cons, dmas[1:], 0, int(len(cons)*IFR)))
    e(f"s_cmp_eq_u32 s{sR}, 0"); e(f"s_cselect_b32 s{sSIG}, 1.0, -1.0")
    e(ts("init"))
    ZA=V.a("ZA",24); CS=SP; SUM=SP+12; SQ=SP+20; WF=SP+28
    def xf(ks,t): return XF+(ks*2+t)*4
    def rd_x(ks):
        kk,kp=divmod(ks,2)
        return [f"ds_read_b128 {v(xf(ks,t),4)}, v{xa[kp]} offset:{kk*8192+t*2048}" for t in range(2)]
    def rd_w(q,kp):
        sl=q%6; b=WF+12*kp
        return [f"ds_read_b64_tr_b16 {v(b+4*c+2*r,2)}, v{wa[sl//3]} offset:{(sl%3)*12288+kp*6144+r*768+c*64}" for c in range(3) for r in range(2)]
    def mm(d,A,B,first): return f"v_mfma_f32_16x16x32_bf16 {v(d,4)}, {A}, {B}, {'0' if first else v(d,4)}"
    def mf_z(ks,stats):
        o=[]; b=WF+12*(ks%2); f=ks==0
        if stats:
            for t in range(2):
                o.append(mm(SQ+4*t, v(xf(ks,t),4), v(xf(ks,t),4), f)); o.append(mm(SUM+4*t, v(ONES,4), v(xf(ks,t),4), f))
        for c in range(3):
            for t in range(2): o.append(mm(ZA+(c*2+t)*4, v(b+4*c,4), v(xf(ks,t),4), f))
            o.append(mm(CS+4*c, v(b+4*c,4), v(ONES,4), f))
        return o
    RES=V.a("RES",8)
    pend=[]; nxt=PRE; done=[]
    def bg(spec):
        o=[]
        for t in spec.split():
            k,n=t[0],int(t[1:]); assert t not in done; done.append(t)
            if k=='w':
                assert n==nxt or f"w{n-1}" in done; o+=issue_w(n)
            elif k=='h': o+=sp_half(n)
            elif k=='r': o+=sp_read(n)
            elif k=='p': o+=poll1() if n==1 else poll2()
            elif k=='c': o+=chk2()
            elif k=='z': o+=[zdma(n,q) for q in range(4)]
            elif k=='n': o+=[[] for _ in range(n%100)]
        return o
    for ks in range(17):
        kk,kp=divmod(ks,2); pre=[]; fill=[]
        if ks<16:
            if kp==0 and kk in BARS:
                nb=min([b for b in BARS if b>kk]+[8])
                pre=[W("vm",f"st{nb-1}"), "s_barrier"]
                if kk==0: pre+=ts("st0")
                hi=min(nb+max(PRE,min(DEP,PRE+kk)), kk+5)
                while nxt<hi:
                    pend+=(issue_x(nxt) if nxt<8 else [])+issue_w(nxt); nxt+=1
                per=-(-len(pend)//(2*(nb-kk)))
            dm=pend[:per]; pend=pend[per:]
            rd=rd_x(ks)+rd_w(kk,kp)
            fill=mix(rd, dm, 2)
        if ks==15:
            fill+= [[f"v_lshrrev_b32 v{t0}, 1, v{vG}", f"v_lshrrev_b32 v{t1}, 1, v{vN}", f"v_xor_b32 v{t0}, v{t0}, v{t1}"],
                    [f"v_lshlrev_b32 v{t0}, 4, v{t0}", f"v_lshl_add_u32 v{t0}, v{vN}, 7, v{t0}", f"v_and_b32 v{t1}, 1, v{vG}"],
                    [f"v_lshl_add_u32 v{t0}, v{t1}, 3, v{t0}", f"s_sub_u32 s{sT0}, s{sJ}, s{sROT}", f"s_and_b32 s{sT0}, s{sT0}, 7", f"s_lshl_b32 s{sT0}, s{sT0}, 13", f"s_add_u32 s{sT0}, s{sT0}, s{sXM}", f"v_add_u32 v{t0}, s{sT0}, v{t0}"],
                    [f"ds_read_b64 {v(RES,2)}, v{t0}", f"v_xor_b32 v{t1}, 32, v{t0}", f"ds_read_b64 {v(RES+2,2)}, v{t1}"],
                    [f"v_xor_b32 v{t1}, 64, v{t0}", f"ds_read_b64 {v(RES+4,2)}, v{t1}", f"v_xor_b32 v{t1}, 0x60, v{t0}", f"ds_read_b64 {v(RES+6,2)}, v{t1}"]]
        if ks==16:
            pre=[W("lg0"), "s_barrier"]
            assert not pend
            fill=bg(SB)
        e(pre)
        if ks==0: e(fill)
        else: e(mix(mf_z(ks-1,True), fill))
    V.f("xd0","xd1","xa0","xa1")
    e(ts("z2gemm"))
    vsp=V.a("vsp"); ra=[V.a(f"ra{k}") for k in range(4)]
    spinit=[f"v_xor_b32 v{t0}, v{vN}, v{vG}", f"v_lshlrev_b32 v{t0}, 4, v{t0}", f"v_lshl_add_u32 v{t0}, v{vG}, 18, v{t0}",
            f"s_lshl_b32 s{sT0}, s{sZ}, 1", f"s_add_u32 s{sT0}, s{sT0}, s{sFH}", f"s_lshl_b32 s{sT0}, s{sT0}, 11", f"v_add_u32 v{vsp}, s{sT0}, v{t0}",
            f"s_mul_i32 s{sSTM}, s{sW}, {STGW}", f"s_add_u32 s{sSTM}, s{sSTM}, {STG}",
            f"v_bfe_u32 v{t0}, v{vL}, 2, 3", f"v_mul_u32_u24 v{t0}, 1088, v{t0}", f"v_and_b32 v{t1}, 3, v{vL}", f"v_lshl_add_u32 v{t0}, v{t1}, 8, v{t0}",
            f"v_lshl_add_u32 v{t0}, v{t1}, 4, v{t0}", f"v_lshrrev_b32 v{t1}, 5, v{vL}", f"v_lshl_add_u32 v{t0}, v{t1}, 7, v{t0}",
            f"v_add_u32 v{ra[0]}, s{sSTM}, v{t0}"]+[f"v_xor_b32 v{ra[k]}, {16*k}, v{ra[0]}" for k in range(1,4)]
    rb=[t4,t5,t6,t7]; sRX=sXM
    tab=sum(sum(((j>>b)&1)<<k for k,b in enumerate(RX) if b>=0)<<(4*j) for j in range(8))
    spinit+=[f"s_lshl_b32 s{sRX}, s{sJ}, 2", f"s_lshr_b32 s{sRX}, {tab}, s{sRX}", f"s_and_b32 s{sRX}, s{sRX}, 7", f"s_lshl_b32 s{sRX}, s{sRX}, 8"]
    def sp_half(h):
        q,hh=divmod(h,2); kap,tb=divmod(q,2); o=[]
        assert h==0 or f"h{h-1}" in done
        for k in range(4):
            u=[f"s_add_u32 s{sT3}, s{sKX}, {(4*hh+k)*1048576-k*1088}",
               I(f"buffer_load_dwordx4 v{vsp}, {srd(sWSP)}, s{sT3} offen offset:{k*1088} {NT} lds", f"sp{q}")]
            if k==0:
                u=[f"s_add_u32 m0, s{sSTM}, {(h%5)*4352}", f"s_xor_b32 s{sKX}, s{sRX}, {tb*1024+kap*256}"]+u
                if h>=5:
                    assert f"r{(h-5)//2}" in done; u=u[:3]+[W("lg",f"spr{(h-5)//2}")]+u[3:]
            o.append(u)
        return o
    def sp_read(q):
        assert f"h{2*q+1}" in done
        h0=(2*q)%5; R=rb if h0==4 else ra
        assert h0<4 or "rb" in done
        r=[I(f"ds_read_b128 {a((q*8+x)*4,4)}, v{R[x%4]} offset:{h0*4352+(x//4)*64}", f"spr{q}") for x in range(8)]
        r[0]=[W("vm",f"sp{q}"), r[0]]
        return r
    aPL=240
    def poll1(): return [f"buffer_load_dwordx4 {a(aPL+4*k,4)}, v{vL16}, {srd(sWS)}, s{sT2} offen offset:{1024*k} sc1" for k in range(4)]
    def poll2(): return [f"buffer_load_dword v{vPC}, v{vP8}, {srd(sWS)}, s{sT2} offen sc1"]
    def slowchk(n):
        SLOW.extend([f"L_s{n}:", f"s_mov_b32 s{sCNT}, 0", f"L_l{n}:", f"buffer_load_dword v{vPC}, v{vP8}, {srd(sWS)}, s{sT2} offen sc1", "s_waitcnt vmcnt(0)",
                     f"v_cmp_ne_u32 vcc, s{sNON}, v{vPC}", f"s_cbranch_vccz L_b{n}", f"s_add_u32 s{sCNT}, s{sCNT}, 1", f"s_cmp_lt_u32 s{sCNT}, {SPIN}", f"s_cbranch_scc1 L_l{n}", f"s_branch L_b{n}"])
        return [f"v_cmp_ne_u32 vcc, s{sNON}, v{vPC}", f"s_cbranch_vccnz L_s{n}", f"L_b{n}:"]
    def chk2(): return [slowchk("s2")+["s_barrier"]+ts("s2")]
    SL=16384
    def zdma(g,o):
        if g>=24 or (g>=16 and o==3): return []
        r=[]
        if o==0: r=[f"s_add_u32 m0, s{sRM}, {(g%NS)*SL}", f"s_mov_b32 s{sKX}, {Z2N+g*4096}"]
        return r+[I(f"buffer_load_dwordx4 v{vZL}, {srd(sWS)}, s{sKX} offen offset:{o*1024} sc1 lds", f"z{g}")]
    C0=C; C=[]; e=C.append
    e(f"v_readfirstlane_b32 s{sNON}, v{vNV}")
    e(spinit)
    e(f"s_mul_i32 s{sNON}, s{sNON}, 1664525"); e(f"s_add_u32 s{sNON}, s{sNON}, 1013904223")
    e(f"s_lshr_b32 s{sN1}, s{sNON}, 8"); e(f"s_lshr_b32 s{sN2}, s{sNON}, 16"); e(f"s_lshr_b32 s{sN3}, s{sNON}, 24"); e(f"s_movk_i32 s{sFF}, 0xff")
    NM=V.a("NM",2); K1=V.a("K1",2); K0=V.a("K0",2); IR=V.a("IR",2); RS=V.a("RS",2)
    k0=-2*math.log2(math.e)*math.sqrt(2/math.pi); k1=k0*0.044715
    e(f"v_lshrrev_b32 v{t0}, 2, v{vN}"); e(f"v_lshl_add_u32 v{t0}, v{t0}, 4, v{vN}"); e(f"v_lshlrev_b32 v{t0}, 2, v{t0}")
    for t in range(2):
        s=SQ+4*t
        e(f"v_cndmask_b32 v{s}, v{s}, v{s+1}, s[{sMA}:{sMA+1}]"); e(f"v_cndmask_b32 v{s+2}, v{s+2}, v{s+3}, s[{sMA}:{sMA+1}]")
        e(f"v_cndmask_b32 v{s}, v{s}, v{s+2}, s[{sMB}:{sMB+1}]")
        e(f"ds_bpermute_b32 v{s+1}, v{t0}, v{s}")
    for t in range(2):
        e(f"v_mul_f32 v{NM+t}, {fl(-1/512)}, v{SUM+4*t}")
        e(f"v_mul_f32 v{t2+t}, v{NM+t}, v{NM+t}"); e(f"v_sub_f32 v{t2+t}, {fl(1e-5)}, v{t2+t}")
    for t in range(2):
        e(f"v_fmamk_f32 v{t2+t}, v{SQ+4*t+1}, {fl(1/512)}, v{t2+t}"); e(f"v_max_f32 v{t2+t}, {fl(1e-5)}, v{t2+t}")
    for t in range(2): e(f"v_rsq_f32 v{RS+t}, v{t2+t}")
    for t in range(2): e(f"v_sqrt_f32 v{IR+t}, v{t2+t}")
    for t in range(2):
        e(f"v_mul_f32 v{K0+t}, {fl(k0)}, v{RS+t}"); e(f"v_mul_f32 v{t2+t}, v{RS+t}, v{RS+t}")
    for t in range(2):
        e(f"v_mul_f32 v{t2+t}, {fl(0.044715)}, v{t2+t}"); e(f"v_mul_f32 v{K1+t}, v{K0+t}, v{t2+t}")
    cpre=flat(C); C=C0; e=C.append
    e(mix(cpre, bg(SC0)))
    TM=SP+28
    S2=SP+40; Q2=SP+44
    def gelu(stats):
        o=[]
        for c in range(3):
            P=[(ZA+(c*2+t)*4+2*h, CS+4*c+2*h, t, TM+2*(t*2+h), h) for t in range(2) for h in range(2)]
            for z,cs,t,u,h in P: o.append(f"v_pk_fma_f32 {v(z,2)}, {v(NM,2)}, {v(cs,2)}, {v(z,2)} op_sel:[{t},0,0] op_sel_hi:[{t},1,1]")
            for z,cs,t,u,h in P: o.append(f"v_pk_mul_f32 {v(u,2)}, {v(z,2)}, {v(z,2)}")
            for z,cs,t,u,h in P: o.append(f"v_pk_fma_f32 {v(u,2)}, {v(u,2)}, {v(K1,2)}, {v(K0,2)} op_sel:[0,{t},{t}] op_sel_hi:[1,{t},{t}]")
            for z,cs,t,u,h in P: o.append(f"v_pk_mul_f32 {v(u,2)}, {v(u,2)}, {v(z,2)}")
            for z,cs,t,u,h in P: o+= [f"v_exp_f32 v{u}, v{u}", f"v_exp_f32 v{u+1}, v{u+1}"]
            for z,cs,t,u,h in P: o.append(f"v_pk_fma_f32 {v(u,2)}, {v(u,2)}, {v(IR,2)}, {v(IR,2)} op_sel:[0,{t},{t}] op_sel_hi:[1,{t},{t}]")
            for z,cs,t,u,h in P: o+= [f"v_rcp_f32 v{u}, v{u}", f"v_rcp_f32 v{u+1}, v{u+1}"]
            for z,cs,t,u,h in P: o.append(f"v_pk_mul_f32 {v(z,2)}, {v(z,2)}, {v(u,2)}")
            if stats:
                for z,cs,t,u,h in P:
                    if c==0 and h==0:
                        o.append(f"v_pk_add_f32 {v(S2+2*t,2)}, {v(z,2)}, {v(z+2,2)}"); o.append(f"v_pk_mul_f32 {v(Q2+2*t,2)}, {v(z,2)}, {v(z,2)}")
                    else:
                        if c: o.append(f"v_pk_add_f32 {v(S2+2*t,2)}, {v(S2+2*t,2)}, {v(z,2)}")
                        o.append(f"v_pk_fma_f32 {v(Q2+2*t,2)}, {v(z,2)}, {v(z,2)}, {v(Q2+2*t,2)}")
        return o
    e(mix(gelu(True), bg(SC)))
    e(f"v_add_f32 v{t0}, v{S2}, v{S2+1}"); e(f"v_add_f32 v{t2}, v{S2+2}, v{S2+3}")
    e(f"v_add_f32 v{t1}, v{Q2}, v{Q2+1}"); e(f"v_add_f32 v{t3}, v{Q2+2}, v{Q2+3}")
    e(f"v_lshlrev_b32 v{t4}, 3, v{vG}"); e(f"v_lshrrev_b32 v{t4}, v{t4}, s{sNON}")
    e(f"v_permlane32_swap_b32 v{t0}, v{t2}"); e(f"v_permlane32_swap_b32 v{t1}, v{t3}")
    e(f"v_add_f32 v{t0}, v{t0}, v{t2}"); e(f"v_add_f32 v{t1}, v{t1}, v{t3}")
    e(f"v_lshlrev_b32 v{t5}, 2, v{vG}"); e(f"v_lshl_add_u32 v{t5}, v{vN}, 4, v{t5}")
    e(f"v_permlane16_swap_b32 v{t0}, v{t1}")
    e(f"s_lshl_b32 s{sT0}, s{sI}, 1"); e(f"s_add_u32 s{sT0}, s{sT0}, s{sSH}"); e(f"s_lshl_b32 s{sT0}, s{sT0}, 12"); e(f"s_add_u32 s{sT2}, s{sT0}, {STATS}")
    e(f"s_lshl_b32 s{sT0}, s{sJ}, 1"); e(f"s_add_u32 s{sT0}, s{sT0}, s{sFH}"); e(f"s_lshl_b32 s{sT0}, s{sT0}, 8"); e(f"s_add_u32 s{sT0}, s{sT0}, s{sT2}")
    e(f"v_add_f32 v{t0}, v{t0}, v{t1}")
    e(f"v_bfi_b32 v{t0}, s{sFF}, v{t4}, v{t0}")
    e(I(f"buffer_store_dword v{t0}, v{t5}, {srd(sWS)}, s{sT0} offen sc1","stat"))
    e(ts("statpub"))
    UA=SP; RR=SP+32; TR=SP+40; TI=SP+44; TN=SP+48
    def acc(uw,ri,t): return UA+((uw*2+ri)*2+t)*4
    vVS=V.a("vVS"); vZ=V.a("vZ"); vZ2=V.a("vZ2")
    fillD=[[f"v_lshlrev_b32 v{t0}, 4, v{vG}"]+[f"ds_bpermute_b32 v{RR+4*t+r}, v{t0}, v{RS+t} offset:{4*r}" for t in range(2) for r in range(4)]]
    fillD+=[[f"v_permlane16_swap_b32 v{ZA+8*c+r}, v{ZA+8*c+4+r}" for r in range(2*h,2*h+2)] for c in range(3) for h in range(2)]
    fillD+=[[f"s_lshr_b32 s{sT0}, s{sR}, 1", f"s_bfe_u32 s{sT1}, s{sI}, 0x10002", f"s_lshl_b32 s{sT1}, s{sT1}, 1", f"s_xor_b32 s{sT0}, s{sT0}, s{sT1}", f"v_xor_b32 v{t1}, s{sT0}, v{vG}"],
            [f"v_lshlrev_b32 v{t1}, 4, v{t1}", f"v_mul_u32_u24 v{t2}, {VP}, v{vN}"],
            [f"s_lshr_b32 s{sT0}, s{sJ}, 1", f"s_lshl_b32 s{sT0}, s{sT0}, 6", f"s_add_u32 s{sT0}, s{sT0}, s{sZ}", f"s_lshl_b32 s{sT0}, s{sT0}, 2", f"s_add_u32 s{sT0}, s{sT0}, s{sR}",
             f"s_lshl_b32 s{sT0}, s{sT0}, 6", f"v_add3_u32 v{vVS}, v{t1}, v{t2}, s{sT0}"]]
    fillD+=[[f"v_lshrrev_b32 v{t1}, 5, v{vL}", f"s_lshl_b32 s{sT0}, s{sFH}, 1", f"v_add_u32 v{t1}, s{sT0}, v{t1}"],
            [f"s_bfe_u32 s{sT0}, s{sI}, 0x10001", f"v_lshl_add_u32 v{t2}, v{t1}, 1, s{sT0}", f"v_and_b32 v{t3}, 7, v{vL}"],
            [f"v_xor_b32 v{t2}, v{t2}, v{t3}", f"v_lshlrev_b32 v{t2}, 4, v{t2}"],
            [f"v_lshl_add_u32 v{t2}, v{t1}, 10, v{t2}", f"v_bfe_u32 v{t3}, v{vL}, 3, 2"],
            [f"v_mul_u32_u24 v{t3}, 98304, v{t3}", f"s_mul_i32 s{sT0}, s{sJ}, 393216", f"s_lshl_b32 s{sT1}, s{sSH}, 14", f"s_add_u32 s{sT0}, s{sT0}, s{sT1}",
             f"s_lshr_b32 s{sT1}, s{sI}, 3", f"s_lshl_b32 s{sT1}, s{sT1}, 12", f"s_add_u32 s{sT0}, s{sT0}, s{sT1}",
             f"s_and_b32 s{sT1}, s{sI}, 7", f"s_lshl_b32 s{sT1}, s{sT1}, 7", f"s_add_u32 s{sT0}, s{sT0}, s{sT1}", f"v_add3_u32 v{vZ}, v{t2}, v{t3}, s{sT0}"],
            [f"v_add_u32 v{t1}, 8, v{t1}", f"v_cmp_gt_u32 s[{sHM}:{sHM+1}], s{sNOCT}, v{t1}"],
            [f"v_mov_b32 v{t1}, {OOB}"], [f"v_cndmask_b32 v{vZ2}, v{t1}, v{vZ}, s[{sHM}:{sHM+1}]"]]
    fillD+=[f"v_mov_b32 v{t4}, s{sSIG}", f"s_mov_b32 s{sCNT}, 0"]
    bd=bg(SD); fillD=mix(bd, fillD) if len(bd)>len(fillD) else mix(fillD, bd)
    def fftv(var):
        o=[]; seen=set()
        tab={0:[((0,0),(0,1)),((1,0),(1,1)),((0,0),(0,1)),((1,0),(1,1))],
             1:[((0,0),(0,1)),((1,1),(0,0)),((1,0),(1,1)),((0,1),(1,0))],
             3:[((0,0),(0,1)),((0,1),(1,0)),((1,0),(1,1)),((1,1),(0,0))]}[var]
        for ks in range(16):
            D,k=divmod(ks,4)
            for which,base in ((0,aFC),(1,aFS)):
                uw,ri=tab[D][which]
                for t in range(2):
                    d=acc(uw,ri,t); o.append(mm(d, v(xf(ks,t),4), a(base+4*k,4), d not in seen)); seen.add(d)
        return o
    e(f"s_cmp_eq_u32 s{sR}, 1"); e("s_cbranch_scc1 L_f1"); e(f"s_cmp_eq_u32 s{sR}, 3"); e("s_cbranch_scc1 L_f3")
    e(Var([mix(fftv(0),fillD,0,60)+["s_nop 6","s_branch L_fj"], ["L_f1:"]+mix(fftv(1),fillD,0,60)+["s_nop 6","s_branch L_fj"], ["L_f3:"]+mix(fftv(3),fillD,0,60)+["s_nop 7"]]))
    e("L_fj:")
    e(ts("fftm"))
    C0=C; C=[]; e=C.append
    for ri in range(2):
        for t in range(2):
            for h in range(2):
                u=acc(0,ri,t)+2*h; w_=acc(1,ri,t)+2*h
                e(f"v_pk_fma_f32 {v(u,2)}, {v(t4,2)}, {v(w_,2)}, {v(u,2)} op_sel_hi:[0,1,1]")
    for ri in range(2):
        for t in range(2):
            for h in range(2):
                u=acc(0,ri,t)+2*h; e(f"v_pk_mul_f32 {v(u,2)}, {v(u,2)}, {v(RR+4*t+2*h,2)}")
    for t in range(2):
        for h in range(2):
            u=acc(0,0,t)+2*h; e(f"v_cvt_pk_bf16_f32 v{TR+2*t+h}, v{u}, v{u+1}"); e(f"v_cvt_pk_bf16_f32 v{TN+2*t+h}, -v{u}, -v{u+1}")
            u=acc(0,1,t)+2*h; e(f"v_cvt_pk_bf16_f32 v{TI+2*t+h}, v{u}, v{u+1}")
    VA=SP+16
    for th in range(2):
        e(mm(VA+8*th, v(TR,4), a(aAC+4*th,4), True)); e(mm(VA+8*th+4, v(TI,4), a(aAC+4*th,4), True))
        e(mm(VA+8*th, v(TI,4), a(aAS+4*th,4), False)); e(mm(VA+8*th+4, v(TN,4), a(aAS+4*th,4), False))
    VK=SP+32
    for th in range(2):
        for r in range(4): e(f"v_cvt_pk_bf16_f32 v{VK+4*th+r}, v{VA+8*th+r}, v{VA+8*th+4+r}")
    dt=flat(C); C=C0; e=C.append
    e(mix(dt, bg(SD2)))
    for th in range(2):
        e(f"s_mov_b32 s{sT3}, {VB+th*16*VP}")
        e(I(f"buffer_store_dwordx4 {v(VK+4*th,4)}, v{vVS}, {srd(sWS)}, s{sT3} offen sc1","z2n"))
    e(ts("fft"))
    PL=SP; ZP=SP+16
    sn=[sNON,sN1,sN2,sN3]
    chk=[f"v_xor_b32 v{t0}, s{sNON}, v{PL}", f"v_xor_b32 v{t1}, s{sN1}, v{PL+1}"]
    chk+=[f"v_bitop3_b32 v{t0+k%2}, v{PL+k}, s{sn[k%4]}, v{t0+k%2} bitop3:0xbe" for k in range(2,16)]
    chk+=[f"v_bitop3_b32 v{t0}, v{t0}, v{t1}, s{sFF} bitop3:0xa8", f"v_cmp_ne_u32 vcc, 0, v{t0}"]
    assert "p1" in done
    e(W("vm","st13")); e("L_r1:"); e([f"v_accvgpr_read_b32 v{PL+k}, a{aPL+k}" for k in range(16)]); e(chk); e("s_cbranch_vccnz L_s1"); e("L_b1:")
    SLOW.extend(["L_s1:", f"s_add_u32 s{sCNT}, s{sCNT}, 1", f"s_cmp_ge_u32 s{sCNT}, {SPIN}", "s_cbranch_scc1 L_b1"]+poll1()+["s_waitcnt vmcnt(0)", "s_branch L_r1"])
    e(ts("s1"))
    C0=C; C=[]; e=C.append
    for h in range(2):
        e(f"v_pk_add_f32 {v(PL+2*h,2)}, {v(PL+2*h,2)}, {v(PL+4+2*h,2)}"); e(f"v_pk_add_f32 {v(PL+8+2*h,2)}, {v(PL+8+2*h,2)}, {v(PL+12+2*h,2)}")
    for h in range(2): e(f"v_pk_add_f32 {v(PL+2*h,2)}, {v(PL+2*h,2)}, {v(PL+8+2*h,2)}")
    e(f"v_permlane16_swap_b32 v{PL}, v{PL+2}"); e(f"v_permlane16_swap_b32 v{PL+1}, v{PL+3}")
    e(f"v_pk_add_f32 {v(PL+4,2)}, {v(PL,2)}, {v(PL+2,2)}"); e(f"v_pk_add_f32 {v(PL,2)}, {v(PL,2)}, {v(PL+2,2)}")
    e(f"v_permlane32_swap_b32 v{PL}, v{PL+4}"); e(f"v_permlane32_swap_b32 v{PL+1}, v{PL+5}")
    e(f"v_pk_add_f32 {v(PL,2)}, {v(PL,2)}, {v(PL+4,2)}")
    e(f"v_mul_f32 v{t0}, {fl(-1/688)}, v{PL}"); e(f"v_mul_f32 v{t1}, v{t0}, v{t0}"); e(f"v_sub_f32 v{t1}, {fl(1e-5)}, v{t1}")
    e(f"v_fmamk_f32 v{t1}, v{PL+1}, {fl(1/688)}, v{t1}"); e(f"v_max_f32 v{t1}, {fl(1e-5)}, v{t1}")
    e(f"v_rsq_f32 v{t2}, v{t1}"); e(f"v_mul_f32 v{t3}, v{t0}, v{t2}")
    dt=flat(C); C=C0; e=C.append
    e(mix(dt, bg(SE)))
    for c in range(3):
        for k in range(4):
            z=ZA+8*c+2*k; e(f"v_pk_fma_f32 {v(z,2)}, {v(z,2)}, {v(t2,2)}, {v(t2,2)} op_sel:[0,0,1] op_sel_hi:[1,0,1]")
        for k in range(4):
            z=ZA+8*c+2*k; e(f"v_cvt_pk_bf16_f32 v{ZP+4*c+k}, v{z}, v{z+1}")
        e(f"s_mov_b32 s{sT3}, {Z2N+c*32768}")
        e(I(f"buffer_store_dwordx4 {v(ZP+4*c,4)}, v{vZ2 if c==2 else vZ}, {srd(sWS)}, s{sT3} offen sc1","z2n"))
    e(ts("z2npub"))
    V.f("vVS","vZ","vZ2")
    vFO=V.a("vFO"); vBT=V.a("vBT",2)
    e(f"v_lshlrev_b32 v{t0}, 2, v0"); e(f"v_cmp_gt_u32 vcc, 32, v0"); e(f"v_mov_b32 v{t1}, {OOB}"); e(f"v_mov_b32 v{vNV}, s{sNON}"); e(f"v_cndmask_b32 v{vFO}, v{t1}, v{t0}, vcc")
    e(f"v_and_b32 v{t0}, 31, v{vL}"); e(f"v_lshlrev_b32 v{t0}, 7, v{t0}"); e(f"s_lshl_b32 s{sT0}, s{sZ}, 1")
    e(f"buffer_load_ushort v{vBT}, v{t0}, {srd(sBSP)}, s{sT0} offen")
    vZL=V.a("vZL"); vP8=V.a("vP8"); vPC=V.a("vPC")
    e(f"v_and_b32 v{t0}, 16, v{vL}"); e(f"v_mul_u32_u24 v{t0}, {STGW//16}, v{t0}")
    for k in range(4): e(f"v_sub_u32 v{rb[k]}, v{ra[k]}, v{t0}")
    done.append("rb")
    e(f"s_lshl_b32 s{sT0}, s{sJ}, 2"); e(f"s_add_u32 s{sT0}, s{sT0}, s{sW}"); e(f"s_lshr_b32 s{sT1}, s{sRX}, 10"); e(f"s_xor_b32 s{sT1}, s{sT1}, s{sT0}"); e(f"s_mul_i32 s{sT1}, s{sT1}, 98304"); e(f"v_add_u32 v{vZL}, s{sT1}, v{vL16}")
    e(f"s_lshl_b32 s{sRM}, s{sW}, 12")
    e(f"v_and_b32 v{t0}, 7, v{vL}"); e(f"v_lshlrev_b32 v{vP8}, 7, v{t0}")
    e(f"s_lshl_b32 s{sT0}, s{sT0}, 10"); e(f"s_add_u32 s{sT2}, s{sT0}, {F2}")
    e(f"s_lshl_b32 s{sT0}, s{sJ}, 5"); e(f"s_add_u32 s{sT0}, s{sT0}, s{sI}"); e(f"s_lshl_b32 s{sT0}, s{sT0}, 7"); e(f"s_add_u32 s{sT0}, s{sT0}, {F2}")
    e("s_barrier")
    assert FK>=4 and FK<12
    sa,sb=SF.split("w14"); u1=bg(sa); u2=bg("w14"+sb)
    k0_=int(FS[0]); n2=int(round((17-FK)*FS[1]))
    for ks in range(17):
        kk,kp=divmod(ks,2); pre=[]; fill=[]
        if ks<16: fill=rd_w(8+kk,kp)
        if ks==12: pre=[W("vm","st15"),"s_barrier"]
        if ks==FK:
            pre=[W("vm","z2n"),"s_barrier", f"buffer_store_dword v{vNV}, v{vFO}, {srd(sWS)}, s{sT0} offen sc1"]+ts("s2flag")
            if FK==4: pre=[W("lg0")]+pre
        if ks<FK: us=u1[len(u1)*max(0,ks-k0_)//(FK-k0_):len(u1)*max(0,ks+1-k0_)//(FK-k0_)]
        else: us=u2[len(u2)*min(n2,ks-FK)//n2:len(u2)*min(n2,ks+1-FK)//n2]
        fill=mix(fill,us) if len(fill)>=len(us) else mix(us,fill)
        e(pre)
        if ks==0: e(fill)
        else: e(mix(mf_z(ks-1,False), fill))
    V.f("XF","wd0","wd1","wd2","wa0","wa1","ONES")
    e(ts("z1gemm"))
    Z1=V.a("Z1",12)
    gl=gelu(False); e(mix(gl, bg(SG), int(len(gl)*GS[0]), int(len(gl)*GS[1])))
    C0=C; C=[]; e=C.append
    for c in range(3):
        for t in range(2):
            for h in range(2):
                z=ZA+(c*2+t)*4+2*h; e(f"v_cvt_pk_bf16_f32 v{Z1+4*c+2*t+h}, v{z}, v{z+1}")
    for c in range(3):
        for h in range(2): e(f"v_permlane16_swap_b32 v{Z1+4*c+h}, v{Z1+4*c+2+h}")
    e(f"v_lshlrev_b32 v{vBT}, 16, v{vBT}")
    dt=flat(C); C=C0; e=C.append
    e(mix(dt, bg(SG2)))
    assert all(f"r{q}" in done for q in range(8)) and "c2" in done
    V.f("ZA","SP","NM","K1","K0","IR","RS","vsp","ra0","ra1","ra2","ra3")
    za=[V.a(f"za{k}") for k in range(8)]; vRW=V.a("vRW"); vRR=V.a("vRR"); vH=V.a("vH"); vH2=V.a("vH2")
    e(ts("z1done"))
    C0=C; C=[]; e=C.append
    e(f"v_and_b32 v{t0}, 1, v{vG}"); e(f"v_xor_b32 v{t0}, s{sFH}, v{t0}"); e(f"v_and_b32 v{t1}, 1, v{vL}"); e(f"v_lshl_add_u32 v{t0}, v{t0}, 1, v{t1}")
    e(f"v_mul_u32_u24 v{t0}, {1024+32}, v{t0}")
    e(f"v_lshrrev_b32 v{t1}, 2, v{vN}"); e(f"v_lshl_add_u32 v{t0}, v{t1}, 7, v{t0}")
    e(f"v_lshrrev_b32 v{t1}, 3, v{vN}"); e(f"v_lshrrev_b32 v{t2}, 1, v{vG}"); e(f"v_xor_b32 v{t1}, v{t1}, v{t2}"); e(f"v_lshl_add_u32 v{t0}, v{t1}, 4, v{t0}")
    e(f"v_bfe_u32 v{t1}, v{vL}, 1, 1"); e(f"v_lshl_add_u32 v{t0}, v{t1}, 3, v{t0}")
    e(f"s_bfe_u32 s{sT0}, s{sRX}, 0x70003"); e(f"v_xor_b32 v{t0}, s{sT0}, v{t0}")
    e(f"v_lshl_add_u32 v{za[0]}, s{sFH}, 13, v{t0}")
    for k in range(1,4): e(f"v_xor_b32 v{za[k]}, {32*k}, v{za[0]}")
    for k in range(4): e(f"v_add_u32 v{za[4+k]}, {4*SL}, v{za[k]}")
    e(f"s_lshl_b32 s{sT0}, s{sW}, 11"); e(f"s_add_u32 s{sT0}, s{sT0}, {RED}"); e(f"v_add_u32 v{vRR}, s{sT0}, v{vL16}")
    e(f"v_xor_b32 v{vRW}, 2048, v{vRR}")
    e(f"v_and_b32 v{t0}, 1, v{vG}"); e(f"v_lshlrev_b32 v{t0}, 13, v{t0}"); e(f"v_lshl_add_u32 v{t0}, v{vN}, 4, v{t0}")
    e(f"v_lshrrev_b32 v{t1}, 1, v{vG}"); e(f"v_lshl_add_u32 v{t0}, v{t1}, 8, v{t0}")
    e(f"s_mul_i32 s{sT0}, s{sI}, 98304"); e(f"s_lshl_b32 s{sT1}, s{sSH}, 14"); e(f"s_add_u32 s{sT0}, s{sT0}, s{sT1}"); e(f"s_lshl_b32 s{sT1}, s{sFH}, 9"); e(f"s_add_u32 s{sT0}, s{sT0}, s{sT1}")
    e(f"s_lshl_b32 s{sT1}, s{sJ}, 10"); e(f"s_add_u32 s{sT1}, s{sT1}, s{sT0}"); e(f"v_add_u32 v{vH}, s{sT1}, v{t0}")
    e(f"s_mul_i32 s{sT1}, s{sJ}, 768"); e(f"s_min_u32 s{sT1}, s{sT1}, {20*256}"); e(f"s_add_u32 s{sT1}, s{sT1}, s{sT0}"); e(f"v_add_u32 v{t0}, s{sT1}, v{t0}")
    e(f"v_mov_b32 v{t1}, {OOB}"); e(f"v_cndmask_b32 v{vH2}, v{t1}, v{t0}, s[{sHM}:{sHM+1}]")
    AC=V.a("AC0",16); AC1=V.a("AC1",16); ACS=[AC,AC1]; ZF=V.a("ZF",32); RD=V.a("RD",8); HP=V.a("HP",4); HT=V.a("HT",8); BZ=V.a("BZ",8)
    vWO=V.a("vWO"); wo=[[V.a(f"wo{r}{p}") for p in range(4)] for r in range(2)]
    e(f"v_lshrrev_b32 v{t0}, 3, v{vL}"); e(f"v_and_b32 v{t1}, 2, v{t0}"); e(f"v_and_b32 v{t2}, 7, v{vL}")
    e(f"s_lshl_b32 s{sT0}, s{sFH}, 2"); e(f"v_bitop3_b32 v{t1}, v{t1}, v{t2}, s{sT0} bitop3:0x96")
    e(f"v_lshlrev_b32 v{t1}, 4, v{t1}"); e(f"v_lshl_add_u32 v{t1}, v{t0}, 10, v{t1}")
    e(f"s_lshl_b32 s{sT0}, s{sW}, 6"); e(f"s_add_u32 s{sT0}, s{sT0}, s{sJ}"); e(f"s_lshl_b32 s{sT0}, s{sT0}, 7"); e(f"v_add_u32 v{vWO}, s{sT0}, v{t1}")
    e(f"v_lshlrev_b32 v{t0}, 12, v{vG}"); e(f"v_lshrrev_b32 v{t1}, 2, v{vN}"); e(f"v_lshl_add_u32 v{t0}, v{t1}, 7, v{t0}")
    e(f"v_and_b32 v{t1}, 3, v{vL}"); e(f"v_lshl_add_u32 v{t0}, v{t1}, 3, v{t0}"); e(f"v_lshrrev_b32 v{t1}, 3, v{vN}"); e(f"v_lshl_add_u32 v{t0}, v{t1}, 5, v{t0}")
    e(f"v_and_b32 v{t1}, 1, v{vG}"); e(f"v_lshl_add_u32 v{wo[1][0]}, v{t1}, 6, v{t0}")
    for ct in range(1,4): e(f"v_xor_b32 v{wo[1][ct]}, {32*ct}, v{wo[1][0]}")
    for ct in range(4): e(f"v_add_u32 v{wo[0][ct]}, {8*SL}, v{wo[1][ct]}")
    TW=V.a("TW",16); H0=V.a("H0",32); va=[V.a(f"va{k}") for k in range(4)]; WR=H0
    vPA=V.a("vPA"); vPV=V.a("vPV"); vHL=V.a("vHL"); vHL5=V.a("vHL5")
    sMI,sRHO,sVB,sFP,sFS=sXM,sSTM,sWM,sN1,sN2
    e([f"s_cmp_ge_u32 s{sJ}, 4", f"s_cselect_b32 s{sMI}, -1, 0"]); e(f"s_and_b32 s{sT0}, s{sMI}, 0x80000000"); e(f"s_or_b32 s{sT0}, s{sT0}, {fl(1/2048)}")
    e(f"s_lshl_b32 s{sT1}, s{sFH}, 10"); e(f"s_add_u32 s{sT1}, s{sT1}, s{sZ}")
    e(f"v_lshl_add_u32 v{t0}, v{vN}, 6, s{sT1}"); e(f"v_cvt_f32_u32 v{t0}, v{t0}"); e(f"v_mul_f32 v{t0}, s{sT0}, v{t0}")
    e(f"v_lshlrev_b32 v{t1}, 2, v{vG}"); e(f"v_cvt_f32_u32 v{t1}, v{t1}"); e(f"v_mul_f32 v{t1}, v{t1}, v{t0}")
    for kv in range(4):
        for q in range(4):
            e(f"v_fmamk_f32 v{WR+q}, v{t0}, {fl(16*kv+q)}, v{t1}")
        for q in range(4): e(f"v_cos_f32 v{WR+4+q}, v{WR+q}"); e(f"v_sin_f32 v{WR+q}, v{WR+q}")
        for q in range(4): e(f"v_cvt_pk_bf16_f32 v{TW+4*kv+q}, v{WR+4+q}, v{WR+q}")
    e(f"s_xor_b32 s{sT0}, s{sI}, s{sMI}"); e(f"s_sub_u32 s{sT0}, s{sT0}, s{sMI}"); e(f"s_and_b32 s{sT0}, s{sT0}, 31"); e(f"s_mul_i32 s{sVB}, s{sT0}, {VP}"); e(f"s_add_u32 s{sVB}, s{sVB}, {VB}")
    e(f"s_xor_b32 s{sRHO}, s{sJ}, s{sMI}"); e(f"s_and_b32 s{sRHO}, s{sRHO}, 3")
    e(f"v_and_b32 v{t4}, 1, v{vG}"); e(f"v_lshlrev_b32 v{t4}, 1, v{t4}"); e(f"v_lshlrev_b32 v{t5}, 10, v{vG}"); e(f"v_add_u32 v{t5}, {VL}, v{t5}")
    for ct in range(4):
        e(f"v_add_u32 v{t0}, {16*ct}, v{vN}"); e(f"v_xor_b32 v{t0}, s{sMI}, v{t0}"); e(f"v_subrev_u32 v{t0}, s{sMI}, v{t0}")
        e(f"v_bfe_u32 v{t1}, v{t0}, 4, 2"); e(f"v_bfe_u32 v{t2}, v{t0}, 1, 1"); e(f"v_bitop3_b32 v{t1}, v{t1}, v{t2}, v{t4} bitop3:0x96")
        e(f"v_lshl_add_u32 v{t1}, v{t1}, 4, v{t5}"); e(f"v_and_b32 v{t2}, 3, v{t0}"); e(f"v_lshl_add_u32 v{t1}, v{t2}, 6, v{t1}")
        e(f"v_and_b32 v{t2}, 12, v{t0}"); e(f"v_add_u32 v{va[ct]}, v{t1}, v{t2}")
    e(f"v_bfe_u32 v{t0}, v{vN}, 2, 1"); e(f"v_lshlrev_b32 v{t0}, 5, v{t0}"); e(f"v_lshl_add_u32 v{t0}, v{vN}, 8, v{t0}"); e(f"v_add_u32 v{vPA}, s{sRM}, v{t0}")
    e(f"s_mul_i32 s{sT0}, s{sI}, 12"); e(f"s_add_u32 s{sT0}, s{sT0}, s{sW}"); e(f"s_lshl_b32 s{sT0}, s{sT0}, 13"); e(f"v_add_u32 v{vHL}, s{sT0}, v{vL16}")
    e(f"v_cmp_gt_u32 vcc, 32, v{vL}"); e(f"v_mov_b32 v{t1}, {OOB}"); e(f"v_lshlrev_b32 v{t0}, 2, v{vL}"); e(f"v_cndmask_b32 v{vHL5}, v{t1}, v{vHL}, vcc"); e(f"v_cndmask_b32 v{vFO}, v{t1}, v{t0}, vcc")
    e(f"v_lshlrev_b32 v{vP8}, 7, v{vN}")
    e(f"s_lshl_b32 s{sT0}, s{sI}, 1"); e(f"s_add_u32 s{sT0}, s{sT0}, s{sSH}"); e(f"s_lshl_b32 s{sT0}, s{sT0}, 11"); e(f"s_add_u32 s{sFP}, s{sT0}, {F3}")
    e(f"s_lshl_b32 s{sT0}, s{sJ}, 1"); e(f"s_add_u32 s{sT0}, s{sT0}, s{sFH}"); e(f"s_lshl_b32 s{sT0}, s{sT0}, 7"); e(f"s_add_u32 s{sFS}, s{sT0}, s{sFP}")
    setup=C; C=C0; e=C.append
    assert NP>=5
    pro=[([W("lg","spr7"),"s_barrier"] if (g,o)==(4,0) else [])+zdma(g,o) for g in range(NP) for o in range(4) if f"z{g}" not in done]
    e(pro[0]); e(mix(setup, pro[1:], 0, int(len(setup)*0.9)))
    e([f"s_lshl_b32 s{sT0}, s2, 2", f"s_or_b32 s{sT0}, s{sT0}, s{sW}", f"s_cmp_eq_u32 s{sT0}, 0", f"s_cselect_b32 s{sT0}, 0, {OOB}", f"buffer_store_dword v{vNV}, v{vFO}, {srd(sWS)}, s{sT0} offen sc1"])
    def zrd(x):
        g,k=divmod(x,4); sl=g%NS; r_=za[k+4*(sl//4)]; of=(sl%4)*SL
        r=[I(f"ds_read_b64_tr_b16 {v(ZF+8*(x%4)+2*n,2)}, v{r_} offset:{of+(n//2)*4096+(n%2)*512}", f"zr{x}") for n in range(4)]
        if k==0: r[0]=[W("vm",f"z{g}"), "s_barrier", r[0]]
        return r
    def wo_lds(kap): return (8*SL+(kap//4)*SL+(kap%4)*1024) if kap<8 else (((kap-8)//4)*SL+(kap%4)*1024)
    def wo_dma(kap):
        r=[f"s_add_u32 m0, s{sRM}, {wo_lds(kap)}"]
        if kap<16:
            r.append(f"s_mov_b32 s{sT3}, {(f0(kap%8)+32*(kap//8))*1024}")
        elif kap<21:
            k=kap-16
            r+=[f"s_add_u32 s{sT3}, s{sW}, {4*k}", f"s_mul_i32 s{sT3}, s{sT3}, 43", f"s_lshr_b32 s{sT3}, s{sT3}, 7", f"s_lshl_b32 s{sT3}, s{sT3}, 16", f"s_add_u32 s{sT3}, s{sT3}, {(32*k+64)*1024}"]
        else: r.append(f"s_mov_b32 s{sT3}, {672*1024}")
        return r+[I(f"buffer_load_dwordx4 v{vWO}, {srd(sWOUT)}, s{sT3} offen {NT} lds", f"wo{kap}")]
    def red_wr(c):
        return [I(f"ds_write_b128 v{vRW}, {v(ACS[c%2]+8+4*x,4)} offset:{x*1024}", f"rw{c}") for x in range(2)]
    def red_rd(c):
        return [f"ds_read_b128 {v(RD+4*x,4)}, v{vRR} offset:{x*1024}" for x in range(2)]
    def red_own(c, pk):
        A=ACS[c%2]
        if pk: return [f"v_pk_fma_f32 {v(A+2*k,2)}, {v(A+2*k,2)}, {v(HT+2*k,2)}, {v(BZ+2*k,2)}" for k in range(4)]
        return [f"v_fma_f32 v{A+k}, v{A+k}, v{HT+k}, v{BZ+k}" for k in range(8)]
    def red_alu(c, pk):
        o=[]; A=ACS[c%2]
        if pk: o+=[f"v_pk_fma_f32 {v(A+2*k,2)}, {v(RD+2*k,2)}, {v(HT+2*k,2)}, {v(A+2*k,2)}" for k in range(4)]
        else: o+=[f"v_fmac_f32 v{A+k}, v{RD+k}, v{HT+k}" for k in range(8)]
        for k in range(4): o.append(f"v_cvt_pk_bf16_f32 v{HP+k}, v{A+2*k}, v{A+2*k+1}")
        return o
    def z1_unp(c):
        return [x for k in range(4) for x in (f"v_lshlrev_b32 v{HT+2*k}, 16, v{Z1+4*c+k}", f"v_and_b32 v{HT+2*k+1}, 0xffff0000, v{Z1+4*c+k}")]+[f"v_mul_f32 v{BZ+k}, v{vBT}, v{HT+k}" for k in range(8)]
    def h_st(c):
        return [f"s_mov_b32 s{sT0}, {HB+c*32768}", I(f"buffer_store_dwordx4 {v(HP,4)}, v{vH2 if c==2 else vH}, {srd(sWS)}, s{sT0} offen sc1", f"h{c}")]
    def f3flag(c):
        return [f"s_add_u32 s{sT0}, s{sFS}, {c*131072}", W("vm",f"h{c}"), f"buffer_store_dword v{vNV}, v{vFO}, {srd(sWS)}, s{sT0} offen sc1"]
    def f3poll(c):
        return [f"s_add_u32 s{sT2}, s{sFP}, {c*131072}", f"buffer_load_dword v{vPC}, v{vP8}, {srd(sWS)}, s{sT2} offen sc1"]
    def f3chk(c): return slowchk(f"c{c}")
    vdma=[[f"s_lshl_b32 s{sT1}, s{sRHO}, 14", f"s_add_u32 m0, s{sRM}, {VL}", f"s_add_u32 s{sT1}, s{sT1}, s{sRM}", f"s_add_u32 s{sT1}, s{sT1}, s{sVB}",
           I(f"buffer_load_dwordx4 v{vL16}, {srd(sWS)}, s{sT1} offen sc1 lds","v")]]
    vdma+=[I(f"buffer_load_dwordx4 v{vL16}, {srd(sWS)}, s{sT1} offen offset:{1024*k} sc1 lds","v") for k in range(1,4)]
    vdma+=[[f"s_sub_u32 s{sT1}, s{sRHO}, s{sMI}", f"s_and_b32 s{sT1}, s{sT1}, 3", f"s_lshl_b32 s{sT1}, s{sT1}, 14", f"s_add_u32 s{sT1}, s{sT1}, s{sVB}"],
           [f"s_cmp_eq_u32 s{sJ}, 0", f"s_cselect_b32 s{sT1}, {OOB}, s{sT1}", f"buffer_load_dword v{vPV}, v{vPA}, {srd(sWS)}, s{sT1} offen sc1"]]
    def hld(c, dst):
        return [([f"s_mov_b32 s{sKW}, {HB+c*32768+k*1024}"] if k%4==0 else [])+[f"buffer_load_dwordx4 {v(dst+4*k,4)}, v{vHL5 if (c,k)==(2,5) else vHL}, {srd(sWS)}, s{sKW} offen offset:{(k%4)*1024} sc1"] for k in range(8 if c<2 else 6)]
    e(ts("p2pro"))
    LA=4; e(zrd(0)); e(zrd(1))
    ex={y:[] for y in range(193)}; dx={y:[] for y in range(193)}
    def spread(units, y0, per, d=None):
        for k,u in enumerate(units): (ex if d is None else d)[min(192,y0+int(k/per))].append(u)
        return y0+int((len(units)-1)/per)
    yy=0
    for G in range(NP,24):
        yy=max(yy, 8*(G-NS+2)-LA+2)
        for o in range(4):
            while any(g0<=yy<g0+2*GAP[2] for g0 in GAP[:2]): yy+=2
            if zdma(G,o): dx[yy].append(zdma(G,o)); yy+=2
    zend=yy
    spread(z1_unp(0), 21, .5)
    for c in range(2):
        b=64*(c+1)
        spread(red_wr(c), b+RW, 1)
        yb=b+8-LA
        if yb<b+RW+3: yb+=8
        ex[yb-1].append(W("lg",f"rw{c}"))
        spread(red_own(c,False), b+RW+2, 2)
        spread(red_rd(c), yb, 1); ye=spread(red_alu(c,False), max(yb+3,b+RW+6), 2); dx[(ye+1)|1].append(h_st(c))
        spread(z1_unp(c+1), ye+3, .5)
        dx[FX[c]].append(f3flag(c))
    dx[PX[0]].append(f3poll(0))
    spread([wo_dma(k) for k in range(8)], zend, .5, dx)
    assert PX[1]>=zend+16
    ex[PX[1]-1].append(f3chk(0))
    spread(vdma+hld(0,H0), PX[1], VR, dx)
    for y in range(192):
        x,q=divmod(y,2); g,k=divmod(x,4); c=g//8; d=ACS[c%2]
        if q==0: e(W("lg",f"zr{x}"))
        e(f"v_mfma_f32_32x32x16_bf16 {v(d,16)}, {v(ZF+4*(y%8),4)}, {a(((k*2+q)*8+g%8)*4,4)}, {'0' if y%64==0 else v(d,16)}")
        e(dx[y])
        if x+2<96: e(zrd(x+2)[1:] if q else zrd(x+2)[0])
        e(ex[y])
        if P2S and q==1 and x in P2S: e(ts(f"x{x}"))
    e(ts("p2"))
    V.f("ZF","vZL","AC1",*[f"za{k}" for k in range(8)])
    assert not ex[192]; e(dx[192][:2]); e(red_wr(2)); e(red_own(2,True)); e(W("lg0")); e("s_barrier"); e(red_rd(2)); e(dx[192][2:4]); e(red_alu(2,True)); e(h_st(2)); e(dx[192][4:])
    e(f3poll(1))
    e(ts("h2st"))
    H1=V.a("H1",32); OA=V.a("OA",16)
    oa=[x for k in range(8) for x in (f"v_lshlrev_b32 v{OA+2*k}, 16, v{RES+k}", f"v_and_b32 v{OA+2*k+1}, 0xffff0000, v{RES+k}")]
    e(mix(oa, [wo_dma(k) for k in range(8,16)]))
    V.f("AC0","RD","HT","BZ","Z1","vRW","vRR","vH","vH2","vBT")
    H2=V.a("H2",24); WR=V.a("WR",16)
    e(f"v_add_u32 v{vPA}, {VL}, v{vPA}")
    e(f"ds_write_b32 v{vPA}, v{vPV}")
    e(W("lg0")); e("s_barrier")
    e(ts("vbar"))
    def wrd(kap, d):
        rg=0 if kap<8 else 1; ko=wo_lds(kap)-(8*SL if kap<8 else 0)
        return [f"ds_read_b64_tr_b16 {a(d+ct*4+2*r,2)}, v{wo[rg][ct]} offset:{ko+r*512}" for ct in range(4) for r in range(2)]
    def vrd(kv,d):
        return [f"ds_read2st64_b32 {a(d+ct*4+2*r,2)}, v{va[ct]} offset0:{16*kv+2*r} offset1:{16*kv+2*r+1}" for ct in range(4) for r in range(2)]
    steps=[("v",k) for k in range(4)]+[("w",k) for k in range(22)]
    def rds(n):
        ty,k=steps[n]; return vrd(k,16*(n%16)) if ty=="v" else wrd(k,16*(n%16))
    def mms(n):
        ty,k=steps[n]; B = v(TW+4*k,4) if ty=="v" else v((H0,H1,H2)[k//8]+4*(k%8),4)
        return [mm(OA+4*ct, a(16*(n%16)+4*ct,4), B, False) for ct in range(4)]
    e(rds(0)); e(rds(1))
    for n in range(12):
        if n==FN: e(f3flag(2)); e(ts("c2flag")); e(f3chk(1)); e(hld(1,H1))
        e(mix(mms(n), rds(n+2) if n+2<12 else []))
    if FN==12: e(f3flag(2)); e(ts("c2flag")); e(f3chk(1)); e(hld(1,H1))
    e(ts("g3c0"))
    if WL==0: e([wo_dma(k) for k in range(16,22)])
    e(W("vm","wo15")); e("s_barrier")
    for n in range(12,20):
        e(rds(n))
        if n==PN:
            e(f3poll(2))
            if WL==1: e([wo_dma(k) for k in range(16,22)])
    vTW=V.a("vTW"); vTR=V.a("vTR"); vO=V.a("vO")
    fin=[[f"s_mul_i32 s{sT0}, s{sW}, 2304", f"s_add_u32 s{sT0}, s{sT0}, {TRB}"],
         f"v_mul_u32_u24 v{t0}, 144, v{vN}", f"v_lshl_add_u32 v{t0}, v{vG}, 3, v{t0}", f"v_add_u32 v{vTW}, s{sT0}, v{t0}",
         f"v_lshrrev_b32 v{t0}, 3, v{vL}", f"v_and_b32 v{t1}, 7, v{vL}", f"v_lshlrev_b32 v{t1}, 4, v{t1}",
         f"v_mul_u32_u24 v{t2}, 144, v{t0}", f"v_add3_u32 v{vTR}, v{t2}, v{t1}, s{sT0}",
         [f"s_lshl_b32 s{sT0}, s{sFH}, 10", f"s_add_u32 s{sT0}, s{sT0}, s{sZ}"], [f"s_lshl_b32 s{sT0}, s{sT0}, 3", f"s_add_u32 s{sT0}, s{sT0}, s{sJ}"], f"s_lshl_b32 s{sT0}, s{sT0}, 7",
         f"v_lshlrev_b32 v{t0}, 16, v{t0}", f"v_add3_u32 v{vO}, v{t0}, v{t1}, s{sT0}"]
    c1=flat([mms(n) for n in range(12,20)])
    e(mix(c1[:4*CN], fin))
    e(f3chk(2)); e(ts("s3b")); e(hld(2,H2))
    e(W("vm","wo21")); e("s_barrier")
    e(mix(c1[4*CN:], flat([rds(n) for n in range(20,26)])) if CN<8 else [rds(n) for n in range(20,26)])
    e(ts("g3c1"))
    for n in range(20,26): e(mms(n))
    for ct in range(4):
        for h in range(2): e(f"v_cvt_pk_bf16_f32 v{WR+2*ct+h}, v{OA+4*ct+2*h}, v{OA+4*ct+2*h+1}")
        e(f"ds_write_b64 v{vTW}, {v(WR+2*ct,2)} offset:{32*ct}")
    e(f"s_mov_b32 s{sT3}, {8*65536}")
    for p in range(2): e(f"ds_read_b128 {v(WR+8+4*p,4)}, v{vTR} offset:{1152*p}")
    e(f"buffer_store_dwordx4 {v(WR+8,4)}, v{vO}, {srd(sOUT)}, 0 offen")
    e(f"buffer_store_dwordx4 {v(WR+12,4)}, v{vO}, {srd(sOUT)}, s{sT3} offen")
    if DIAGON:
        e(W("vm0")); e(ts("end"))
        e(f"v_mov_b32 v{t0}, 0")
        for k in range(nts[0]): e(f"v_writelane_b32 v{t0}, s{sTS+1+k if k else sTS}, {k}")
        e("s_memrealtime s[6:7]"); e("s_waitcnt lgkmcnt(0)"); e(f"v_writelane_b32 v{t0}, s100, 40"); e(f"v_writelane_b32 v{t0}, s6, 41")
        e(f"s_lshl_b32 s{sT0}, s2, 2"); e(f"s_add_u32 s{sT0}, s{sT0}, s{sW}"); e(f"s_lshl_b32 s{sT0}, s{sT0}, 8"); e(f"s_add_u32 s{sT0}, s{sT0}, {DIAG}")
        e(f"v_lshlrev_b32 v{t1}, 2, v{vL}")
        e(f"buffer_store_dword v{t0}, v{t1}, {srd(sWS)}, s{sT0} offen")
    if DBG is not None:
        e("s_memrealtime s[6:7]"); e(f"s_load_dwordx2 s[{sBSP}:{sBSP+1}], s[0:1], 88"); e("s_waitcnt lgkmcnt(0)")
        e(f"s_mov_b32 s{sBSP+2}, 256"); e(f"s_mov_b32 s{sBSP+3}, 0x20000")
        e(f"v_subrev_u32 v{t0}, s{sTS}, v{t0}"); e("s_sub_u32 s6, s6, s100"); e(f"v_writelane_b32 v{t0}, s6, 3")
        e(f"s_lshl_b32 s{sT0}, s2, 2"); e(f"s_add_u32 s{sT0}, s{sT0}, s{sW}"); e(f"s_cmp_eq_u32 s{sT0}, {DBG*4}"); e(f"s_cselect_b32 s{sT0}, 0, {OOB}")
        e(f"v_subrev_u32 v{t1}, 12, v{t1}"); e(f"v_min_u32 v{t1}, {OOB}, v{t1}")
        e(f"buffer_store_dword v{t0}, v{t1}, {srd(sBSP)}, s{sT0} offen")
    e("L_end:"); e("s_endpgm")
    for x in SLOW: e(Raw(x))
    st=St(); out=[]; run(C,st,out)
    ref=open("stub.txt").read()
    head=ref[:ref.index(NAME+":")].replace("grid=(4096,1,1) block=(256,1,1) lds=0","grid=(256,1,1) block=(256,1,1) lds=163840")
    tail=ref[ref.index(".section .rodata"):].replace("next_free_vgpr 256","next_free_vgpr 512")
    body="\n".join(x if x.endswith(":") else "    "+x for x in out)
    info=dict(n=len(out), maxvm=st.maxvm, nops=st.nops, peak=V.peak, ts=tsn)
    return head+NAME+":\n"+body+"\n"+tail, info

if __name__=="__main__":
    kw={}
    for x in sys.argv[2:]:
        k,val=x.split("="); kw[k]=eval(val)
    s,info=gen(**kw); open(sys.argv[1],"w").write(s); print(info)
```

```python
import re, copy
TRANS = ("v_exp_f32","v_log_f32","v_rcp_f32","v_rsq_f32","v_sqrt_f32","v_sin_f32","v_cos_f32")
REG = re.compile(r"^-?([vas])(\d+)$|^-?([vas])\[(\d+):(\d+)\]$")
def regs(op):
    op = op.strip()
    if op in ("vcc",): return {("s","vcc")}
    if op == "m0": return {("s","m0")}
    if op == "exec": return {("s","exec")}
    m = REG.match(op)
    if not m: return set()
    if m.group(1): return {(m.group(1), int(m.group(2)))}
    return {(m.group(3), k) for k in range(int(m.group(4)), int(m.group(5))+1)}

class I:
    def __init__(s, text, tag=None):
        s.text = text; s.tag = tag
        t = text.split(";")[0].strip()
        s.label = t.endswith(":") or t.startswith(".")
        s.rd=set(); s.wr=set(); s.kind="other"; s.mn=""; s.srcc=set(); s.ab=set(); s.data=set(); s.ws=1
        if s.label or not t:
            s.ws=0; return
        p = t.split(None,1); mn=p[0]; s.mn=mn
        rest = p[1] if len(p)>1 else ""
        ops = [o.strip() for o in rest.split(",")] if rest else []
        mods = ""
        o2=[]
        depth_text = re.sub(r"\b(op_sel|op_sel_hi|neg_lo|neg_hi|quad_perm):\[[^\]]*\]", "", rest)
        ops = [o.strip() for o in depth_text.split(",")] if depth_text.strip() else []
        if ops:
            l = ops[-1].split()
            ops[-1] = l[0] if l else ""
            mods = " ".join(l[1:])
        s.mods = mods
        R = [regs(o) for o in ops]
        U = lambda L: set().union(*L) if L else set()
        if mn.startswith("v_mfma"):
            s.kind="mfma"; s.wr=R[0]; s.ab=R[1]|R[2]; s.srcc=R[3]; s.rd=s.ab|s.srcc
            s.passes = 8 if "32x32x16" in mn else 4
        elif mn.startswith("v_"):
            s.kind="valu"; s.wr=R[0]; s.rd=U(R[1:])
            if mn.startswith(("v_fmac","v_pk_fmac")): s.rd|=R[0]
            if "swap" in mn: s.wr=R[0]|R[1]; s.rd=R[0]|R[1]
            if mn.startswith(("v_add_co","v_addc_co")): s.wr=R[0]|R[1]; s.rd=U(R[2:])
            s.dpp = "row_" in mods or "quad_perm" in rest
            if s.dpp: s.rd|=R[0]
        elif mn.startswith("ds_"):
            s.kind="ds"
            if mn.startswith(("ds_read","ds_bperm","ds_perm","ds_swiz")): s.wr=R[0]; s.rd=U(R[1:])
            else: s.rd=U(R)
        elif mn.startswith(("buffer_","global_")):
            s.kind="vm"
            s.lds = "lds" in mods.split()
            if "load" in mn and not s.lds:
                s.wr=R[0]; s.rd=U(R[1:])
                if "d16" in mn: s.rd|=R[0]
            elif "atomic" in mn:
                s.rd=U(R)
                if "sc0" in mods.split(): s.wr=R[0]
            else:
                s.rd=U(R)
                if s.lds: s.rd |= {("s","m0")}
                if "store" in mn and ("x4" in mn or "x3" in mn): s.data = R[0] if mn.startswith("buffer") else R[1]
        elif mn.startswith("s_"):
            s.kind="salu"
            if mn=="s_nop": s.ws=int(ops[0])+1
            elif mn.startswith(("s_cmp","s_waitcnt","s_barrier","s_branch","s_cbranch","s_endpgm","s_setprio","s_bitcmp")):
                s.rd=U(R)
            else:
                s.wr=R[0]; s.rd=U(R[1:])
            if mn.startswith(("s_load","s_memtime","s_buffer_load")): s.kind="smem"

class W:
    def __init__(s, kind, tag=None): s.kind=kind; s.tag=tag
class Raw:
    def __init__(s, text): s.text=text
class Var:
    def __init__(s, bodies): s.bodies=bodies

class St:
    def __init__(s):
        s.vm=[]; s.lg=[]; s.hist=[]; s.maxvm=0; s.nops=0
def need_ws(p, c):
    n=0
    if p.kind=="valu":
        vw = {r for r in p.wr if r[0] in "va"}; sw = {r for r in p.wr if r[0]=="s"}
        if c.kind=="mfma" and vw & c.rd: n=max(n,2)
        if c.kind=="valu":
            if vw & c.rd:
                if "permlane" in c.mn or c.dpp: n=max(n,2)
                if c.mn.startswith(("v_readfirstlane","v_readlane")): n=max(n,1)
                if p.mn in TRANS and c.mn not in TRANS: n=max(n,1)
            if sw & c.rd: n=max(n,4 if "lane" in c.mn else 2)
        if c.kind=="vm" and sw & c.rd: n=max(n,5)
    if p.kind=="mfma":
        big = 12 if p.passes==8 else 8
        if c.kind=="mfma":
            if p.wr & c.ab: n=max(n,big)
            if p.wr & c.srcc and not (p.wr==c.srcc and p.passes==c.passes): n=max(n,big-2)
            if p.wr & c.wr and not (p.wr==c.srcc): n=max(n,big-2)
        elif c.kind in ("valu","vm","ds"):
            if p.wr & (c.rd|c.wr): n=max(n,big)
            if p.srcc & c.wr: n=max(n, 7 if p.passes==8 else 3)
    if p.kind=="salu" and ("s","m0") in p.wr and c.kind=="vm" and ("s","m0") in c.rd: n=max(n,1)
    if p.kind=="vm" and p.data & c.wr: n=max(n, 2)
    return n

def run(items, st, out):
    def emit(i):
        if not i.label:
            d=0; pad=0
            for p in reversed(st.hist):
                if d>=14: break
                pad=max(pad, need_ws(p,i)-d)
                d+=p.ws
            if pad>0:
                n=I(f"s_nop {pad-1}"); out.append(n.text); st.hist.append(n); st.nops+=pad
            st.hist.append(i); st.hist=st.hist[-20:]
        out.append(i.text)
    def wait(vm=None, lg=None):
        t=[]
        if vm is not None and vm < len(st.vm):
            vm=min(vm,63); t.append(f"vmcnt({vm})"); st.vm=st.vm[len(st.vm)-vm:] if vm else []
        if lg is not None and lg < len(st.lg):
            lg=min(lg,15)
            t.append(f"lgkmcnt({lg})"); st.lg=st.lg[len(st.lg)-lg:] if lg else []
        if t: emit(I("s_waitcnt "+" ".join(t)))
    def cnt(q, pred):
        idx=[k for k,e in enumerate(q) if pred(e)]
        return None if not idx else len(q)-1-idx[-1]
    for it in items:
        if isinstance(it,str): it=I(it)
        if isinstance(it,list): run(it,st,out); continue
        if isinstance(it,Raw): out.append(it.text); continue
        if isinstance(it,W):
            if it.kind=="vm": wait(vm=cnt(st.vm, lambda e: e.tag==it.tag))
            elif it.kind=="lg": wait(lg=cnt(st.lg, lambda e: e.tag==it.tag))
            elif it.kind=="vm0": wait(vm=0)
            elif it.kind=="lg0": wait(lg=0)
            elif it.kind=="vmlg0": wait(vm=cnt(st.vm, lambda e: e.tag==it.tag), lg=0)
            elif it.kind=="reset": st.vm=[]
            elif it.kind=="resetlg": st.lg=[]
            continue
        if isinstance(it,Var):
            ends=[]
            for b in it.bodies:
                s2=copy.deepcopy(st); run(b,s2,out); ends.append(s2)
            for e in ends[1:]:
                assert [x.text for x in e.vm]==[x.text for x in ends[0].vm]
                assert [x.text for x in e.lg]==[x.text for x in ends[0].lg]
            e=ends[-1]; st.vm=e.vm; st.lg=e.lg; st.hist=e.hist; st.maxvm=e.maxvm; st.nops=e.nops
            continue
        touch = it.rd|it.wr
        if touch:
            v=cnt(st.vm, lambda e: e.wr & touch)
            if it.kind=="ds":
                l=cnt(st.lg, lambda e: e.wr & it.rd)
            else: l=cnt(st.lg, lambda e: e.wr & touch)
            if it.kind=="vm" and v is not None and not any(e.wr & it.rd for e in st.vm): v=None
            wait(vm=v, lg=l)
        emit(it)
        if it.kind=="vm":
            st.vm.append(it); st.maxvm=max(st.maxvm,len(st.vm))
            assert len(st.vm)<=63, "vmcnt overflow"
        if it.kind=="ds": st.lg.append(it)

def flat(L):
    o=[]
    for x in L:
        if isinstance(x,list): o+=flat(x)
        else: o.append(x)
    return o
def mix(main, fill, start=0, end=None):
    if end is None: end=len(main)
    n=end-start; m=len(fill); out=list(main[:start]); k=0
    for x in range(n):
        out.append(main[start+x])
        while k<m and (k*n)//m <= x if m else False:
            out.append(fill[k]); k+=1
    out+=fill[k:]
    out+=main[end:]
    return out

class Alloc:
    def __init__(s, n, lo=0):
        s.free=set(range(lo,n)); s.names={}; s.peak=0; s.n=n
    def a(s, name, k=1, al=None):
        al = al or (1 if k==1 else 2)
        for b in range(0,s.n,al):
            if all((b+x) in s.free for x in range(k)):
                for x in range(k): s.free.discard(b+x)
                assert name not in s.names, name
                s.names[name]=(b,k); s.peak=max(s.peak, s.n-len(s.free)); return b
        raise Exception(f"out of regs for {name} ({k}); live: {s.names}")
    def at(s, name, b, k):
        assert all((b+x) in s.free for x in range(k)), name
        for x in range(k): s.free.discard(b+x)
        s.names[name]=(b,k); return b
    def f(s, *names):
        for n in names:
            b,k=s.names.pop(n)
            for x in range(k): s.free.add(b+x)

def cost(x):
    if isinstance(x,W): return 4
    if isinstance(x,list): return sum(cost(y) for y in x)
    t=x.text if isinstance(x,I) else x
    if t.endswith(":"): return 0
    if t.startswith(("buffer_","global_")): return 8
    if t.startswith(TRANS) or "swap" in t or t.startswith("v_pk"): return 8
    return 4
def isvm(x):
    if isinstance(x,(W,list)): return False
    t=x.text if isinstance(x,I) else x
    return t.startswith(("buffer_","global_"))
def gsched(steps, segs, cap=8, slack=3):
    q=[]
    for g0,g1,items in segs:
        tot=sum(cost(x) for x in items); c=0
        for x in items: q.append((g0+(g1-g0)*c/max(tot,1), g1, x)); c+=cost(x)
    out=[]; G=0; k=0
    for pre,mm,prim,post in steps:
        out.append(pre); prim=list(prim); n=len(mm)
        for g,m in enumerate(mm):
            out.append(m); b=cap
            if g==n-1: b-=cost(post)
            left=n-slack-g-1
            must=lambda: prim and sum(cost(x) for x in prim)>max(left,0)*cap
            due=lambda: k<len(q) and q[k][0]<=G
            if due() and isvm(q[k][2]) and not must() and b==cap:
                out.append(q[k][2]); k+=1; b=0
            while b>0 or must():
                if must() or (prim and (b==cap or not due() or isvm(q[k][2]))): x=prim.pop(0)
                elif due() and not isvm(q[k][2]): x=q[k][2]; k+=1
                else: break
                out.append(x); b-=cost(x)
            while k<len(q) and q[k][1]<=G+1: out.append(q[k][2]); k+=1
            if g==n-1: out.append(post)
            G+=1
    assert k==len(q)
    return out
```

```python
import sys, struct, math
from fw import *
NAME="parallel_sum__spectral_fnet__mixer_gmlp__prompt_kernel"
def fl(x): return "0x%08x" % struct.unpack("<I", struct.pack("<f", x))[0]
F2=0x1000; F3=0x80000; STATS=0x40000; Z2N=0x100000; VB=0x400000; VP=65536+256; HB=0x700000; DIAG=0xA00000; WSSZ=0xB00000
OOB=0x7ff00000; SENT=0x7f817f81
WB=0; XB=73728; STG=73728; STGW=21760; RED=114688; VL=65536; TRB=114688
sX,sWIN,sWSP,sWOUT,sOUT,sWS,sBSP = 8,12,16,20,24,28,32
sI,sJ,sW,sSH,sFH,sF0,sNOCT,sNON,sR,sXM,sWM,sT0,sT1,sT2,sT3,sSIG,sCNT,sSTM,sRM,sZ = range(36,56)
sN1,sN2,sN3,sFF,sHM = 56,57,58,59,60
sMA,sMB = 62,64
sROT,sKX,sKW = 3,4,5
sTS=66; sSC=92
def srd(b): return f"s[{b}:{b+3}]"
def v(b,k=1): return f"v{b}" if k==1 else f"v[{b}:{b+k-1}]"
def a(b,k=1): return f"a{b}" if k==1 else f"a[{b}:{b+k-1}]"
def f0(j): return 88*j - (8 if j==7 else 0)

def gen(MAPB=2, NT="", DIAGON=False, SPIN=20000, PF=True, PRE=3, DBG=None, ROT=(1,4,0,1), NS=7, NP=7, GAP=(0,0,0), RW=1, FX=(105,175), PX=(0,0,69), VR=.5, FN=5, PN=15, WL=1, CN=4, P2S=False, IST=False, IFR=0.8, DEP=4, SB='w12', SC0='w13', SC='h0 h1 h2', SD='h3 h4 r0 h5 p1', SD2='h6 r1', SE='h7', SF='h8 r2 h9 h10 w14 w15 r3 h11 h12 r4 h13 h14 p2', SG='r5 h15 c2 r6 z0 z1', SG2='r7', FK=6, TQ='H W8 W12 V J', TA=8, TB2=20, TB=63, T1=(2,2,0), T2=(48,1), TRD=(1,7,11), PFN=4, RPG={-1:0,0:0}, HL=(110,171), SK=(5,6,7), OST='', TS=None, WM=4, WS=1, XP='', W1=6, DR=(2,2,2), LW=1, XSP=0, SPM=1, RF=(0,2), SLK=(5,3), RX=(-1,2,-1), GS=(0,1.), FS=1., BARS=(0,1,2,3,4,5,6,7)):
    V=Alloc(256); C=[]; e=C.append
    nts=[0]; tsn=[]; SLOW=[]
    def ts(name):
        if not DIAGON or (TS and name not in TS.split() and name[0]!='x'): return []
        if name[0]=='x':
            k=nts[0]; nts[0]+=1; tsn.append(name); assert k<25
            return [Raw(f"s_getreg_b32 s{sTS+1+k}, hwreg(HW_REG_SHADER_CYCLES)")] if 0 else [Raw(f"s_mov_b32 s{sTS+1+k}, s6"), Raw("s_memtime s[6:7]")]
        k=nts[0]; nts[0]+=1; tsn.append(name); assert k<25
        return [W("lg0"), f"s_memtime s[6:7]", "s_waitcnt lgkmcnt(0)", f"s_mov_b32 s{sTS+1+k}, s6"]
    V.at("tid",0,1)
    XF=V.at("XF",128,128)
    e("s_cmp_ge_u32 s2, 256"); e("s_cbranch_scc1 L_end")
    for s,o in ((sX,0),(sWIN,48),(sWS,96),(sWSP,56),(sBSP,64),(sWOUT,72),(sOUT,80)):
        e(f"s_load_dwordx2 s[{s}:{s+1}], s[0:1], {o}")
    if DIAGON:
        e(f"s_memtime s[{sTS}:{sTS+1}]"); nts[0]=1; tsn.append("start")
        e("s_memrealtime s[100:101]")
    vL=V.a("L"); vN=V.a("n"); vG=V.a("g"); vL16=V.a("L16")
    t0=V.a("t0",2); t1=t0+1; t2=V.a("t2",2); t3=t2+1; t4=V.a("t4",2); t5=t4+1; t6=V.a("t6",2); t7=t6+1
    e(f"v_lshrrev_b32 v{t0}, 6, v0")
    e(f"v_and_b32 v{vL}, 63, v0")
    e(f"v_readfirstlane_b32 s{sW}, v{t0}")
    if MAPB==2:
        e(f"s_bfe_u32 s{sT0}, s2, 0x20001"); e(f"s_lshl_b32 s{sT0}, s{sT0}, 3")
        e(f"s_lshr_b32 s{sT1}, s2, 5"); e(f"s_add_u32 s{sI}, s{sT0}, s{sT1}")
        e(f"s_and_b32 s{sT0}, s2, 1"); e(f"s_lshl_b32 s{sT0}, s{sT0}, 2")
        e(f"s_bfe_u32 s{sT1}, s2, 0x20003"); e(f"s_add_u32 s{sJ}, s{sT0}, s{sT1}")
    else:
        e(f"s_and_b32 s{sT0}, s2, 7"); e(f"s_lshl_b32 s{sT0}, s{sT0}, 2")
        e(f"s_lshr_b32 s{sT1}, s2, 6"); e(f"s_add_u32 s{sI}, s{sT0}, s{sT1}")
        e(f"s_bfe_u32 s{sJ}, s2, 0x30003")
    e(f"v_and_b32 v{vN}, 15, v0"); e(f"v_bfe_u32 v{vG}, v0, 4, 2"); e(f"v_lshlrev_b32 v{vL16}, 4, v{vL}")
    e(f"s_lshr_b32 s{sSH}, s{sW}, 1"); e(f"s_and_b32 s{sFH}, s{sW}, 1")
    e(f"s_mul_i32 s{sF0}, s{sJ}, 88"); e(f"s_cmp_eq_u32 s{sJ}, 7"); e(f"s_cselect_b32 s{sT0}, 8, 0"); e(f"s_sub_u32 s{sF0}, s{sF0}, s{sT0}")
    e(f"s_cmp_lt_u32 s{sJ}, 6"); e(f"s_cselect_b32 s{sNOCT}, 11, 10")
    for s,n in ((sX,2097152),(sWIN,512*2752),(sWS,WSSZ),(sWSP,8388608),(sBSP,4096),(sWOUT,688*1024),(sOUT,2097152)):
        e(f"s_mov_b32 s{s+2}, {n}"); e(f"s_mov_b32 s{s+3}, 0x20000")
    if isinstance(ROT,tuple):
        si,mi,mj,mx=ROT
        e(f"s_lshr_b32 s{sROT}, s{sI}, {si}"); e(f"s_mul_i32 s{sROT}, s{sROT}, {mi}")
        if mj: e(f"s_mul_i32 s{sT0}, s{sJ}, {mj}"); e(f"s_add_u32 s{sROT}, s{sROT}, s{sT0}")
        if mx: e(f"s_mul_i32 s{sT0}, s2, {mx}"); e(f"s_add_u32 s{sROT}, s{sROT}, s{sT0}")
        e(f"s_and_b32 s{sROT}, s{sROT}, 7")
    elif ROT:
        if MAPB==2: e(f"s_lshl_b32 s{sROT}, s{sJ}, 1"); e(f"s_add_u32 s{sROT}, s{sROT}, s{sI}")
        else: e(f"s_lshl_b32 s{sROT}, s{sI}, 1"); e(f"s_add_u32 s{sROT}, s{sROT}, s{sJ}")
        e(f"s_and_b32 s{sROT}, s{sROT}, 7")
    else: e(f"s_mov_b32 s{sROT}, 0")
    xd0=V.a("xd0"); xd1=V.a("xd1")
    e(f"s_lshl_b32 s{sT0}, s{sFH}, 10"); e(f"s_lshl_b32 s{sT1}, s{sSH}, 5"); e(f"s_add_u32 s{sZ}, s{sT1}, s{sI}")
    e(f"s_add_u32 s{sT0}, s{sT0}, s{sZ}"); e(f"s_lshl_b32 s{sT2}, s{sT0}, 10")
    e(f"v_lshrrev_b32 v{t0}, 3, v{vL}"); e(f"v_and_b32 v{t1}, 7, v{vL}"); e(f"v_xor_b32 v{t1}, v{t1}, v{vG}")
    e(f"v_lshlrev_b32 v{t1}, 4, v{t1}"); e(f"v_lshl_add_u32 v{t1}, v{t0}, 16, v{t1}"); e(f"v_add_u32 v{xd0}, s{sT2}, v{t1}")
    e(f"v_xor_b32 v{xd1}, 64, v{xd0}"); e(f"v_add_u32 v{xd1}, {8*65536-1024}, v{xd1}")
    e(f"s_lshl_b32 s{sXM}, s{sW}, 11"); e(f"s_add_u32 s{sXM}, s{sXM}, {XB}")
    e(f"s_mul_i32 s{sWM}, s{sW}, 3072")
    wd=[V.a(f"wd{q}") for q in range(3)]
    e(f"s_mul_i32 s{sT0}, s{sW}, {16*2752}"); e(f"s_lshl_b32 s{sT1}, s{sF0}, 1"); e(f"s_add_u32 s{sT0}, s{sT0}, s{sT1}"); e(f"s_add_u32 s{sT0}, s{sT0}, 1376")
    e(f"s_lshl_b32 s{sKX}, s{sROT}, 7")
    e(f"v_mov_b32 v{t4}, {OOB}")
    for q in range(3):
        if q: e(f"v_add_u32 v{t0}, {64*q}, v{vL}")
        idx = t0 if q else vL
        e(f"v_mul_u32_u24 v{t1}, 171, v{idx}"); e(f"v_lshrrev_b32 v{t1}, 11, v{t1}")
        e(f"v_mad_i32_i24 v{t2}, v{t1}, -12, v{idx}")
        if q==1:
            e(f"v_lshrrev_b32 v{t3}, 2, v{t1}"); e(f"v_and_b32 v{t3}, 2, v{t3}"); e(f"v_xor_b32 v{t2}, v{t2}, v{t3}")
        if q==2: e(f"v_xor_b32 v{t2}, 2, v{t2}")
        e(f"v_cmp_gt_u32 vcc, s{sNOCT}, v{t2}")
        e(f"v_mul_u32_u24 v{t1}, 2752, v{t1}"); e(f"v_lshl_add_u32 v{t1}, v{t2}, 4, v{t1}")
        if q: e(f"s_sub_u32 s{sT0}, s{sT0}, 1024")
        e(f"v_add_u32 v{t1}, s{sT0}, v{t1}")
        e(f"v_cndmask_b32 v{wd[q]}, v{t4}, v{t1}, vcc")
    for n in range(1,8): e(f"s_mov_b32 s{sSC+n}, {n*(524288 if SPM else 1048576)-(n%4)*1088}")
    e("s_waitcnt lgkmcnt(0)")
    e(ts("karg"))
    adv=lambda q: [f"s_add_u32 s{sKX}, s{sKX}, 128", f"s_and_b32 s{sKX}, s{sKX}, 0x380"] if q else []
    def issue_x(kk):
        return [[f"s_add_u32 m0, s{sXM}, {kk*8192}"]+adv(kk)+
                [I(f"buffer_load_dwordx4 v{xd0}, {srd(sX)}, s{sKX} offen {NT} lds", f"st{kk}")],
                I(f"buffer_load_dwordx4 v{xd1}, {srd(sX)}, s{sKX} offen offset:1024 {NT} lds", f"st{kk}")]
    def issue_w(q):
        return [([f"v_subrev_u32 v{wd[k]}, 1376, v{wd[k]}" for k in range(3)] if q==8 else [])+(adv(q) if q>=8 else [])+[f"s_add_u32 m0, s{sWM}, {WB+(q%6)*12288}", f"s_mul_i32 s{sKW}, s{sKX}, 1376"]+
                [I(f"buffer_load_dwordx4 v{wd[0]}, {srd(sWIN)}, s{sKW} offen {NT} lds", f"st{q}")],
                I(f"buffer_load_dwordx4 v{wd[1]}, {srd(sWIN)}, s{sKW} offen offset:1024 {NT} lds", f"st{q}"),
                I(f"buffer_load_dwordx4 v{wd[2]}, {srd(sWIN)}, s{sKW} offen offset:2048 {NT} lds", f"st{q}")]
    dmas=[]; vNV=V.a('vNV')
    sent=lambda c: [f"s_add_u32 s{sSC}, s{sSC}, {32768 if c else HB}", I(f"buffer_store_dwordx4 a[188:191], v{vL16}, {srd(sWS)}, s{sSC} offen sc1",f"sent{c}")]
    for kk in range(PRE):
        dmas+=issue_x(kk)+issue_w(kk)
        if IST: dmas.append(ts(f"d{kk}"))
        if kk==PRE-1: dmas.append(f"buffer_load_dword v{vNV}, off, {srd(sWS)}, 0 sc1")
        if kk==0 and PF:
            dmas.append([f"s_getpc_b64 s[6:7]", "L_pc:", f"s_lshr_b32 s{sT3}, s2, 3", f"s_mul_i32 s{sT3}, s{sT3}, 1280", f"v_lshrrev_b32 v{t6}, 4, v0", f"v_min_u32 v{t6}, 9, v{t6}", f"v_lshl_add_u32 v{t6}, v{t6}, 7, s{sT3}", f"v_min_u32 v{t6}, L_end-L_pc, v{t6}", f"global_load_dword v{t7}, v{t6}, s[6:7]"])
    C0=C; C=[]; e=C.append
    xa=[V.a("xa0"),V.a("xa1")]; wa=[V.a("wa0"),V.a("wa1")]
    e(f"v_lshrrev_b32 v{t0}, 1, v{vN}"); e(f"v_xor_b32 v{t0}, v{t0}, v{vG}"); e(f"v_lshlrev_b32 v{t0}, 4, v{t0}")
    e(f"v_lshl_add_u32 v{t0}, v{vN}, 7, v{t0}")
    e(f"s_lshl_b32 s{sT0}, s{sSH}, 12"); e(f"s_add_u32 s{sT0}, s{sT0}, {XB}")
    e(f"v_add_u32 v{xa[0]}, s{sT0}, v{t0}"); e(f"v_xor_b32 v{xa[1]}, 64, v{xa[0]}")
    e(f"v_lshrrev_b32 v{t0}, 2, v{vN}"); e(f"v_lshl_add_u32 v{t0}, v{vG}, 3, v{t0}"); e(f"v_mul_u32_u24 v{t0}, 192, v{t0}")
    e(f"v_and_b32 v{t1}, 1, v{vG}"); e(f"v_xor_b32 v{t1}, s{sFH}, v{t1}"); e(f"v_lshl_add_u32 v{t0}, v{t1}, 5, v{t0}")
    e(f"v_and_b32 v{t1}, 3, v{vL}"); e(f"v_lshl_add_u32 v{wa[0]}, v{t1}, 3, v{t0}"); e(f"v_add_u32 v{wa[1]}, 36864, v{wa[0]}")
    e(f"v_and_b32 v{t0}, 1, v{vL}"); e(f"v_cmp_ne_u32 s[{sMA}:{sMA+1}], 0, v{t0}")
    e(f"v_and_b32 v{t0}, 2, v{vL}"); e(f"v_cmp_ne_u32 s[{sMB}:{sMB+1}], 0, v{t0}")
    e(f"s_mov_b32 s{sCNT}, {SENT}")
    for k in range(4): e(f"v_accvgpr_write_b32 a{188+k}, s{sCNT}")
    e(f"s_mul_i32 s{sCNT}, s{sI}, 12"); e(f"s_add_u32 s{sCNT}, s{sCNT}, s{sW}"); e(f"s_lshl3_add_u32 s{sCNT}, s{sCNT}, s{sJ}"); e(f"s_lshl_b32 s{sSC}, s{sCNT}, 10")
    ONES=V.a("ONES",4)
    for k in range(4): e(f"v_mov_b32 v{ONES+k}, 0x3f803f80")
    SP=V.a("SP",52)
    aFC,aFS,aAC,aAS=192,208,224,232
    e(f"s_and_b32 s{sT0}, s{sJ}, 1"); e(f"s_lshl_b32 s{sT0}, s{sT0}, 1"); e(f"s_add_u32 s{sR}, s{sT0}, s{sFH}")
    e(f"s_lshr_b32 s{sT0}, s{sJ}, 1"); e(f"s_lshl_b32 s{sT0}, s{sT0}, 6"); e(f"s_add_u32 s{sT0}, s{sT0}, s{sR}")
    e(f"v_lshl_add_u32 v{t0}, v{vN}, 2, s{sT0}")
    e(f"v_subrev_u32 v{t0}, 1, v{t0}"); e(f"v_and_b32 v{t0}, 0xff, v{t0}"); e(f"v_add_u32 v{t0}, 1, v{t0}")
    e(f"v_cvt_f32_u32 v{t0}, v{t0}"); e(f"v_mul_f32 v{t0}, {fl(-1/512)}, v{t0}")
    e(f"s_lshl_b32 s{sT0}, s{sROT}, 6"); e(f"v_lshl_add_u32 v{t1}, v{vG}, 3, s{sT0}"); e(f"v_cvt_f32_u32 v{t1}, v{t1}"); e(f"v_mul_f32 v{t1}, v{t1}, v{t0}"); e(f"v_fract_f32 v{t1}, v{t1}")
    def sincos(step, base, k0, dc, ds, u):
        b=SP+8*(u%2)
        return [f"v_fmamk_f32 v{b}, v{step}, {fl(k0)}, v{base}", f"v_add_f32 v{b+1}, v{b}, v{step}",
                f"v_cos_f32 v{b+2}, v{b}", f"v_cos_f32 v{b+3}, v{b+1}", f"v_sin_f32 v{b+4}, v{b}", f"v_sin_f32 v{b+5}, v{b+1}",
                f"v_cvt_pk_bf16_f32 v{b+2}, v{b+2}, v{b+3}", f"v_accvgpr_write_b32 a{dc}, v{b+2}",
                f"v_cvt_pk_bf16_f32 v{b+4}, v{b+4}, v{b+5}", f"v_accvgpr_write_b32 a{ds}, v{b+4}"]
    for ks in range(4):
        for pr in range(4): e(sincos(t0,t1,32*ks+2*pr,aFC+4*ks+pr,aFS+4*ks+pr,pr))
    for th in range(2):
        e(f"v_add_u32 v{t0}, {16*th}, v{vN}"); e(f"v_cvt_f32_u32 v{t0}, v{t0}"); e(f"v_mul_f32 v{t0}, {fl(1/32)}, v{t0}")
        e(f"v_lshlrev_b32 v{t1}, 2, v{vG}"); e(f"v_cvt_f32_u32 v{t1}, v{t1}"); e(f"v_mul_f32 v{t1}, v{t1}, v{t0}")
        for pr in range(4): e(sincos(t0,t1,16*(pr//2)+2*(pr%2),aAC+4*th+pr,aAS+4*th+pr,pr))
    cons=flat(C); C=C0; e=C.append
    e(dmas[0]); e(mix(cons, dmas[1:], 0, int(len(cons)*IFR)))
    e(f"s_cmp_eq_u32 s{sR}, 0"); e(f"s_cselect_b32 s{sSIG}, 1.0, -1.0")
    e(ts("init"))
    ZA=V.a("ZA",24); CS=SP; SUM=SP+12; SQ=SP+20; WF=SP+28
    def xf(ks,t): return XF+(ks*2+t)*4
    def rd_x(ks):
        kk,kp=divmod(ks,2)
        return [I(f"ds_read_b128 {v(xf(ks,t),4)}, v{xa[kp]} offset:{kk*8192+t*2048}","fr") for t in range(2)]
    def rd_w(q,kp):
        sl=q%6; b=WF+12*kp
        return [I(f"ds_read_b64_tr_b16 {v(b+4*c+2*r,2)}, v{wa[sl//3]} offset:{(sl%3)*12288+kp*6144+r*768+c*64}","fr") for c in range(3) for r in range(2)]
    def mm(d,A,B,first): return f"v_mfma_f32_16x16x32_bf16 {v(d,4)}, {A}, {B}, {'0' if first else v(d,4)}"
    def mf_z(ks,stats):
        o=[]; b=WF+12*(ks%2); f=ks==0
        if stats:
            for t in range(2):
                o.append(mm(SQ+4*t, v(xf(ks,t),4), v(xf(ks,t),4), f)); o.append(mm(SUM+4*t, v(ONES,4), v(xf(ks,t),4), f))
        for c in range(3):
            for t in range(2): o.append(mm(ZA+(c*2+t)*4, v(b+4*c,4), v(xf(ks,t),4), f))
            o.append(mm(CS+4*c, v(b+4*c,4), v(ONES,4), f))
        return o
    RES=V.a("RES",8)
    pend=[]; nxt=PRE; done=[]
    def bg(spec):
        o=[]
        for t in spec.split():
            k,n=t[0],int(t[1:]); assert t not in done; done.append(t)
            if k=='w':
                assert n==nxt or f"w{n-1}" in done; o+=issue_w(n)
            elif k=='h': o+=sp_half(n)
            elif k=='r': o+=sp_read(n)
            elif k=='p': o+=poll1() if n==1 else poll2()
            elif k=='c': o+=chk2()
            elif k=='z': o+=[zdma(n,q) for q in range(4)]
            elif k=='s': assert (n==0 or f"s{n-1}" in done) and "r4" not in done; o+=[sent(n)]
            elif k=='n': o+=[[] for _ in range(n%100)]
        return o
    steps=[]; segs=[]; NB=len(mf_z(0,True))
    for ks in range(17):
        kk,kp=divmod(ks,2); pre=[]; rd=[]
        if ks<16:
            if kp==0:
                pre=[W("vm",f"st{kk}"), "s_barrier"]
                if kk==0: pre+=ts("st0")
                hi=min(kk+1+max(PRE,min(DEP,PRE+kk)), kk+5)
                pend=[]
                while nxt<hi:
                    pend+=(issue_x(nxt) if nxt<8 else [])+issue_w(nxt); nxt+=1
                pend=flat(pend+bg(" ".join(f"s{c}" for c in range(len(SK)) if SK[c]==kk)))
                if kk==7:
                    pend+=[f"v_lshrrev_b32 v{t0}, 1, v{vG}", f"v_lshrrev_b32 v{t1}, 1, v{vN}", f"v_xor_b32 v{t0}, v{t0}, v{t1}",
                    f"v_lshlrev_b32 v{t0}, 4, v{t0}", f"v_lshl_add_u32 v{t0}, v{vN}, 7, v{t0}", f"v_and_b32 v{t1}, 1, v{vG}",
                    f"v_lshl_add_u32 v{t0}, v{t1}, 3, v{t0}", f"s_sub_u32 s{sT0}, s{sJ}, s{sROT}", f"s_and_b32 s{sT0}, s{sT0}, 7", f"s_lshl_b32 s{sT0}, s{sT0}, 13", f"s_add_u32 s{sT0}, s{sT0}, s{sXM}", f"v_add_u32 v{t0}, s{sT0}, v{t0}",
                    f"ds_read_b64 {v(RES,2)}, v{t0}", f"v_xor_b32 v{t1}, 32, v{t0}", f"ds_read_b64 {v(RES+2,2)}, v{t1}",
                    f"v_xor_b32 v{t1}, 64, v{t0}", f"ds_read_b64 {v(RES+4,2)}, v{t1}", f"v_xor_b32 v{t1}, 0x60, v{t0}", f"ds_read_b64 {v(RES+6,2)}, v{t1}"]
                segs.append((max(0,NB*(ks-1)), NB*(ks+1)-1, pend))
            rd=rd_x(ks)+rd_w(kk,kp)
        if ks==16:
            pre=[W("lg0"), W("vm","sent0"), "s_barrier"]; segs.append((NB*15, NB*16, flat(bg(SB))))
        if ks==0: e(pre); e(rd)
        else: steps.append((pre, mf_z(ks-1,True), rd, [W("lg","fr")] if ks<16 else []))
    e(gsched(steps, segs, slack=SLK[0]))
    V.f("xd0","xd1","xa0","xa1")
    e(ts("z2gemm"))
    vsp=V.a("vsp"); ra=[V.a(f"ra{k}") for k in range(4)]
    spinit=[f"v_xor_b32 v{t0}, v{vN}, v{vG}", f"v_lshlrev_b32 v{t0}, 4, v{t0}"]+([f"v_mul_u32_u24 v{t1}, 9, v{vG}", f"v_and_b32 v{t1}, 17, v{t1}", f"v_lshl_add_u32 v{t0}, v{t1}, 18, v{t0}"] if SPM else [f"v_lshl_add_u32 v{t0}, v{vG}, 18, v{t0}"])+[
            f"s_lshl_b32 s{sT0}, s{sZ}, 1", f"s_add_u32 s{sT0}, s{sT0}, s{sFH}", f"s_lshl_b32 s{sT0}, s{sT0}, 11", f"v_add_u32 v{vsp}, s{sT0}, v{t0}",
            f"s_mul_i32 s{sSTM}, s{sW}, {STGW}", f"s_add_u32 s{sSTM}, s{sSTM}, {STG}",
            f"v_bfe_u32 v{t0}, v{vL}, {1 if SPM else 2}, 3", f"v_mul_u32_u24 v{t0}, 1088, v{t0}"]+([f"v_lshrrev_b32 v{t1}, 3, v{vL}", f"v_bfi_b32 v{t1}, 1, v{vL}, v{t1}"] if SPM else [])+[f"v_and_b32 v{t1}, 3, v{t1 if SPM else vL}", f"v_lshl_add_u32 v{t0}, v{t1}, 8, v{t0}",
            f"v_lshl_add_u32 v{t0}, v{t1}, 4, v{t0}", f"v_lshrrev_b32 v{t1}, 5, v{vL}", f"v_lshl_add_u32 v{t0}, v{t1}, 7, v{t0}",
            f"v_add_u32 v{ra[0]}, s{sSTM}, v{t0}"]+[f"v_xor_b32 v{ra[k]}, {16*k}, v{ra[0]}" for k in range(1,4)]
    rb=[t4,t5,t6,t7]; sRX=sXM
    tab=sum(sum(((j>>b)&1)<<k for k,b in enumerate(RX) if b>=0)<<(4*j) for j in range(8))
    spinit+=[f"s_lshl_b32 s{sRX}, s{sJ}, 2", f"s_lshr_b32 s{sRX}, {tab}, s{sRX}", f"s_and_b32 s{sRX}, s{sRX}, 7"]+[x for r,m in ((sSH,RF[0]),(sFH,RF[1])) if m for x in (f"s_mul_i32 s{sT0}, s{r}, {m}", f"s_xor_b32 s{sRX}, s{sRX}, s{sT0}")]+[f"s_lshl_b32 s{sRX}, s{sRX}, 8", f"v_add_u32 v{vsp}, s{sRX}, v{vsp}"]
    def sp_half(h):
        q,hh=divmod(h,2); kap,tb=divmod(q,2); o=[]
        assert h==0 or f"h{h-1}" in done
        off=lambda q: (q%2)*1024+(q//2)*256
        for k in range(4):
            n=4*hh+k
            u=[I(f"buffer_load_dwordx4 v{vsp}, {srd(sWSP)}, {f's{sSC+n}' if n else 0} offen offset:{k*1088} {NT} lds", f"sp{q}")]
            if XSP==1: u=[]
            if XSP==2: u=[I(f"buffer_load_dwordx4 v{vL16}, {srd(sWSP)}, s{sT2} offen offset:{k*1024} sc1 lds", f"sp{q}")]
            if k==0:
                if h>=5 and h%2:
                    assert f"r{(h-5)//2}" in done; u=[W("lg",f"spr{(h-5)//2}")]+u
                u=[f"s_add_u32 m0, s{sSTM}, {(h%5)*4352}"]+u
                if hh==0 and q: u=[f"v_xor_b32 v{vsp}, {off(q)^off(q-1)}, v{vsp}"]+u
            o.append(u)
        return o
    def sp_read(q):
        assert f"h{2*q+1}" in done
        h0=(2*q)%5; R=rb if h0==4 else ra
        assert h0<4 or "rb" in done
        r=[I(f"ds_read_b128 {a((q*8+x)*4,4)}, v{R[x%4]} offset:{h0*4352+(x//4)*64}", f"spr{q}") for x in range(8)]
        r[0]=[W("vm",f"sp{q}"), r[0]]
        return r
    aPL=240
    def poll1(): return [f"buffer_load_dwordx4 {a(aPL+4*k,4)}, v{vL16}, {srd(sWS)}, s{sT2} offen offset:{1024*k} sc1" for k in range(4)]
    def poll2(): return [f"buffer_load_dword v{vPC}, v{vP8}, {srd(sWS)}, s{sT2} offen sc1"]
    def slowchk(n):
        SLOW.extend([f"L_s{n}:", f"s_mov_b32 s{sCNT}, 0", f"L_l{n}:", f"buffer_load_dword v{vPC}, v{vP8}, {srd(sWS)}, s{sT2} offen sc1", "s_waitcnt vmcnt(0)",
                     f"v_cmp_ne_u32 vcc, s{sNON}, v{vPC}", f"s_cbranch_vccz L_b{n}", f"s_add_u32 s{sCNT}, s{sCNT}, 1", f"s_cmp_lt_u32 s{sCNT}, {SPIN}", f"s_cbranch_scc1 L_l{n}", f"s_branch L_b{n}"])
        return [f"v_cmp_ne_u32 vcc, s{sNON}, v{vPC}", f"s_cbranch_vccnz L_s{n}", f"L_b{n}:"]
    def chk2(): return [slowchk("s2")+["s_barrier"]+ts("s2")]
    SL=16384
    def zdma(g,o):
        if g>=24 or (g>=16 and o==3): return []
        r=[]
        if o==0: r=[f"s_add_u32 m0, s{sRM}, {(g%NS)*SL}", f"s_mov_b32 s{sKX}, {Z2N+(g%2 if 'h' in XP else g)*4096}"]
        return r+[I(f"buffer_load_dwordx4 v{vZL}, {srd(sWS)}, s{sKX} offen offset:{o*1024} sc1 lds", f"z{g}")]
    C0=C; C=[]; e=C.append
    e(f"v_readfirstlane_b32 s{sNON}, v{vNV}")
    e(spinit)
    e(f"s_mul_i32 s{sNON}, s{sNON}, 1664525"); e(f"s_add_u32 s{sNON}, s{sNON}, 1013904223")
    e(f"s_lshr_b32 s{sN1}, s{sNON}, 8"); e(f"s_lshr_b32 s{sN2}, s{sNON}, 16"); e(f"s_lshr_b32 s{sN3}, s{sNON}, 24"); e(f"s_movk_i32 s{sFF}, 0xff")
    NM=V.a("NM",2); K1=V.a("K1",2); K0=V.a("K0",2); IR=V.a("IR",2); RS=V.a("RS",2)
    k0=-2*math.log2(math.e)*math.sqrt(2/math.pi); k1=k0*0.044715
    e(f"v_lshrrev_b32 v{t0}, 2, v{vN}"); e(f"v_lshl_add_u32 v{t0}, v{t0}, 4, v{vN}"); e(f"v_lshlrev_b32 v{t0}, 2, v{t0}")
    for t in range(2):
        s=SQ+4*t
        e(f"v_cndmask_b32 v{s}, v{s}, v{s+1}, s[{sMA}:{sMA+1}]"); e(f"v_cndmask_b32 v{s+2}, v{s+2}, v{s+3}, s[{sMA}:{sMA+1}]")
        e(f"v_cndmask_b32 v{s}, v{s}, v{s+2}, s[{sMB}:{sMB+1}]")
        e(f"ds_bpermute_b32 v{s+1}, v{t0}, v{s}")
    for t in range(2):
        e(f"v_mul_f32 v{NM+t}, {fl(-1/512)}, v{SUM+4*t}")
        e(f"v_mul_f32 v{t2+t}, v{NM+t}, v{NM+t}"); e(f"v_sub_f32 v{t2+t}, {fl(1e-5)}, v{t2+t}")
    for t in range(2):
        e(f"v_fmamk_f32 v{t2+t}, v{SQ+4*t+1}, {fl(1/512)}, v{t2+t}"); e(f"v_max_f32 v{t2+t}, {fl(1e-5)}, v{t2+t}")
    for t in range(2): e(f"v_rsq_f32 v{RS+t}, v{t2+t}")
    for t in range(2): e(f"v_sqrt_f32 v{IR+t}, v{t2+t}")
    for t in range(2):
        e(f"v_mul_f32 v{K0+t}, {fl(k0)}, v{RS+t}"); e(f"v_mul_f32 v{t2+t}, v{RS+t}, v{RS+t}")
    for t in range(2):
        e(f"v_mul_f32 v{t2+t}, {fl(0.044715)}, v{t2+t}"); e(f"v_mul_f32 v{K1+t}, v{K0+t}, v{t2+t}")
    cpre=flat(C); C=C0; e=C.append
    e(mix(cpre, bg(SC0)))
    TM=SP+28
    S2=SP+40; Q2=SP+44
    def gelu(stats):
        o=[]
        for c in range(3):
            P=[(ZA+(c*2+t)*4+2*h, CS+4*c+2*h, t, TM+2*(t*2+h), h) for t in range(2) for h in range(2)]
            for z,cs,t,u,h in P: o.append(f"v_pk_fma_f32 {v(z,2)}, {v(NM,2)}, {v(cs,2)}, {v(z,2)} op_sel:[{t},0,0] op_sel_hi:[{t},1,1]")
            for z,cs,t,u,h in P: o.append(f"v_pk_mul_f32 {v(u,2)}, {v(z,2)}, {v(z,2)}")
            for z,cs,t,u,h in P: o.append(f"v_pk_fma_f32 {v(u,2)}, {v(u,2)}, {v(K1,2)}, {v(K0,2)} op_sel:[0,{t},{t}] op_sel_hi:[1,{t},{t}]")
            for z,cs,t,u,h in P: o.append(f"v_pk_mul_f32 {v(u,2)}, {v(u,2)}, {v(z,2)}")
            for z,cs,t,u,h in P: o+= [f"v_exp_f32 v{u}, v{u}", f"v_exp_f32 v{u+1}, v{u+1}"]
            for z,cs,t,u,h in P: o.append(f"v_pk_fma_f32 {v(u,2)}, {v(u,2)}, {v(IR,2)}, {v(IR,2)} op_sel:[0,{t},{t}] op_sel_hi:[1,{t},{t}]")
            for z,cs,t,u,h in P: o+= [f"v_rcp_f32 v{u}, v{u}", f"v_rcp_f32 v{u+1}, v{u+1}"]
            for z,cs,t,u,h in P: o.append(f"v_pk_mul_f32 {v(z,2)}, {v(z,2)}, {v(u,2)}")
            if stats:
                for z,cs,t,u,h in P:
                    if c==0 and h==0:
                        o.append(f"v_pk_add_f32 {v(S2+2*t,2)}, {v(z,2)}, {v(z+2,2)}"); o.append(f"v_pk_mul_f32 {v(Q2+2*t,2)}, {v(z,2)}, {v(z,2)}")
                    else:
                        if c: o.append(f"v_pk_add_f32 {v(S2+2*t,2)}, {v(S2+2*t,2)}, {v(z,2)}")
                        o.append(f"v_pk_fma_f32 {v(Q2+2*t,2)}, {v(z,2)}, {v(z,2)}, {v(Q2+2*t,2)}")
        return o
    e(mix(gelu(True), bg(SC)))
    e(f"v_add_f32 v{t0}, v{S2}, v{S2+1}"); e(f"v_add_f32 v{t2}, v{S2+2}, v{S2+3}")
    e(f"v_add_f32 v{t1}, v{Q2}, v{Q2+1}"); e(f"v_add_f32 v{t3}, v{Q2+2}, v{Q2+3}")
    e(f"v_lshlrev_b32 v{t4}, 3, v{vG}"); e(f"v_lshrrev_b32 v{t4}, v{t4}, s{sNON}")
    e(f"v_permlane32_swap_b32 v{t0}, v{t2}"); e(f"v_permlane32_swap_b32 v{t1}, v{t3}")
    e(f"v_add_f32 v{t0}, v{t0}, v{t2}"); e(f"v_add_f32 v{t1}, v{t1}, v{t3}")
    e(f"v_lshlrev_b32 v{t5}, 2, v{vG}"); e(f"v_lshl_add_u32 v{t5}, v{vN}, 4, v{t5}")
    e(f"v_permlane16_swap_b32 v{t0}, v{t1}")
    e(f"s_lshl_b32 s{sT0}, s{sI}, 1"); e(f"s_add_u32 s{sT0}, s{sT0}, s{sSH}"); e(f"s_lshl_b32 s{sT0}, s{sT0}, 12"); e(f"s_add_u32 s{sT2}, s{sT0}, {STATS}")
    e(f"s_lshl_b32 s{sT0}, s{sJ}, 1"); e(f"s_add_u32 s{sT0}, s{sT0}, s{sFH}"); e(f"s_lshl_b32 s{sT0}, s{sT0}, 8"); e(f"s_add_u32 s{sT0}, s{sT0}, s{sT2}")
    e(f"v_add_f32 v{t0}, v{t0}, v{t1}")
    e(f"v_bfi_b32 v{t0}, s{sFF}, v{t4}, v{t0}")
    e(I(f"buffer_store_dword v{t0}, v{t5}, {srd(sWS)}, s{sT0} offen sc1","stat"))
    e(ts("statpub"))
    UA=SP; RR=SP+32; TR=SP+40; TI=SP+44; TN=SP+48
    def acc(uw,ri,t): return UA+((uw*2+ri)*2+t)*4
    vVS=V.a("vVS"); vZ=V.a("vZ"); vZ2=V.a("vZ2")
    fillD=[[f"v_lshlrev_b32 v{t0}, 4, v{vG}"]+[f"ds_bpermute_b32 v{RR+4*t+r}, v{t0}, v{RS+t} offset:{4*r}" for t in range(2) for r in range(4)]]
    fillD+=[[f"v_permlane16_swap_b32 v{ZA+8*c+r}, v{ZA+8*c+4+r}" for r in range(2*h,2*h+2)] for c in range(3) for h in range(2)]
    fillD+=[[f"s_lshr_b32 s{sT0}, s{sR}, 1", f"s_bfe_u32 s{sT1}, s{sI}, 0x10002", f"s_lshl_b32 s{sT1}, s{sT1}, 1", f"s_xor_b32 s{sT0}, s{sT0}, s{sT1}", f"v_xor_b32 v{t1}, s{sT0}, v{vG}"],
            [f"v_lshlrev_b32 v{t1}, 4, v{t1}", f"v_mul_u32_u24 v{t2}, {VP}, v{vN}"],
            [f"s_lshr_b32 s{sT0}, s{sJ}, 1", f"s_lshl_b32 s{sT0}, s{sT0}, 6", f"s_add_u32 s{sT0}, s{sT0}, s{sZ}", f"s_lshl_b32 s{sT0}, s{sT0}, 2", f"s_add_u32 s{sT0}, s{sT0}, s{sR}",
             f"s_lshl_b32 s{sT0}, s{sT0}, 6", f"v_add3_u32 v{vVS}, v{t1}, v{t2}, s{sT0}"]]
    fillD+=[[f"v_lshrrev_b32 v{t1}, 5, v{vL}", f"s_lshl_b32 s{sT0}, s{sFH}, 1", f"v_add_u32 v{t1}, s{sT0}, v{t1}"],
            [f"s_bfe_u32 s{sT0}, s{sI}, 0x10001", f"v_lshl_add_u32 v{t2}, v{t1}, 1, s{sT0}", f"v_and_b32 v{t3}, 7, v{vL}"],
            [f"v_xor_b32 v{t2}, v{t2}, v{t3}", f"v_lshlrev_b32 v{t2}, 4, v{t2}"],
            [f"v_lshl_add_u32 v{t2}, v{t1}, 10, v{t2}", f"v_bfe_u32 v{t3}, v{vL}, 3, 2"],
            [f"v_mul_u32_u24 v{t3}, 98304, v{t3}", f"s_mul_i32 s{sT0}, s{sJ}, 393216", f"s_lshl_b32 s{sT1}, s{sSH}, 14", f"s_add_u32 s{sT0}, s{sT0}, s{sT1}",
             f"s_lshr_b32 s{sT1}, s{sI}, 3", f"s_lshl_b32 s{sT1}, s{sT1}, 12", f"s_add_u32 s{sT0}, s{sT0}, s{sT1}",
             f"s_and_b32 s{sT1}, s{sI}, 7", f"s_lshl_b32 s{sT1}, s{sT1}, 7", f"s_add_u32 s{sT0}, s{sT0}, s{sT1}", f"v_add3_u32 v{vZ}, v{t2}, v{t3}, s{sT0}"],
            [f"v_add_u32 v{t1}, 8, v{t1}", f"v_cmp_gt_u32 s[{sHM}:{sHM+1}], s{sNOCT}, v{t1}"],
            [f"v_mov_b32 v{t1}, {OOB}"], [f"v_cndmask_b32 v{vZ2}, v{t1}, v{vZ}, s[{sHM}:{sHM+1}]"]]
    fillD+=[f"v_mov_b32 v{t4}, s{sSIG}", f"s_mov_b32 s{sCNT}, 0"]
    bd=bg(SD); fillD=flat(mix(bd, fillD) if len(bd)>len(fillD) else mix(fillD, bd))
    fD=lambda var: gsched([([],fftv(var),[],[])], [(0,62,fillD)])
    def fftv(var):
        o=[]; seen=set()
        tab={0:[((0,0),(0,1)),((1,0),(1,1)),((0,0),(0,1)),((1,0),(1,1))],
             1:[((0,0),(0,1)),((1,1),(0,0)),((1,0),(1,1)),((0,1),(1,0))],
             3:[((0,0),(0,1)),((0,1),(1,0)),((1,0),(1,1)),((1,1),(0,0))]}[var]
        for ks in range(16):
            D,k=divmod(ks,4)
            for which,base in ((0,aFC),(1,aFS)):
                uw,ri=tab[D][which]
                for t in range(2):
                    d=acc(uw,ri,t); o.append(mm(d, v(xf(ks,t),4), a(base+4*k,4), d not in seen)); seen.add(d)
        return o
    e(f"s_cmp_eq_u32 s{sR}, 1"); e("s_cbranch_scc1 L_f1"); e(f"s_cmp_eq_u32 s{sR}, 3"); e("s_cbranch_scc1 L_f3")
    e(Var([fD(0)+["s_nop 6","s_branch L_fj"], ["L_f1:"]+fD(1)+["s_nop 6","s_branch L_fj"], ["L_f3:"]+fD(3)+["s_nop 7"]]))
    e("L_fj:")
    e(ts("fftm"))
    C0=C; C=[]; e=C.append
    for ri in range(2):
        for t in range(2):
            for h in range(2):
                u=acc(0,ri,t)+2*h; w_=acc(1,ri,t)+2*h
                e(f"v_pk_fma_f32 {v(u,2)}, {v(t4,2)}, {v(w_,2)}, {v(u,2)} op_sel_hi:[0,1,1]")
    for ri in range(2):
        for t in range(2):
            for h in range(2):
                u=acc(0,ri,t)+2*h; e(f"v_pk_mul_f32 {v(u,2)}, {v(u,2)}, {v(RR+4*t+2*h,2)}")
    for t in range(2):
        for h in range(2):
            u=acc(0,0,t)+2*h; e(f"v_cvt_pk_bf16_f32 v{TR+2*t+h}, v{u}, v{u+1}"); e(f"v_cvt_pk_bf16_f32 v{TN+2*t+h}, -v{u}, -v{u+1}")
            u=acc(0,1,t)+2*h; e(f"v_cvt_pk_bf16_f32 v{TI+2*t+h}, v{u}, v{u+1}")
    VA=SP+16
    for th in range(2):
        e(mm(VA+8*th, v(TR,4), a(aAC+4*th,4), True)); e(mm(VA+8*th+4, v(TI,4), a(aAC+4*th,4), True))
        e(mm(VA+8*th, v(TI,4), a(aAS+4*th,4), False)); e(mm(VA+8*th+4, v(TN,4), a(aAS+4*th,4), False))
    VK=SP+32
    for th in range(2):
        for r in range(4): e(f"v_cvt_pk_bf16_f32 v{VK+4*th+r}, v{VA+8*th+r}, v{VA+8*th+4+r}")
    dt=flat(C); C=C0; e=C.append
    e(mix(dt, bg(SD2)))
    for th in range(2):
        e(f"s_mov_b32 s{sT3}, {VB+th*16*VP}")
        e(I(f"buffer_store_dwordx4 {v(VK+4*th,4)}, v{vVS}, {srd(sWS)}, s{sT3} offen sc1","z2n"))
    e(ts("fft"))
    PL=SP; ZP=SP+16
    sn=[sNON,sN1,sN2,sN3]
    chk=[f"v_xor_b32 v{t0}, s{sNON}, v{PL}", f"v_xor_b32 v{t1}, s{sN1}, v{PL+1}"]
    chk+=[f"v_bitop3_b32 v{t0+k%2}, v{PL+k}, s{sn[k%4]}, v{t0+k%2} bitop3:0xbe" for k in range(2,16)]
    chk+=[f"v_bitop3_b32 v{t0}, v{t0}, v{t1}, s{sFF} bitop3:0xa8", f"v_cmp_ne_u32 vcc, 0, v{t0}"]
    assert "p1" in done
    e(W("vm","st13")); e("L_r1:"); e([f"v_accvgpr_read_b32 v{PL+k}, a{aPL+k}" for k in range(16)]); e(chk); e("s_cbranch_vccnz L_s1"); e("L_b1:")
    SLOW.extend(["L_s1:", f"s_add_u32 s{sCNT}, s{sCNT}, 1", f"s_cmp_ge_u32 s{sCNT}, {SPIN}", "s_cbranch_scc1 L_b1"]+poll1()+["s_waitcnt vmcnt(0)", "s_branch L_r1"])
    e(ts("s1"))
    C0=C; C=[]; e=C.append
    for h in range(2):
        e(f"v_pk_add_f32 {v(PL+2*h,2)}, {v(PL+2*h,2)}, {v(PL+4+2*h,2)}"); e(f"v_pk_add_f32 {v(PL+8+2*h,2)}, {v(PL+8+2*h,2)}, {v(PL+12+2*h,2)}")
    for h in range(2): e(f"v_pk_add_f32 {v(PL+2*h,2)}, {v(PL+2*h,2)}, {v(PL+8+2*h,2)}")
    e(f"v_permlane16_swap_b32 v{PL}, v{PL+2}"); e(f"v_permlane16_swap_b32 v{PL+1}, v{PL+3}")
    e(f"v_pk_add_f32 {v(PL+4,2)}, {v(PL,2)}, {v(PL+2,2)}"); e(f"v_pk_add_f32 {v(PL,2)}, {v(PL,2)}, {v(PL+2,2)}")
    e(f"v_permlane32_swap_b32 v{PL}, v{PL+4}"); e(f"v_permlane32_swap_b32 v{PL+1}, v{PL+5}")
    e(f"v_pk_add_f32 {v(PL,2)}, {v(PL,2)}, {v(PL+4,2)}")
    e(f"v_mul_f32 v{t0}, {fl(-1/688)}, v{PL}"); e(f"v_mul_f32 v{t1}, v{t0}, v{t0}"); e(f"v_sub_f32 v{t1}, {fl(1e-5)}, v{t1}")
    e(f"v_fmamk_f32 v{t1}, v{PL+1}, {fl(1/688)}, v{t1}"); e(f"v_max_f32 v{t1}, {fl(1e-5)}, v{t1}")
    e(f"v_rsq_f32 v{t2}, v{t1}"); e(f"v_mul_f32 v{t3}, v{t0}, v{t2}")
    dt=flat(C); C=C0; e=C.append
    e(mix(dt, bg(SE)))
    for c in range(3):
        for k in range(4):
            z=ZA+8*c+2*k; e(f"v_pk_fma_f32 {v(z,2)}, {v(z,2)}, {v(t2,2)}, {v(t2,2)} op_sel:[0,0,1] op_sel_hi:[1,0,1]")
        for k in range(4):
            z=ZA+8*c+2*k; e(f"v_cvt_pk_bf16_f32 v{ZP+4*c+k}, v{z}, v{z+1}")
        e(f"s_mov_b32 s{sT3}, {Z2N+c*32768}")
        e(I(f"buffer_store_dwordx4 {v(ZP+4*c,4)}, v{vZ2 if c==2 else vZ}, {srd(sWS)}, s{sT3} offen sc1","z2n"))
    e(ts("z2npub"))
    V.f("vVS","vZ","vZ2")
    vFO=V.a("vFO"); vBT=V.a("vBT")
    e(f"v_lshlrev_b32 v{t0}, 2, v0"); e(f"v_cmp_gt_u32 vcc, 32, v0"); e(f"v_mov_b32 v{t1}, {OOB}"); e(f"v_mov_b32 v{vNV}, s{sNON}"); e(f"v_cndmask_b32 v{vFO}, v{t1}, v{t0}, vcc")
    e(f"v_and_b32 v{t0}, 31, v{vL}"); e(f"v_lshlrev_b32 v{t0}, 7, v{t0}"); e(f"s_lshl_b32 s{sT0}, s{sZ}, 1")
    e(f"buffer_load_ushort v{vBT}, v{t0}, {srd(sBSP)}, s{sT0} offen")
    vZL=V.a("vZL"); vP8=V.a("vP8"); vPC=V.a("vPC")
    e(f"v_and_b32 v{t0}, {8 if SPM else 16}, v{vL}"); e(f"v_mul_u32_u24 v{t0}, {STGW//(8 if SPM else 16)}, v{t0}")
    for k in range(4): e(f"v_sub_u32 v{rb[k]}, v{ra[k]}, v{t0}")
    done.append("rb")
    e(f"s_lshl_b32 s{sT0}, s{sJ}, 2"); e(f"s_add_u32 s{sT0}, s{sT0}, s{sW}"); e(f"s_lshr_b32 s{sT1}, s{sRX}, 10"); e(f"s_xor_b32 s{sT1}, s{sT1}, s{sT0}"); e(f"s_mul_i32 s{sT1}, s{sT1}, 98304"); e(f"v_add_u32 v{vZL}, s{sT1}, v{vL16}")
    e(f"s_lshl_b32 s{sRM}, s{sW}, 12")
    e(f"v_and_b32 v{t0}, 7, v{vL}"); e(f"v_lshlrev_b32 v{vP8}, 7, v{t0}")
    e(f"s_lshl_b32 s{sT0}, s{sT0}, 10"); e(f"s_add_u32 s{sT2}, s{sT0}, {F2}")
    e(f"s_lshl_b32 s{sT0}, s{sJ}, 5"); e(f"s_add_u32 s{sT0}, s{sT0}, s{sI}"); e(f"s_lshl_b32 s{sT0}, s{sT0}, 7"); e(f"s_add_u32 s{sT0}, s{sT0}, {F2}")
    e("s_barrier")
    assert FK>=5 and FK<12
    sa,sb=SF.split("w14"); u1=bg(sa); u2=bg("w14"+sb)
    steps=[]; NF=len(mf_z(0,False))
    for ks in range(17):
        kk,kp=divmod(ks,2); pre=[]; rd=[]
        if ks<16: rd=rd_w(8+kk,kp)
        if ks==12: pre=[W("vm","st15"),"s_barrier"]
        if ks==FK:
            pre=[W("vm","z2n"),"s_barrier"]
            u2=[f"buffer_store_dword v{vNV}, v{vFO}, {srd(sWS)}, s{sT0} offen sc1"]+([ts("s2flag")] if DIAGON else [])+flat(u2)
        if ks==0: e(rd)
        else: steps.append((pre, mf_z(ks-1,False), rd, [W("lg","fr")] if ks<16 else []))
    e(gsched(steps, [(0,NF*(FK-1)-1,flat(u1)), (NF*(FK-1),int(NF*16*FS),u2)], slack=SLK[1]))
    V.f("XF","wd0","wd1","wd2","wa0","wa1","ONES")
    e(ts("z1gemm"))
    Z1=V.a("Z1",12)
    gl=gelu(False); e(mix(gl, bg(SG), int(len(gl)*GS[0]), int(len(gl)*GS[1])))
    C0=C; C=[]; e=C.append
    for c in range(3):
        for t in range(2):
            for h in range(2):
                z=ZA+(c*2+t)*4+2*h; e(f"v_cvt_pk_bf16_f32 v{Z1+4*c+2*t+h}, v{z}, v{z+1}")
    for c in range(3):
        for h in range(2): e(f"v_permlane16_swap_b32 v{Z1+4*c+h}, v{Z1+4*c+2+h}")
    e(f"v_lshlrev_b32 v{vBT}, 16, v{vBT}")
    dt=flat(C); C=C0; e=C.append
    e(mix(dt, bg(SG2)))
    assert all(f"r{q}" in done for q in range(8)) and "c2" in done and ("s2" in done or 's' in XP)
    V.f("ZA","SP","NM","K1","K0","IR","RS","vsp","ra0","ra1","ra2","ra3")
    za=[V.a(f"za{k}") for k in range(8)]; vRW=V.a("vRW"); vRR=V.a("vRR"); vH=V.a("vH"); vH2=V.a("vH2")
    e(ts("z1done"))
    C0=C; C=[]; e=C.append
    e(f"v_and_b32 v{t0}, 1, v{vG}"); e(f"v_xor_b32 v{t0}, s{sFH}, v{t0}"); e(f"v_and_b32 v{t1}, 1, v{vL}"); e(f"v_lshl_add_u32 v{t0}, v{t0}, 1, v{t1}")
    e(f"v_mul_u32_u24 v{t0}, {1024+32}, v{t0}")
    e(f"v_lshrrev_b32 v{t1}, 2, v{vN}"); e(f"v_lshl_add_u32 v{t0}, v{t1}, 7, v{t0}")
    e(f"v_lshrrev_b32 v{t1}, 3, v{vN}"); e(f"v_lshrrev_b32 v{t2}, 1, v{vG}"); e(f"v_xor_b32 v{t1}, v{t1}, v{t2}"); e(f"v_lshl_add_u32 v{t0}, v{t1}, 4, v{t0}")
    e(f"v_bfe_u32 v{t1}, v{vL}, 1, 1"); e(f"v_lshl_add_u32 v{t0}, v{t1}, 3, v{t0}")
    e(f"s_bfe_u32 s{sT0}, s{sRX}, 0x70003"); e(f"v_xor_b32 v{t0}, s{sT0}, v{t0}")
    e(f"v_lshl_add_u32 v{za[0]}, s{sFH}, 13, v{t0}")
    for k in range(1,4): e(f"v_xor_b32 v{za[k]}, {32*k}, v{za[0]}")
    for k in range(4): e(f"v_add_u32 v{za[4+k]}, {4*SL}, v{za[k]}")
    e(f"s_lshl_b32 s{sT0}, s{sW}, 11"); e(f"s_add_u32 s{sT0}, s{sT0}, {RED}"); e(f"v_mad_u32_u24 v{vRR}, v{vL}, {4*WM}, s{sT0}")
    e(f"v_xor_b32 v{vRW}, 2048, v{vRR}")
    e(f"v_and_b32 v{t0}, 1, v{vG}"); e(f"v_lshlrev_b32 v{t0}, 13, v{t0}"); e(f"v_lshl_add_u32 v{t0}, v{vN}, 4, v{t0}")
    e(f"v_lshrrev_b32 v{t1}, 1, v{vG}"); e(f"v_lshl_add_u32 v{t0}, v{t1}, 8, v{t0}")
    e(f"s_mul_i32 s{sT0}, s{sI}, 98304"); e(f"s_lshl_b32 s{sT1}, s{sSH}, 14"); e(f"s_add_u32 s{sT0}, s{sT0}, s{sT1}"); e(f"s_lshl_b32 s{sT1}, s{sFH}, 9"); e(f"s_add_u32 s{sT0}, s{sT0}, s{sT1}")
    e(f"s_lshl_b32 s{sT1}, s{sJ}, 10"); e(f"s_add_u32 s{sT1}, s{sT1}, s{sT0}"); e(f"v_add_u32 v{vH}, s{sT1}, v{t0}")
    e(f"s_mul_i32 s{sT1}, s{sJ}, 768"); e(f"s_min_u32 s{sT1}, s{sT1}, {20*256}"); e(f"s_add_u32 s{sT1}, s{sT1}, s{sT0}"); e(f"v_add_u32 v{t0}, s{sT1}, v{t0}")
    e(f"v_mov_b32 v{t1}, {OOB}"); e(f"v_cndmask_b32 v{vH2}, v{t1}, v{t0}, s[{sHM}:{sHM+1}]")
    AC=V.a("AC0",16); AC1=V.a("AC1",16); ACS=[AC,AC1]; ZF=V.a("ZF",32); RD=V.a("RD",8); HP=V.a("HP",4); HT=V.a("HT",8); BZ=V.a("BZ",8)
    vWO=V.a("vWO"); wo=[[V.a(f"wo{r}{p}") for p in range(4)] for r in range(2)]
    e(f"v_lshrrev_b32 v{t0}, 3, v{vL}"); e(f"v_and_b32 v{t1}, 2, v{t0}"); e(f"v_and_b32 v{t2}, 7, v{vL}")
    e(f"s_lshl_b32 s{sT0}, s{sFH}, 2"); e(f"v_bitop3_b32 v{t1}, v{t1}, v{t2}, s{sT0} bitop3:0x96")
    e(f"v_lshlrev_b32 v{t1}, 4, v{t1}"); e(f"v_lshl_add_u32 v{t1}, v{t0}, 10, v{t1}")
    e(f"s_lshl_b32 s{sT0}, s{sW}, 6"); e(f"s_add_u32 s{sT0}, s{sT0}, s{sJ}"); e(f"s_lshl_b32 s{sT0}, s{sT0}, 7"); e(f"v_add_u32 v{vWO}, s{sT0}, v{t1}")
    if 'c' in XP: e(f"s_mul_i32 s{sT0}, s{sJ}, 86"); e(f"s_add_u32 s{sT0}, s{sT0}, s{sW}"); e(f"s_lshl_b32 s{sT0}, s{sT0}, 10"); e(f"v_add_u32 v{vWO}, s{sT0}, v{vL16}")
    e(f"v_lshlrev_b32 v{t0}, 12, v{vG}"); e(f"v_lshrrev_b32 v{t1}, 2, v{vN}"); e(f"v_lshl_add_u32 v{t0}, v{t1}, 7, v{t0}")
    e(f"v_and_b32 v{t1}, 3, v{vL}"); e(f"v_lshl_add_u32 v{t0}, v{t1}, 3, v{t0}"); e(f"v_lshrrev_b32 v{t1}, 3, v{vN}"); e(f"v_lshl_add_u32 v{t0}, v{t1}, 5, v{t0}")
    e(f"v_and_b32 v{t1}, 1, v{vG}"); e(f"v_lshl_add_u32 v{t0}, v{t1}, 6, v{t0}"); e(f"v_add_u32 v{wo[1][0]}, {2*SL}, v{t0}")
    for ct in range(1,4): e(f"v_xor_b32 v{wo[1][ct]}, {32*ct}, v{wo[1][0]}")
    for ct in range(4): e(f"v_add_u32 v{wo[0][ct]}, {4*SL}, v{wo[1][ct]}")
    TW=V.a("TW",16); H0=V.a("H0",32); H1=V.a("H1",32); OA=V.a("OA",16); va=[V.a(f"va{k}") for k in range(4)]; WR=H0
    vPA=V.a("vPA"); vPV=V.a("vPV"); vHL=V.a("vHL"); vHL5=V.a("vHL5")
    sMI,sRHO,sVB,sFP,sFS=sXM,sSTM,sWM,sN1,sN2
    e([f"s_cmp_ge_u32 s{sJ}, 4", f"s_cselect_b32 s{sMI}, -1, 0"]); e(f"s_and_b32 s{sT0}, s{sMI}, 0x80000000"); e(f"s_or_b32 s{sT0}, s{sT0}, {fl(1/2048)}")
    e(f"s_lshl_b32 s{sT1}, s{sFH}, 10"); e(f"s_add_u32 s{sT1}, s{sT1}, s{sZ}")
    e(f"v_lshl_add_u32 v{t0}, v{vN}, 6, s{sT1}"); e(f"v_cvt_f32_u32 v{t0}, v{t0}"); e(f"v_mul_f32 v{t0}, s{sT0}, v{t0}")
    e(f"v_lshlrev_b32 v{t1}, 2, v{vG}"); e(f"v_cvt_f32_u32 v{t1}, v{t1}"); e(f"v_mul_f32 v{t1}, v{t1}, v{t0}")
    for kv in range(4):
        for q in range(4):
            e(f"v_fmamk_f32 v{WR+q}, v{t0}, {fl(16*kv+q)}, v{t1}")
        for q in range(4): e(f"v_cos_f32 v{WR+4+q}, v{WR+q}"); e(f"v_sin_f32 v{WR+q}, v{WR+q}")
        for q in range(4): e(f"v_cvt_pk_bf16_f32 v{TW+4*kv+q}, v{WR+4+q}, v{WR+q}")
    e(f"s_xor_b32 s{sT0}, s{sI}, s{sMI}"); e(f"s_sub_u32 s{sT0}, s{sT0}, s{sMI}"); e(f"s_and_b32 s{sT0}, s{sT0}, 31"); e(f"s_mul_i32 s{sVB}, s{sT0}, {VP}"); e(f"s_add_u32 s{sVB}, s{sVB}, {VB}")
    e(f"s_xor_b32 s{sRHO}, s{sJ}, s{sMI}"); e(f"s_and_b32 s{sRHO}, s{sRHO}, 3")
    e(f"v_and_b32 v{t4}, 1, v{vG}"); e(f"v_lshlrev_b32 v{t4}, 1, v{t4}"); e(f"v_lshlrev_b32 v{t5}, 10, v{vG}"); e(f"v_add_u32 v{t5}, {VL}, v{t5}")
    for ct in range(4):
        e(f"v_add_u32 v{t0}, {16*ct}, v{vN}"); e(f"v_xor_b32 v{t0}, s{sMI}, v{t0}"); e(f"v_subrev_u32 v{t0}, s{sMI}, v{t0}")
        e(f"v_bfe_u32 v{t1}, v{t0}, 4, 2"); e(f"v_bfe_u32 v{t2}, v{t0}, 1, 1"); e(f"v_bitop3_b32 v{t1}, v{t1}, v{t2}, v{t4} bitop3:0x96")
        e(f"v_lshl_add_u32 v{t1}, v{t1}, 4, v{t5}"); e(f"v_and_b32 v{t2}, 3, v{t0}"); e(f"v_lshl_add_u32 v{t1}, v{t2}, 6, v{t1}")
        e(f"v_and_b32 v{t2}, 12, v{t0}"); e(f"v_add_u32 v{va[ct]}, v{t1}, v{t2}")
    e(f"v_bfe_u32 v{t0}, v{vN}, 2, 1"); e(f"v_lshlrev_b32 v{t0}, 5, v{t0}"); e(f"v_lshl_add_u32 v{t0}, v{vN}, 8, v{t0}"); e(f"v_add_u32 v{vPA}, s{sRM}, v{t0}")
    e(f"s_mul_i32 s{sT0}, s{sI}, 12"); e(f"s_add_u32 s{sT0}, s{sT0}, s{sW}"); e(f"s_lshl_b32 s{sT0}, s{sT0}, 13"); e(f"v_add_u32 v{vHL}, s{sT0}, v{vL16}")
    e(f"v_cmp_gt_u32 vcc, 32, v{vL}"); e(f"v_mov_b32 v{t1}, {OOB}"); e(f"v_lshlrev_b32 v{t0}, 7, v{vL}"); e(f"v_cndmask_b32 v{vHL5}, v{t1}, v{vHL}, vcc"); e(f"v_cndmask_b32 v{vP8}, v{t1}, v{t0}, vcc")
    if PX[1]:
        e(f"s_and_b32 s{sT0}, s{sI}, 7"); e(f"s_lshl2_add_u32 s{sT0}, s{sT0}, s{sW}"); e(f"s_mul_i32 s{sT0}, s{sT0}, 22"); e(f"v_min_u32 v{t2}, 21, v{vL}"); e(f"v_add_lshl_u32 v{t2}, v{t2}, s{sT0}, 10")
    setup=C; C=C0; e=C.append
    assert NP>=5
    pro=[([W("lg","spr7"),"s_barrier"] if (g,o)==(4,0) else [])+zdma(g,o) for g in range(NP) for o in range(4) if f"z{g}" not in done]
    e(pro[0]); e(mix(setup, pro[1:], 0, int(len(setup)*0.9)))
    nst=[f"s_cmp_eq_u32 s2, 0", f"s_cselect_b32 s{sT0}, 0, {OOB}", f"buffer_store_dword v{vNV}, v{vFO}, {srd(sWS)}, s{sT0} offen sc1"]
    def zrd(x):
        g,k=divmod(x,4); sl=g%NS; r_=za[k+4*(sl//4)]; of=(sl%4)*SL
        r=[I(f"ds_read_b64_tr_b16 {v(ZF+8*(x%4)+2*n,2)}, v{r_} offset:{of+(n//2)*4096+(n%2)*512}", f"zr{x}") for n in range(4)]
        if k==0: r[0]=[W("vm",f"z{g}")]+([] if 'b' in XP and g else ["s_barrier"])+[r[0]]
        return r
    def wo_lds(kap): return (8,9,3,5,6,2)[kap//4]*SL+(kap%4)*1024
    def wo_dma(kap):
        r=[f"s_add_u32 m0, s{sRM}, {wo_lds(kap)}"]
        if 'c' in XP: r.append(f"s_mov_b32 s{sT3}, {kap*4096}")
        elif kap<16:
            r.append(f"s_mov_b32 s{sT3}, {(f0(kap%8)+32*(kap//8))*1024}")
        elif kap<21:
            k=kap-16
            r+=[f"s_add_u32 s{sT3}, s{sW}, {4*k}", f"s_mul_i32 s{sT3}, s{sT3}, 43", f"s_lshr_b32 s{sT3}, s{sT3}, 7", f"s_lshl_b32 s{sT3}, s{sT3}, 16", f"s_add_u32 s{sT3}, s{sT3}, {(32*k+64)*1024}"]
        else: r.append(f"s_mov_b32 s{sT3}, {672*1024}")
        return r+[I(f"buffer_load_dwordx4 v{vWO}, {srd(sWOUT)}, s{sT3} offen {NT} lds", f"wo{kap}")]
    def red_wr(c):
        return [I(f"ds_write_b{32*WM} v{vRW}, {v(ACS[c%2]+8+WM*x,WM)} offset:{x*256*WM}", f"rw{c}") for x in range(8//WM)]
    def red_rd(c):
        if WM==1: return [f"ds_read2st64_b32 {v(RD+2*x,2)}, v{vRR} offset0:{2*x} offset1:{2*x+1}" for x in range(4)]
        return [f"ds_read_b{32*WM} {v(RD+WM*x,WM)}, v{vRR} offset:{x*256*WM}" for x in range(8//WM)]
    def red_own(c, pk):
        A=ACS[c%2]
        if pk: return [f"v_pk_fma_f32 {v(A+2*k,2)}, {v(A+2*k,2)}, {v(HT+2*k,2)}, {v(BZ+2*k,2)}" for k in range(4)]
        return [f"v_fma_f32 v{A+k}, v{A+k}, v{HT+k}, v{BZ+k}" for k in range(8)]
    def red_alu(c, pk):
        o=[]; A=ACS[c%2]
        if pk: o+=[f"v_pk_fma_f32 {v(A+2*k,2)}, {v(RD+2*k,2)}, {v(HT+2*k,2)}, {v(A+2*k,2)}" for k in range(4)]
        else: o+=[f"v_fmac_f32 v{A+k}, v{RD+k}, v{HT+k}" for k in range(8)]
        for k in range(4): o.append(f"v_cvt_pk_bf16_f32 v{HP+k}, v{A+2*k}, v{A+2*k+1}")
        return o
    def z1_unp(c):
        return [x for k in range(4) for x in (f"v_lshlrev_b32 v{HT+2*k}, 16, v{Z1+4*c+k}", f"v_and_b32 v{HT+2*k+1}, 0xffff0000, v{Z1+4*c+k}")]+[f"v_mul_f32 v{BZ+k}, v{vBT}, v{HT+k}" for k in range(8)]
    def h_st(c):
        return [f"s_mov_b32 s{sT0}, {HB+c*32768}", I(f"buffer_store_dwordx4 {v(HP,4)}, v{vH2 if c==2 else vH}, {srd(sWS)}, s{sT0} offen sc1", f"h{c}")]
    vdma=[[f"s_lshl_b32 s{sT1}, s{sRHO}, 14", f"s_add_u32 m0, s{sRM}, {VL}", f"s_add_u32 s{sT1}, s{sT1}, s{sRM}", f"s_add_u32 s{sT1}, s{sT1}, s{sVB}",
           I(f"buffer_load_dwordx4 v{vL16}, {srd(sWS)}, s{sT1} offen sc1 lds","v")]]
    vdma+=[I(f"buffer_load_dwordx4 v{vL16}, {srd(sWS)}, s{sT1} offen offset:{1024*k} sc1 lds","v") for k in range(1,4)]
    vdma+=[[f"s_sub_u32 s{sT1}, s{sRHO}, s{sMI}", f"s_and_b32 s{sT1}, s{sT1}, 3", f"s_lshl_b32 s{sT1}, s{sT1}, 14", f"s_add_u32 s{sT1}, s{sT1}, s{sVB}"],
           [f"s_cmp_eq_u32 s{sJ}, 0", f"s_cselect_b32 s{sT1}, {OOB}, s{sT1}", f"buffer_load_dword v{vPV}, v{vPA}, {srd(sWS)}, s{sT1} offen sc1"]]
    def hld(c, dst, sKW=sKW):
        return [([f"s_mov_b32 s{sKW}, {HB+c*32768+k*1024}"] if k%4==0 else [])+[I(f"buffer_load_dwordx4 {v(dst+4*k,4)}, v{vHL5 if (c,k)==(2,5) else vHL}, {srd(sWS)}, s{sKW} offen offset:{(k%4)*1024} sc1", f"hl{c}")] for k in range(8 if c<2 else 6)]
    HH=[H0,H1]
    def wrd(kap, d):
        rg=0 if wo_lds(kap)>=6*SL else 1; ko=wo_lds(kap)-(2*SL if rg else 6*SL)
        return [f"ds_read_b64_tr_b16 {a(d+ct*4+2*r,2)}, v{wo[rg][ct]} offset:{ko+r*512}" for ct in range(4) for r in range(2)]
    def vrd(kv,d):
        if 'v' in XP: return wrd(kv,d)
        return [f"ds_read2st64_b32 {a(d+ct*4+2*r,2)}, v{va[ct]} offset0:{16*kv+2*r} offset1:{16*kv+2*r+1}" for ct in range(4) for r in range(2)]
    tst=[("w",k) for k in range(8)]+[("v",k) for k in range(4)]+[("w",k) for k in range(8,22)]
    def rds(n):
        if n>=26: return []
        ty,k=tst[n]; return vrd(k,16*(n%16)) if ty=="v" else wrd(k,16*(n%16))
    def mms(n):
        ty,k=tst[n]; B = v(TW+4*k,4) if ty=="v" else v(HH[k//8]+4*(k%8),4)
        return [mm(OA+4*ct, a(16*(n%16)+4*ct,4), B, False) for ct in range(4)]
    def hchk(c):
        H=HH[c]; n=8 if c<2 else 6; nm=f"h{c}"
        ck=[f"v_max3_i32 v{t0}, v{H}, v{H+4}, v{H+8}"]+[f"v_max3_i32 v{t0}, v{t0}, v{H+4*k}, v{H+4*k+4}" for k in range(3,n-1,2)]+[f"v_max_i32 v{t0}, v{t0}, v{H+4*n-4}", f"v_cmp_eq_u32 vcc, {SENT}, v{t0}"]
        SLOW.extend([f"L_s{nm}:", f"s_add_u32 s{sCNT}, s{sCNT}, 1", f"s_cmp_ge_u32 s{sCNT}, {SPIN}", f"s_cbranch_scc1 L_b{nm}"]+flat(hld(c,H,sT3))+["s_waitcnt vmcnt(0)", f"s_branch L_r{nm}"])
        return [f"s_mov_b32 s{sCNT}, 0", W("vm",f"hl{c}"), f"L_r{nm}:"]+ck+[f"s_cbranch_vccnz L_s{nm}", f"L_b{nm}:"]+ts(f"xck{c}")
    e(ts("p2pro"))
    e(zrd(0)); e(zrd(1))
    if LW: e(zrd(2))
    ex={y:[] for y in range(193)}; dx={y:[] for y in range(193)}
    def spread(units, y0, per, d=None):
        for k,u in enumerate(units): (ex if d is None else d)[min(192,y0+int(k/per))].append(u)
        return y0+int((len(units)-1)/per)
    yy=0.; LA=4+2*LW
    def put(u, lo, dr):
        nonlocal yy
        yy=max(yy,lo); y=2*int((yy+1e-6)/2)
        while any(g0<=y<g0+2*GAP[2] for g0 in GAP[:2]): y+=2; yy+=2
        dx[min(y,192)].append(u); yy+=dr
    for k in range(W1): put(wo_dma(k), 0, DR[0])
    lead=[]; hq=hld(0,H0)
    for G in range(NP,24):
        for o in range(4):
            if zdma(G,o): put([] if 'd' in XP else zdma(G,o), 8*(G-NS+2)-LA+2, DR[G>=16])
        if G>=16 and W1<8: put(wo_dma(W1), 0, DR[1]); W1+=1
        elif G>=16 and yy>=HL[0]: put(hq.pop(0), 0, DR[1])
        lead.append(8*G-LA-int(yy))
    zend=2*int((yy+1)/2); info_lead=(lead,zend)
    oa=[x for k in range(8) for x in (f"v_lshlrev_b32 v{OA+2*k}, 16, v{RES+k}", f"v_and_b32 v{OA+2*k+1}, 0xffff0000, v{RES+k}")]
    spread(oa+z1_unp(0), 3, .625)
    for c in range(2):
        b=64*(c+1)
        if 'r' in XP: continue
        yw=spread([[]] if 'w' in XP else red_wr(c), b+RW, 1/WS)
        yb=b+8-LA
        while yb<yw+2: yb+=8
        ex[yb-1].append(W("lg",f"rw{c}"))
        spread(red_own(c,False), b+RW+2, 2)
        spread(red_rd(c), yb, 1); ye=spread(red_alu(c,False), max(yb+len(red_rd(c))+1,b+RW+6), 2); dx[(ye+1)|1].append(h_st(c))
        spread(z1_unp(c+1), ye+3, .5)
    dx[PX[2]].append(nst)
    if PX[0]: dx[PX[0]].append([f"s_lshl_b32 s{sT2}, s{sRHO}, 14", f"s_add_u32 s{sT2}, s{sT2}, s{sRM}", f"s_add_u32 s{sT2}, s{sT2}, s{sVB}", f"buffer_load_dword v{vPC}, v{vP8}, {srd(sWS)}, s{sT2} offen sc1"])
    if PX[1]: dx[PX[1]].append([f"s_lshl_b32 s{sT2}, s{sJ}, 7", f"buffer_load_dword v{t3}, v{t2}, {srd(sWOUT)}, s{sT2} offen"])
    assert NS==7 and W1==8
    ex[HL[1]].append(hchk(0))
    free=lambda g: 8*(g+2)-LA+2
    grp={'H':(hq,HL[0]), 'V':(vdma[:4]+[vdma[4]+vdma[5]],max(free(18),HL[1]+1)), 'W8':([wo_dma(k) for k in range(8,12)],free(17)),
         'W12':([wo_dma(k) for k in range(12,16)],free(19)), 'W16':([wo_dma(k) for k in range(16,20)],free(20)), 'J':(hld(1,H1),0)}
    for t in TQ.split()+[t for t in ('J','W16') if t not in TQ.split()]:
        for u in grp[t][0]: put(u, grp[t][1], DR[2])
    info_lead+=(yy,len(dx[192]))
    rq=[(n,r) for n in range(26) for r in rds(n)]
    for y in range(192):
        x,q=divmod(y,2); g,k=divmod(x,4); c=g//8; d=ACS[c%2]
        if q==0 and not LW: e(W("lg",f"zr{x}"))
        if q==0 and LW and x%2==0: e(W("lg",f"zr{x+1}"))
        e(f"v_mfma_f32_32x32x16_bf16 {v(d,16)}, {v(ZF+4*(y%8),4)}, {a(((k*2+q)*8+g%8)*4,4)}, {'0' if y%64==0 else v(d,16)}")
        e(dx[y])
        if x+2+LW<96: e(zrd(x+2+LW)[1:] if q else zrd(x+2+LW)[0])
        else: e([rq.pop(0)[1] for _ in range(PFN)])
        e(ex[y])
        if P2S and q==1 and x in P2S: e(ts(f"x{x}"))
    e(ts("xp2"))
    V.f("ZF","vZL","AC1","RES",*[f"za{k}" for k in range(8)])
    H2=V.a("H2",24); HH.append(H2); WR=V.a("WR",8); vO=V.a("vO")
    rest=dx[192]; assert not ex[192]
    fin=[f"v_and_b32 v{t1}, 1, v{vG}", f"v_lshlrev_b32 v{t1}, 5, v{t1}", f"v_lshrrev_b32 v{t2}, 1, v{vG}", f"v_lshl_add_u32 v{t1}, v{t2}, 4, v{t1}",
         f"s_lshl_b32 s{sT0}, s{sFH}, 10", f"s_add_u32 s{sT0}, s{sT0}, s{sZ}", f"s_lshl_b32 s{sT0}, s{sT0}, 3", f"s_add_u32 s{sT0}, s{sT0}, s{sJ}", f"s_lshl_b32 s{sT0}, s{sT0}, 7",
         f"v_lshlrev_b32 v{t2}, 16, v{vN}", f"v_add3_u32 v{vO}, v{t2}, v{t1}, s{sT0}"]
    tx={g:[] for g in range(-1,105)}; ty={g:[] for g in range(-1,105)}
    assert not any(isinstance(x,I) and x.tag in ("wo15","v") for x in flat(rest)), "V / w8-11 must be issued inside the loop"
    tx[TRD[0]].append(red_wr(2)); tx[TB2-3].append([f"v_add_u32 v{vPA}, {VL}, v{vPA}", I(f"ds_write_b32 v{vPA}, v{vPV}","vp")])
    ty[TB2].append([W("vm","wo15"), W("lg","vp"), "s_barrier"]+ts("xb2"))
    for k,u in enumerate(red_own(2,True)): tx[TRD[0]+1+k//2].append(u)
    ty[TRD[1]].append([W("lg","rw2"), "s_barrier"]+red_rd(2)+ts("xbr"))
    ty[TRD[2]].append(red_alu(2,True)+h_st(2)+ts("xh2st"))
    g=T1[0]
    for k,u in enumerate(rest+[wo_dma(20),wo_dma(21)]):
        if k>=len(rest): g=max(g,TRD[1]+1)
        if k==T1[2]: g=max(g,TRD[2]+1)
        tx[int(g)].append(u); g+=T1[1]
    assert g-T1[1]<T2[0] and int(g-T1[1])<TB
    for k,u in enumerate(hld(2,H2)): tx[T2[0]+int(k*T2[1])].append(u)
    ty[TB].append([W("vm","wo21"), "s_barrier"]+ts("xbb"))
    ty[47].append(hchk(1)); ty[79].append(hchk(2))
    for k,u in enumerate(fin): tx[88+k].append(u)
    rdy=lambda n: -1 if n<8 else TB2+1 if n<20 else TB+1
    lk=[]
    for g in range(-1,104):
        if g>=0: e(mms(g//4)[g%4])
        e(tx[g])
        for _ in range(RPG.get(g,2)):
            if rq and rdy(rq[0][0])<=g and rq[0][0]-g//4<TA: e(rq.pop(0)[1])
        e(ty[g])
        if rq: lk.append((208-len(rq))//2-g-1); assert lk[-1]>0
    info_lead+=(lk[::4],)
    e(ts("xg3"))
    for p in range(2):
        for k in range(4): e(f"v_cvt_pk_bf16_f32 v{WR+4*p+k}, v{OA+8*p+2*k}, v{OA+8*p+2*k+1}")
    for p in range(2):
        for k in range(2): e(f"v_permlane16_swap_b32 v{WR+4*p+k}, v{WR+4*p+2+k}")
        e(f"buffer_store_dwordx4 {v(WR+4*p,4)}, v{vO}, {srd(sOUT)}, 0 offen offset:{64*p} {OST}")
    if DIAGON:
        e(ts("xst")); e(W("vm0")); e(ts("end"))
        e(f"v_mov_b32 v{t0}, 0")
        for k in range(nts[0]): e(f"v_writelane_b32 v{t0}, s{sTS+1+k if k else sTS}, {k}")
        e("s_memrealtime s[6:7]"); e("s_waitcnt lgkmcnt(0)"); e(f"v_writelane_b32 v{t0}, s100, 40"); e(f"v_writelane_b32 v{t0}, s6, 41")
        e(f"s_lshl_b32 s{sT0}, s2, 2"); e(f"s_add_u32 s{sT0}, s{sT0}, s{sW}"); e(f"s_lshl_b32 s{sT0}, s{sT0}, 8"); e(f"s_add_u32 s{sT0}, s{sT0}, {DIAG}")
        e(f"v_lshlrev_b32 v{t1}, 2, v{vL}")
        e(f"buffer_store_dword v{t0}, v{t1}, {srd(sWS)}, s{sT0} offen")
    if DBG is not None:
        e("s_memrealtime s[6:7]"); e(f"s_load_dwordx2 s[{sBSP}:{sBSP+1}], s[0:1], 88"); e("s_waitcnt lgkmcnt(0)")
        e(f"s_mov_b32 s{sBSP+2}, 256"); e(f"s_mov_b32 s{sBSP+3}, 0x20000")
        e(f"v_subrev_u32 v{t0}, s{sTS}, v{t0}"); e("s_sub_u32 s6, s6, s100"); e(f"v_writelane_b32 v{t0}, s6, 3")
        e(f"s_lshl_b32 s{sT0}, s2, 2"); e(f"s_add_u32 s{sT0}, s{sT0}, s{sW}"); e(f"s_cmp_eq_u32 s{sT0}, {DBG*4}"); e(f"s_cselect_b32 s{sT0}, 0, {OOB}")
        e(f"v_subrev_u32 v{t1}, 12, v{t1}"); e(f"v_min_u32 v{t1}, {OOB}, v{t1}")
        e(f"buffer_store_dword v{t0}, v{t1}, {srd(sBSP)}, s{sT0} offen")
    e("L_end:"); e("s_endpgm")
    for x in SLOW: e(Raw(x.text if isinstance(x,I) else x))
    st=St(); out=[]; run(C,st,out)
    ref=open("stub.txt").read()
    head=ref[:ref.index(NAME+":")].replace("grid=(4096,1,1) block=(256,1,1) lds=0","grid=(256,1,1) block=(256,1,1) lds=163840")
    tail=ref[ref.index(".section .rodata"):].replace("next_free_vgpr 256","next_free_vgpr 512")
    body="\n".join(x if x.endswith(":") else "    "+x for x in out)
    info=dict(n=len(out), maxvm=st.maxvm, nops=st.nops, peak=V.peak, lead=info_lead, ts=tsn)
    return head+NAME+":\n"+body+"\n"+tail, info

if __name__=="__main__":
    kw={}
    for x in sys.argv[2:]:
        k,val=x.split("="); kw[k]=eval(val)
    s,info=gen(**kw); open(sys.argv[1],"w").write(s); print(info)
```

```python
import sys, struct, math
from fw import *
NAME="parallel_sum__spectral_fnet__mixer_gmlp__prompt_kernel"
def fl(x): return "0x%08x" % struct.unpack("<I", struct.pack("<f", x))[0]
F2=0x1000; F3=0x80000; STATS=0x40000; Z2N=0x100000; VB=0x400000; VP=65536+256; HB=0x700000; DIAG=0xA00000; WSSZ=0xB00000
OOB=0x7ff00000; SENT=0x7f817f81
WB=0; XB=73728; STG=73728; STGW=21760; RED=114688; VL=65536; TRB=114688
sX,sWIN,sWSP,sWOUT,sOUT,sWS,sBSP = 8,12,16,20,24,28,32
sI,sJ,sW,sSH,sFH,sF0,sNOCT,sNON,sR,sXM,sWM,sT0,sT1,sT2,sT3,sSIG,sCNT,sSTM,sRM,sZ = range(36,56)
sN1,sN2,sN3,sFF,sHM = 56,57,58,59,60
sMA,sMB = 62,64
sROT,sKX,sKW = 3,4,5
sTS=66; sSC=92
def srd(b): return f"s[{b}:{b+3}]"
def v(b,k=1): return f"v{b}" if k==1 else f"v[{b}:{b+k-1}]"
def a(b,k=1): return f"a{b}" if k==1 else f"a[{b}:{b+k-1}]"
def f0(j): return 88*j - (8 if j==7 else 0)

def gen(RI=(), QN=8, SW='', SWN=(0,99), TI='', TK={}, TCN='', MAPB=2, NT="", DIAGON=False, SPIN=20000, PF=2, PRE=4, DBG=None, ROT=(1,4,0,1), NS=7, NP=7, GAP=(0,0,0), RW=1, FX=(105,175), PX=(0,0,69), VR=.5, FN=5, PN=15, WL=1, CN=4, P2S=False, IST=False, IFR=1.0, DEP=4, SB='w10', SC0='w11', SC='h0 w12 h1 h2 s1 s2', SD='w13 h3 h4 r0 h5 p1', SD2='h6 r1', SE='h7', SF='h8 r2 | w14 w15 | h9 h10 r3 h11 h12 r4 p2', SG='h13 h14 r5 h15 c2 z0', SG2='r6', FK=7, FA=4, TQ='H W8 W12 V J', TA=8, TB2=20, TB=63, T1=(2,2,0), T2=(48,1), TRD=(1,7,11), PFN=4, RPG={-1:0,0:0}, HL=(110,171), SK=(5,), OST='nt', SPL=1, SS='z1 z2 r7 z3 z4 z5 z6', SFR=0.9, XK=(2,3), HS=None, HN=(3,4,3,3,4,3,3,3), XW=(2,17,2,12), TS=None, WM=4, WS=1, XP='', W1=6, DR=(2,2,2), LW=1, XSP=0, SPM=1, RF=(0,2), SLK=(3,3), RX=(-1,2,-1), GS=(0,1.), FS=1., BARS=(0,1,2,3,4,5,6,7)):
    V=Alloc(256); C=[]; e=C.append
    nts=[0]; tsn=[]; SLOW=[]
    def ts(name):
        if not DIAGON or (TS and name not in TS.split() and (name[0]!='x' or ('xB' in TS and name[1]!='a') or 'x0' in TS)): return []
        if name[0]=='x':
            k=nts[0]; nts[0]+=1; tsn.append(name); assert k<25
            return [Raw(f"s_getreg_b32 s{sTS+1+k}, hwreg(HW_REG_SHADER_CYCLES)")] if 0 else [Raw(f"s_mov_b32 s{sTS+1+k}, s6"), Raw("s_memtime s[6:7]")]
        k=nts[0]; nts[0]+=1; tsn.append(name); assert k<25
        return [W("lg0"), f"s_memtime s[6:7]", "s_waitcnt lgkmcnt(0)", f"s_mov_b32 s{sTS+1+k}, s6"]
    V.at("tid",0,1)
    XF=V.at("XF",128,128)
    e("s_cmp_ge_u32 s2, 256"); e("s_cbranch_scc1 L_end")
    for s,o in ((sX,0),(sWIN,48),(sWS,96),(sWSP,56),(sBSP,64),(sWOUT,72),(sOUT,80)):
        e(f"s_load_dwordx2 s[{s}:{s+1}], s[0:1], {o}")
    if DIAGON:
        e(f"s_memtime s[{sTS}:{sTS+1}]"); nts[0]=1; tsn.append("start")
        e("s_memrealtime s[100:101]")
    vL=V.a("L"); vN=V.a("n"); vG=V.a("g"); vL16=V.a("L16")
    t0=V.a("t0",2); t1=t0+1; t2=V.a("t2",2); t3=t2+1; t4=V.a("t4",2); t5=t4+1; t6=V.a("t6",2); t7=t6+1
    pf=[f"s_getpc_b64 s[6:7]", "L_pc:", f"s_lshr_b32 s{sT3}, s2, 3", f"s_mul_i32 s{sT3}, s{sT3}, 1280", f"v_lshrrev_b32 v{t6}, 4, v0", f"v_min_u32 v{t6}, 9, v{t6}", f"v_lshl_add_u32 v{t6}, v{t6}, 7, s{sT3}", f"v_min_u32 v{t6}, L_end-L_pc, v{t6}", f"global_load_dword v{t7}, v{t6}, s[6:7]"]
    if PF==2: e(pf)
    if PF==3:
        e(["s_cmp_ge_u32 s2, 16", "s_cbranch_scc1 L_npf", f"s_getpc_b64 s[6:7]", "L_pc:", f"v_lshlrev_b32 v{t6}, 7, v0", f"v_min_u32 v{t6}, L_end-L_pc, v{t6}", Raw(f"global_load_dword v{t7}, v{t6}, s[6:7]"), "L_npf:"])
    if PF==4:
        e([f"s_getpc_b64 s[6:7]", "L_pc:", f"s_bfe_u32 s{sT3}, s2, 0x20003", f"s_lshl_b32 s{sT3}, s{sT3}, 13", f"v_lshrrev_b32 v{t6}, 2, v0", f"v_lshl_add_u32 v{t6}, v{t6}, 7, s{sT3}", f"v_min_u32 v{t6}, L_end-L_pc, v{t6}", f"global_load_dword v{t7}, v{t6}, s[6:7]"])
    e(f"v_lshrrev_b32 v{t0}, 6, v0")
    e(f"v_and_b32 v{vL}, 63, v0")
    e(f"v_readfirstlane_b32 s{sW}, v{t0}")
    if MAPB==2:
        e(f"s_bfe_u32 s{sT0}, s2, 0x20001"); e(f"s_lshl_b32 s{sT0}, s{sT0}, 3")
        e(f"s_lshr_b32 s{sT1}, s2, 5"); e(f"s_add_u32 s{sI}, s{sT0}, s{sT1}")
        e(f"s_and_b32 s{sT0}, s2, 1"); e(f"s_lshl_b32 s{sT0}, s{sT0}, 2")
        e(f"s_bfe_u32 s{sT1}, s2, 0x20003"); e(f"s_add_u32 s{sJ}, s{sT0}, s{sT1}")
    else:
        e(f"s_and_b32 s{sT0}, s2, 7"); e(f"s_lshl_b32 s{sT0}, s{sT0}, 2")
        e(f"s_lshr_b32 s{sT1}, s2, 6"); e(f"s_add_u32 s{sI}, s{sT0}, s{sT1}")
        e(f"s_bfe_u32 s{sJ}, s2, 0x30003")
    e(f"v_and_b32 v{vN}, 15, v0"); e(f"v_bfe_u32 v{vG}, v0, 4, 2"); e(f"v_lshlrev_b32 v{vL16}, 4, v{vL}")
    e(f"s_lshr_b32 s{sSH}, s{sW}, 1"); e(f"s_and_b32 s{sFH}, s{sW}, 1")
    e(f"s_mul_i32 s{sF0}, s{sJ}, 88"); e(f"s_cmp_eq_u32 s{sJ}, 7"); e(f"s_cselect_b32 s{sT0}, 8, 0"); e(f"s_sub_u32 s{sF0}, s{sF0}, s{sT0}")
    e(f"s_cmp_lt_u32 s{sJ}, 6"); e(f"s_cselect_b32 s{sNOCT}, 11, 10")
    for s,n in ((sX,2097152),(sWIN,512*2752),(sWS,WSSZ),(sWSP,8388608),(sBSP,4096),(sWOUT,688*1024),(sOUT,2097152)):
        e(f"s_mov_b32 s{s+2}, {n}"); e(f"s_mov_b32 s{s+3}, 0x20000")
    if isinstance(ROT,tuple):
        si,mi,mj,mx=ROT
        e(f"s_lshr_b32 s{sROT}, s{sI}, {si}"); e(f"s_mul_i32 s{sROT}, s{sROT}, {mi}")
        if mj: e(f"s_mul_i32 s{sT0}, s{sJ}, {mj}"); e(f"s_add_u32 s{sROT}, s{sROT}, s{sT0}")
        if mx: e(f"s_mul_i32 s{sT0}, s2, {mx}"); e(f"s_add_u32 s{sROT}, s{sROT}, s{sT0}")
        e(f"s_and_b32 s{sROT}, s{sROT}, 7")
    elif ROT:
        if MAPB==2: e(f"s_lshl_b32 s{sROT}, s{sJ}, 1"); e(f"s_add_u32 s{sROT}, s{sROT}, s{sI}")
        else: e(f"s_lshl_b32 s{sROT}, s{sI}, 1"); e(f"s_add_u32 s{sROT}, s{sROT}, s{sJ}")
        e(f"s_and_b32 s{sROT}, s{sROT}, 7")
    else: e(f"s_mov_b32 s{sROT}, 0")
    xd0=V.a("xd0"); xd1=V.a("xd1")
    e(f"s_lshl_b32 s{sT0}, s{sFH}, 10"); e(f"s_lshl_b32 s{sT1}, s{sSH}, 5"); e(f"s_add_u32 s{sZ}, s{sT1}, s{sI}")
    e(f"s_add_u32 s{sT0}, s{sT0}, s{sZ}"); e(f"s_lshl_b32 s{sT2}, s{sT0}, 10")
    e(f"v_lshrrev_b32 v{t0}, 3, v{vL}"); e(f"v_and_b32 v{t1}, 7, v{vL}"); e(f"v_xor_b32 v{t1}, v{t1}, v{vG}")
    e(f"v_lshlrev_b32 v{t1}, 4, v{t1}"); e(f"v_lshl_add_u32 v{t1}, v{t0}, 16, v{t1}"); e(f"v_add_u32 v{xd0}, s{sT2}, v{t1}")
    e(f"v_xor_b32 v{xd1}, 64, v{xd0}"); e(f"v_add_u32 v{xd1}, {8*65536-1024}, v{xd1}")
    e(f"s_lshl_b32 s{sXM}, s{sW}, 11"); e(f"s_add_u32 s{sXM}, s{sXM}, {XB}")
    e(f"s_mul_i32 s{sWM}, s{sW}, 3072")
    wd=[V.a(f"wd{q}") for q in range(3)]
    e(f"s_mul_i32 s{sT0}, s{sW}, {16*2752}"); e(f"s_lshl_b32 s{sT1}, s{sF0}, 1"); e(f"s_add_u32 s{sT0}, s{sT0}, s{sT1}"); e(f"s_add_u32 s{sT0}, s{sT0}, 1376")
    e(f"s_lshl_b32 s{sKX}, s{sROT}, 7")
    e(f"v_mov_b32 v{t4}, {OOB}")
    for q in range(3):
        if q: e(f"v_add_u32 v{t0}, {64*q}, v{vL}")
        idx = t0 if q else vL
        e(f"v_mul_u32_u24 v{t1}, 171, v{idx}"); e(f"v_lshrrev_b32 v{t1}, 11, v{t1}")
        e(f"v_mad_i32_i24 v{t2}, v{t1}, -12, v{idx}")
        if q==1:
            e(f"v_lshrrev_b32 v{t3}, 2, v{t1}"); e(f"v_and_b32 v{t3}, 2, v{t3}"); e(f"v_xor_b32 v{t2}, v{t2}, v{t3}")
        if q==2: e(f"v_xor_b32 v{t2}, 2, v{t2}")
        e(f"v_cmp_gt_u32 vcc, s{sNOCT}, v{t2}")
        e(f"v_mul_u32_u24 v{t1}, 2752, v{t1}"); e(f"v_lshl_add_u32 v{t1}, v{t2}, 4, v{t1}")
        if q: e(f"s_sub_u32 s{sT0}, s{sT0}, 1024")
        e(f"v_add_u32 v{t1}, s{sT0}, v{t1}")
        e(f"v_cndmask_b32 v{wd[q]}, v{t4}, v{t1}, vcc")
    for n in range(1,8): e(f"s_mov_b32 s{sSC+n}, {n*(524288 if SPM else 1048576)-(n%4)*1088}")
    e("s_waitcnt lgkmcnt(0)")
    e(ts("karg"))
    adv=lambda q: [f"s_add_u32 s{sKX}, s{sKX}, 128", f"s_and_b32 s{sKX}, s{sKX}, 0x380"] if q else []
    def issue_x(kk):
        return [[f"s_add_u32 m0, s{sXM}, {kk*8192}"]+adv(kk)+
                [I(f"buffer_load_dwordx4 v{xd0}, {srd(sX)}, s{sKX} offen {NT} lds", f"st{kk}")],
                I(f"buffer_load_dwordx4 v{xd1}, {srd(sX)}, s{sKX} offen offset:1024 {NT} lds", f"st{kk}")]
    def issue_w(q):
        return [([f"v_subrev_u32 v{wd[k]}, 1376, v{wd[k]}" for k in range(3)] if q==8 else [])+(adv(q) if q>=8 else [])+[f"s_add_u32 m0, s{sWM}, {WB+(q%6)*12288}", f"s_mul_i32 s{sKW}, s{sKX}, 1376"]+
                [I(f"buffer_load_dwordx4 v{wd[0]}, {srd(sWIN)}, s{sKW} offen {NT} lds", f"st{q}")],
                I(f"buffer_load_dwordx4 v{wd[1]}, {srd(sWIN)}, s{sKW} offen offset:1024 {NT} lds", f"st{q}"),
                I(f"buffer_load_dwordx4 v{wd[2]}, {srd(sWIN)}, s{sKW} offen offset:2048 {NT} lds", f"st{q}")]
    dmas=[]; vNV=V.a('vNV')
    sent=lambda c: [f"s_add_u32 s{sSC}, s{sSC}, {32768 if c else HB}", I(f"buffer_store_dwordx4 a[188:191], v{vL16}, {srd(sWS)}, s{sSC} offen sc1",f"sent{c}")]
    vT=V.a('vT')
    def touch(n):
        r=255-n; sA=61
        if n>=10:
            u,q=divmod(n-10,4); r=255-u; o=touch(u)
            return o[:8]+[f"s_add_u32 s{sA}, s{sA}, {q<<21}"]+[x.replace("0x7c0080","0x1c0080").replace(f"a{r},",f"a{247-(n-10)},") for x in o[8:]]
        if n==7: return [f"s_and_b32 s{sA}, s{sI}, 7", f"s_lshl2_add_u32 s{sA}, s{sA}, s{sW}", f"s_mul_i32 s{sA}, s{sA}, 176", f"s_add_u32 s{sA}, s{sA}, s{sJ}", f"s_lshl_b32 s{sA}, s{sA}, 7", f"v_min_u32 v{vT}, 21, v{vL}", f"v_lshl_add_u32 v{vT}, v{vT}, 10, s{sA}"]
        if n==8: return [f"buffer_load_dword v{vT}, v{vT}, {srd(sWOUT)}, 0 offen {TCN}"]
        if n==9: return touch(3)[:-1]
        if n==5: return [x.replace(srd(sX),srd(sOUT)).replace("a251","a250") for x in touch(4)]
        if n==6: return [f"v_lshlrev_b32 v{vT}, 7, v{vL}", f"buffer_load_dword a{r}, v{vT}, {srd(sBSP)}, 0 offen {TCN}"]
        if n<2: return [f"s_and_b32 s{sA}, s{sJ}, 3", f"s_lshl_b32 s{sA}, s{sA}, 1", f"s_lshr_b32 s60, s{sJ}, 2", f"s_xor_b32 s60, s60, {n}", f"s_add_u32 s{sA}, s{sA}, s60",
                        f"s_lshl3_add_u32 s{sA}, s{sFH}, s{sA}", f"s_lshl4_add_u32 s{sA}, s{sZ}, s{sA}", f"s_lshl_b32 s{sA}, s{sA}, 8",
                        f"v_lshlrev_b32 v{vT}, 18, v{vL}", f"v_lshl_add_u32 v{vT}, v{vL}, 2, v{vT}", f"v_and_b32 v{vT}, 0x7c0080, v{vT}", f"buffer_load_dword a{r}, v{vT}, {srd(sWSP)}, s{sA} offen {TCN}"]
        if n==4: return [f"s_lshl_b32 s{sA}, s{sFH}, 10", f"s_add_u32 s{sA}, s{sA}, s{sZ}", f"s_lshl3_add_u32 s{sA}, s{sA}, s{sJ}", f"s_lshl_b32 s{sA}, s{sA}, 7",
                        f"v_lshlrev_b32 v{vT}, 16, v{vN}", f"buffer_load_dword a{r}, v{vT}, {srd(sX)}, s{sA} offen {TCN}"]
        m,sr=(11,sWIN) if n==2 else (6,sWOUT)
        return [f"s_lshl2_add_u32 s{sA}, s2, s{sW}", f"s_mul_i32 s{sA}, s{sA}, {128*m}", f"v_min_u32 v{vT}, {m-1}, v{vL}", f"v_lshl_add_u32 v{vT}, v{vT}, 7, s{sA}", f"buffer_load_dword a{r}, v{vT}, {srd(sr)}, 0 offen {TCN}"]
    def stouch(c):
        ld=lambda b,o: Raw(f"s_load_dword s56, s[{b}:{b+1}], s61 offset:{o}")
        st=128 if c.islower() else 64
        if c in 'xX':
            o=[f"s_lshl2_add_u32 s60, s{sJ}, s{sW}", "s_lshl_b32 s60, s60, 6", f"s_add_u32 s60, s60, s{sI}"]
            for d in (4,6): o+=[f"s_add_u32 s61, s{sROT}, {d}", "s_and_b32 s61, s61, 6", "s_lshl3_add_u32 s61, s60, s61", "s_lshl_b32 s61, s61, 7"]+[ld(sX,r*32768+k) for r in range(2) for k in range(0,256,st)]
            return o
        if c in 'zZ': return [f"s_lshl1_add_u32 s60, s2, s{sSH}", "s_mul_i32 s60, s60, 2752", f"s_mul_i32 s61, s{sFH}, 704", "s_add_u32 s61, s61, s60"]+[ld(sWIN,k) for k in range(0,704,st)]
        if c in 'uU': return [f"s_lshl2_add_u32 s60, s2, s{sW}", "s_min_u32 s60, s60, 916", "s_mul_i32 s61, s60, 768"]+[ld(sWOUT,k) for k in range(0,768,st)]
        if c in 'pP':
            return [f"s_lshl2_add_u32 s60, s2, s{sW}", "s_lshl_b32 s61, s60, 13"]+[ld(sWSP,r*2048+k+q) for r in range(4) for q in (0,512) for k in range(0,128,st)]
    sq_=[x for c in SW for x in stouch(c)]
    def stake(p):
        o=[]; n=SWN[p] if p<len(SWN) else 0
        while sq_ and n: o.append(sq_.pop(0)); n-=isinstance(o[-1],Raw)
        return [o] if o else []
    e(stake(0))
    for kk in range(PRE):
        dmas+=issue_x(kk)+issue_w(kk)
        dmas+=stake(kk+1)
        dmas+=[touch(int(t[1:].split('@')[0])) for t in TI.split() if int((t+'@').split('@')[1] or PRE-1)==kk]
        if IST: dmas.append(ts(f"d{kk}"))
        if kk==PRE-1: dmas.append(f"buffer_load_dword v{vNV}, off, {srd(sWS)}, 0 sc1")
        if kk==0 and PF==1: dmas.append(pf)
    C0=C; C=[]; e=C.append
    xa=[V.a("xa0"),V.a("xa1")]; wa=[V.a("wa0"),V.a("wa1")]
    e(f"v_lshrrev_b32 v{t0}, 1, v{vN}"); e(f"v_xor_b32 v{t0}, v{t0}, v{vG}"); e(f"v_lshlrev_b32 v{t0}, 4, v{t0}")
    e(f"v_lshl_add_u32 v{t0}, v{vN}, 7, v{t0}")
    e(f"s_lshl_b32 s{sT0}, s{sSH}, 12"); e(f"s_add_u32 s{sT0}, s{sT0}, {XB}")
    sPI=sSIG
    e(f"s_xor_b32 s{sPI}, s{sSH}, s{sFH}"); e(f"s_lshl_b32 s{sT1}, s{sPI}, 6"); e(f"v_xad_u32 v{xa[0]}, v{t0}, s{sT1}, 0")
    e(f"v_add_u32 v{xa[0]}, s{sT0}, v{xa[0]}"); e(f"v_xor_b32 v{xa[1]}, 64, v{xa[0]}")
    e(f"v_lshrrev_b32 v{t0}, 2, v{vN}"); e(f"v_lshl_add_u32 v{t0}, v{vG}, 3, v{t0}"); e(f"v_mul_u32_u24 v{t0}, 192, v{t0}")
    e(f"v_and_b32 v{t1}, 1, v{vG}"); e(f"v_xor_b32 v{t1}, s{sFH}, v{t1}"); e(f"v_lshl_add_u32 v{t0}, v{t1}, 5, v{t0}")
    e(f"v_and_b32 v{t1}, 3, v{vL}"); e(f"v_lshl_add_u32 v{t0}, v{t1}, 3, v{t0}")
    e(f"s_mul_i32 s{sT0}, s{sPI}, 6144"); e(f"s_sub_u32 s{sT1}, 6144, s{sT0}"); e(f"v_add_u32 v{wa[0]}, s{sT0}, v{t0}"); e(f"v_add_u32 v{wa[1]}, s{sT1}, v{t0}")
    e(f"v_and_b32 v{t0}, 1, v{vL}"); e(f"v_cmp_ne_u32 s[{sMA}:{sMA+1}], 0, v{t0}")
    e(f"v_and_b32 v{t0}, 2, v{vL}"); e(f"v_cmp_ne_u32 s[{sMB}:{sMB+1}], 0, v{t0}")
    e(f"s_mov_b32 s{sCNT}, {SENT}")
    for k in range(4): e(f"v_accvgpr_write_b32 a{188+k}, s{sCNT}")
    e(f"s_mul_i32 s{sCNT}, s{sI}, 12"); e(f"s_add_u32 s{sCNT}, s{sCNT}, s{sW}"); e(f"s_lshl3_add_u32 s{sCNT}, s{sCNT}, s{sJ}"); e(f"s_lshl_b32 s{sSC}, s{sCNT}, 10")
    ONES=V.a("ONES",4)
    for k in range(4): e(f"v_mov_b32 v{ONES+k}, 0x3f803f80")
    SP=V.a("SP",52)
    aFC,aFS,aAC,aAS=192,208,224,232
    e(f"s_and_b32 s{sT0}, s{sJ}, 1"); e(f"s_lshl_b32 s{sT0}, s{sT0}, 1"); e(f"s_add_u32 s{sR}, s{sT0}, s{sFH}")
    e(f"s_lshr_b32 s{sT0}, s{sJ}, 1"); e(f"s_lshl_b32 s{sT0}, s{sT0}, 6"); e(f"s_add_u32 s{sT0}, s{sT0}, s{sR}")
    e(f"v_lshl_add_u32 v{t0}, v{vN}, 2, s{sT0}")
    e(f"v_subrev_u32 v{t0}, 1, v{t0}"); e(f"v_and_b32 v{t0}, 0xff, v{t0}"); e(f"v_add_u32 v{t0}, 1, v{t0}")
    e(f"v_cvt_f32_u32 v{t0}, v{t0}"); e(f"v_mul_f32 v{t0}, {fl(-1/512)}, v{t0}")
    e(f"s_lshl_b32 s{sT0}, s{sROT}, 6"); e(f"v_lshl_add_u32 v{t1}, v{vG}, 3, s{sT0}"); e(f"v_cvt_f32_u32 v{t1}, v{t1}"); e(f"v_mul_f32 v{t1}, v{t1}, v{t0}"); e(f"v_fract_f32 v{t1}, v{t1}")
    def sincos(step, base, k0, dc, ds, u):
        b=SP+8*(u%2)
        return [f"v_fmamk_f32 v{b}, v{step}, {fl(k0)}, v{base}", f"v_add_f32 v{b+1}, v{b}, v{step}",
                f"v_cos_f32 v{b+2}, v{b}", f"v_cos_f32 v{b+3}, v{b+1}", f"v_sin_f32 v{b+4}, v{b}", f"v_sin_f32 v{b+5}, v{b+1}",
                f"v_cvt_pk_bf16_f32 v{b+2}, v{b+2}, v{b+3}", f"v_accvgpr_write_b32 a{dc}, v{b+2}",
                f"v_cvt_pk_bf16_f32 v{b+4}, v{b+4}, v{b+5}", f"v_accvgpr_write_b32 a{ds}, v{b+4}"]
    e(f"s_mul_i32 s{sT0}, s{sPI}, {fl(32.)}"); e(f"v_fma_f32 v{t2}, v{t0}, s{sT0}, v{t1}"); e(f"v_fma_f32 v{t3}, -v{t0}, s{sT0}, v{t1}")
    for ks in range(4):
        for pr in range(4): e(sincos(t0,t2+ks%2,32*ks+2*pr,aFC+4*ks+pr,aFS+4*ks+pr,pr))
    for th in range(2):
        e(f"v_add_u32 v{t0}, {16*th}, v{vN}"); e(f"v_cvt_f32_u32 v{t0}, v{t0}"); e(f"v_mul_f32 v{t0}, {fl(1/32)}, v{t0}")
        e(f"v_lshlrev_b32 v{t1}, 2, v{vG}"); e(f"v_cvt_f32_u32 v{t1}, v{t1}"); e(f"v_mul_f32 v{t1}, v{t1}, v{t0}")
        for pr in range(4): e(sincos(t0,t1,16*(pr//2)+2*(pr%2),aAC+4*th+pr,aAS+4*th+pr,pr))
    cons=flat(C); C=C0; e=C.append
    e(dmas[0]); e(mix(cons, dmas[1:], 0, int(len(cons)*IFR)))
    e(f"s_cmp_eq_u32 s{sR}, 0"); e(f"s_cselect_b32 s{sSIG}, 1.0, -1.0")
    e(ts("init"))
    ZA=V.a("ZA",24); CS=SP; SUM=SP+12; SQ=SP+20; WF=SP+28
    def xf(ks,t): return XF+(ks*2+t)*4
    def rd_x(ks):
        kk,kp=divmod(ks,2)
        return [I(f"ds_read_b128 {v(xf(ks,t),4)}, v{xa[kp]} offset:{kk*8192+t*2048}","fr") for t in range(2)]
    def rd_w(q,kp):
        sl=q%6; b=WF+12*kp
        return [I(f"ds_read_b64_tr_b16 {v(b+4*c+2*r,2)}, v{wa[kp]} offset:{sl*12288+r*768+c*64}","fr") for c in range(3) for r in range(2)]
    def mm(d,A,B,first): return f"v_mfma_f32_16x16x32_bf16 {v(d,4)}, {A}, {B}, {'0' if first else v(d,4)}"
    EX=160768
    def att(o,k,x): o[k]=flat([o[k],x])
    def mf_z(ks,stats):
        b=WF+12*(ks%2); f=ks==0; spl=SPL&(1 if stats else 2)
        sq=lambda f: [mm(SQ+4*t, v(xf(ks,t),4), v(xf(ks,t),4), f) for t in range(2)]
        sm=lambda f: [mm(SUM+4*t, v(ONES,4), v(xf(ks,t),4), f) for t in range(2)]
        mn=lambda c: [mm(ZA+(c*2+t)*4, v(b+4*c,4), v(xf(ks,t),4), f) for t in range(2)]
        cs=lambda c,f: [mm(CS+4*c, v(b+4*c,4), v(ONES,4), f)]
        if not spl: return (sq(f)+sm(f) if stats else [])+[x for c in range(3) for x in mn(c)+cs(c,f)]
        if ks<14:
            if stats: return sq(ks==1)+sm(ks==1)+mn(0)+mn(1)+mn(2) if ks%2 else [x for c in range(3) for x in mn(c)+cs(c,f)]
            return [x for c in range(3) for x in mn(c)+(cs(c,ks<2) if (c==2)==(ks%2) else [])]
        o=mn(0)+mn(1)+mn(2); n14=13 if stats else 9
        if ks==14: o=(sq(0)+sm(0) if stats else [])+cs(0,0)+cs(1,0)+cs(2,0)+o
        sel=lambda d,q: [f"v_cndmask_b32 v{d}, v{q}, v{q+1}, s[{sMA}:{sMA+1}]", f"v_cndmask_b32 v{d+1}, v{q+2}, v{q+3}, s[{sMA}:{sMA+1}]", f"v_cndmask_b32 v{d}, v{d}, v{d+1}, s[{sMB}:{sMB+1}]"]
        vc=lambda lo,hi: [f"s_mov_b32 vcc_lo, {lo}", f"s_mov_b32 vcc_hi, {hi}"]
        x=[]
        if stats: x=vc("0x00f0000f","0xf0000f00")+sel(SQ,SQ)+sel(SQ+4,SQ+4)+[f"v_cndmask_b32 v{SUM+t}, v{SUM+4*t}, v{SQ+4*t}, vcc" for t in range(2)]+[I(f"ds_write_b64 v{t2}, {v(SUM,2)}","exw")]
        x+=vc("0xf0f0f0f0","0xf0f0f0f0")+sel(SQ,CS)+sel(SQ+2,CS+4)+[f"v_cndmask_b32 v{SQ}, v{SQ}, v{SQ+2}, vcc"]+vc("0xff00ff00","0xff00ff00")+sel(SQ+2,CS+8)+[f"v_cndmask_b32 v{SQ}, v{SQ}, v{SQ+2}, vcc", I(f"ds_write_b32 v{t3}, v{SQ}","exw")]
        g0,g1=XW[:2] if stats else XW[2:]
        for k,u in enumerate(x):
            g=g0+k*(g1-g0)//len(x)-(n14 if ks==15 else 0)
            if 0<=g<len(o): att(o,g,u)
        return o
    exad=lambda stats: [f"s_mul_i32 s{sT1}, s{sW}, 768", f"s_add_u32 s{sT1}, s{sT1}, {EX}"]+([f"v_lshl_add_u32 v{t2}, v{vL}, 3, s{sT1}"] if stats else [])+[f"s_add_u32 s{sT1}, s{sT1}, 512", f"v_lshl_add_u32 v{t3}, v{vL}, 2, s{sT1}",
                        f"s_xor_b32 s{sT1}, s{sW}, 2", f"s_mul_i32 s{sT1}, s{sT1}, 768", f"s_add_u32 s{sT1}, s{sT1}, {EX+512}", f"v_lshl_add_u32 v{t5 if stats else t2}, v{vG}, 6, s{sT1}"]+(
                        [f"s_mul_i32 s{sT1}, s{sSH}, 1536", f"s_add_u32 s{sT1}, s{sT1}, {EX}", f"v_lshrrev_b32 v{t4}, 2, v{vN}", f"v_lshl_add_u32 v{t4}, v{t4}, 4, v{vN}", f"v_lshl_add_u32 v{t4}, v{t4}, 3, s{sT1}"] if stats else [])
    exrd=lambda stats: ([f"ds_read2_b64 {v(SQ,4)}, v{t4} offset1:96", f"v_xor_b32 v{t4}, 128, v{t4}", f"ds_read2_b64 {v(SQ+4,4)}, v{t4} offset1:96"] if stats else [])+[f"ds_read_b128 {v(WF+4*c,4)}, v{t5 if stats else t2} offset:{16*c}" for c in range(3)]
    csadd=[f"v_pk_add_f32 {v(CS+2*k,2)}, {v(CS+2*k,2)}, {v(WF+2*k,2)}" for k in range(6)]
    cum=lambda stats: [sum(len(mf_z(k,stats)) for k in range(n)) for n in range(17)]
    RES=V.a("RES",8)
    pend=[]; nxt=PRE; done=[]
    def bg(spec):
        o=[]
        for t in spec.split():
            k,n=t[0],int(t[1:]); assert t not in done; done.append(t)
            if k=='w':
                assert n==nxt or f"w{n-1}" in done; o+=issue_w(n)
            elif k=='h': o+=sp_half(n)
            elif k=='r': o+=sp_read(n)
            elif k=='p': o+=poll1() if n==1 else poll2()
            elif k=='c': o+=chk2()
            elif k=='z': o+=[zdma(n,q) for q in range(4)]
            elif k=='s': assert (n==0 or f"s{n-1}" in done) and "r4" not in done; o+=[sent(n)]
            elif k=='t': o+=[touch(n)]
            elif k=='q':
                q,hh=divmod(n//10,2); assert "t19" not in done
                o+=[[f"s_and_b32 s60, s{sJ}, 3", f"s_lshl_b32 s60, s60, 7", f"s_add_u32 s60, s60, s{sZ}", f"s_lshl1_add_u32 s60, s60, s{sFH}", "s_lshl_b32 s60, s60, 11", f"s_xor_b32 s61, s{sXM}, {(q%2)*1024+(q//2)*256+hh*2097152+(n%2)*4194304}", "s_add_u32 s61, s61, s60"]
                    +[Raw(f"s_load_dword s7, s[{sWSP}:{sWSP+1}], s61 offset:{r*262144+c*64}") for r in range(2) for c in range(4)][:QN]]
            elif k=='n': o+=[[] for _ in range(n%100)]
        return o
    steps=[]; segs=[]; NB=cum(True); lq=[]
    for ks in range(17):
        kk,kp=divmod(ks,2); pre=[]; rd=[]
        if ks<16:
            if kp==0:
                pre=[W("vm",f"st{kk}"), "s_barrier"]
                if kk==0: pre=([Raw("s_waitcnt lgkmcnt(0)")] if SW else [])+pre+ts("st0")
                elif TS and 'xB' in TS: pre=[W("vm",f"st{kk}")]+ts(f"xa{kk}")+["s_barrier"] if 'xB1' in TS else ts(f"xa{kk}")+pre
                hi=min(kk+1+max(PRE,min(DEP,PRE+kk)), kk+5) if HS is None else HS[kk]; assert hi<=kk+6
                pend=[]
                while HN is None and nxt<hi:
                    pend+=(issue_x(nxt) if nxt<8 else [])+issue_w(nxt); nxt+=1
                for _ in range(HN[kk] if HN else 0):
                    if not lq: lq=(issue_x(nxt) if nxt<8 else [])+issue_w(nxt); nxt+=1; assert nxt<=kk+6
                    pend.append(lq.pop(0))
                    if 'B' in XP: pend[-1]=[I('s_nop 0',x.tag) if isinstance(x,I) else x for x in flat([pend[-1]])]
                assert kk==7 or nxt-bool(lq)>kk+1
                pend=flat(pend+bg(" ".join(f"s{c}" for c in range(len(SK)) if SK[c]==kk))+bg(TK.get(kk,'')))
                if kk==XK[0] and SPL&1: pend+=exad(True)
                if kk==XK[1]:
                    pend+=[f"v_lshrrev_b32 v{t0}, 1, v{vG}", f"v_lshrrev_b32 v{t1}, 1, v{vN}", f"v_xor_b32 v{t0}, v{t0}, v{t1}",
                    f"v_lshlrev_b32 v{t0}, 4, v{t0}", f"v_lshl_add_u32 v{t0}, v{vN}, 7, v{t0}", f"v_and_b32 v{t1}, 1, v{vG}",
                    f"v_lshl_add_u32 v{t0}, v{t1}, 3, v{t0}", f"s_sub_u32 s{sT0}, s{sJ}, s{sROT}", f"s_and_b32 s{sT0}, s{sT0}, 7", f"s_lshl_b32 s{sT0}, s{sT0}, 13", f"s_add_u32 s{sT0}, s{sT0}, s{sXM}", f"v_add_u32 v{t0}, s{sT0}, v{t0}",
                    f"v_xor_b32 v{t1}, 32, v{t0}", f"v_xor_b32 v{t6}, 64, v{t0}", f"v_xor_b32 v{t7}, 0x60, v{t0}"]
                if kk==7: pend+=[f"ds_read_b64 {v(RES+2*k,2)}, v{r}" for k,r in enumerate((t0,t1,t6,t7))]
                segs.append((NB[max(0,ks-1)], NB[ks+1]-1, pend))
            rd=rd_x(ks)+rd_w(kk,kp)
        if ks==16:
            assert not lq
            pre=[] if SPL&1 else [W("lg0"), W("vm","sent0"), "s_barrier"]; segs.append((NB[15], NB[16], flat(bg(SB))))
        if ks==0: e(pre); e(rd)
        else: steps.append((pre, mf_z(ks-1,True), rd, [W("lg","fr")] if ks<16 else []))
    e(gsched(steps, segs, slack=SLK[0]))
    if SPL&1: e([W("lg0"), W("vm","sent0"), "s_barrier"]+exrd(True)); assert nxt<=13 and "w13" not in done
    V.f("xd0","xd1","xa0","xa1")
    if TS and 'xB' in TS: e(ts("xa8"))
    e(ts("z2gemm"))
    vsp=V.a("vsp"); ra=[V.a(f"ra{k}") for k in range(4)]
    spinit=[f"v_xor_b32 v{t0}, v{vN}, v{vG}", f"v_lshlrev_b32 v{t0}, 4, v{t0}"]+([f"v_mul_u32_u24 v{t1}, 9, v{vG}", f"v_and_b32 v{t1}, 17, v{t1}", f"v_lshl_add_u32 v{t0}, v{t1}, 18, v{t0}"] if SPM else [f"v_lshl_add_u32 v{t0}, v{vG}, 18, v{t0}"])+[
            f"s_lshl_b32 s{sT0}, s{sZ}, 1", f"s_add_u32 s{sT0}, s{sT0}, s{sFH}", f"s_lshl_b32 s{sT0}, s{sT0}, 11", f"v_add_u32 v{vsp}, s{sT0}, v{t0}",
            f"s_mul_i32 s{sSTM}, s{sW}, {STGW}", f"s_add_u32 s{sSTM}, s{sSTM}, {STG}",
            f"v_bfe_u32 v{t0}, v{vL}, {1 if SPM else 2}, 3", f"v_mul_u32_u24 v{t0}, 1088, v{t0}"]+([f"v_lshrrev_b32 v{t1}, 3, v{vL}", f"v_bfi_b32 v{t1}, 1, v{vL}, v{t1}"] if SPM else [])+[f"v_and_b32 v{t1}, 3, v{t1 if SPM else vL}", f"v_lshl_add_u32 v{t0}, v{t1}, 8, v{t0}",
            f"v_lshl_add_u32 v{t0}, v{t1}, 4, v{t0}", f"v_lshrrev_b32 v{t1}, 5, v{vL}", f"v_lshl_add_u32 v{t0}, v{t1}, 7, v{t0}",
            f"v_add_u32 v{ra[0]}, s{sSTM}, v{t0}"]+[f"v_xor_b32 v{ra[k]}, {16*k}, v{ra[0]}" for k in range(1,4)]
    rb=[t4,t5,t6,t7]; sRX=sXM
    tab=sum(sum(((j>>b)&1)<<k for k,b in enumerate(RX) if b>=0)<<(4*j) for j in range(8))
    spinit+=[f"s_lshl_b32 s{sRX}, s{sJ}, 2", f"s_lshr_b32 s{sRX}, {tab}, s{sRX}", f"s_and_b32 s{sRX}, s{sRX}, 7"]+[x for r,m in ((sSH,RF[0]),(sFH,RF[1])) if m for x in (f"s_mul_i32 s{sT0}, s{r}, {m}", f"s_xor_b32 s{sRX}, s{sRX}, s{sT0}")]+[x for b,m in enumerate(RI) if m for x in (f"s_bfe_u32 s{sT0}, s{sI}, {0x10000+b}", f"s_mul_i32 s{sT0}, s{sT0}, {m}", f"s_xor_b32 s{sRX}, s{sRX}, s{sT0}")]+[f"s_lshl_b32 s{sRX}, s{sRX}, 8", f"v_add_u32 v{vsp}, s{sRX}, v{vsp}"]
    def sp_half(h):
        q,hh=divmod(h,2); kap,tb=divmod(q,2); o=[]
        assert h==0 or f"h{h-1}" in done
        off=lambda q: (q%2)*1024+(q//2)*256
        for k in range(4):
            n=4*hh+k
            u=[I(f"buffer_load_dwordx4 v{vsp}, {srd(sWSP)}, {f's{sSC+n}' if n else 0} offen offset:{k*1088} {NT} lds", f"sp{q}")]
            if XSP==1: u=[]
            if XSP==2: u=[I(f"buffer_load_dwordx4 v{vL16}, {srd(sWSP)}, s{sT2} offen offset:{k*1024} sc1 lds", f"sp{q}")]
            if k==0:
                if h>=5 and h%2:
                    assert f"r{(h-5)//2}" in done; u=[W("lg",f"spr{(h-5)//2}")]+u
                u=[f"s_add_u32 m0, s{sSTM}, {(h%5)*4352}"]+u
                if hh==0 and q: u=[f"v_xor_b32 v{vsp}, {off(q)^off(q-1)}, v{vsp}"]+u
            o.append(u)
        return o
    def sp_read(q):
        assert f"h{2*q+1}" in done
        h0=(2*q)%5; R=rb if h0==4 else ra
        assert h0<4 or "rb" in done
        r=[I(f"ds_read_b128 {a((q*8+x)*4,4)}, v{R[x%4]} offset:{h0*4352+(x//4)*64}", f"spr{q}") for x in range(8)]
        r[0]=[W("vm",f"sp{q}"), r[0]]
        return r
    aPL=240
    def poll1(): return [f"buffer_load_dwordx4 {a(aPL+4*k,4)}, v{vL16}, {srd(sWS)}, s{sT2} offen offset:{1024*k} sc1" for k in range(4)]
    def poll2(): return [f"buffer_load_dword v{vPC}, v{vP8}, {srd(sWS)}, s{sT2} offen sc1"]
    def slowchk(n):
        SLOW.extend([f"L_s{n}:", f"s_mov_b32 s{sCNT}, 0", f"L_l{n}:", f"buffer_load_dword v{vPC}, v{vP8}, {srd(sWS)}, s{sT2} offen sc1", "s_waitcnt vmcnt(0)",
                     f"v_cmp_ne_u32 vcc, s{sNON}, v{vPC}", f"s_cbranch_vccz L_b{n}", f"s_add_u32 s{sCNT}, s{sCNT}, 1", f"s_cmp_lt_u32 s{sCNT}, {SPIN}", f"s_cbranch_scc1 L_l{n}", f"s_branch L_b{n}"])
        return [f"v_cmp_ne_u32 vcc, s{sNON}, v{vPC}", f"s_cbranch_vccnz L_s{n}", f"L_b{n}:"]
    def chk2(): return [slowchk("s2")+["s_barrier"]+ts("s2")]
    SL=16384
    def zdma(g,o):
        if g>=24 or (g>=16 and o==3): return []
        r=[]
        if o==0: r=[f"s_add_u32 m0, s{sRM}, {(g%NS)*SL}", f"s_mov_b32 s{sKX}, {Z2N+(g%2 if 'h' in XP else g)*4096}"]
        return r+[I(f"buffer_load_dwordx4 v{vZL}, {srd(sWS)}, s{sKX} offen offset:{o*1024} sc1 lds", f"z{g}")]
    C0=C; C=[]; e=C.append
    e(f"v_readfirstlane_b32 s{sNON}, v{vNV}")
    e(spinit)
    e(f"s_mul_i32 s{sNON}, s{sNON}, 1664525"); e(f"s_add_u32 s{sNON}, s{sNON}, 1013904223")
    e(f"s_lshr_b32 s{sN1}, s{sNON}, 8"); e(f"s_lshr_b32 s{sN2}, s{sNON}, 16"); e(f"s_lshr_b32 s{sN3}, s{sNON}, 24"); e(f"s_movk_i32 s{sFF}, 0xff")
    NM=V.a("NM",2); K1=V.a("K1",2); K0=V.a("K0",2); IR=V.a("IR",2); RS=V.a("RS",2)
    k0=-2*math.log2(math.e)*math.sqrt(2/math.pi); k1=k0*0.044715
    if SPL&1:
        for k in (1,0): e(f"v_pk_add_f32 {v(SQ+4*k,2)}, {v(SQ+4*k,2)}, {v(SQ+4*k+2,2)}")
        rSUM=lambda t: SQ+4+t; rSQ=lambda t: SQ+t
    else:
        rSUM=lambda t: SUM+4*t; rSQ=lambda t: SQ+4*t+1
        e(f"v_lshrrev_b32 v{t0}, 2, v{vN}"); e(f"v_lshl_add_u32 v{t0}, v{t0}, 4, v{vN}"); e(f"v_lshlrev_b32 v{t0}, 2, v{t0}")
        for t in range(2):
            s=SQ+4*t
            e(f"v_cndmask_b32 v{s}, v{s}, v{s+1}, s[{sMA}:{sMA+1}]"); e(f"v_cndmask_b32 v{s+2}, v{s+2}, v{s+3}, s[{sMA}:{sMA+1}]")
            e(f"v_cndmask_b32 v{s}, v{s}, v{s+2}, s[{sMB}:{sMB+1}]")
            e(f"ds_bpermute_b32 v{s+1}, v{t0}, v{s}")
    for t in range(2):
        e(f"v_mul_f32 v{NM+t}, {fl(-1/512)}, v{rSUM(t)}")
        e(f"v_mul_f32 v{t2+t}, v{NM+t}, v{NM+t}"); e(f"v_sub_f32 v{t2+t}, {fl(1e-5)}, v{t2+t}")
    for t in range(2):
        e(f"v_fmamk_f32 v{t2+t}, v{rSQ(t)}, {fl(1/512)}, v{t2+t}"); e(f"v_max_f32 v{t2+t}, {fl(1e-5)}, v{t2+t}")
    for t in range(2): e(f"v_rsq_f32 v{RS+t}, v{t2+t}")
    for t in range(2): e(f"v_sqrt_f32 v{IR+t}, v{t2+t}")
    if SPL&1: e(csadd)
    for t in range(2):
        e(f"v_mul_f32 v{K0+t}, {fl(k0)}, v{RS+t}"); e(f"v_mul_f32 v{t2+t}, v{RS+t}, v{RS+t}")
    for t in range(2):
        e(f"v_mul_f32 v{t2+t}, {fl(0.044715)}, v{t2+t}"); e(f"v_mul_f32 v{K1+t}, v{K0+t}, v{t2+t}")
    cpre=flat(C); C=C0; e=C.append
    e(mix(cpre, bg(SC0)))
    TM=SP+28
    S2=SP+40; Q2=SP+44
    def gelu(stats):
        o=[]
        for c in range(3):
            P=[(ZA+(c*2+t)*4+2*h, CS+4*c+2*h, t, TM+2*(t*2+h), h) for t in range(2) for h in range(2)]
            for z,cs,t,u,h in P: o.append(f"v_pk_fma_f32 {v(z,2)}, {v(NM,2)}, {v(cs,2)}, {v(z,2)} op_sel:[{t},0,0] op_sel_hi:[{t},1,1]")
            for z,cs,t,u,h in P: o.append(f"v_pk_mul_f32 {v(u,2)}, {v(z,2)}, {v(z,2)}")
            for z,cs,t,u,h in P: o.append(f"v_pk_fma_f32 {v(u,2)}, {v(u,2)}, {v(K1,2)}, {v(K0,2)} op_sel:[0,{t},{t}] op_sel_hi:[1,{t},{t}]")
            for z,cs,t,u,h in P: o.append(f"v_pk_mul_f32 {v(u,2)}, {v(u,2)}, {v(z,2)}")
            for z,cs,t,u,h in P: o+= [f"v_exp_f32 v{u}, v{u}", f"v_exp_f32 v{u+1}, v{u+1}"]
            for z,cs,t,u,h in P: o.append(f"v_pk_fma_f32 {v(u,2)}, {v(u,2)}, {v(IR,2)}, {v(IR,2)} op_sel:[0,{t},{t}] op_sel_hi:[1,{t},{t}]")
            for z,cs,t,u,h in P: o+= [f"v_rcp_f32 v{u}, v{u}", f"v_rcp_f32 v{u+1}, v{u+1}"]
            for z,cs,t,u,h in P: o.append(f"v_pk_mul_f32 {v(z,2)}, {v(z,2)}, {v(u,2)}")
            if stats:
                for z,cs,t,u,h in P:
                    if c==0 and h==0:
                        o.append(f"v_pk_add_f32 {v(S2+2*t,2)}, {v(z,2)}, {v(z+2,2)}"); o.append(f"v_pk_mul_f32 {v(Q2+2*t,2)}, {v(z,2)}, {v(z,2)}")
                    else:
                        if c: o.append(f"v_pk_add_f32 {v(S2+2*t,2)}, {v(S2+2*t,2)}, {v(z,2)}")
                        o.append(f"v_pk_fma_f32 {v(Q2+2*t,2)}, {v(z,2)}, {v(z,2)}, {v(Q2+2*t,2)}")
        return o
    e(mix(gelu(True), bg(SC))); done+=[f"t{n}" for n in range(20) if n!=8]
    e(f"v_add_f32 v{t0}, v{S2}, v{S2+1}"); e(f"v_add_f32 v{t2}, v{S2+2}, v{S2+3}")
    e(f"v_add_f32 v{t1}, v{Q2}, v{Q2+1}"); e(f"v_add_f32 v{t3}, v{Q2+2}, v{Q2+3}")
    e(f"v_lshlrev_b32 v{t4}, 3, v{vG}"); e(f"v_lshrrev_b32 v{t4}, v{t4}, s{sNON}")
    e(f"v_permlane32_swap_b32 v{t0}, v{t2}"); e(f"v_permlane32_swap_b32 v{t1}, v{t3}")
    e(f"v_add_f32 v{t0}, v{t0}, v{t2}"); e(f"v_add_f32 v{t1}, v{t1}, v{t3}")
    e(f"v_lshlrev_b32 v{t5}, 2, v{vG}"); e(f"v_lshl_add_u32 v{t5}, v{vN}, 4, v{t5}")
    e(f"v_permlane16_swap_b32 v{t0}, v{t1}")
    e(f"s_lshl_b32 s{sT0}, s{sI}, 1"); e(f"s_add_u32 s{sT0}, s{sT0}, s{sSH}"); e(f"s_lshl_b32 s{sT0}, s{sT0}, 12"); e(f"s_add_u32 s{sT2}, s{sT0}, {STATS}")
    e(f"s_lshl_b32 s{sT0}, s{sJ}, 1"); e(f"s_add_u32 s{sT0}, s{sT0}, s{sFH}"); e(f"s_lshl_b32 s{sT0}, s{sT0}, 8"); e(f"s_add_u32 s{sT0}, s{sT0}, s{sT2}")
    e(f"v_add_f32 v{t0}, v{t0}, v{t1}")
    e(f"v_bfi_b32 v{t0}, s{sFF}, v{t4}, v{t0}")
    e(I(f"buffer_store_dword v{t0}, v{t5}, {srd(sWS)}, s{sT0} offen sc1","stat"))
    e(ts("statpub"))
    UA=SP; RR=SP+32; TR=SP+40; TI=SP+44; TN=SP+48
    def acc(uw,ri,t): return UA+((uw*2+ri)*2+t)*4
    vVS=V.a("vVS"); vZ=V.a("vZ"); vZ2=V.a("vZ2")
    fillD=[[f"v_lshlrev_b32 v{t0}, 4, v{vG}"]+[f"ds_bpermute_b32 v{RR+4*t+r}, v{t0}, v{RS+t} offset:{4*r}" for t in range(2) for r in range(4)]]
    fillD+=[[f"v_permlane16_swap_b32 v{ZA+8*c+r}, v{ZA+8*c+4+r}" for r in range(2*h,2*h+2)] for c in range(3) for h in range(2)]
    fillD+=[[f"s_lshr_b32 s{sT0}, s{sR}, 1", f"s_bfe_u32 s{sT1}, s{sI}, 0x10002", f"s_lshl_b32 s{sT1}, s{sT1}, 1", f"s_xor_b32 s{sT0}, s{sT0}, s{sT1}", f"v_xor_b32 v{t1}, s{sT0}, v{vG}"],
            [f"v_lshlrev_b32 v{t1}, 4, v{t1}", f"v_mul_u32_u24 v{t2}, {VP}, v{vN}"],
            [f"s_lshr_b32 s{sT0}, s{sJ}, 1", f"s_lshl_b32 s{sT0}, s{sT0}, 6", f"s_add_u32 s{sT0}, s{sT0}, s{sZ}", f"s_lshl_b32 s{sT0}, s{sT0}, 2", f"s_add_u32 s{sT0}, s{sT0}, s{sR}",
             f"s_lshl_b32 s{sT0}, s{sT0}, 6", f"v_add3_u32 v{vVS}, v{t1}, v{t2}, s{sT0}"]]
    fillD+=[[f"v_lshrrev_b32 v{t1}, 5, v{vL}", f"s_lshl_b32 s{sT0}, s{sFH}, 1", f"v_add_u32 v{t1}, s{sT0}, v{t1}"],
            [f"s_bfe_u32 s{sT0}, s{sI}, 0x10001", f"v_lshl_add_u32 v{t2}, v{t1}, 1, s{sT0}", f"v_and_b32 v{t3}, 7, v{vL}"],
            [f"v_xor_b32 v{t2}, v{t2}, v{t3}", f"v_lshlrev_b32 v{t2}, 4, v{t2}"],
            [f"v_lshl_add_u32 v{t2}, v{t1}, 10, v{t2}", f"v_bfe_u32 v{t3}, v{vL}, 3, 2"],
            [f"v_mul_u32_u24 v{t3}, 98304, v{t3}", f"s_mul_i32 s{sT0}, s{sJ}, 393216", f"s_lshl_b32 s{sT1}, s{sSH}, 14", f"s_add_u32 s{sT0}, s{sT0}, s{sT1}",
             f"s_lshr_b32 s{sT1}, s{sI}, 3", f"s_lshl_b32 s{sT1}, s{sT1}, 12", f"s_add_u32 s{sT0}, s{sT0}, s{sT1}",
             f"s_and_b32 s{sT1}, s{sI}, 7", f"s_lshl_b32 s{sT1}, s{sT1}, 7", f"s_add_u32 s{sT0}, s{sT0}, s{sT1}", f"v_add3_u32 v{vZ}, v{t2}, v{t3}, s{sT0}"],
            [f"v_add_u32 v{t1}, 8, v{t1}", f"v_cmp_gt_u32 s[{sHM}:{sHM+1}], s{sNOCT}, v{t1}"],
            [f"v_mov_b32 v{t1}, {OOB}"], [f"v_cndmask_b32 v{vZ2}, v{t1}, v{vZ}, s[{sHM}:{sHM+1}]"]]
    fillD+=[f"v_mov_b32 v{t4}, s{sSIG}", f"s_mov_b32 s{sCNT}, 0"]
    bd=bg(SD); fillD=flat(mix(bd, fillD) if len(bd)>len(fillD) else mix(fillD, bd))
    fD=lambda var: gsched([([],fftv(var),[],[])], [(0,62,fillD)])
    def fftv(var):
        o=[]; seen=set()
        tab={0:[((0,0),(0,1)),((1,0),(1,1)),((0,0),(0,1)),((1,0),(1,1))],
             1:[((0,0),(0,1)),((1,1),(0,0)),((1,0),(1,1)),((0,1),(1,0))],
             3:[((0,0),(0,1)),((0,1),(1,0)),((1,0),(1,1)),((1,1),(0,0))]}[var]
        for ks in range(16):
            D,k=divmod(ks,4)
            for which,base in ((0,aFC),(1,aFS)):
                uw,ri=tab[D][which]
                for t in range(2):
                    d=acc(uw,ri,t); o.append(mm(d, v(xf(ks,t),4), a(base+4*k,4), d not in seen)); seen.add(d)
        return o
    e(f"s_cmp_eq_u32 s{sR}, 1"); e("s_cbranch_scc1 L_f1"); e(f"s_cmp_eq_u32 s{sR}, 3"); e("s_cbranch_scc1 L_f3")
    e(Var([fD(0)+["s_nop 6","s_branch L_fj"], ["L_f1:"]+fD(1)+["s_nop 6","s_branch L_fj"], ["L_f3:"]+fD(3)+["s_nop 7"]]))
    e("L_fj:")
    e(ts("fftm"))
    C0=C; C=[]; e=C.append
    for ri in range(2):
        for t in range(2):
            for h in range(2):
                u=acc(0,ri,t)+2*h; w_=acc(1,ri,t)+2*h
                e(f"v_pk_fma_f32 {v(u,2)}, {v(t4,2)}, {v(w_,2)}, {v(u,2)} op_sel_hi:[0,1,1]")
    for ri in range(2):
        for t in range(2):
            for h in range(2):
                u=acc(0,ri,t)+2*h; e(f"v_pk_mul_f32 {v(u,2)}, {v(u,2)}, {v(RR+4*t+2*h,2)}")
    for t in range(2):
        for h in range(2):
            u=acc(0,0,t)+2*h; e(f"v_cvt_pk_bf16_f32 v{TR+2*t+h}, v{u}, v{u+1}"); e(f"v_cvt_pk_bf16_f32 v{TN+2*t+h}, -v{u}, -v{u+1}")
            u=acc(0,1,t)+2*h; e(f"v_cvt_pk_bf16_f32 v{TI+2*t+h}, v{u}, v{u+1}")
    VA=SP+16
    for th in range(2):
        e(mm(VA+8*th, v(TR,4), a(aAC+4*th,4), True)); e(mm(VA+8*th+4, v(TI,4), a(aAC+4*th,4), True))
        e(mm(VA+8*th, v(TI,4), a(aAS+4*th,4), False)); e(mm(VA+8*th+4, v(TN,4), a(aAS+4*th,4), False))
    VK=SP+32
    for th in range(2):
        for r in range(4): e(f"v_cvt_pk_bf16_f32 v{VK+4*th+r}, v{VA+8*th+r}, v{VA+8*th+4+r}")
    dt=flat(C); C=C0; e=C.append
    e(mix(dt, bg(SD2)))
    for th in range(2):
        e(f"s_mov_b32 s{sT3}, {VB+th*16*VP}")
        e(I(f"buffer_store_dwordx4 {v(VK+4*th,4)}, v{vVS}, {srd(sWS)}, s{sT3} offen sc1","z2n"))
    e(ts("fft"))
    PL=SP; ZP=SP+16
    sn=[sNON,sN1,sN2,sN3]
    chk=[f"v_xor_b32 v{t0}, s{sNON}, v{PL}", f"v_xor_b32 v{t1}, s{sN1}, v{PL+1}"]
    chk+=[f"v_bitop3_b32 v{t0+k%2}, v{PL+k}, s{sn[k%4]}, v{t0+k%2} bitop3:0xbe" for k in range(2,16)]
    chk+=[f"v_bitop3_b32 v{t0}, v{t0}, v{t1}, s{sFF} bitop3:0xa8", f"v_cmp_ne_u32 vcc, 0, v{t0}"]
    assert "p1" in done
    e(W("vm","st13")); e("L_r1:"); e([f"v_accvgpr_read_b32 v{PL+k}, a{aPL+k}" for k in range(16)]); e(chk); e("s_cbranch_vccnz L_s1"); e("L_b1:")
    SLOW.extend(["L_s1:", f"s_add_u32 s{sCNT}, s{sCNT}, 1", f"s_cmp_ge_u32 s{sCNT}, {SPIN}", "s_cbranch_scc1 L_b1"]+poll1()+["s_waitcnt vmcnt(0)", "s_branch L_r1"])
    e(ts("s1"))
    C0=C; C=[]; e=C.append
    for h in range(2):
        e(f"v_pk_add_f32 {v(PL+2*h,2)}, {v(PL+2*h,2)}, {v(PL+4+2*h,2)}"); e(f"v_pk_add_f32 {v(PL+8+2*h,2)}, {v(PL+8+2*h,2)}, {v(PL+12+2*h,2)}")
    for h in range(2): e(f"v_pk_add_f32 {v(PL+2*h,2)}, {v(PL+2*h,2)}, {v(PL+8+2*h,2)}")
    e(f"v_permlane16_swap_b32 v{PL}, v{PL+2}"); e(f"v_permlane16_swap_b32 v{PL+1}, v{PL+3}")
    e(f"v_pk_add_f32 {v(PL+4,2)}, {v(PL,2)}, {v(PL+2,2)}"); e(f"v_pk_add_f32 {v(PL,2)}, {v(PL,2)}, {v(PL+2,2)}")
    e(f"v_permlane32_swap_b32 v{PL}, v{PL+4}"); e(f"v_permlane32_swap_b32 v{PL+1}, v{PL+5}")
    e(f"v_pk_add_f32 {v(PL,2)}, {v(PL,2)}, {v(PL+4,2)}")
    e(f"v_mul_f32 v{t0}, {fl(-1/688)}, v{PL}"); e(f"v_mul_f32 v{t1}, v{t0}, v{t0}"); e(f"v_sub_f32 v{t1}, {fl(1e-5)}, v{t1}")
    e(f"v_fmamk_f32 v{t1}, v{PL+1}, {fl(1/688)}, v{t1}"); e(f"v_max_f32 v{t1}, {fl(1e-5)}, v{t1}")
    e(f"v_rsq_f32 v{t2}, v{t1}"); e(f"v_mul_f32 v{t3}, v{t0}, v{t2}")
    dt=flat(C); C=C0; e=C.append
    e(mix(dt, bg(SE)))
    for c in range(3):
        for k in range(4):
            z=ZA+8*c+2*k; e(f"v_pk_fma_f32 {v(z,2)}, {v(z,2)}, {v(t2,2)}, {v(t2,2)} op_sel:[0,0,1] op_sel_hi:[1,0,1]")
        for k in range(4):
            z=ZA+8*c+2*k; e(f"v_cvt_pk_bf16_f32 v{ZP+4*c+k}, v{z}, v{z+1}")
        e(f"s_mov_b32 s{sT3}, {Z2N+c*32768}")
        e(I(f"buffer_store_dwordx4 {v(ZP+4*c,4)}, v{vZ2 if c==2 else vZ}, {srd(sWS)}, s{sT3} offen sc1","z2n"))
    e(ts("z2npub"))
    V.f("vVS","vZ","vZ2")
    vFO=V.a("vFO"); vBT=V.a("vBT")
    e(f"v_lshlrev_b32 v{t0}, 2, v0"); e(f"v_cmp_gt_u32 vcc, 32, v0"); e(f"v_mov_b32 v{t1}, {OOB}"); e(f"v_mov_b32 v{vNV}, s{sNON}"); e(f"v_cndmask_b32 v{vFO}, v{t1}, v{t0}, vcc")
    e(f"v_and_b32 v{t0}, 31, v{vL}"); e(f"v_lshlrev_b32 v{t0}, 7, v{t0}"); e(f"s_lshl_b32 s{sT0}, s{sZ}, 1")
    e(f"buffer_load_ushort v{vBT}, v{t0}, {srd(sBSP)}, s{sT0} offen")
    vZL=V.a("vZL"); vP8=V.a("vP8"); vPC=V.a("vPC")
    e(f"v_and_b32 v{t0}, {8 if SPM else 16}, v{vL}"); e(f"v_mul_u32_u24 v{t0}, {STGW//(8 if SPM else 16)}, v{t0}")
    for k in range(4): e(f"v_sub_u32 v{rb[k]}, v{ra[k]}, v{t0}")
    done.append("rb")
    e(f"s_lshl_b32 s{sT0}, s{sJ}, 2"); e(f"s_add_u32 s{sT0}, s{sT0}, s{sW}"); e(f"s_lshr_b32 s{sT1}, s{sRX}, 10"); e(f"s_xor_b32 s{sT1}, s{sT1}, s{sT0}"); e(f"s_mul_i32 s{sT1}, s{sT1}, 98304"); e(f"v_add_u32 v{vZL}, s{sT1}, v{vL16}")
    e(f"s_lshl_b32 s{sRM}, s{sW}, 12")
    e(f"v_and_b32 v{t0}, 7, v{vL}"); e(f"v_lshlrev_b32 v{vP8}, 7, v{t0}")
    e(f"s_lshl_b32 s{sT0}, s{sT0}, 10"); e(f"s_add_u32 s{sT2}, s{sT0}, {F2}")
    e(f"s_lshl_b32 s{sT0}, s{sJ}, 5"); e(f"s_add_u32 s{sT0}, s{sT0}, s{sI}"); e(f"s_lshl_b32 s{sT0}, s{sT0}, 7"); e(f"s_add_u32 s{sT0}, s{sT0}, {F2}")
    e("s_barrier")
    assert 4<=FA<=FK<=12
    sa,sb,sc=SF.split("|"); assert "w14" not in sa and (FA<FK or not sb.strip())
    u1=flat(bg(sa)); u2=flat(bg(sb)); u3=flat(bg(sc))
    steps=[]; NF=cum(False)
    for ks in range(17):
        kk,kp=divmod(ks,2); pre=[]; rd=[]
        if ks<16: rd=rd_w(8+kk,kp)
        if ks==FA: pre=["s_barrier"]
        if ks==FK:
            pre=[W("vm","z2n"),"s_barrier"]
            u3=[f"buffer_store_dword v{vNV}, v{vFO}, {srd(sWS)}, s{sT0} offen sc1"]+([ts("s2flag")] if DIAGON else [])+u3
        if ks==12: pre=[W("vm","st15"),"s_barrier"]
        if ks==0: e(rd)
        else: steps.append((pre, mf_z(ks-1,False), rd, [W("lg","fr")] if ks<16 else []))
    e(gsched(steps, [(0,NF[FA-1]-1,u1+(exad(False) if SPL&2 else [])), (NF[FA-1],NF[FK-1]-1,u2), (NF[FK-1],int(NF[16]*FS),u3)], slack=SLK[1]))
    if SPL&2: e([W("lg","exw"),"s_barrier"]+exrd(False))
    V.f("XF","wd0","wd1","wd2","wa0","wa1","ONES")
    e(ts("z1gemm"))
    Z1=V.a("Z1",12)
    gl=(csadd if SPL&2 else [])+gelu(False); e(mix(gl, bg(SG), int(len(gl)*GS[0]), int(len(gl)*GS[1])))
    C0=C; C=[]; e=C.append
    for c in range(3):
        for t in range(2):
            for h in range(2):
                z=ZA+(c*2+t)*4+2*h; e(f"v_cvt_pk_bf16_f32 v{Z1+4*c+2*t+h}, v{z}, v{z+1}")
    for c in range(3):
        for h in range(2): e(f"v_permlane16_swap_b32 v{Z1+4*c+h}, v{Z1+4*c+2+h}")
    e(f"v_lshlrev_b32 v{vBT}, 16, v{vBT}")
    dt=flat(C); C=C0; e=C.append
    e(mix(dt, bg(SG2)))
    assert all(f"r{q}" in done for q in range(7)) and "c2" in done and ("s2" in done or 's' in XP)
    V.f("vT","ZA","SP","NM","K1","K0","IR","RS","vsp","ra0","ra1","ra2","ra3")
    za=[V.a(f"za{k}") for k in range(8)]; vRW=V.a("vRW"); vRR=V.a("vRR"); vH=V.a("vH"); vH2=V.a("vH2")
    e(ts("z1done"))
    C0=C; C=[]; e=C.append
    e(f"v_and_b32 v{t0}, 1, v{vG}"); e(f"v_xor_b32 v{t0}, s{sFH}, v{t0}"); e(f"v_and_b32 v{t1}, 1, v{vL}"); e(f"v_lshl_add_u32 v{t0}, v{t0}, 1, v{t1}")
    e(f"v_mul_u32_u24 v{t0}, {1024+32}, v{t0}")
    e(f"v_lshrrev_b32 v{t1}, 2, v{vN}"); e(f"v_lshl_add_u32 v{t0}, v{t1}, 7, v{t0}")
    e(f"v_lshrrev_b32 v{t1}, 3, v{vN}"); e(f"v_lshrrev_b32 v{t2}, 1, v{vG}"); e(f"v_xor_b32 v{t1}, v{t1}, v{t2}"); e(f"v_lshl_add_u32 v{t0}, v{t1}, 4, v{t0}")
    e(f"v_bfe_u32 v{t1}, v{vL}, 1, 1"); e(f"v_lshl_add_u32 v{t0}, v{t1}, 3, v{t0}")
    e(f"s_bfe_u32 s{sT0}, s{sRX}, 0x70003"); e(f"v_xor_b32 v{t0}, s{sT0}, v{t0}")
    e(f"v_lshl_add_u32 v{za[0]}, s{sFH}, 13, v{t0}")
    for k in range(1,4): e(f"v_xor_b32 v{za[k]}, {32*k}, v{za[0]}")
    for k in range(4): e(f"v_add_u32 v{za[4+k]}, {4*SL}, v{za[k]}")
    e(f"s_lshl_b32 s{sT0}, s{sW}, 11"); e(f"s_add_u32 s{sT0}, s{sT0}, {RED}"); e(f"v_mad_u32_u24 v{vRR}, v{vL}, {4*WM}, s{sT0}")
    e(f"v_xor_b32 v{vRW}, 2048, v{vRR}")
    e(f"v_and_b32 v{t0}, 1, v{vG}"); e(f"v_lshlrev_b32 v{t0}, 13, v{t0}"); e(f"v_lshl_add_u32 v{t0}, v{vN}, 4, v{t0}")
    e(f"v_lshrrev_b32 v{t1}, 1, v{vG}"); e(f"v_lshl_add_u32 v{t0}, v{t1}, 8, v{t0}")
    e(f"s_mul_i32 s{sT0}, s{sI}, 98304"); e(f"s_lshl_b32 s{sT1}, s{sSH}, 14"); e(f"s_add_u32 s{sT0}, s{sT0}, s{sT1}"); e(f"s_lshl_b32 s{sT1}, s{sFH}, 9"); e(f"s_add_u32 s{sT0}, s{sT0}, s{sT1}")
    e(f"s_lshl_b32 s{sT1}, s{sJ}, 10"); e(f"s_add_u32 s{sT1}, s{sT1}, s{sT0}"); e(f"v_add_u32 v{vH}, s{sT1}, v{t0}")
    e(f"s_mul_i32 s{sT1}, s{sJ}, 768"); e(f"s_min_u32 s{sT1}, s{sT1}, {20*256}"); e(f"s_add_u32 s{sT1}, s{sT1}, s{sT0}"); e(f"v_add_u32 v{t0}, s{sT1}, v{t0}")
    e(f"v_mov_b32 v{t1}, {OOB}"); e(f"v_cndmask_b32 v{vH2}, v{t1}, v{t0}, s[{sHM}:{sHM+1}]")
    AC=V.a("AC0",16); AC1=V.a("AC1",16); ACS=[AC,AC1]; ZF=V.a("ZF",32); RD=V.a("RD",8); HP=V.a("HP",4); HT=V.a("HT",8); BZ=V.a("BZ",8)
    vWO=V.a("vWO"); wo=[[V.a(f"wo{r}{p}") for p in range(4)] for r in range(2)]
    e(f"v_lshrrev_b32 v{t0}, 3, v{vL}"); e(f"v_and_b32 v{t1}, 2, v{t0}"); e(f"v_and_b32 v{t2}, 7, v{vL}")
    e(f"s_lshl_b32 s{sT0}, s{sFH}, 2"); e(f"v_bitop3_b32 v{t1}, v{t1}, v{t2}, s{sT0} bitop3:0x96")
    e(f"v_lshlrev_b32 v{t1}, 4, v{t1}"); e(f"v_lshl_add_u32 v{t1}, v{t0}, 10, v{t1}")
    e(f"s_lshl_b32 s{sT0}, s{sW}, 6"); e(f"s_add_u32 s{sT0}, s{sT0}, s{sJ}"); e(f"s_lshl_b32 s{sT0}, s{sT0}, 7"); e(f"v_add_u32 v{vWO}, s{sT0}, v{t1}")
    if 'c' in XP: e(f"s_mul_i32 s{sT0}, s{sJ}, 86"); e(f"s_add_u32 s{sT0}, s{sT0}, s{sW}"); e(f"s_lshl_b32 s{sT0}, s{sT0}, 10"); e(f"v_add_u32 v{vWO}, s{sT0}, v{vL16}")
    e(f"v_lshlrev_b32 v{t0}, 12, v{vG}"); e(f"v_lshrrev_b32 v{t1}, 2, v{vN}"); e(f"v_lshl_add_u32 v{t0}, v{t1}, 7, v{t0}")
    e(f"v_and_b32 v{t1}, 3, v{vL}"); e(f"v_lshl_add_u32 v{t0}, v{t1}, 3, v{t0}"); e(f"v_lshrrev_b32 v{t1}, 3, v{vN}"); e(f"v_lshl_add_u32 v{t0}, v{t1}, 5, v{t0}")
    e(f"v_and_b32 v{t1}, 1, v{vG}"); e(f"v_lshl_add_u32 v{t0}, v{t1}, 6, v{t0}"); e(f"v_add_u32 v{wo[1][0]}, {2*SL}, v{t0}")
    for ct in range(1,4): e(f"v_xor_b32 v{wo[1][ct]}, {32*ct}, v{wo[1][0]}")
    for ct in range(4): e(f"v_add_u32 v{wo[0][ct]}, {4*SL}, v{wo[1][ct]}")
    TW=V.a("TW",16); H0=V.a("H0",32); H1=V.a("H1",32); OA=V.a("OA",16); va=[V.a(f"va{k}") for k in range(4)]; WR=H0
    vPA=V.a("vPA"); vPV=V.a("vPV"); vHL=V.a("vHL"); vHL5=V.a("vHL5")
    sMI,sRHO,sVB,sFP,sFS=sXM,sSTM,sWM,sN1,sN2
    e([f"s_cmp_ge_u32 s{sJ}, 4", f"s_cselect_b32 s{sMI}, -1, 0"]); e(f"s_and_b32 s{sT0}, s{sMI}, 0x80000000"); e(f"s_or_b32 s{sT0}, s{sT0}, {fl(1/2048)}")
    e(f"s_lshl_b32 s{sT1}, s{sFH}, 10"); e(f"s_add_u32 s{sT1}, s{sT1}, s{sZ}")
    e(f"v_lshl_add_u32 v{t0}, v{vN}, 6, s{sT1}"); e(f"v_cvt_f32_u32 v{t0}, v{t0}"); e(f"v_mul_f32 v{t0}, s{sT0}, v{t0}")
    e(f"v_lshlrev_b32 v{t1}, 2, v{vG}"); e(f"v_cvt_f32_u32 v{t1}, v{t1}"); e(f"v_mul_f32 v{t1}, v{t1}, v{t0}")
    for kv in range(4):
        for q in range(4):
            e(f"v_fmamk_f32 v{WR+q}, v{t0}, {fl(16*kv+q)}, v{t1}")
        for q in range(4): e(f"v_cos_f32 v{WR+4+q}, v{WR+q}"); e(f"v_sin_f32 v{WR+q}, v{WR+q}")
        for q in range(4): e(f"v_cvt_pk_bf16_f32 v{TW+4*kv+q}, v{WR+4+q}, v{WR+q}")
    e(f"s_xor_b32 s{sT0}, s{sI}, s{sMI}"); e(f"s_sub_u32 s{sT0}, s{sT0}, s{sMI}"); e(f"s_and_b32 s{sT0}, s{sT0}, 31"); e(f"s_mul_i32 s{sVB}, s{sT0}, {VP}"); e(f"s_add_u32 s{sVB}, s{sVB}, {VB}")
    e(f"s_xor_b32 s{sRHO}, s{sJ}, s{sMI}"); e(f"s_and_b32 s{sRHO}, s{sRHO}, 3")
    e(f"v_and_b32 v{t4}, 1, v{vG}"); e(f"v_lshlrev_b32 v{t4}, 1, v{t4}"); e(f"v_lshlrev_b32 v{t5}, 10, v{vG}"); e(f"v_add_u32 v{t5}, {VL}, v{t5}")
    for ct in range(4):
        e(f"v_add_u32 v{t0}, {16*ct}, v{vN}"); e(f"v_xor_b32 v{t0}, s{sMI}, v{t0}"); e(f"v_subrev_u32 v{t0}, s{sMI}, v{t0}")
        e(f"v_bfe_u32 v{t1}, v{t0}, 4, 2"); e(f"v_bfe_u32 v{t2}, v{t0}, 1, 1"); e(f"v_bitop3_b32 v{t1}, v{t1}, v{t2}, v{t4} bitop3:0x96")
        e(f"v_lshl_add_u32 v{t1}, v{t1}, 4, v{t5}"); e(f"v_and_b32 v{t2}, 3, v{t0}"); e(f"v_lshl_add_u32 v{t1}, v{t2}, 6, v{t1}")
        e(f"v_and_b32 v{t2}, 12, v{t0}"); e(f"v_add_u32 v{va[ct]}, v{t1}, v{t2}")
    e(f"v_bfe_u32 v{t0}, v{vN}, 2, 1"); e(f"v_lshlrev_b32 v{t0}, 5, v{t0}"); e(f"v_lshl_add_u32 v{t0}, v{vN}, 8, v{t0}"); e(f"v_add_u32 v{vPA}, s{sRM}, v{t0}")
    e(f"s_mul_i32 s{sT0}, s{sI}, 12"); e(f"s_add_u32 s{sT0}, s{sT0}, s{sW}"); e(f"s_lshl_b32 s{sT0}, s{sT0}, 13"); e(f"v_add_u32 v{vHL}, s{sT0}, v{vL16}")
    e(f"v_cmp_gt_u32 vcc, 32, v{vL}"); e(f"v_mov_b32 v{t1}, {OOB}"); e(f"v_lshlrev_b32 v{t0}, 7, v{vL}"); e(f"v_cndmask_b32 v{vHL5}, v{t1}, v{vHL}, vcc"); e(f"v_cndmask_b32 v{vP8}, v{t1}, v{t0}, vcc")
    if PX[1]:
        e(f"s_and_b32 s{sT0}, s{sI}, 7"); e(f"s_lshl2_add_u32 s{sT0}, s{sT0}, s{sW}"); e(f"s_mul_i32 s{sT0}, s{sT0}, 22"); e(f"v_min_u32 v{t2}, 21, v{vL}"); e(f"v_add_lshl_u32 v{t2}, v{t2}, s{sT0}, 10")
    setup=C; C=C0; e=C.append
    assert NP>=5
    pro=[]
    for t in (SS or " ".join(f"z{g}" for g in range(NP) if f"z{g}" not in done)).split():
        u=bg(t)
        if t=="z4": assert "r7" in done; u[0]=[W("lg","spr7"),"s_barrier"]+u[0]
        if t=="r7": u=[u[k:k+2] for k in range(0,8,2)]
        pro+=u
    assert f"z{NP-1}" in done and f"z{NP}" not in done
    sm_=flat([pro[0], mix(setup, pro[1:], 0, int(len(setup)*SFR))]); tx_=lambda x: x.text if isinstance(x,I) else x if isinstance(x,str) else ""
    k7=[k for k,x in enumerate(sm_) if isinstance(x,I) and x.tag=="spr7"]
    assert not k7 or not any(tx_(x).split(",")[0].endswith(tuple(f" v{r}" for r in rb)) for x in sm_[:k7[-1]])
    e(sm_)
    nst=[f"s_cmp_eq_u32 s2, 0", f"s_cselect_b32 s{sT0}, 0, {OOB}", f"buffer_store_dword v{vNV}, v{vFO}, {srd(sWS)}, s{sT0} offen sc1"]
    def zrd(x):
        g,k=divmod(x,4); sl=g%NS; r_=za[k+4*(sl//4)]; of=(sl%4)*SL
        r=[I(f"ds_read_b64_tr_b16 {v(ZF+8*(x%4)+2*n,2)}, v{r_} offset:{of+(n//2)*4096+(n%2)*512}", f"zr{x}") for n in range(4)]
        if k==0: r[0]=[W("vm",f"z{g}")]+([] if 'b' in XP and g else ["s_barrier"])+[r[0]]
        return r
    def wo_lds(kap): return (8,9,3,5,6,2)[kap//4]*SL+(kap%4)*1024
    def wo_dma(kap):
        r=[f"s_add_u32 m0, s{sRM}, {wo_lds(kap)}"]
        if 'c' in XP: r.append(f"s_mov_b32 s{sT3}, {kap*4096}")
        elif kap<16:
            r.append(f"s_mov_b32 s{sT3}, {(f0(kap%8)+32*(kap//8))*1024}")
        elif kap<21:
            k=kap-16
            r+=[f"s_add_u32 s{sT3}, s{sW}, {4*k}", f"s_mul_i32 s{sT3}, s{sT3}, 43", f"s_lshr_b32 s{sT3}, s{sT3}, 7", f"s_lshl_b32 s{sT3}, s{sT3}, 16", f"s_add_u32 s{sT3}, s{sT3}, {(32*k+64)*1024}"]
        else: r.append(f"s_mov_b32 s{sT3}, {672*1024}")
        return r+[I(f"buffer_load_dwordx4 v{vWO}, {srd(sWOUT)}, s{sT3} offen {NT} lds", f"wo{kap}")]
    def red_wr(c):
        return [I(f"ds_write_b{32*WM} v{vRW}, {v(ACS[c%2]+8+WM*x,WM)} offset:{x*256*WM}", f"rw{c}") for x in range(8//WM)]
    def red_rd(c):
        if WM==1: return [f"ds_read2st64_b32 {v(RD+2*x,2)}, v{vRR} offset0:{2*x} offset1:{2*x+1}" for x in range(4)]
        return [f"ds_read_b{32*WM} {v(RD+WM*x,WM)}, v{vRR} offset:{x*256*WM}" for x in range(8//WM)]
    def red_own(c, pk):
        A=ACS[c%2]
        if pk: return [f"v_pk_fma_f32 {v(A+2*k,2)}, {v(A+2*k,2)}, {v(HT+2*k,2)}, {v(BZ+2*k,2)}" for k in range(4)]
        return [f"v_fma_f32 v{A+k}, v{A+k}, v{HT+k}, v{BZ+k}" for k in range(8)]
    def red_alu(c, pk):
        o=[]; A=ACS[c%2]
        if pk: o+=[f"v_pk_fma_f32 {v(A+2*k,2)}, {v(RD+2*k,2)}, {v(HT+2*k,2)}, {v(A+2*k,2)}" for k in range(4)]
        else: o+=[f"v_fmac_f32 v{A+k}, v{RD+k}, v{HT+k}" for k in range(8)]
        for k in range(4): o.append(f"v_cvt_pk_bf16_f32 v{HP+k}, v{A+2*k}, v{A+2*k+1}")
        return o
    def z1_unp(c):
        return [x for k in range(4) for x in (f"v_lshlrev_b32 v{HT+2*k}, 16, v{Z1+4*c+k}", f"v_and_b32 v{HT+2*k+1}, 0xffff0000, v{Z1+4*c+k}")]+[f"v_mul_f32 v{BZ+k}, v{vBT}, v{HT+k}" for k in range(8)]
    def h_st(c):
        return [f"s_mov_b32 s{sT0}, {HB+c*32768}", I(f"buffer_store_dwordx4 {v(HP,4)}, v{vH2 if c==2 else vH}, {srd(sWS)}, s{sT0} offen sc1", f"h{c}")]
    vdma=[[f"s_lshl_b32 s{sT1}, s{sRHO}, 14", f"s_add_u32 m0, s{sRM}, {VL}", f"s_add_u32 s{sT1}, s{sT1}, s{sRM}", f"s_add_u32 s{sT1}, s{sT1}, s{sVB}",
           I(f"buffer_load_dwordx4 v{vL16}, {srd(sWS)}, s{sT1} offen sc1 lds","v")]]
    vdma+=[I(f"buffer_load_dwordx4 v{vL16}, {srd(sWS)}, s{sT1} offen offset:{1024*k} sc1 lds","v") for k in range(1,4)]
    vdma+=[[f"s_sub_u32 s{sT1}, s{sRHO}, s{sMI}", f"s_and_b32 s{sT1}, s{sT1}, 3", f"s_lshl_b32 s{sT1}, s{sT1}, 14", f"s_add_u32 s{sT1}, s{sT1}, s{sVB}"],
           [f"s_cmp_eq_u32 s{sJ}, 0", f"s_cselect_b32 s{sT1}, {OOB}, s{sT1}", f"buffer_load_dword v{vPV}, v{vPA}, {srd(sWS)}, s{sT1} offen sc1"]]
    def hld(c, dst, sKW=sKW):
        return [([f"s_mov_b32 s{sKW}, {HB+c*32768+k*1024}"] if k%4==0 else [])+[I(f"buffer_load_dwordx4 {v(dst+4*k,4)}, v{vHL5 if (c,k)==(2,5) else vHL}, {srd(sWS)}, s{sKW} offen offset:{(k%4)*1024} sc1", f"hl{c}")] for k in range(8 if c<2 else 6)]
    HH=[H0,H1]
    def wrd(kap, d):
        rg=0 if wo_lds(kap)>=6*SL else 1; ko=wo_lds(kap)-(2*SL if rg else 6*SL)
        return [f"ds_read_b64_tr_b16 {a(d+ct*4+2*r,2)}, v{wo[rg][ct]} offset:{ko+r*512}" for ct in range(4) for r in range(2)]
    def vrd(kv,d):
        if 'v' in XP: return wrd(kv,d)
        return [f"ds_read2st64_b32 {a(d+ct*4+2*r,2)}, v{va[ct]} offset0:{16*kv+2*r} offset1:{16*kv+2*r+1}" for ct in range(4) for r in range(2)]
    tst=[("w",k) for k in range(8)]+[("v",k) for k in range(4)]+[("w",k) for k in range(8,22)]
    def rds(n):
        if n>=26: return []
        ty,k=tst[n]; return vrd(k,16*(n%16)) if ty=="v" else wrd(k,16*(n%16))
    def mms(n):
        ty,k=tst[n]; B = v(TW+4*k,4) if ty=="v" else v(HH[k//8]+4*(k%8),4)
        return [mm(OA+4*ct, a(16*(n%16)+4*ct,4), B, False) for ct in range(4)]
    def hchk(c):
        H=HH[c]; n=8 if c<2 else 6; nm=f"h{c}"
        ck=[f"v_max3_i32 v{t0}, v{H}, v{H+4}, v{H+8}"]+[f"v_max3_i32 v{t0}, v{t0}, v{H+4*k}, v{H+4*k+4}" for k in range(3,n-1,2)]+[f"v_max_i32 v{t0}, v{t0}, v{H+4*n-4}", f"v_cmp_eq_u32 vcc, {SENT}, v{t0}"]
        SLOW.extend([f"L_s{nm}:", f"s_add_u32 s{sCNT}, s{sCNT}, 1", f"s_cmp_ge_u32 s{sCNT}, {SPIN}", f"s_cbranch_scc1 L_b{nm}"]+flat(hld(c,H,sT3))+["s_waitcnt vmcnt(0)", f"s_branch L_r{nm}"])
        return [f"s_mov_b32 s{sCNT}, 0", W("vm",f"hl{c}"), f"L_r{nm}:"]+ck+[f"s_cbranch_vccnz L_s{nm}", f"L_b{nm}:"]+ts(f"xck{c}")
    e(ts("p2pro"))
    e(zrd(0)); e(zrd(1))
    if LW: e(zrd(2))
    ex={y:[] for y in range(193)}; dx={y:[] for y in range(193)}
    def spread(units, y0, per, d=None):
        for k,u in enumerate(units): (ex if d is None else d)[min(192,y0+int(k/per))].append(u)
        return y0+int((len(units)-1)/per)
    yy=0.; LA=4+2*LW
    def put(u, lo, dr):
        nonlocal yy
        yy=max(yy,lo); y=2*int((yy+1e-6)/2)
        while any(g0<=y<g0+2*GAP[2] for g0 in GAP[:2]): y+=2; yy+=2
        dx[min(y,192)].append(u); yy+=dr
    for k in range(W1): put(wo_dma(k), 0, DR[0])
    lead=[]; hq=hld(0,H0)
    for G in range(NP,24):
        for o in range(4):
            if zdma(G,o): put([] if 'd' in XP else zdma(G,o), 8*(G-NS+2)-LA+2, DR[G>=16])
        if G>=16 and W1<8: put(wo_dma(W1), 0, DR[1]); W1+=1
        elif G>=16 and yy>=HL[0]: put(hq.pop(0), 0, DR[1])
        lead.append(8*G-LA-int(yy))
    zend=2*int((yy+1)/2); info_lead=(lead,zend)
    oa=[x for k in range(8) for x in (f"v_lshlrev_b32 v{OA+2*k}, 16, v{RES+k}", f"v_and_b32 v{OA+2*k+1}, 0xffff0000, v{RES+k}")]
    spread(oa+z1_unp(0), 3, .625)
    for c in range(2):
        b=64*(c+1)
        if 'r' in XP: continue
        yw=spread([[]] if 'w' in XP else red_wr(c), b+RW, 1/WS)
        yb=b+8-LA
        while yb<yw+2: yb+=8
        ex[yb-1].append(W("lg",f"rw{c}"))
        spread(red_own(c,False), b+RW+2, 2)
        spread(red_rd(c), yb, 1); ye=spread(red_alu(c,False), max(yb+len(red_rd(c))+1,b+RW+6), 2); dx[(ye+1)|1].append(h_st(c))
        spread(z1_unp(c+1), ye+3, .5)
    dx[PX[2]].append(nst)
    if PX[0]: dx[PX[0]].append([f"s_lshl_b32 s{sT2}, s{sRHO}, 14", f"s_add_u32 s{sT2}, s{sT2}, s{sRM}", f"s_add_u32 s{sT2}, s{sT2}, s{sVB}", f"buffer_load_dword v{vPC}, v{vP8}, {srd(sWS)}, s{sT2} offen sc1"])
    if PX[1]: dx[PX[1]].append([f"s_lshl_b32 s{sT2}, s{sJ}, 7", f"buffer_load_dword v{t3}, v{t2}, {srd(sWOUT)}, s{sT2} offen"])
    assert NS==7 and W1==8
    ex[HL[1]].append(hchk(0))
    free=lambda g: 8*(g+2)-LA+2
    grp={'H':(hq,HL[0]), 'V':(vdma[:4]+[vdma[4]+vdma[5]],max(free(18),HL[1]+1)), 'W8':([wo_dma(k) for k in range(8,12)],free(17)),
         'W12':([wo_dma(k) for k in range(12,16)],free(19)), 'W16':([wo_dma(k) for k in range(16,20)],free(20)), 'J':(hld(1,H1),0)}
    for t in TQ.split()+[t for t in ('J','W16') if t not in TQ.split()]:
        for u in grp[t][0]: put(u, grp[t][1], DR[2])
    info_lead+=(yy,len(dx[192]))
    rq=[(n,r) for n in range(26) for r in rds(n)]
    for y in range(192):
        x,q=divmod(y,2); g,k=divmod(x,4); c=g//8; d=ACS[c%2]
        if q==0 and not LW: e(W("lg",f"zr{x}"))
        if q==0 and LW and x%2==0: e(W("lg",f"zr{x+1}"))
        e(f"v_mfma_f32_32x32x16_bf16 {v(d,16)}, {v(ZF+4*(y%8),4)}, {a(((k*2+q)*8+g%8)*4,4)}, {'0' if y%64==0 else v(d,16)}")
        e(dx[y])
        if x+2+LW<96: e(zrd(x+2+LW)[1:] if q else zrd(x+2+LW)[0])
        else: e([rq.pop(0)[1] for _ in range(PFN)])
        e(ex[y])
        if P2S and q==1 and x in P2S: e(ts(f"x{x}"))
    e(ts("xp2"))
    V.f("ZF","vZL","AC1","RES",*[f"za{k}" for k in range(8)])
    H2=V.a("H2",24); HH.append(H2); WR=V.a("WR",8); vO=V.a("vO")
    rest=dx[192]; assert not ex[192]
    fin=[f"v_and_b32 v{t1}, 1, v{vG}", f"v_lshlrev_b32 v{t1}, 5, v{t1}", f"v_lshrrev_b32 v{t2}, 1, v{vG}", f"v_lshl_add_u32 v{t1}, v{t2}, 4, v{t1}",
         f"s_lshl_b32 s{sT0}, s{sFH}, 10", f"s_add_u32 s{sT0}, s{sT0}, s{sZ}", f"s_lshl_b32 s{sT0}, s{sT0}, 3", f"s_add_u32 s{sT0}, s{sT0}, s{sJ}", f"s_lshl_b32 s{sT0}, s{sT0}, 7",
         f"v_lshlrev_b32 v{t2}, 16, v{vN}", f"v_add3_u32 v{vO}, v{t2}, v{t1}, s{sT0}"]
    tx={g:[] for g in range(-1,105)}; ty={g:[] for g in range(-1,105)}
    assert not any(isinstance(x,I) and x.tag in ("wo15","v") for x in flat(rest)), "V / w8-11 must be issued inside the loop"
    tx[TRD[0]].append(red_wr(2)); tx[TB2-3].append([f"v_add_u32 v{vPA}, {VL}, v{vPA}", I(f"ds_write_b32 v{vPA}, v{vPV}","vp")])
    ty[TB2].append([W("vm","wo15"), W("lg","vp"), "s_barrier"]+ts("xb2"))
    for k,u in enumerate(red_own(2,True)): tx[TRD[0]+1+k//2].append(u)
    ty[TRD[1]].append([W("lg","rw2"), "s_barrier"]+red_rd(2)+ts("xbr"))
    ty[TRD[2]].append(red_alu(2,True)+h_st(2)+ts("xh2st"))
    g=T1[0]
    for k,u in enumerate(rest+[wo_dma(20),wo_dma(21)]):
        if k>=len(rest): g=max(g,TRD[1]+1)
        if k==T1[2]: g=max(g,TRD[2]+1)
        tx[int(g)].append(u); g+=T1[1]
    assert g-T1[1]<T2[0] and int(g-T1[1])<TB
    for k,u in enumerate(hld(2,H2)): tx[T2[0]+int(k*T2[1])].append(u)
    ty[TB].append([W("vm","wo21"), "s_barrier"]+ts("xbb"))
    ty[47].append(hchk(1)); ty[79].append(hchk(2))
    for k,u in enumerate(fin): tx[88+k].append(u)
    rdy=lambda n: -1 if n<8 else TB2+1 if n<20 else TB+1
    lk=[]
    for g in range(-1,104):
        if g>=0: e(mms(g//4)[g%4])
        e(tx[g])
        for _ in range(RPG.get(g,2)):
            if rq and rdy(rq[0][0])<=g and rq[0][0]-g//4<TA: e(rq.pop(0)[1])
        e(ty[g])
        if rq: lk.append((208-len(rq))//2-g-1); assert lk[-1]>0
    info_lead+=(lk[::4],)
    e(ts("xg3"))
    for p in range(2):
        for k in range(4): e(f"v_cvt_pk_bf16_f32 v{WR+4*p+k}, v{OA+8*p+2*k}, v{OA+8*p+2*k+1}")
    for p in range(2):
        for k in range(2): e(f"v_permlane16_swap_b32 v{WR+4*p+k}, v{WR+4*p+2+k}")
        e(f"buffer_store_dwordx4 {v(WR+4*p,4)}, v{vO}, {srd(sOUT)}, 0 offen offset:{64*p} {OST}")
    if DIAGON:
        e(ts("xst")); e(W("vm0")); e(ts("end"))
        e(f"v_mov_b32 v{t0}, 0")
        for k in range(nts[0]): e(f"v_writelane_b32 v{t0}, s{sTS+1+k if k else sTS}, {k}")
        e("s_memrealtime s[6:7]"); e("s_waitcnt lgkmcnt(0)"); e(f"v_writelane_b32 v{t0}, s100, 40"); e(f"v_writelane_b32 v{t0}, s6, 41")
        e(f"s_lshl_b32 s{sT0}, s2, 2"); e(f"s_add_u32 s{sT0}, s{sT0}, s{sW}"); e(f"s_lshl_b32 s{sT0}, s{sT0}, 8"); e(f"s_add_u32 s{sT0}, s{sT0}, {DIAG}")
        e(f"v_lshlrev_b32 v{t1}, 2, v{vL}")
        e(f"buffer_store_dword v{t0}, v{t1}, {srd(sWS)}, s{sT0} offen")
    if DBG is not None:
        e("s_memrealtime s[6:7]"); e(f"s_load_dwordx2 s[{sBSP}:{sBSP+1}], s[0:1], 88"); e("s_waitcnt lgkmcnt(0)")
        e(f"s_mov_b32 s{sBSP+2}, 256"); e(f"s_mov_b32 s{sBSP+3}, 0x20000")
        e(f"v_subrev_u32 v{t0}, s{sTS}, v{t0}"); e("s_sub_u32 s6, s6, s100"); e(f"v_writelane_b32 v{t0}, s6, 3")
        e(f"s_lshl_b32 s{sT0}, s2, 2"); e(f"s_add_u32 s{sT0}, s{sT0}, s{sW}"); e(f"s_cmp_eq_u32 s{sT0}, {DBG*4}"); e(f"s_cselect_b32 s{sT0}, 0, {OOB}")
        e(f"v_subrev_u32 v{t1}, 12, v{t1}"); e(f"v_min_u32 v{t1}, {OOB}, v{t1}")
        e(f"buffer_store_dword v{t0}, v{t1}, {srd(sBSP)}, s{sT0} offen")
    e("L_end:"); e("s_endpgm")
    for x in SLOW: e(Raw(x.text if isinstance(x,I) else x))
    st=St(); out=[]; run(C,st,out)
    ref=open("stub.txt").read()
    head=ref[:ref.index(NAME+":")].replace("grid=(4096,1,1) block=(256,1,1) lds=0","grid=(256,1,1) block=(256,1,1) lds=163840")
    tail=ref[ref.index(".section .rodata"):].replace("next_free_vgpr 256","next_free_vgpr 512")
    body="\n".join(x if x.endswith(":") else "    "+x for x in out)
    info=dict(n=len(out), maxvm=st.maxvm, nops=st.nops, peak=V.peak, lead=info_lead, ts=tsn)
    return head+NAME+":\n"+body+"\n"+tail, info

if __name__=="__main__":
    kw={}
    for x in sys.argv[2:]:
        k,val=x.split("="); kw[k]=eval(val)
    s,info=gen(**kw); open(sys.argv[1],"w").write(s); print(info)
```

```python
import sys, struct, math
from fw import *
NAME="parallel_sum__spectral_fnet__mixer_gmlp__prompt_kernel"
def fl(x): return "0x%08x" % struct.unpack("<I", struct.pack("<f", x))[0]
F2=0x1000; F3=0x80000; STATS=0x40000; Z2N=0x100000; VB=0x400000; VP=65536+256; HB=0x700000; DIAG=0xA00000; WSSZ=0xB00000
OOB=0x7ff00000; SENT=0x7f817f81
WB=0; XB=73728; STG=73728; STGW=21760; RED=114688; VL=65536; TRB=114688
sX,sWIN,sWSP,sWOUT,sOUT,sWS,sBSP = 8,12,16,20,24,28,32
sI,sJ,sW,sSH,sFH,sF0,sNOCT,sNON,sR,sXM,sWM,sT0,sT1,sT2,sT3,sSIG,sCNT,sSTM,sRM,sZ = range(36,56)
sN1,sN2,sN3,sFF,sHM = 56,57,58,59,60
sMA,sMB = 62,64
sROT,sKX,sKW = 3,4,5
sTS=66; sSC=92
def srd(b): return f"s[{b}:{b+3}]"
def v(b,k=1): return f"v{b}" if k==1 else f"v[{b}:{b+k-1}]"
def a(b,k=1): return f"a{b}" if k==1 else f"a[{b}:{b+k-1}]"
def f0(j): return 88*j - (8 if j==7 else 0)

def gen(VF=1, Z6=1, CR=1, RI=(), QN=8, SW='', SWN=(0,99), TI='', TK={}, TCN='', MAPB=2, NT="", DIAGON=False, SPIN=20000, PF=2, PRE=4, DBG=None, ROT=(1,4,0,1), NS=7, NP=7, GAP=(0,0,0), RW=1, FX=(105,175), PX=(0,0,69), VR=.5, FN=5, PN=15, WL=1, CN=4, P2S=False, IST=False, IFR=1.0, DEP=4, SB='w10', SC0='w11', SC='h0 w12 h1 h2 s1 s2', SD='w13 h3 h4 r0 h5 p1', SD2='h6 r1', SE='h7', SF='h8 r2 | w14 w15 | h9 h10 r3 h11 h12 r4 p2', SG='h13 h14 r5 h15 c2 z0', SG2='r6', FK=7, FA=4, TQ='H W8 W12 V J', TA=8, TB2=20, TB=63, T1=(2,2,0), T2=(48,1), TRD=(1,7,11), PFN=4, RPG={-1:0,0:0}, HL=(110,171), SK=(5,), OST='nt', SPL=1, SS='z1 z2 r7 z3 z4 z5 z6', SFR=0.9, XK=(2,3), HS=None, HN=(3,4,3,3,4,3,3,3), XW=(2,17,2,12), TS=None, WM=4, WS=1, XP='', W1=6, DR=(2,2,2), LW=1, XSP=0, SPM=1, RF=(0,2), SLK=(3,3), RX=(-1,2,-1), GS=(0,1.), FS=1., BARS=(0,1,2,3,4,5,6,7)):
    V=Alloc(256); C=[]; e=C.append
    nts=[0]; tsn=[]; SLOW=[]
    def ts(name):
        if not DIAGON or (TS and name not in TS.split() and (name[0]!='x' or ('xB' in TS and name[1]!='a') or 'x0' in TS)): return []
        if name[0]=='x':
            k=nts[0]; nts[0]+=1; tsn.append(name); assert k<25
            return [Raw(f"s_getreg_b32 s{sTS+1+k}, hwreg(HW_REG_SHADER_CYCLES)")] if 0 else [Raw(f"s_mov_b32 s{sTS+1+k}, s6"), Raw("s_memtime s[6:7]")]
        k=nts[0]; nts[0]+=1; tsn.append(name); assert k<25
        return [W("lg0"), f"s_memtime s[6:7]", "s_waitcnt lgkmcnt(0)", f"s_mov_b32 s{sTS+1+k}, s6"]
    V.at("tid",0,1)
    XF=V.at("XF",128,128)
    e("s_cmp_ge_u32 s2, 256"); e("s_cbranch_scc1 L_end")
    for s,o in ((sX,0),(sWIN,48),(sWS,96),(sWSP,56),(sBSP,64),(sWOUT,72),(sOUT,80)):
        e(f"s_load_dwordx2 s[{s}:{s+1}], s[0:1], {o}")
    if DIAGON:
        e(f"s_memtime s[{sTS}:{sTS+1}]"); nts[0]=1; tsn.append("start")
        e("s_memrealtime s[100:101]")
    vL=V.a("L"); vN=V.a("n"); vG=V.a("g"); vL16=V.a("L16")
    t0=V.a("t0",2); t1=t0+1; t2=V.a("t2",2); t3=t2+1; t4=V.a("t4",2); t5=t4+1; t6=V.a("t6",2); t7=t6+1
    pf=[f"s_getpc_b64 s[6:7]", "L_pc:", f"s_lshr_b32 s{sT3}, s2, 3", f"s_mul_i32 s{sT3}, s{sT3}, 1280", f"v_lshrrev_b32 v{t6}, 4, v0", f"v_min_u32 v{t6}, 9, v{t6}", f"v_lshl_add_u32 v{t6}, v{t6}, 7, s{sT3}", f"v_min_u32 v{t6}, L_end-L_pc, v{t6}", f"global_load_dword v{t7}, v{t6}, s[6:7]"]
    if PF==2: e(pf)
    if PF==3:
        e(["s_cmp_ge_u32 s2, 16", "s_cbranch_scc1 L_npf", f"s_getpc_b64 s[6:7]", "L_pc:", f"v_lshlrev_b32 v{t6}, 7, v0", f"v_min_u32 v{t6}, L_end-L_pc, v{t6}", Raw(f"global_load_dword v{t7}, v{t6}, s[6:7]"), "L_npf:"])
    if PF==4:
        e([f"s_getpc_b64 s[6:7]", "L_pc:", f"s_bfe_u32 s{sT3}, s2, 0x20003", f"s_lshl_b32 s{sT3}, s{sT3}, 13", f"v_lshrrev_b32 v{t6}, 2, v0", f"v_lshl_add_u32 v{t6}, v{t6}, 7, s{sT3}", f"v_min_u32 v{t6}, L_end-L_pc, v{t6}", f"global_load_dword v{t7}, v{t6}, s[6:7]"])
    e(f"v_lshrrev_b32 v{t0}, 6, v0")
    e(f"v_and_b32 v{vL}, 63, v0")
    e(f"v_readfirstlane_b32 s{sW}, v{t0}")
    if MAPB==2:
        e(f"s_bfe_u32 s{sT0}, s2, 0x20001"); e(f"s_lshl_b32 s{sT0}, s{sT0}, 3")
        e(f"s_lshr_b32 s{sT1}, s2, 5"); e(f"s_add_u32 s{sI}, s{sT0}, s{sT1}")
        e(f"s_and_b32 s{sT0}, s2, 1"); e(f"s_lshl_b32 s{sT0}, s{sT0}, 2")
        e(f"s_bfe_u32 s{sT1}, s2, 0x20003"); e(f"s_add_u32 s{sJ}, s{sT0}, s{sT1}")
    else:
        e(f"s_and_b32 s{sT0}, s2, 7"); e(f"s_lshl_b32 s{sT0}, s{sT0}, 2")
        e(f"s_lshr_b32 s{sT1}, s2, 6"); e(f"s_add_u32 s{sI}, s{sT0}, s{sT1}")
        e(f"s_bfe_u32 s{sJ}, s2, 0x30003")
    e(f"v_and_b32 v{vN}, 15, v0"); e(f"v_bfe_u32 v{vG}, v0, 4, 2"); e(f"v_lshlrev_b32 v{vL16}, 4, v{vL}")
    e(f"s_lshr_b32 s{sSH}, s{sW}, 1"); e(f"s_and_b32 s{sFH}, s{sW}, 1")
    e(f"s_mul_i32 s{sF0}, s{sJ}, 88"); e(f"s_cmp_eq_u32 s{sJ}, 7"); e(f"s_cselect_b32 s{sT0}, 8, 0"); e(f"s_sub_u32 s{sF0}, s{sF0}, s{sT0}")
    e(f"s_cmp_lt_u32 s{sJ}, 6"); e(f"s_cselect_b32 s{sNOCT}, 11, 10")
    for s,n in ((sX,2097152),(sWIN,512*2752),(sWS,WSSZ),(sWSP,8388608),(sBSP,4096),(sWOUT,688*1024),(sOUT,2097152)):
        e(f"s_mov_b32 s{s+2}, {n}"); e(f"s_mov_b32 s{s+3}, 0x20000")
    if isinstance(ROT,tuple):
        si,mi,mj,mx=ROT
        e(f"s_lshr_b32 s{sROT}, s{sI}, {si}"); e(f"s_mul_i32 s{sROT}, s{sROT}, {mi}")
        if mj: e(f"s_mul_i32 s{sT0}, s{sJ}, {mj}"); e(f"s_add_u32 s{sROT}, s{sROT}, s{sT0}")
        if mx: e(f"s_mul_i32 s{sT0}, s2, {mx}"); e(f"s_add_u32 s{sROT}, s{sROT}, s{sT0}")
        e(f"s_and_b32 s{sROT}, s{sROT}, 7")
    elif ROT:
        if MAPB==2: e(f"s_lshl_b32 s{sROT}, s{sJ}, 1"); e(f"s_add_u32 s{sROT}, s{sROT}, s{sI}")
        else: e(f"s_lshl_b32 s{sROT}, s{sI}, 1"); e(f"s_add_u32 s{sROT}, s{sROT}, s{sJ}")
        e(f"s_and_b32 s{sROT}, s{sROT}, 7")
    else: e(f"s_mov_b32 s{sROT}, 0")
    xd0=V.a("xd0"); xd1=V.a("xd1")
    e(f"s_lshl_b32 s{sT0}, s{sFH}, 10"); e(f"s_lshl_b32 s{sT1}, s{sSH}, 5"); e(f"s_add_u32 s{sZ}, s{sT1}, s{sI}")
    e(f"s_add_u32 s{sT0}, s{sT0}, s{sZ}"); e(f"s_lshl_b32 s{sT2}, s{sT0}, 10")
    e(f"v_lshrrev_b32 v{t0}, 3, v{vL}"); e(f"v_and_b32 v{t1}, 7, v{vL}"); e(f"v_xor_b32 v{t1}, v{t1}, v{vG}")
    e(f"v_lshlrev_b32 v{t1}, 4, v{t1}"); e(f"v_lshl_add_u32 v{t1}, v{t0}, 16, v{t1}"); e(f"v_add_u32 v{xd0}, s{sT2}, v{t1}")
    e(f"v_xor_b32 v{xd1}, 64, v{xd0}"); e(f"v_add_u32 v{xd1}, {8*65536-1024}, v{xd1}")
    e(f"s_lshl_b32 s{sXM}, s{sW}, 11"); e(f"s_add_u32 s{sXM}, s{sXM}, {XB}")
    e(f"s_mul_i32 s{sWM}, s{sW}, 3072")
    wd=[V.a(f"wd{q}") for q in range(3)]
    e(f"s_mul_i32 s{sT0}, s{sW}, {16*2752}"); e(f"s_lshl_b32 s{sT1}, s{sF0}, 1"); e(f"s_add_u32 s{sT0}, s{sT0}, s{sT1}"); e(f"s_add_u32 s{sT0}, s{sT0}, 1376")
    e(f"s_lshl_b32 s{sKX}, s{sROT}, 7")
    e(f"v_mov_b32 v{t4}, {OOB}")
    for q in range(3):
        if q: e(f"v_add_u32 v{t0}, {64*q}, v{vL}")
        idx = t0 if q else vL
        e(f"v_mul_u32_u24 v{t1}, 171, v{idx}"); e(f"v_lshrrev_b32 v{t1}, 11, v{t1}")
        e(f"v_mad_i32_i24 v{t2}, v{t1}, -12, v{idx}")
        if q==1:
            e(f"v_lshrrev_b32 v{t3}, 2, v{t1}"); e(f"v_and_b32 v{t3}, 2, v{t3}"); e(f"v_xor_b32 v{t2}, v{t2}, v{t3}")
        if q==2: e(f"v_xor_b32 v{t2}, 2, v{t2}")
        e(f"v_cmp_gt_u32 vcc, s{sNOCT}, v{t2}")
        e(f"v_mul_u32_u24 v{t1}, 2752, v{t1}"); e(f"v_lshl_add_u32 v{t1}, v{t2}, 4, v{t1}")
        if q: e(f"s_sub_u32 s{sT0}, s{sT0}, 1024")
        e(f"v_add_u32 v{t1}, s{sT0}, v{t1}")
        e(f"v_cndmask_b32 v{wd[q]}, v{t4}, v{t1}, vcc")
    for n in range(1,8): e(f"s_mov_b32 s{sSC+n}, {n*(524288 if SPM else 1048576)-(n%4)*1088}")
    e("s_waitcnt lgkmcnt(0)")
    e(ts("karg"))
    adv=lambda q: [f"s_add_u32 s{sKX}, s{sKX}, 128", f"s_and_b32 s{sKX}, s{sKX}, 0x380"] if q else []
    def issue_x(kk):
        return [[f"s_add_u32 m0, s{sXM}, {kk*8192}"]+adv(kk)+
                [I(f"buffer_load_dwordx4 v{xd0}, {srd(sX)}, s{sKX} offen {NT} lds", f"st{kk}")],
                I(f"buffer_load_dwordx4 v{xd1}, {srd(sX)}, s{sKX} offen offset:1024 {NT} lds", f"st{kk}")]
    def issue_w(q):
        return [([f"v_subrev_u32 v{wd[k]}, 1376, v{wd[k]}" for k in range(3)] if q==8 else [])+(adv(q) if q>=8 else [])+[f"s_add_u32 m0, s{sWM}, {WB+(q%6)*12288}", f"s_mul_i32 s{sKW}, s{sKX}, 1376"]+
                [I(f"buffer_load_dwordx4 v{wd[0]}, {srd(sWIN)}, s{sKW} offen {NT} lds", f"st{q}")],
                I(f"buffer_load_dwordx4 v{wd[1]}, {srd(sWIN)}, s{sKW} offen offset:1024 {NT} lds", f"st{q}"),
                I(f"buffer_load_dwordx4 v{wd[2]}, {srd(sWIN)}, s{sKW} offen offset:2048 {NT} lds", f"st{q}")]
    dmas=[]; vNV=V.a('vNV')
    sent=lambda c: [f"s_add_u32 s{sSC}, s{sSC}, {32768 if c else HB}", I(f"buffer_store_dwordx4 a[188:191], v{vL16}, {srd(sWS)}, s{sSC} offen sc1",f"sent{c}")]
    vT=V.a('vT')
    def touch(n):
        r=255-n; sA=61
        if n>=10:
            u,q=divmod(n-10,4); r=255-u; o=touch(u)
            return o[:8]+[f"s_add_u32 s{sA}, s{sA}, {q<<21}"]+[x.replace("0x7c0080","0x1c0080").replace(f"a{r},",f"a{247-(n-10)},") for x in o[8:]]
        if n==7: return [f"s_and_b32 s{sA}, s{sI}, 7", f"s_lshl2_add_u32 s{sA}, s{sA}, s{sW}", f"s_mul_i32 s{sA}, s{sA}, 176", f"s_add_u32 s{sA}, s{sA}, s{sJ}", f"s_lshl_b32 s{sA}, s{sA}, 7", f"v_min_u32 v{vT}, 21, v{vL}", f"v_lshl_add_u32 v{vT}, v{vT}, 10, s{sA}"]
        if n==8: return [f"buffer_load_dword v{vT}, v{vT}, {srd(sWOUT)}, 0 offen {TCN}"]
        if n==9: return touch(3)[:-1]
        if n==5: return [x.replace(srd(sX),srd(sOUT)).replace("a251","a250") for x in touch(4)]
        if n==6: return [f"v_lshlrev_b32 v{vT}, 7, v{vL}", f"buffer_load_dword a{r}, v{vT}, {srd(sBSP)}, 0 offen {TCN}"]
        if n<2: return [f"s_and_b32 s{sA}, s{sJ}, 3", f"s_lshl_b32 s{sA}, s{sA}, 1", f"s_lshr_b32 s60, s{sJ}, 2", f"s_xor_b32 s60, s60, {n}", f"s_add_u32 s{sA}, s{sA}, s60",
                        f"s_lshl3_add_u32 s{sA}, s{sFH}, s{sA}", f"s_lshl4_add_u32 s{sA}, s{sZ}, s{sA}", f"s_lshl_b32 s{sA}, s{sA}, 8",
                        f"v_lshlrev_b32 v{vT}, 18, v{vL}", f"v_lshl_add_u32 v{vT}, v{vL}, 2, v{vT}", f"v_and_b32 v{vT}, 0x7c0080, v{vT}", f"buffer_load_dword a{r}, v{vT}, {srd(sWSP)}, s{sA} offen {TCN}"]
        if n==4: return [f"s_lshl_b32 s{sA}, s{sFH}, 10", f"s_add_u32 s{sA}, s{sA}, s{sZ}", f"s_lshl3_add_u32 s{sA}, s{sA}, s{sJ}", f"s_lshl_b32 s{sA}, s{sA}, 7",
                        f"v_lshlrev_b32 v{vT}, 16, v{vN}", f"buffer_load_dword a{r}, v{vT}, {srd(sX)}, s{sA} offen {TCN}"]
        m,sr=(11,sWIN) if n==2 else (6,sWOUT)
        return [f"s_lshl2_add_u32 s{sA}, s2, s{sW}", f"s_mul_i32 s{sA}, s{sA}, {128*m}", f"v_min_u32 v{vT}, {m-1}, v{vL}", f"v_lshl_add_u32 v{vT}, v{vT}, 7, s{sA}", f"buffer_load_dword a{r}, v{vT}, {srd(sr)}, 0 offen {TCN}"]
    def stouch(c):
        ld=lambda b,o: Raw(f"s_load_dword s56, s[{b}:{b+1}], s61 offset:{o}")
        st=128 if c.islower() else 64
        if c in 'xX':
            o=[f"s_lshl2_add_u32 s60, s{sJ}, s{sW}", "s_lshl_b32 s60, s60, 6", f"s_add_u32 s60, s60, s{sI}"]
            for d in (4,6): o+=[f"s_add_u32 s61, s{sROT}, {d}", "s_and_b32 s61, s61, 6", "s_lshl3_add_u32 s61, s60, s61", "s_lshl_b32 s61, s61, 7"]+[ld(sX,r*32768+k) for r in range(2) for k in range(0,256,st)]
            return o
        if c in 'zZ': return [f"s_lshl1_add_u32 s60, s2, s{sSH}", "s_mul_i32 s60, s60, 2752", f"s_mul_i32 s61, s{sFH}, 704", "s_add_u32 s61, s61, s60"]+[ld(sWIN,k) for k in range(0,704,st)]
        if c in 'uU': return [f"s_lshl2_add_u32 s60, s2, s{sW}", "s_min_u32 s60, s60, 916", "s_mul_i32 s61, s60, 768"]+[ld(sWOUT,k) for k in range(0,768,st)]
        if c=='b': return ["s_lshr_b32 s60, s2, 3", f"s_lshl2_add_u32 s60, s60, s{sW}", "s_and_b32 s60, s60, 63", "s_lshl_b32 s61, s60, 6", ld(sBSP,0)]
        if c in 'pP':
            return [f"s_lshl2_add_u32 s60, s2, s{sW}", "s_lshl_b32 s61, s60, 13"]+[ld(sWSP,r*2048+k+q) for r in range(4) for q in (0,512) for k in range(0,128,st)]
    sq_=[x for c in SW for x in stouch(c)]
    def stake(p):
        o=[]; n=SWN[p] if p<len(SWN) else 0
        while sq_ and n: o.append(sq_.pop(0)); n-=isinstance(o[-1],Raw)
        return [o] if o else []
    e(stake(0))
    for kk in range(PRE):
        dmas+=issue_x(kk)+issue_w(kk)
        dmas+=stake(kk+1)
        dmas+=[touch(int(t[1:].split('@')[0])) for t in TI.split() if int((t+'@').split('@')[1] or PRE-1)==kk]
        if IST: dmas.append(ts(f"d{kk}"))
        if kk==PRE-1: dmas.append(f"buffer_load_dword v{vNV}, off, {srd(sWS)}, 0 sc1")
        if kk==0 and PF==1: dmas.append(pf)
    C0=C; C=[]; e=C.append
    xa=[V.a("xa0"),V.a("xa1")]; wa=[V.a("wa0"),V.a("wa1")]
    e(f"v_lshrrev_b32 v{t0}, 1, v{vN}"); e(f"v_xor_b32 v{t0}, v{t0}, v{vG}"); e(f"v_lshlrev_b32 v{t0}, 4, v{t0}")
    e(f"v_lshl_add_u32 v{t0}, v{vN}, 7, v{t0}")
    e(f"s_lshl_b32 s{sT0}, s{sSH}, 12"); e(f"s_add_u32 s{sT0}, s{sT0}, {XB}")
    sPI=sSIG
    e(f"s_xor_b32 s{sPI}, s{sSH}, s{sFH}"); e(f"s_lshl_b32 s{sT1}, s{sPI}, 6"); e(f"v_xad_u32 v{xa[0]}, v{t0}, s{sT1}, 0")
    e(f"v_add_u32 v{xa[0]}, s{sT0}, v{xa[0]}"); e(f"v_xor_b32 v{xa[1]}, 64, v{xa[0]}")
    e(f"v_lshrrev_b32 v{t0}, 2, v{vN}"); e(f"v_lshl_add_u32 v{t0}, v{vG}, 3, v{t0}"); e(f"v_mul_u32_u24 v{t0}, 192, v{t0}")
    e(f"v_and_b32 v{t1}, 1, v{vG}"); e(f"v_xor_b32 v{t1}, s{sFH}, v{t1}"); e(f"v_lshl_add_u32 v{t0}, v{t1}, 5, v{t0}")
    e(f"v_and_b32 v{t1}, 3, v{vL}"); e(f"v_lshl_add_u32 v{t0}, v{t1}, 3, v{t0}")
    e(f"s_mul_i32 s{sT0}, s{sPI}, 6144"); e(f"s_sub_u32 s{sT1}, 6144, s{sT0}"); e(f"v_add_u32 v{wa[0]}, s{sT0}, v{t0}"); e(f"v_add_u32 v{wa[1]}, s{sT1}, v{t0}")
    e(f"v_and_b32 v{t0}, 1, v{vL}"); e(f"v_cmp_ne_u32 s[{sMA}:{sMA+1}], 0, v{t0}")
    e(f"v_and_b32 v{t0}, 2, v{vL}"); e(f"v_cmp_ne_u32 s[{sMB}:{sMB+1}], 0, v{t0}")
    e(f"s_mov_b32 s{sCNT}, {SENT}")
    for k in range(4): e(f"v_accvgpr_write_b32 a{188+k}, s{sCNT}")
    e(f"s_mul_i32 s{sCNT}, s{sI}, 12"); e(f"s_add_u32 s{sCNT}, s{sCNT}, s{sW}"); e(f"s_lshl3_add_u32 s{sCNT}, s{sCNT}, s{sJ}"); e(f"s_lshl_b32 s{sSC}, s{sCNT}, 10")
    ONES=V.a("ONES",4)
    for k in range(4): e(f"v_mov_b32 v{ONES+k}, 0x3f803f80")
    SP=V.a("SP",52)
    aFC,aFS,aAC,aAS=192,208,224,232
    e(f"s_and_b32 s{sT0}, s{sJ}, 1"); e(f"s_lshl_b32 s{sT0}, s{sT0}, 1"); e(f"s_add_u32 s{sR}, s{sT0}, s{sFH}")
    e(f"s_lshr_b32 s{sT0}, s{sJ}, 1"); e(f"s_lshl_b32 s{sT0}, s{sT0}, 6"); e(f"s_add_u32 s{sT0}, s{sT0}, s{sR}")
    e(f"v_lshl_add_u32 v{t0}, v{vN}, 2, s{sT0}")
    e(f"v_subrev_u32 v{t0}, 1, v{t0}"); e(f"v_and_b32 v{t0}, 0xff, v{t0}"); e(f"v_add_u32 v{t0}, 1, v{t0}")
    e(f"v_cvt_f32_u32 v{t0}, v{t0}"); e(f"v_mul_f32 v{t0}, {fl(-1/512)}, v{t0}")
    e(f"s_lshl_b32 s{sT0}, s{sROT}, 6"); e(f"v_lshl_add_u32 v{t1}, v{vG}, 3, s{sT0}"); e(f"v_cvt_f32_u32 v{t1}, v{t1}"); e(f"v_mul_f32 v{t1}, v{t1}, v{t0}"); e(f"v_fract_f32 v{t1}, v{t1}")
    def sincos(step, base, k0, dc, ds, u):
        b=SP+8*(u%2)
        return [f"v_fmamk_f32 v{b}, v{step}, {fl(k0)}, v{base}", f"v_add_f32 v{b+1}, v{b}, v{step}",
                f"v_cos_f32 v{b+2}, v{b}", f"v_cos_f32 v{b+3}, v{b+1}", f"v_sin_f32 v{b+4}, v{b}", f"v_sin_f32 v{b+5}, v{b+1}",
                f"v_cvt_pk_bf16_f32 v{b+2}, v{b+2}, v{b+3}", f"v_accvgpr_write_b32 a{dc}, v{b+2}",
                f"v_cvt_pk_bf16_f32 v{b+4}, v{b+4}, v{b+5}", f"v_accvgpr_write_b32 a{ds}, v{b+4}"]
    e(f"s_mul_i32 s{sT0}, s{sPI}, {fl(32.)}"); e(f"v_fma_f32 v{t2}, v{t0}, s{sT0}, v{t1}"); e(f"v_fma_f32 v{t3}, -v{t0}, s{sT0}, v{t1}")
    if CR:
        R1=SP+40; R2=SP+42
        e(f"v_fmamk_f32 v{R1}, v{t0}, {fl(32.)}, v{t3}"); e(f"v_mul_f32 v{R2}, {fl(64.)}, v{t0}"); e(f"v_sub_f32 v{R1}, v{R1}, v{t2}")
        for R in (R2,R1): e(f"v_sin_f32 v{R+1}, v{R}"); e(f"v_cos_f32 v{R}, v{R}")
        rot=lambda d,b,R: [f"v_pk_mul_f32 {v(d,2)}, {v(b+2,2)}, {v(R,2)} op_sel:[0,1] op_sel_hi:[1,1]", f"v_pk_mul_f32 {v(d+2,2)}, {v(b,2)}, {v(R,2)} op_sel:[0,1] op_sel_hi:[1,1]",
                           f"v_pk_fma_f32 {v(d,2)}, {v(b,2)}, {v(R,2)}, {v(d,2)} op_sel_hi:[1,0,1] neg_lo:[0,0,1] neg_hi:[0,0,1]", f"v_pk_fma_f32 {v(d+2,2)}, {v(b+2,2)}, {v(R,2)}, {v(d+2,2)} op_sel_hi:[1,0,1]"]
        put=lambda b,k: [f"v_cvt_pk_bf16_f32 v{b}, v{b}, v{b+1}", f"v_cvt_pk_bf16_f32 v{b+2}, v{b+2}, v{b+3}", f"v_accvgpr_write_b32 a{aFC+k}, v{b}", f"v_accvgpr_write_b32 a{aFS+k}, v{b+2}"]
        for pr in range(4):
            b=SP+8*(pr%2)+2; q=SP+16+12*(pr%2)
            e(sincos(t0,t2,2*pr,0,0,pr)[:6]); e(rot(q,b,R1)); e(rot(q+4,b,R2)); e(rot(q+8,q,R2)); e(put(b,pr)); e(put(q,4+pr)); e(put(q+4,8+pr)); e(put(q+8,12+pr))
        e(f"v_cvt_f32_u32 v{t0}, v{vN}"); e(f"v_mul_f32 v{t0}, {fl(1/32)}, v{t0}")
        e(f"v_lshlrev_b32 v{t1}, 2, v{vG}"); e(f"v_cvt_f32_u32 v{t1}, v{t1}"); e(f"v_mul_f32 v{t1}, v{t1}, v{t0}")
        e(f"v_bfe_i32 v{t2}, v{vN}, 0, 1"); e(f"v_and_b32 v{t2}, 0x80008000, v{t2}")
        for pr in range(2):
            e(sincos(t0,t1,2*pr,aAC+pr,aAS+pr,pr))
            for m,k in (("0x80000000",4),(f"v{t2}",6),("0x80000000",2)):
                for r,d in ((2,aAC),(4,aAS)): e(f"v_xor_b32 v{SP+8*pr+r}, {m}, v{SP+8*pr+r}")
                for r,d in ((2,aAC),(4,aAS)): e(f"v_accvgpr_write_b32 a{d+k+pr}, v{SP+8*pr+r}")
    else:
        for ks in range(4):
            for pr in range(4): e(sincos(t0,t2+ks%2,32*ks+2*pr,aFC+4*ks+pr,aFS+4*ks+pr,pr))
        for th in range(2):
            e(f"v_add_u32 v{t0}, {16*th}, v{vN}"); e(f"v_cvt_f32_u32 v{t0}, v{t0}"); e(f"v_mul_f32 v{t0}, {fl(1/32)}, v{t0}")
            e(f"v_lshlrev_b32 v{t1}, 2, v{vG}"); e(f"v_cvt_f32_u32 v{t1}, v{t1}"); e(f"v_mul_f32 v{t1}, v{t1}, v{t0}")
            for pr in range(4): e(sincos(t0,t1,16*(pr//2)+2*(pr%2),aAC+4*th+pr,aAS+4*th+pr,pr))
    cons=flat(C); C=C0; e=C.append
    e(dmas[0]); e(mix(cons, dmas[1:], 0, int(len(cons)*IFR)))
    e(f"s_cmp_eq_u32 s{sR}, 0"); e(f"s_cselect_b32 s{sSIG}, 1.0, -1.0")
    e(ts("init"))
    ZA=V.a("ZA",24); CS=SP; SUM=SP+12; SQ=SP+20; WF=SP+28
    def xf(ks,t): return XF+(ks*2+t)*4
    def rd_x(ks):
        kk,kp=divmod(ks,2)
        return [I(f"ds_read_b128 {v(xf(ks,t),4)}, v{xa[kp]} offset:{kk*8192+t*2048}","fr") for t in range(2)]
    def rd_w(q,kp):
        sl=q%6; b=WF+12*kp
        return [I(f"ds_read_b64_tr_b16 {v(b+4*c+2*r,2)}, v{wa[kp]} offset:{sl*12288+r*768+c*64}","fr") for c in range(3) for r in range(2)]
    def mm(d,A,B,first): return f"v_mfma_f32_16x16x32_bf16 {v(d,4)}, {A}, {B}, {'0' if first else v(d,4)}"
    EX=160768
    def att(o,k,x): o[k]=flat([o[k],x])
    def mf_z(ks,stats):
        b=WF+12*(ks%2); f=ks==0; spl=SPL&(1 if stats else 2)
        sq=lambda f: [mm(SQ+4*t, v(xf(ks,t),4), v(xf(ks,t),4), f) for t in range(2)]
        sm=lambda f: [mm(SUM+4*t, v(ONES,4), v(xf(ks,t),4), f) for t in range(2)]
        mn=lambda c: [mm(ZA+(c*2+t)*4, v(b+4*c,4), v(xf(ks,t),4), f) for t in range(2)]
        cs=lambda c,f: [mm(CS+4*c, v(b+4*c,4), v(ONES,4), f)]
        if not spl: return (sq(f)+sm(f) if stats else [])+[x for c in range(3) for x in mn(c)+cs(c,f)]
        if ks<14:
            if stats: return sq(ks==1)+sm(ks==1)+mn(0)+mn(1)+mn(2) if ks%2 else [x for c in range(3) for x in mn(c)+cs(c,f)]
            return [x for c in range(3) for x in mn(c)+(cs(c,ks<2) if (c==2)==(ks%2) else [])]
        o=mn(0)+mn(1)+mn(2); n14=13 if stats else 9
        if ks==14: o=(sq(0)+sm(0) if stats else [])+cs(0,0)+cs(1,0)+cs(2,0)+o
        sel=lambda d,q: [f"v_cndmask_b32 v{d}, v{q}, v{q+1}, s[{sMA}:{sMA+1}]", f"v_cndmask_b32 v{d+1}, v{q+2}, v{q+3}, s[{sMA}:{sMA+1}]", f"v_cndmask_b32 v{d}, v{d}, v{d+1}, s[{sMB}:{sMB+1}]"]
        vc=lambda lo,hi: [f"s_mov_b32 vcc_lo, {lo}", f"s_mov_b32 vcc_hi, {hi}"]
        x=[]
        if stats: x=vc("0x00f0000f","0xf0000f00")+sel(SQ,SQ)+sel(SQ+4,SQ+4)+[f"v_cndmask_b32 v{SUM+t}, v{SUM+4*t}, v{SQ+4*t}, vcc" for t in range(2)]+[I(f"ds_write_b64 v{t2}, {v(SUM,2)}","exw")]
        x+=vc("0xf0f0f0f0","0xf0f0f0f0")+sel(SQ,CS)+sel(SQ+2,CS+4)+[f"v_cndmask_b32 v{SQ}, v{SQ}, v{SQ+2}, vcc"]+vc("0xff00ff00","0xff00ff00")+sel(SQ+2,CS+8)+[f"v_cndmask_b32 v{SQ}, v{SQ}, v{SQ+2}, vcc", I(f"ds_write_b32 v{t3}, v{SQ}","exw")]
        g0,g1=XW[:2] if stats else XW[2:]
        for k,u in enumerate(x):
            g=g0+k*(g1-g0)//len(x)-(n14 if ks==15 else 0)
            if 0<=g<len(o): att(o,g,u)
        return o
    exad=lambda stats: [f"s_mul_i32 s{sT1}, s{sW}, 768", f"s_add_u32 s{sT1}, s{sT1}, {EX}"]+([f"v_lshl_add_u32 v{t2}, v{vL}, 3, s{sT1}"] if stats else [])+[f"s_add_u32 s{sT1}, s{sT1}, 512", f"v_lshl_add_u32 v{t3}, v{vL}, 2, s{sT1}",
                        f"s_xor_b32 s{sT1}, s{sW}, 2", f"s_mul_i32 s{sT1}, s{sT1}, 768", f"s_add_u32 s{sT1}, s{sT1}, {EX+512}", f"v_lshl_add_u32 v{t5 if stats else t2}, v{vG}, 6, s{sT1}"]+(
                        [f"s_mul_i32 s{sT1}, s{sSH}, 1536", f"s_add_u32 s{sT1}, s{sT1}, {EX}", f"v_lshrrev_b32 v{t4}, 2, v{vN}", f"v_lshl_add_u32 v{t4}, v{t4}, 4, v{vN}", f"v_lshl_add_u32 v{t4}, v{t4}, 3, s{sT1}"] if stats else [])
    exrd=lambda stats: ([f"ds_read2_b64 {v(SQ,4)}, v{t4} offset1:96", f"v_xor_b32 v{t4}, 128, v{t4}", f"ds_read2_b64 {v(SQ+4,4)}, v{t4} offset1:96"] if stats else [])+[f"ds_read_b128 {v(WF+4*c,4)}, v{t5 if stats else t2} offset:{16*c}" for c in range(3)]
    csadd=[f"v_pk_add_f32 {v(CS+2*k,2)}, {v(CS+2*k,2)}, {v(WF+2*k,2)}" for k in range(6)]
    cum=lambda stats: [sum(len(mf_z(k,stats)) for k in range(n)) for n in range(17)]
    RES=V.a("RES",8)
    pend=[]; nxt=PRE; done=[]
    def bg(spec):
        o=[]
        for t in spec.split():
            k,n=t[0],int(t[1:]); assert t not in done; done.append(t)
            if k=='w':
                assert n==nxt or f"w{n-1}" in done; o+=issue_w(n)
            elif k=='h': o+=sp_half(n)
            elif k=='r': o+=sp_read(n)
            elif k=='p': o+=poll1() if n==1 else poll2()
            elif k=='c': o+=chk2()
            elif k=='z': o+=[zdma(n,q) for q in range(4)]
            elif k=='s': assert (n==0 or f"s{n-1}" in done) and "r4" not in done; o+=[sent(n)]
            elif k=='t': o+=[touch(n)]
            elif k=='b': o+=[[f"v_and_b32 v{vBT}, 31, v{vL}", f"v_lshl_add_u32 v{vBT}, v{vBT}, 6, s{sZ}", f"v_lshlrev_b32 v{vBT}, 1, v{vBT}", f"buffer_load_ushort v{vBT}, v{vBT}, {srd(sBSP)}, 0 offen"]]
            elif k=='q':
                q,hh=divmod(n//10,2); assert "t19" not in done
                o+=[[f"s_and_b32 s60, s{sJ}, 3", f"s_lshl_b32 s60, s60, 7", f"s_add_u32 s60, s60, s{sZ}", f"s_lshl1_add_u32 s60, s60, s{sFH}", "s_lshl_b32 s60, s60, 11", f"s_xor_b32 s61, s{sXM}, {(q%2)*1024+(q//2)*256+hh*2097152+(n%2)*4194304}", "s_add_u32 s61, s61, s60"]
                    +[Raw(f"s_load_dword s7, s[{sWSP}:{sWSP+1}], s61 offset:{r*262144+c*64}") for r in range(2) for c in range(4)][:QN]]
            elif k=='n': o+=[[] for _ in range(n%100)]
        return o
    steps=[]; segs=[]; NB=cum(True); lq=[]
    for ks in range(17):
        kk,kp=divmod(ks,2); pre=[]; rd=[]
        if ks<16:
            if kp==0:
                pre=[W("vm",f"st{kk}"), "s_barrier"]
                if kk==0: pre=([Raw("s_waitcnt lgkmcnt(0)")] if SW else [])+pre+ts("st0")
                elif TS and 'xB' in TS: pre=[W("vm",f"st{kk}")]+ts(f"xa{kk}")+["s_barrier"] if 'xB1' in TS else ts(f"xa{kk}")+pre
                hi=min(kk+1+max(PRE,min(DEP,PRE+kk)), kk+5) if HS is None else HS[kk]; assert hi<=kk+6
                pend=[]
                while HN is None and nxt<hi:
                    pend+=(issue_x(nxt) if nxt<8 else [])+issue_w(nxt); nxt+=1
                for _ in range(HN[kk] if HN else 0):
                    if not lq: lq=(issue_x(nxt) if nxt<8 else [])+issue_w(nxt); nxt+=1; assert nxt<=kk+6
                    pend.append(lq.pop(0))
                    if 'B' in XP: pend[-1]=[I('s_nop 0',x.tag) if isinstance(x,I) else x for x in flat([pend[-1]])]
                assert kk==7 or nxt-bool(lq)>kk+1
                pend=flat(pend+bg(" ".join(f"s{c}" for c in range(len(SK)) if SK[c]==kk))+bg(TK.get(kk,'')))
                if kk==XK[0] and SPL&1: pend+=exad(True)
                if kk==XK[1]:
                    pend+=[f"v_lshrrev_b32 v{t0}, 1, v{vG}", f"v_lshrrev_b32 v{t1}, 1, v{vN}", f"v_xor_b32 v{t0}, v{t0}, v{t1}",
                    f"v_lshlrev_b32 v{t0}, 4, v{t0}", f"v_lshl_add_u32 v{t0}, v{vN}, 7, v{t0}", f"v_and_b32 v{t1}, 1, v{vG}",
                    f"v_lshl_add_u32 v{t0}, v{t1}, 3, v{t0}", f"s_sub_u32 s{sT0}, s{sJ}, s{sROT}", f"s_and_b32 s{sT0}, s{sT0}, 7", f"s_lshl_b32 s{sT0}, s{sT0}, 13", f"s_add_u32 s{sT0}, s{sT0}, s{sXM}", f"v_add_u32 v{t0}, s{sT0}, v{t0}",
                    f"v_xor_b32 v{t1}, 32, v{t0}", f"v_xor_b32 v{t6}, 64, v{t0}", f"v_xor_b32 v{t7}, 0x60, v{t0}"]
                if kk==7: pend+=[f"ds_read_b64 {v(RES+2*k,2)}, v{r}" for k,r in enumerate((t0,t1,t6,t7))]
                segs.append((NB[max(0,ks-1)], NB[ks+1]-1, pend))
            rd=rd_x(ks)+rd_w(kk,kp)
        if ks==16:
            assert not lq
            pre=[] if SPL&1 else [W("lg0"), W("vm","sent0"), "s_barrier"]; segs.append((NB[15], NB[16], flat(bg(SB))))
        if ks==0: e(pre); e(rd)
        else: steps.append((pre, mf_z(ks-1,True), rd, [W("lg","fr")] if ks<16 else []))
    e(gsched(steps, segs, slack=SLK[0]))
    if SPL&1: e([W("lg0"), W("vm","sent0"), "s_barrier"]+exrd(True)); assert nxt<=13 and "w13" not in done
    V.f("xd0","xd1","xa0","xa1")
    if TS and 'xB' in TS: e(ts("xa8"))
    e(ts("z2gemm"))
    vsp=V.a("vsp"); ra=[V.a(f"ra{k}") for k in range(4)]
    spinit=[f"v_xor_b32 v{t0}, v{vN}, v{vG}", f"v_lshlrev_b32 v{t0}, 4, v{t0}"]+([f"v_mul_u32_u24 v{t1}, 9, v{vG}", f"v_and_b32 v{t1}, 17, v{t1}", f"v_lshl_add_u32 v{t0}, v{t1}, 18, v{t0}"] if SPM else [f"v_lshl_add_u32 v{t0}, v{vG}, 18, v{t0}"])+[
            f"s_lshl_b32 s{sT0}, s{sZ}, 1", f"s_add_u32 s{sT0}, s{sT0}, s{sFH}", f"s_lshl_b32 s{sT0}, s{sT0}, 11", f"v_add_u32 v{vsp}, s{sT0}, v{t0}",
            f"s_mul_i32 s{sSTM}, s{sW}, {STGW}", f"s_add_u32 s{sSTM}, s{sSTM}, {STG}",
            f"v_bfe_u32 v{t0}, v{vL}, {1 if SPM else 2}, 3", f"v_mul_u32_u24 v{t0}, 1088, v{t0}"]+([f"v_lshrrev_b32 v{t1}, 3, v{vL}", f"v_bfi_b32 v{t1}, 1, v{vL}, v{t1}"] if SPM else [])+[f"v_and_b32 v{t1}, 3, v{t1 if SPM else vL}", f"v_lshl_add_u32 v{t0}, v{t1}, 8, v{t0}",
            f"v_lshl_add_u32 v{t0}, v{t1}, 4, v{t0}", f"v_lshrrev_b32 v{t1}, 5, v{vL}", f"v_lshl_add_u32 v{t0}, v{t1}, 7, v{t0}",
            f"v_add_u32 v{ra[0]}, s{sSTM}, v{t0}"]+[f"v_xor_b32 v{ra[k]}, {16*k}, v{ra[0]}" for k in range(1,4)]
    rb=[t4,t5,t6,t7]; sRX=sXM
    tab=sum(sum(((j>>b)&1)<<k for k,b in enumerate(RX) if b>=0)<<(4*j) for j in range(8))
    spinit+=[f"s_lshl_b32 s{sRX}, s{sJ}, 2", f"s_lshr_b32 s{sRX}, {tab}, s{sRX}", f"s_and_b32 s{sRX}, s{sRX}, 7"]+[x for r,m in ((sSH,RF[0]),(sFH,RF[1])) if m for x in (f"s_mul_i32 s{sT0}, s{r}, {m}", f"s_xor_b32 s{sRX}, s{sRX}, s{sT0}")]+[x for b,m in enumerate(RI) if m for x in (f"s_bfe_u32 s{sT0}, s{sI}, {0x10000+b}", f"s_mul_i32 s{sT0}, s{sT0}, {m}", f"s_xor_b32 s{sRX}, s{sRX}, s{sT0}")]+[f"s_lshl_b32 s{sRX}, s{sRX}, 8", f"v_add_u32 v{vsp}, s{sRX}, v{vsp}"]
    def sp_half(h):
        q,hh=divmod(h,2); kap,tb=divmod(q,2); o=[]
        assert h==0 or f"h{h-1}" in done
        off=lambda q: (q%2)*1024+(q//2)*256
        for k in range(4):
            n=4*hh+k
            u=[I(f"buffer_load_dwordx4 v{vsp}, {srd(sWSP)}, {f's{sSC+n}' if n else 0} offen offset:{k*1088} {NT} lds", f"sp{q}")]
            if XSP==1: u=[]
            if XSP==2: u=[I(f"buffer_load_dwordx4 v{vL16}, {srd(sWSP)}, s{sT2} offen offset:{k*1024} sc1 lds", f"sp{q}")]
            if k==0:
                if h>=5 and h%2:
                    assert f"r{(h-5)//2}" in done; u=[W("lg",f"spr{(h-5)//2}")]+u
                u=[f"s_add_u32 m0, s{sSTM}, {(h%5)*4352}"]+u
                if hh==0 and q: u=[f"v_xor_b32 v{vsp}, {off(q)^off(q-1)}, v{vsp}"]+u
            o.append(u)
        return o
    def sp_read(q):
        assert f"h{2*q+1}" in done
        h0=(2*q)%5; R=rb if h0==4 else ra
        assert h0<4 or "rb" in done
        r=[I(f"ds_read_b128 {a((q*8+x)*4,4)}, v{R[x%4]} offset:{h0*4352+(x//4)*64}", f"spr{q}") for x in range(8)]
        r[0]=[W("vm",f"sp{q}"), r[0]]
        return r
    aPL=240
    def poll1(): return [f"buffer_load_dwordx4 {a(aPL+4*k,4)}, v{vL16}, {srd(sWS)}, s{sT2} offen offset:{1024*k} sc1" for k in range(4)]
    def poll2(): return [f"buffer_load_dword v{vPC}, v{vP8}, {srd(sWS)}, s{sT2} offen sc1"]
    def slowchk(n):
        SLOW.extend([f"L_s{n}:", f"s_mov_b32 s{sCNT}, 0", f"L_l{n}:", f"buffer_load_dword v{vPC}, v{vP8}, {srd(sWS)}, s{sT2} offen sc1", "s_waitcnt vmcnt(0)",
                     f"v_cmp_ne_u32 vcc, s{sNON}, v{vPC}", f"s_cbranch_vccz L_b{n}", f"s_add_u32 s{sCNT}, s{sCNT}, 1", f"s_cmp_lt_u32 s{sCNT}, {SPIN}", f"s_cbranch_scc1 L_l{n}", f"s_branch L_b{n}"])
        return [f"v_cmp_ne_u32 vcc, s{sNON}, v{vPC}", f"s_cbranch_vccnz L_s{n}", f"L_b{n}:"]
    def chk2(): return [slowchk("s2")+["s_barrier"]+ts("s2")]
    SL=16384
    def zdma(g,o):
        if g>=24 or (g>=16 and o==3): return []
        r=[]
        if o==0: r=[f"s_add_u32 m0, s{sRM}, {(g%NS)*SL}", f"s_mov_b32 s{sKX}, {Z2N+(g%2 if 'h' in XP else g)*4096}"]
        if Z6 and g>=16 and o==2: r=[f"s_sub_u32 s{sKX}, s{sKX}, s{sN3}"]
        return r+[I(f"buffer_load_dwordx4 v{vZL}, {srd(sWS)}, s{sKX} offen offset:{o*1024} sc1 lds", f"z{g}")]
    C0=C; C=[]; e=C.append
    e(f"v_readfirstlane_b32 s{sNON}, v{vNV}")
    e(spinit)
    e(f"s_mul_i32 s{sNON}, s{sNON}, 1664525"); e(f"s_add_u32 s{sNON}, s{sNON}, 1013904223")
    e(f"s_lshr_b32 s{sN1}, s{sNON}, 8"); e(f"s_lshr_b32 s{sN2}, s{sNON}, 16"); e(f"s_lshr_b32 s{sN3}, s{sNON}, 24"); e(f"s_movk_i32 s{sFF}, 0xff")
    NM=V.a("NM",2); K1=V.a("K1",2); K0=V.a("K0",2); IR=V.a("IR",2); RS=V.a("RS",2)
    k0=-2*math.log2(math.e)*math.sqrt(2/math.pi); k1=k0*0.044715
    if SPL&1:
        for k in (1,0): e(f"v_pk_add_f32 {v(SQ+4*k,2)}, {v(SQ+4*k,2)}, {v(SQ+4*k+2,2)}")
        rSUM=lambda t: SQ+4+t; rSQ=lambda t: SQ+t
    else:
        rSUM=lambda t: SUM+4*t; rSQ=lambda t: SQ+4*t+1
        e(f"v_lshrrev_b32 v{t0}, 2, v{vN}"); e(f"v_lshl_add_u32 v{t0}, v{t0}, 4, v{vN}"); e(f"v_lshlrev_b32 v{t0}, 2, v{t0}")
        for t in range(2):
            s=SQ+4*t
            e(f"v_cndmask_b32 v{s}, v{s}, v{s+1}, s[{sMA}:{sMA+1}]"); e(f"v_cndmask_b32 v{s+2}, v{s+2}, v{s+3}, s[{sMA}:{sMA+1}]")
            e(f"v_cndmask_b32 v{s}, v{s}, v{s+2}, s[{sMB}:{sMB+1}]")
            e(f"ds_bpermute_b32 v{s+1}, v{t0}, v{s}")
    for t in range(2):
        e(f"v_mul_f32 v{NM+t}, {fl(-1/512)}, v{rSUM(t)}")
        e(f"v_mul_f32 v{t2+t}, v{NM+t}, v{NM+t}"); e(f"v_sub_f32 v{t2+t}, {fl(1e-5)}, v{t2+t}")
    for t in range(2):
        e(f"v_fmamk_f32 v{t2+t}, v{rSQ(t)}, {fl(1/512)}, v{t2+t}"); e(f"v_max_f32 v{t2+t}, {fl(1e-5)}, v{t2+t}")
    for t in range(2): e(f"v_rsq_f32 v{RS+t}, v{t2+t}")
    for t in range(2): e(f"v_sqrt_f32 v{IR+t}, v{t2+t}")
    if SPL&1: e(csadd)
    for t in range(2):
        e(f"v_mul_f32 v{K0+t}, {fl(k0)}, v{RS+t}"); e(f"v_mul_f32 v{t2+t}, v{RS+t}, v{RS+t}")
    for t in range(2):
        e(f"v_mul_f32 v{t2+t}, {fl(0.044715)}, v{t2+t}"); e(f"v_mul_f32 v{K1+t}, v{K0+t}, v{t2+t}")
    cpre=flat(C); C=C0; e=C.append
    e(mix(cpre, bg(SC0)))
    TM=SP+28
    S2=SP+40; Q2=SP+44
    def gelu(stats):
        o=[]
        for c in range(3):
            P=[(ZA+(c*2+t)*4+2*h, CS+4*c+2*h, t, TM+2*(t*2+h), h) for t in range(2) for h in range(2)]
            for z,cs,t,u,h in P: o.append(f"v_pk_fma_f32 {v(z,2)}, {v(NM,2)}, {v(cs,2)}, {v(z,2)} op_sel:[{t},0,0] op_sel_hi:[{t},1,1]")
            for z,cs,t,u,h in P: o.append(f"v_pk_mul_f32 {v(u,2)}, {v(z,2)}, {v(z,2)}")
            for z,cs,t,u,h in P: o.append(f"v_pk_fma_f32 {v(u,2)}, {v(u,2)}, {v(K1,2)}, {v(K0,2)} op_sel:[0,{t},{t}] op_sel_hi:[1,{t},{t}]")
            for z,cs,t,u,h in P: o.append(f"v_pk_mul_f32 {v(u,2)}, {v(u,2)}, {v(z,2)}")
            for z,cs,t,u,h in P: o+= [f"v_exp_f32 v{u}, v{u}", f"v_exp_f32 v{u+1}, v{u+1}"]
            for z,cs,t,u,h in P: o.append(f"v_pk_fma_f32 {v(u,2)}, {v(u,2)}, {v(IR,2)}, {v(IR,2)} op_sel:[0,{t},{t}] op_sel_hi:[1,{t},{t}]")
            for z,cs,t,u,h in P: o+= [f"v_rcp_f32 v{u}, v{u}", f"v_rcp_f32 v{u+1}, v{u+1}"]
            for z,cs,t,u,h in P: o.append(f"v_pk_mul_f32 {v(z,2)}, {v(z,2)}, {v(u,2)}")
            if stats:
                for z,cs,t,u,h in P:
                    if c==0 and h==0:
                        o.append(f"v_pk_add_f32 {v(S2+2*t,2)}, {v(z,2)}, {v(z+2,2)}"); o.append(f"v_pk_mul_f32 {v(Q2+2*t,2)}, {v(z,2)}, {v(z,2)}")
                    else:
                        if c: o.append(f"v_pk_add_f32 {v(S2+2*t,2)}, {v(S2+2*t,2)}, {v(z,2)}")
                        o.append(f"v_pk_fma_f32 {v(Q2+2*t,2)}, {v(z,2)}, {v(z,2)}, {v(Q2+2*t,2)}")
        return o
    e(mix(gelu(True), bg(SC))); done+=[f"t{n}" for n in range(20) if n!=8]
    e(f"v_add_f32 v{t0}, v{S2}, v{S2+1}"); e(f"v_add_f32 v{t2}, v{S2+2}, v{S2+3}")
    e(f"v_add_f32 v{t1}, v{Q2}, v{Q2+1}"); e(f"v_add_f32 v{t3}, v{Q2+2}, v{Q2+3}")
    e(f"v_lshlrev_b32 v{t4}, 3, v{vG}"); e(f"v_lshrrev_b32 v{t4}, v{t4}, s{sNON}")
    e(f"v_permlane32_swap_b32 v{t0}, v{t2}"); e(f"v_permlane32_swap_b32 v{t1}, v{t3}")
    e(f"v_add_f32 v{t0}, v{t0}, v{t2}"); e(f"v_add_f32 v{t1}, v{t1}, v{t3}")
    e(f"v_lshlrev_b32 v{t5}, 2, v{vG}"); e(f"v_lshl_add_u32 v{t5}, v{vN}, 4, v{t5}")
    e(f"v_permlane16_swap_b32 v{t0}, v{t1}")
    e(f"s_lshl_b32 s{sT0}, s{sI}, 1"); e(f"s_add_u32 s{sT0}, s{sT0}, s{sSH}"); e(f"s_lshl_b32 s{sT0}, s{sT0}, 12"); e(f"s_add_u32 s{sT2}, s{sT0}, {STATS}")
    e(f"s_lshl_b32 s{sT0}, s{sJ}, 1"); e(f"s_add_u32 s{sT0}, s{sT0}, s{sFH}"); e(f"s_lshl_b32 s{sT0}, s{sT0}, 8"); e(f"s_add_u32 s{sT0}, s{sT0}, s{sT2}")
    e(f"v_add_f32 v{t0}, v{t0}, v{t1}")
    e(f"v_bfi_b32 v{t0}, s{sFF}, v{t4}, v{t0}")
    e(I(f"buffer_store_dword v{t0}, v{t5}, {srd(sWS)}, s{sT0} offen sc1","stat"))
    e(ts("statpub"))
    UA=SP; RR=SP+32; TR=SP+40; TI=SP+44; TN=SP+48
    def acc(uw,ri,t): return UA+((uw*2+ri)*2+t)*4
    vVS=V.a("vVS"); vZ=V.a("vZ"); vZ2=V.a("vZ2")
    fillD=[[f"v_lshlrev_b32 v{t0}, 4, v{vG}"]+[f"ds_bpermute_b32 v{RR+4*t+r}, v{t0}, v{RS+t} offset:{4*r}" for t in range(2) for r in range(4)]]
    fillD+=[[f"v_permlane16_swap_b32 v{ZA+8*c+r}, v{ZA+8*c+4+r}" for r in range(2*h,2*h+2)] for c in range(3) for h in range(2)]
    fillD+=[[f"s_lshr_b32 s{sT0}, s{sR}, 1", f"s_bfe_u32 s{sT1}, s{sI}, 0x10002", f"s_lshl_b32 s{sT1}, s{sT1}, 1", f"s_xor_b32 s{sT0}, s{sT0}, s{sT1}", f"v_xor_b32 v{t1}, s{sT0}, v{vG}"],
            [f"v_lshlrev_b32 v{t1}, 4, v{t1}", f"v_mul_u32_u24 v{t2}, {VP}, v{vN}"],
            [f"s_lshr_b32 s{sT0}, s{sJ}, 1", f"s_lshl_b32 s{sT0}, s{sT0}, 6", f"s_add_u32 s{sT0}, s{sT0}, s{sZ}", f"s_lshl_b32 s{sT0}, s{sT0}, 2", f"s_add_u32 s{sT0}, s{sT0}, s{sR}",
             f"s_lshl_b32 s{sT0}, s{sT0}, 6", f"v_add3_u32 v{vVS}, v{t1}, v{t2}, s{sT0}"]]
    fillD+=[[f"v_lshrrev_b32 v{t1}, 5, v{vL}", f"s_lshl_b32 s{sT0}, s{sFH}, 1", f"v_add_u32 v{t1}, s{sT0}, v{t1}"],
            [f"s_bfe_u32 s{sT0}, s{sI}, 0x10001", f"v_lshl_add_u32 v{t2}, v{t1}, 1, s{sT0}", f"v_and_b32 v{t3}, 7, v{vL}"],
            [f"v_xor_b32 v{t2}, v{t2}, v{t3}", f"v_lshlrev_b32 v{t2}, 4, v{t2}"],
            [f"v_lshl_add_u32 v{t2}, v{t1}, 10, v{t2}", f"v_bfe_u32 v{t3}, v{vL}, 3, 2"],
            [f"v_mul_u32_u24 v{t3}, 98304, v{t3}", f"s_mul_i32 s{sT0}, s{sJ}, 393216", f"s_lshl_b32 s{sT1}, s{sSH}, 14", f"s_add_u32 s{sT0}, s{sT0}, s{sT1}",
             f"s_lshr_b32 s{sT1}, s{sI}, 3", f"s_lshl_b32 s{sT1}, s{sT1}, 12", f"s_add_u32 s{sT0}, s{sT0}, s{sT1}",
             f"s_and_b32 s{sT1}, s{sI}, 7", f"s_lshl_b32 s{sT1}, s{sT1}, 7", f"s_add_u32 s{sT0}, s{sT0}, s{sT1}", f"v_add3_u32 v{vZ}, v{t2}, v{t3}, s{sT0}"],
            [f"v_add_u32 v{t1}, 8, v{t1}", f"v_cmp_gt_u32 s[{sHM}:{sHM+1}], s{sNOCT}, v{t1}"],
            [f"v_mov_b32 v{t1}, {OOB}"], [f"v_cndmask_b32 v{vZ2}, v{t1}, v{vZ}, s[{sHM}:{sHM+1}]"]]
    fillD+=[f"v_mov_b32 v{t4}, s{sSIG}", f"s_mov_b32 s{sCNT}, 0"]
    bd=bg(SD); fillD=flat(mix(bd, fillD) if len(bd)>len(fillD) else mix(fillD, bd))
    fD=lambda var: gsched([([],fftv(var),[],[])], [(0,62,fillD)])
    def fftv(var):
        o=[]; seen=set()
        tab={0:[((0,0),(0,1)),((1,0),(1,1)),((0,0),(0,1)),((1,0),(1,1))],
             1:[((0,0),(0,1)),((1,1),(0,0)),((1,0),(1,1)),((0,1),(1,0))],
             3:[((0,0),(0,1)),((0,1),(1,0)),((1,0),(1,1)),((1,1),(0,0))]}[var]
        for ks in range(16):
            D,k=divmod(ks,4)
            for which,base in ((0,aFC),(1,aFS)):
                uw,ri=tab[D][which]
                for t in range(2):
                    d=acc(uw,ri,t); o.append(mm(d, v(xf(ks,t),4), a(base+4*k,4), d not in seen)); seen.add(d)
        return o
    e(f"s_cmp_eq_u32 s{sR}, 1"); e("s_cbranch_scc1 L_f1"); e(f"s_cmp_eq_u32 s{sR}, 3"); e("s_cbranch_scc1 L_f3")
    e(Var([fD(0)+["s_nop 6","s_branch L_fj"], ["L_f1:"]+fD(1)+["s_nop 6","s_branch L_fj"], ["L_f3:"]+fD(3)+["s_nop 7"]]))
    e("L_fj:")
    e(ts("fftm"))
    C0=C; C=[]; e=C.append
    for ri in range(2):
        for t in range(2):
            for h in range(2):
                u=acc(0,ri,t)+2*h; w_=acc(1,ri,t)+2*h
                e(f"v_pk_fma_f32 {v(u,2)}, {v(t4,2)}, {v(w_,2)}, {v(u,2)} op_sel_hi:[0,1,1]")
    for ri in range(2):
        for t in range(2):
            for h in range(2):
                u=acc(0,ri,t)+2*h; e(f"v_pk_mul_f32 {v(u,2)}, {v(u,2)}, {v(RR+4*t+2*h,2)}")
    for t in range(2):
        for h in range(2):
            u=acc(0,0,t)+2*h; e(f"v_cvt_pk_bf16_f32 v{TR+2*t+h}, v{u}, v{u+1}"); e(f"v_cvt_pk_bf16_f32 v{TN+2*t+h}, -v{u}, -v{u+1}")
            u=acc(0,1,t)+2*h; e(f"v_cvt_pk_bf16_f32 v{TI+2*t+h}, v{u}, v{u+1}")
    VA=SP+16
    for th in range(2):
        e(mm(VA+8*th, v(TR,4), a(aAC+4*th,4), True)); e(mm(VA+8*th+4, v(TI,4), a(aAC+4*th,4), True))
        e(mm(VA+8*th, v(TI,4), a(aAS+4*th,4), False)); e(mm(VA+8*th+4, v(TN,4), a(aAS+4*th,4), False))
    VK=SP+32
    for th in range(2):
        for r in range(4): e(f"v_cvt_pk_bf16_f32 v{VK+4*th+r}, v{VA+8*th+r}, v{VA+8*th+4+r}")
    dt=flat(C); C=C0; e=C.append
    e(mix(dt, bg(SD2)))
    for th in range(2):
        e(f"s_mov_b32 s{sT3}, {VB+th*16*VP}")
        e(I(f"buffer_store_dwordx4 {v(VK+4*th,4)}, v{vVS}, {srd(sWS)}, s{sT3} offen sc1","z2n"))
    e(ts("fft"))
    PL=SP; ZP=SP+16
    sn=[sNON,sN1,sN2,sN3]
    chk=[f"v_xor_b32 v{t0}, s{sNON}, v{PL}", f"v_xor_b32 v{t1}, s{sN1}, v{PL+1}"]
    chk+=[f"v_bitop3_b32 v{t0+k%2}, v{PL+k}, s{sn[k%4]}, v{t0+k%2} bitop3:0xbe" for k in range(2,16)]
    chk+=[f"v_bitop3_b32 v{t0}, v{t0}, v{t1}, s{sFF} bitop3:0xa8", f"v_cmp_ne_u32 vcc, 0, v{t0}"]
    assert "p1" in done
    e(W("vm","st13")); e("L_r1:"); e([f"v_accvgpr_read_b32 v{PL+k}, a{aPL+k}" for k in range(16)]); e(chk); e("s_cbranch_vccnz L_s1"); e("L_b1:")
    SLOW.extend(["L_s1:", f"s_add_u32 s{sCNT}, s{sCNT}, 1", f"s_cmp_ge_u32 s{sCNT}, {SPIN}", "s_cbranch_scc1 L_b1"]+poll1()+["s_waitcnt vmcnt(0)", "s_branch L_r1"])
    e(ts("s1"))
    C0=C; C=[]; e=C.append
    for h in range(2):
        e(f"v_pk_add_f32 {v(PL+2*h,2)}, {v(PL+2*h,2)}, {v(PL+4+2*h,2)}"); e(f"v_pk_add_f32 {v(PL+8+2*h,2)}, {v(PL+8+2*h,2)}, {v(PL+12+2*h,2)}")
    for h in range(2): e(f"v_pk_add_f32 {v(PL+2*h,2)}, {v(PL+2*h,2)}, {v(PL+8+2*h,2)}")
    e(f"v_permlane16_swap_b32 v{PL}, v{PL+2}"); e(f"v_permlane16_swap_b32 v{PL+1}, v{PL+3}")
    e(f"v_pk_add_f32 {v(PL+4,2)}, {v(PL,2)}, {v(PL+2,2)}"); e(f"v_pk_add_f32 {v(PL,2)}, {v(PL,2)}, {v(PL+2,2)}")
    e(f"v_permlane32_swap_b32 v{PL}, v{PL+4}"); e(f"v_permlane32_swap_b32 v{PL+1}, v{PL+5}")
    e(f"v_pk_add_f32 {v(PL,2)}, {v(PL,2)}, {v(PL+4,2)}")
    e(f"v_mul_f32 v{t0}, {fl(-1/688)}, v{PL}"); e(f"v_mul_f32 v{t1}, v{t0}, v{t0}"); e(f"v_sub_f32 v{t1}, {fl(1e-5)}, v{t1}")
    e(f"v_fmamk_f32 v{t1}, v{PL+1}, {fl(1/688)}, v{t1}"); e(f"v_max_f32 v{t1}, {fl(1e-5)}, v{t1}")
    e(f"v_rsq_f32 v{t2}, v{t1}"); e(f"v_mul_f32 v{t3}, v{t0}, v{t2}")
    dt=flat(C); C=C0; e=C.append
    e(mix(dt, bg(SE)))
    for c in range(3):
        for k in range(4):
            z=ZA+8*c+2*k; e(f"v_pk_fma_f32 {v(z,2)}, {v(z,2)}, {v(t2,2)}, {v(t2,2)} op_sel:[0,0,1] op_sel_hi:[1,0,1]")
        for k in range(4):
            z=ZA+8*c+2*k; e(f"v_cvt_pk_bf16_f32 v{ZP+4*c+k}, v{z}, v{z+1}")
        e(f"s_mov_b32 s{sT3}, {Z2N+c*32768}")
        e(I(f"buffer_store_dwordx4 {v(ZP+4*c,4)}, v{vZ2 if c==2 else vZ}, {srd(sWS)}, s{sT3} offen sc1","z2n"))
    e(ts("z2npub"))
    V.f("vVS","vZ","vZ2")
    vFO=V.a("vFO"); vBT=V.a("vBT")
    e(f"v_lshlrev_b32 v{t0}, 2, v0"); e(f"v_cmp_gt_u32 vcc, 32, v0"); e(f"v_mov_b32 v{t1}, {OOB}"); e(f"v_mov_b32 v{vNV}, s{sNON}"); e(f"v_cndmask_b32 v{vFO}, v{t1}, v{t0}, vcc")
    if 'b0' not in SF+SG+SG2+(SS or ''): e(bg('b0'))
    vZL=V.a("vZL"); vP8=V.a("vP8"); vPC=V.a("vPC")
    e(f"v_and_b32 v{t0}, {8 if SPM else 16}, v{vL}"); e(f"v_mul_u32_u24 v{t0}, {STGW//(8 if SPM else 16)}, v{t0}")
    for k in range(4): e(f"v_sub_u32 v{rb[k]}, v{ra[k]}, v{t0}")
    done.append("rb")
    e(f"s_lshl_b32 s{sT0}, s{sJ}, 2"); e(f"s_add_u32 s{sT0}, s{sT0}, s{sW}"); e(f"s_lshr_b32 s{sT1}, s{sRX}, 10"); e(f"s_xor_b32 s{sT1}, s{sT1}, s{sT0}"); e(f"s_mul_i32 s{sT1}, s{sT1}, 98304"); e(f"v_add_u32 v{vZL}, s{sT1}, v{vL16}")
    e(f"s_lshl_b32 s{sRM}, s{sW}, 12")
    e(f"v_and_b32 v{t0}, 7, v{vL}"); e(f"v_lshlrev_b32 v{vP8}, 7, v{t0}")
    e(f"s_lshl_b32 s{sT0}, s{sT0}, 10"); e(f"s_add_u32 s{sT2}, s{sT0}, {F2}")
    e(f"s_lshl_b32 s{sT0}, s{sJ}, 5"); e(f"s_add_u32 s{sT0}, s{sT0}, s{sI}"); e(f"s_lshl_b32 s{sT0}, s{sT0}, 7"); e(f"s_add_u32 s{sT0}, s{sT0}, {F2}")
    e("s_barrier")
    assert 4<=FA<=FK<=12
    sa,sb,sc=SF.split("|"); assert "w14" not in sa and (FA<FK or not sb.strip())
    u1=flat(bg(sa)); u2=flat(bg(sb)); u3=flat(bg(sc))
    steps=[]; NF=cum(False)
    for ks in range(17):
        kk,kp=divmod(ks,2); pre=[]; rd=[]
        if ks<16: rd=rd_w(8+kk,kp)
        if ks==FA: pre=["s_barrier"]
        if ks==FK:
            pre=[W("vm","z2n"),"s_barrier"]
            u3=[f"buffer_store_dword v{vNV}, v{vFO}, {srd(sWS)}, s{sT0} offen sc1"]+([ts("s2flag")] if DIAGON else [])+u3
        if ks==12: pre=[W("vm","st15"),"s_barrier"]
        if ks==0: e(rd)
        else: steps.append((pre, mf_z(ks-1,False), rd, [W("lg","fr")] if ks<16 else []))
    e(gsched(steps, [(0,NF[FA-1]-1,u1+(exad(False) if SPL&2 else [])), (NF[FA-1],NF[FK-1]-1,u2), (NF[FK-1],int(NF[16]*FS),u3)], slack=SLK[1]))
    if SPL&2: e([W("lg","exw"),"s_barrier"]+exrd(False))
    V.f("XF","wd0","wd1","wd2","wa0","wa1","ONES")
    e(ts("z1gemm"))
    Z1=V.a("Z1",12)
    gl=(csadd if SPL&2 else [])+gelu(False); e(mix(gl, bg(SG), int(len(gl)*GS[0]), int(len(gl)*GS[1])))
    C0=C; C=[]; e=C.append
    for c in range(3):
        for t in range(2):
            for h in range(2):
                z=ZA+(c*2+t)*4+2*h; e(f"v_cvt_pk_bf16_f32 v{Z1+4*c+2*t+h}, v{z}, v{z+1}")
    for c in range(3):
        for h in range(2): e(f"v_permlane16_swap_b32 v{Z1+4*c+h}, v{Z1+4*c+2+h}")
    dt=flat(C); C=C0; e=C.append
    e(mix(dt, bg(SG2)))
    assert all(f"r{q}" in done for q in range(7)) and "c2" in done and ("s2" in done or 's' in XP)
    V.f("vT","ZA","SP","NM","K1","K0","IR","RS","vsp","ra0","ra1","ra2","ra3")
    za=[V.a(f"za{k}") for k in range(8)]; vRW=V.a("vRW"); vRR=V.a("vRR"); vH=V.a("vH"); vH2=V.a("vH2")
    e(ts("z1done"))
    C0=C; C=[]; e=C.append
    e(f"v_and_b32 v{t0}, 1, v{vG}"); e(f"v_xor_b32 v{t0}, s{sFH}, v{t0}"); e(f"v_and_b32 v{t1}, 1, v{vL}"); e(f"v_lshl_add_u32 v{t0}, v{t0}, 1, v{t1}")
    e(f"v_mul_u32_u24 v{t0}, {1024+32}, v{t0}")
    e(f"v_lshrrev_b32 v{t1}, 2, v{vN}"); e(f"v_lshl_add_u32 v{t0}, v{t1}, 7, v{t0}")
    e(f"v_lshrrev_b32 v{t1}, 3, v{vN}"); e(f"v_lshrrev_b32 v{t2}, 1, v{vG}"); e(f"v_xor_b32 v{t1}, v{t1}, v{t2}"); e(f"v_lshl_add_u32 v{t0}, v{t1}, 4, v{t0}")
    e(f"v_bfe_u32 v{t1}, v{vL}, 1, 1"); e(f"v_lshl_add_u32 v{t0}, v{t1}, 3, v{t0}")
    e(f"s_bfe_u32 s{sT0}, s{sRX}, 0x70003"); e(f"v_xor_b32 v{t0}, s{sT0}, v{t0}")
    e(f"v_lshl_add_u32 v{za[0]}, s{sFH}, 13, v{t0}")
    for k in range(1,4): e(f"v_xor_b32 v{za[k]}, {32*k}, v{za[0]}")
    for k in range(4): e(f"v_add_u32 v{za[4+k]}, {4*SL}, v{za[k]}")
    e(f"s_lshl_b32 s{sT0}, s{sW}, 11"); e(f"s_add_u32 s{sT0}, s{sT0}, {RED}"); e(f"v_mad_u32_u24 v{vRR}, v{vL}, {4*WM}, s{sT0}")
    e(f"v_xor_b32 v{vRW}, 2048, v{vRR}")
    e(f"v_and_b32 v{t0}, 1, v{vG}"); e(f"v_lshlrev_b32 v{t0}, 13, v{t0}"); e(f"v_lshl_add_u32 v{t0}, v{vN}, 4, v{t0}")
    e(f"v_lshrrev_b32 v{t1}, 1, v{vG}"); e(f"v_lshl_add_u32 v{t0}, v{t1}, 8, v{t0}")
    e(f"s_mul_i32 s{sT0}, s{sI}, 98304"); e(f"s_lshl_b32 s{sT1}, s{sSH}, 14"); e(f"s_add_u32 s{sT0}, s{sT0}, s{sT1}"); e(f"s_lshl_b32 s{sT1}, s{sFH}, 9"); e(f"s_add_u32 s{sT0}, s{sT0}, s{sT1}")
    e(f"s_lshl_b32 s{sT1}, s{sJ}, 10"); e(f"s_add_u32 s{sT1}, s{sT1}, s{sT0}"); e(f"v_add_u32 v{vH}, s{sT1}, v{t0}")
    e(f"s_mul_i32 s{sT1}, s{sJ}, 768"); e(f"s_min_u32 s{sT1}, s{sT1}, {20*256}"); e(f"s_add_u32 s{sT1}, s{sT1}, s{sT0}"); e(f"v_add_u32 v{t0}, s{sT1}, v{t0}")
    e(f"v_mov_b32 v{t1}, {OOB}"); e(f"v_cndmask_b32 v{vH2}, v{t1}, v{t0}, s[{sHM}:{sHM+1}]")
    AC=V.a("AC0",16); AC1=V.a("AC1",16); ACS=[AC,AC1]; ZF=V.a("ZF",32); RD=V.a("RD",8); HP=V.a("HP",4); HT=V.a("HT",8); BZ=V.a("BZ",8)
    vWO=V.a("vWO"); wo=[[V.a(f"wo{r}{p}") for p in range(4)] for r in range(2)]
    e(f"v_lshrrev_b32 v{t0}, 3, v{vL}"); e(f"v_and_b32 v{t1}, 2, v{t0}"); e(f"v_and_b32 v{t2}, 7, v{vL}")
    e(f"s_lshl_b32 s{sT0}, s{sFH}, 2"); e(f"v_bitop3_b32 v{t1}, v{t1}, v{t2}, s{sT0} bitop3:0x96")
    e(f"v_lshlrev_b32 v{t1}, 4, v{t1}"); e(f"v_lshl_add_u32 v{t1}, v{t0}, 10, v{t1}")
    e(f"s_lshl_b32 s{sT0}, s{sW}, 6"); e(f"s_add_u32 s{sT0}, s{sT0}, s{sJ}"); e(f"s_lshl_b32 s{sT0}, s{sT0}, 7"); e(f"v_add_u32 v{vWO}, s{sT0}, v{t1}")
    if 'c' in XP: e(f"s_mul_i32 s{sT0}, s{sJ}, 86"); e(f"s_add_u32 s{sT0}, s{sT0}, s{sW}"); e(f"s_lshl_b32 s{sT0}, s{sT0}, 10"); e(f"v_add_u32 v{vWO}, s{sT0}, v{vL16}")
    e(f"v_lshlrev_b32 v{t0}, 12, v{vG}"); e(f"v_lshrrev_b32 v{t1}, 2, v{vN}"); e(f"v_lshl_add_u32 v{t0}, v{t1}, 7, v{t0}")
    e(f"v_and_b32 v{t1}, 3, v{vL}"); e(f"v_lshl_add_u32 v{t0}, v{t1}, 3, v{t0}"); e(f"v_lshrrev_b32 v{t1}, 3, v{vN}"); e(f"v_lshl_add_u32 v{t0}, v{t1}, 5, v{t0}")
    e(f"v_and_b32 v{t1}, 1, v{vG}"); e(f"v_lshl_add_u32 v{t0}, v{t1}, 6, v{t0}"); e(f"v_add_u32 v{wo[1][0]}, {2*SL}, v{t0}")
    for ct in range(1,4): e(f"v_xor_b32 v{wo[1][ct]}, {32*ct}, v{wo[1][0]}")
    for ct in range(4): e(f"v_add_u32 v{wo[0][ct]}, {4*SL}, v{wo[1][ct]}")
    TW=V.a("TW",16); H0=V.a("H0",32); H1=V.a("H1",32); OA=V.a("OA",16); va=[V.a(f"va{k}") for k in range(4)]; WR=H0
    vPA=V.a("vPA"); vPV=V.a("vPV"); vHL=V.a("vHL"); vHL5=V.a("vHL5")
    sMI,sRHO,sVB,sFP,sFS=sXM,sSTM,sWM,sN1,sN2
    e([f"s_cmp_ge_u32 s{sJ}, 4", f"s_cselect_b32 s{sMI}, -1, 0"]); e(f"s_and_b32 s{sT0}, s{sMI}, 0x80000000"); e(f"s_or_b32 s{sT0}, s{sT0}, {fl(1/2048)}")
    e(f"s_lshl_b32 s{sT1}, s{sFH}, 10"); e(f"s_add_u32 s{sT1}, s{sT1}, s{sZ}")
    e(f"v_lshl_add_u32 v{t0}, v{vN}, 6, s{sT1}"); e(f"v_cvt_f32_u32 v{t0}, v{t0}"); e(f"v_mul_f32 v{t0}, s{sT0}, v{t0}")
    e(f"v_lshlrev_b32 v{t1}, 2, v{vG}"); e(f"v_cvt_f32_u32 v{t1}, v{t1}"); e(f"v_mul_f32 v{t1}, v{t1}, v{t0}")
    for kv in range(4):
        for q in range(4):
            e(f"v_fmamk_f32 v{WR+q}, v{t0}, {fl(16*kv+q)}, v{t1}")
        for q in range(4): e(f"v_cos_f32 v{WR+4+q}, v{WR+q}"); e(f"v_sin_f32 v{WR+q}, v{WR+q}")
        for q in range(4): e(f"v_cvt_pk_bf16_f32 v{TW+4*kv+q}, v{WR+4+q}, v{WR+q}")
    if Z6: e(f"s_sub_u32 s{sN3}, 11, s{sNOCT}"); e(f"s_lshl_b32 s{sN3}, s{sN3}, 10")
    e(f"s_xor_b32 s{sT0}, s{sI}, s{sMI}"); e(f"s_sub_u32 s{sT0}, s{sT0}, s{sMI}"); e(f"s_and_b32 s{sT0}, s{sT0}, 31"); e(f"s_mul_i32 s{sVB}, s{sT0}, {VP}"); e(f"s_add_u32 s{sVB}, s{sVB}, {VB}")
    e(f"s_xor_b32 s{sRHO}, s{sJ}, s{sMI}"); e(f"s_and_b32 s{sRHO}, s{sRHO}, 3")
    e(f"v_and_b32 v{t4}, 1, v{vG}"); e(f"v_lshlrev_b32 v{t4}, {5 if VF else 1}, v{t4}"); e(f"v_lshlrev_b32 v{t5}, 10, v{vG}"); e(f"v_add_u32 v{t5}, {VL}, v{t5}")
    for ct in range(4):
        e(f"v_add_u32 v{t0}, {16*ct}, v{vN}"); e(f"v_xor_b32 v{t0}, s{sMI}, v{t0}"); e(f"v_subrev_u32 v{t0}, s{sMI}, v{t0}")
        if VF:
            e(f"v_and_b32 v{t1}, 0x12, v{t0}"); e(f"v_lshl_add_u32 v{t1}, v{t1}, 3, v{t5}"); e(f"v_and_b32 v{t2}, 1, v{t0}"); e(f"v_lshl_add_u32 v{t1}, v{t2}, 6, v{t1}")
            e(f"v_bitop3_b32 v{t2}, v{t0}, 44, v{t4} bitop3:0x6a"); e(f"v_add_u32 v{va[ct]}, v{t1}, v{t2}")
            continue
        e(f"v_bfe_u32 v{t1}, v{t0}, 4, 2"); e(f"v_bfe_u32 v{t2}, v{t0}, 1, 1"); e(f"v_bitop3_b32 v{t1}, v{t1}, v{t2}, v{t4} bitop3:0x96")
        e(f"v_lshl_add_u32 v{t1}, v{t1}, 4, v{t5}"); e(f"v_and_b32 v{t2}, 3, v{t0}"); e(f"v_lshl_add_u32 v{t1}, v{t2}, 6, v{t1}")
        e(f"v_and_b32 v{t2}, 12, v{t0}"); e(f"v_add_u32 v{va[ct]}, v{t1}, v{t2}")
    e(f"v_bfe_u32 v{t0}, v{vN}, 2, 1"); e(f"v_lshlrev_b32 v{t0}, 5, v{t0}"); e(f"v_lshl_add_u32 v{t0}, v{vN}, 8, v{t0}"); e(f"v_add_u32 v{vPA}, s{sRM}, v{t0}")
    e(f"s_mul_i32 s{sT0}, s{sI}, 12"); e(f"s_add_u32 s{sT0}, s{sT0}, s{sW}"); e(f"s_lshl_b32 s{sT0}, s{sT0}, 13"); e(f"v_add_u32 v{vHL}, s{sT0}, v{vL16}")
    e(f"v_cmp_gt_u32 vcc, 32, v{vL}"); e(f"v_mov_b32 v{t1}, {OOB}"); e(f"v_lshlrev_b32 v{t0}, 7, v{vL}"); e(f"v_cndmask_b32 v{vHL5}, v{t1}, v{vHL}, vcc"); e(f"v_cndmask_b32 v{vP8}, v{t1}, v{t0}, vcc")
    if VF:
        assert not PX[0]
        e(f"v_bfe_u32 v{t0}, v{vL}, 3, 1"); e(f"v_xor_b32 v{t0}, v{t0}, v{vL}"); e(f"v_lshlrev_b32 v{t1}, 3, v{vL}"); e(f"v_bfi_b32 v{t0}, 8, v{t1}, v{t0}"); e(f"v_lshlrev_b32 v{vP8}, 4, v{t0}")
    if PX[1]:
        e(f"s_and_b32 s{sT0}, s{sI}, 7"); e(f"s_lshl2_add_u32 s{sT0}, s{sT0}, s{sW}"); e(f"s_mul_i32 s{sT0}, s{sT0}, 22"); e(f"v_min_u32 v{t2}, 21, v{vL}"); e(f"v_add_lshl_u32 v{t2}, v{t2}, s{sT0}, 10")
    setup=C; C=C0; e=C.append
    assert NP>=5
    pro=[]
    for t in (SS or " ".join(f"z{g}" for g in range(NP) if f"z{g}" not in done)).split():
        u=bg(t)
        if t=="z4": assert "r7" in done; u[0]=[W("lg","spr7"),"s_barrier"]+u[0]
        if t=="r7": u=[u[k:k+2] for k in range(0,8,2)]
        pro+=u
    assert f"z{NP-1}" in done and f"z{NP}" not in done
    sm_=flat([pro[0], mix(setup, pro[1:], 0, int(len(setup)*SFR))]); tx_=lambda x: x.text if isinstance(x,I) else x if isinstance(x,str) else ""
    k7=[k for k,x in enumerate(sm_) if isinstance(x,I) and x.tag=="spr7"]
    assert not k7 or not any(tx_(x).split(",")[0].endswith(tuple(f" v{r}" for r in rb)) for x in sm_[:k7[-1]])
    e(sm_)
    nst=[f"s_cmp_eq_u32 s2, 0", f"s_cselect_b32 s{sT0}, 0, {OOB}", f"buffer_store_dword v{vNV}, v{vFO}, {srd(sWS)}, s{sT0} offen sc1"]
    def zrd(x):
        g,k=divmod(x,4); sl=g%NS; r_=za[k+4*(sl//4)]; of=(sl%4)*SL
        r=[I(f"ds_read_b64_tr_b16 {v(ZF+8*(x%4)+2*n,2)}, v{r_} offset:{of+(n//2)*4096+(n%2)*512}", f"zr{x}") for n in range(4)]
        if k==0: r[0]=[W("vm",f"z{g}")]+([] if 'b' in XP and g else ["s_barrier"])+[r[0]]
        return r
    def wo_lds(kap): return (8,9,3,5,6,2)[kap//4]*SL+(kap%4)*1024
    def wo_dma(kap):
        r=[f"s_add_u32 m0, s{sRM}, {wo_lds(kap)}"]
        if 'c' in XP: r.append(f"s_mov_b32 s{sT3}, {kap*4096}")
        elif kap<16:
            r.append(f"s_mov_b32 s{sT3}, {(f0(kap%8)+32*(kap//8))*1024}")
        elif kap<21:
            k=kap-16
            r+=[f"s_add_u32 s{sT3}, s{sW}, {4*k}", f"s_mul_i32 s{sT3}, s{sT3}, 43", f"s_lshr_b32 s{sT3}, s{sT3}, 7", f"s_lshl_b32 s{sT3}, s{sT3}, 16", f"s_add_u32 s{sT3}, s{sT3}, {(32*k+64)*1024}"]
        else: r.append(f"s_mov_b32 s{sT3}, {672*1024}")
        return r+[I(f"buffer_load_dwordx4 v{vWO}, {srd(sWOUT)}, s{sT3} offen {NT} lds", f"wo{kap}")]
    def red_wr(c):
        return [I(f"ds_write_b{32*WM} v{vRW}, {v(ACS[c%2]+8+WM*x,WM)} offset:{x*256*WM}", f"rw{c}") for x in range(8//WM)]
    def red_rd(c):
        if WM==1: return [f"ds_read2st64_b32 {v(RD+2*x,2)}, v{vRR} offset0:{2*x} offset1:{2*x+1}" for x in range(4)]
        return [f"ds_read_b{32*WM} {v(RD+WM*x,WM)}, v{vRR} offset:{x*256*WM}" for x in range(8//WM)]
    def red_own(c, pk):
        A=ACS[c%2]
        if pk: return [f"v_pk_fma_f32 {v(A+2*k,2)}, {v(A+2*k,2)}, {v(HT+2*k,2)}, {v(BZ+2*k,2)}" for k in range(4)]
        return [f"v_fma_f32 v{A+k}, v{A+k}, v{HT+k}, v{BZ+k}" for k in range(8)]
    def red_alu(c, pk):
        o=[]; A=ACS[c%2]
        if pk: o+=[f"v_pk_fma_f32 {v(A+2*k,2)}, {v(RD+2*k,2)}, {v(HT+2*k,2)}, {v(A+2*k,2)}" for k in range(4)]
        else: o+=[f"v_fmac_f32 v{A+k}, v{RD+k}, v{HT+k}" for k in range(8)]
        for k in range(4): o.append(f"v_cvt_pk_bf16_f32 v{HP+k}, v{A+2*k}, v{A+2*k+1}")
        return o
    def z1_unp(c):
        return [x for k in range(4) for x in (f"v_lshlrev_b32 v{HT+2*k}, 16, v{Z1+4*c+k}", f"v_and_b32 v{HT+2*k+1}, 0xffff0000, v{Z1+4*c+k}")]+([f"v_lshlrev_b32 v{vBT}, 16, v{vBT}"] if c==0 else [])+[f"v_mul_f32 v{BZ+k}, v{vBT}, v{HT+k}" for k in range(8)]
    def h_st(c):
        return [f"s_mov_b32 s{sT0}, {HB+c*32768}", I(f"buffer_store_dwordx4 {v(HP,4)}, v{vH2 if c==2 else vH}, {srd(sWS)}, s{sT0} offen sc1", f"h{c}")]
    vdma=[[f"s_lshl_b32 s{sT1}, s{sRHO}, 14", f"s_add_u32 m0, s{sRM}, {VL}", f"s_add_u32 s{sT1}, s{sT1}, s{sRM}", f"s_add_u32 s{sT1}, s{sT1}, s{sVB}",
           I(f"buffer_load_dwordx4 v{vP8 if VF else vL16}, {srd(sWS)}, s{sT1} offen sc1 lds","v")]]
    vdma+=[I(f"buffer_load_dwordx4 v{vP8 if VF else vL16}, {srd(sWS)}, s{sT1} offen offset:{1024*k} sc1 lds","v") for k in range(1,4)]
    vdma+=[[f"s_sub_u32 s{sT1}, s{sRHO}, s{sMI}", f"s_and_b32 s{sT1}, s{sT1}, 3", f"s_lshl_b32 s{sT1}, s{sT1}, 14", f"s_add_u32 s{sT1}, s{sT1}, s{sVB}"],
           [f"s_cmp_eq_u32 s{sJ}, 0", f"s_cselect_b32 s{sT1}, {OOB}, s{sT1}", f"buffer_load_dword v{vPV}, v{vPA}, {srd(sWS)}, s{sT1} offen sc1"]]
    def hld(c, dst, sKW=sKW):
        return [([f"s_mov_b32 s{sKW}, {HB+c*32768+k*1024}"] if k%4==0 else [])+[I(f"buffer_load_dwordx4 {v(dst+4*k,4)}, v{vHL5 if (c,k)==(2,5) else vHL}, {srd(sWS)}, s{sKW} offen offset:{(k%4)*1024} sc1", f"hl{c}")] for k in range(8 if c<2 else 6)]
    HH=[H0,H1]
    def wrd(kap, d):
        rg=0 if wo_lds(kap)>=6*SL else 1; ko=wo_lds(kap)-(2*SL if rg else 6*SL)
        return [f"ds_read_b64_tr_b16 {a(d+ct*4+2*r,2)}, v{wo[rg][ct]} offset:{ko+r*512}" for ct in range(4) for r in range(2)]
    def vrd(kv,d):
        if 'v' in XP: return wrd(kv,d)
        return [f"ds_read2st64_b32 {a(d+ct*4+2*r,2)}, v{va[ct]} offset0:{16*kv+2*r} offset1:{16*kv+2*r+1}" for ct in range(4) for r in range(2)]
    tst=[("w",k) for k in range(8)]+[("v",k) for k in range(4)]+[("w",k) for k in range(8,22)]
    def rds(n):
        if n>=26: return []
        ty,k=tst[n]; return vrd(k,16*(n%16)) if ty=="v" else wrd(k,16*(n%16))
    def mms(n):
        ty,k=tst[n]; B = v(TW+4*k,4) if ty=="v" else v(HH[k//8]+4*(k%8),4)
        return [mm(OA+4*ct, a(16*(n%16)+4*ct,4), B, False) for ct in range(4)]
    def hchk(c):
        H=HH[c]; n=8 if c<2 else 6; nm=f"h{c}"
        ck=[f"v_max3_i32 v{t0}, v{H}, v{H+4}, v{H+8}"]+[f"v_max3_i32 v{t0}, v{t0}, v{H+4*k}, v{H+4*k+4}" for k in range(3,n-1,2)]+[f"v_max_i32 v{t0}, v{t0}, v{H+4*n-4}", f"v_cmp_eq_u32 vcc, {SENT}, v{t0}"]
        SLOW.extend([f"L_s{nm}:", f"s_add_u32 s{sCNT}, s{sCNT}, 1", f"s_cmp_ge_u32 s{sCNT}, {SPIN}", f"s_cbranch_scc1 L_b{nm}"]+flat(hld(c,H,sT3))+["s_waitcnt vmcnt(0)", f"s_branch L_r{nm}"])
        return [f"s_mov_b32 s{sCNT}, 0", W("vm",f"hl{c}"), f"L_r{nm}:"]+ck+[f"s_cbranch_vccnz L_s{nm}", f"L_b{nm}:"]+ts(f"xck{c}")
    e(ts("p2pro"))
    e(zrd(0)); e(zrd(1))
    if LW: e(zrd(2))
    ex={y:[] for y in range(193)}; dx={y:[] for y in range(193)}
    def spread(units, y0, per, d=None):
        for k,u in enumerate(units): (ex if d is None else d)[min(192,y0+int(k/per))].append(u)
        return y0+int((len(units)-1)/per)
    yy=0.; LA=4+2*LW
    def put(u, lo, dr):
        nonlocal yy
        yy=max(yy,lo); y=2*int((yy+1e-6)/2)
        while any(g0<=y<g0+2*GAP[2] for g0 in GAP[:2]): y+=2; yy+=2
        dx[min(y,192)].append(u); yy+=dr
    for k in range(W1): put(wo_dma(k), 0, DR[0])
    lead=[]; hq=hld(0,H0)
    for G in range(NP,24):
        for o in range(4):
            if zdma(G,o): put([] if 'd' in XP else zdma(G,o), 8*(G-NS+2)-LA+2, DR[G>=16])
        if G>=16 and W1<8: put(wo_dma(W1), 0, DR[1]); W1+=1
        elif G>=16 and yy>=HL[0]: put(hq.pop(0), 0, DR[1])
        lead.append(8*G-LA-int(yy))
    zend=2*int((yy+1)/2); info_lead=(lead,zend)
    oa=[x for k in range(8) for x in (f"v_lshlrev_b32 v{OA+2*k}, 16, v{RES+k}", f"v_and_b32 v{OA+2*k+1}, 0xffff0000, v{RES+k}")]
    spread(oa+z1_unp(0), 3, .625)
    for c in range(2):
        b=64*(c+1)
        if 'r' in XP: continue
        yw=spread([[]] if 'w' in XP else red_wr(c), b+RW, 1/WS)
        yb=b+8-LA
        while yb<yw+2: yb+=8
        ex[yb-1].append(W("lg",f"rw{c}"))
        spread(red_own(c,False), b+RW+2, 2)
        spread(red_rd(c), yb, 1); ye=spread(red_alu(c,False), max(yb+len(red_rd(c))+1,b+RW+6), 2); dx[(ye+1)|1].append(h_st(c))
        spread(z1_unp(c+1), ye+3, .5)
    dx[PX[2]].append(nst)
    if PX[0]: dx[PX[0]].append([f"s_lshl_b32 s{sT2}, s{sRHO}, 14", f"s_add_u32 s{sT2}, s{sT2}, s{sRM}", f"s_add_u32 s{sT2}, s{sT2}, s{sVB}", f"buffer_load_dword v{vPC}, v{vP8}, {srd(sWS)}, s{sT2} offen sc1"])
    if PX[1]: dx[PX[1]].append([f"s_lshl_b32 s{sT2}, s{sJ}, 7", f"buffer_load_dword v{t3}, v{t2}, {srd(sWOUT)}, s{sT2} offen"])
    assert NS==7 and W1==8
    ex[HL[1]].append(hchk(0))
    free=lambda g: 8*(g+2)-LA+2
    grp={'H':(hq,HL[0]), 'V':(vdma[:4]+[vdma[4]+vdma[5]],max(free(18),HL[1]+1)), 'W8':([wo_dma(k) for k in range(8,12)],free(17)),
         'W12':([wo_dma(k) for k in range(12,16)],free(19)), 'W16':([wo_dma(k) for k in range(16,20)],free(20)), 'J':(hld(1,H1),0)}
    for t in TQ.split()+[t for t in ('J','W16') if t not in TQ.split()]:
        for u in grp[t][0]: put(u, grp[t][1], DR[2])
    info_lead+=(yy,len(dx[192]))
    rq=[(n,r) for n in range(26) for r in rds(n)]
    for y in range(192):
        x,q=divmod(y,2); g,k=divmod(x,4); c=g//8; d=ACS[c%2]
        if q==0 and not LW: e(W("lg",f"zr{x}"))
        if q==0 and LW and x%2==0: e(W("lg",f"zr{x+1}"))
        e(f"v_mfma_f32_32x32x16_bf16 {v(d,16)}, {v(ZF+4*(y%8),4)}, {a(((k*2+q)*8+g%8)*4,4)}, {'0' if y%64==0 else v(d,16)}")
        e(dx[y])
        if x+2+LW<96: e(zrd(x+2+LW)[1:] if q else zrd(x+2+LW)[0])
        else: e([rq.pop(0)[1] for _ in range(PFN)])
        e(ex[y])
        if P2S and q==1 and x in P2S: e(ts(f"x{x}"))
    e(ts("xp2"))
    V.f("ZF","vZL","AC1","RES",*[f"za{k}" for k in range(8)])
    H2=V.a("H2",24); HH.append(H2); WR=V.a("WR",8); vO=V.a("vO")
    rest=dx[192]; assert not ex[192]
    fin=[f"v_and_b32 v{t1}, 1, v{vG}", f"v_lshlrev_b32 v{t1}, 5, v{t1}", f"v_lshrrev_b32 v{t2}, 1, v{vG}", f"v_lshl_add_u32 v{t1}, v{t2}, 4, v{t1}",
         f"s_lshl_b32 s{sT0}, s{sFH}, 10", f"s_add_u32 s{sT0}, s{sT0}, s{sZ}", f"s_lshl_b32 s{sT0}, s{sT0}, 3", f"s_add_u32 s{sT0}, s{sT0}, s{sJ}", f"s_lshl_b32 s{sT0}, s{sT0}, 7",
         f"v_lshlrev_b32 v{t2}, 16, v{vN}", f"v_add3_u32 v{vO}, v{t2}, v{t1}, s{sT0}"]
    tx={g:[] for g in range(-1,105)}; ty={g:[] for g in range(-1,105)}
    assert not any(isinstance(x,I) and x.tag in ("wo15","v") for x in flat(rest)), "V / w8-11 must be issued inside the loop"
    tx[TRD[0]].append(red_wr(2)); tx[TB2-3].append([f"v_add_u32 v{vPA}, {VL}, v{vPA}", I(f"ds_write_b32 v{vPA}, v{vPV}","vp")])
    ty[TB2].append([W("vm","wo15"), W("lg","vp"), "s_barrier"]+ts("xb2"))
    for k,u in enumerate(red_own(2,True)): tx[TRD[0]+1+k//2].append(u)
    ty[TRD[1]].append([W("lg","rw2"), "s_barrier"]+red_rd(2)+ts("xbr"))
    ty[TRD[2]].append(red_alu(2,True)+h_st(2)+ts("xh2st"))
    g=T1[0]
    for k,u in enumerate(rest+[wo_dma(20),wo_dma(21)]):
        if k>=len(rest): g=max(g,TRD[1]+1)
        if k==T1[2]: g=max(g,TRD[2]+1)
        tx[int(g)].append(u); g+=T1[1]
    assert g-T1[1]<T2[0] and int(g-T1[1])<TB
    for k,u in enumerate(hld(2,H2)): tx[T2[0]+int(k*T2[1])].append(u)
    ty[TB].append([W("vm","wo21"), "s_barrier"]+ts("xbb"))
    ty[47].append(hchk(1)); ty[79].append(hchk(2))
    for k,u in enumerate(fin): tx[88+k].append(u)
    rdy=lambda n: -1 if n<8 else TB2+1 if n<20 else TB+1
    lk=[]
    for g in range(-1,104):
        if g>=0: e(mms(g//4)[g%4])
        e(tx[g])
        for _ in range(RPG.get(g,2)):
            if rq and rdy(rq[0][0])<=g and rq[0][0]-g//4<TA: e(rq.pop(0)[1])
        e(ty[g])
        if rq: lk.append((208-len(rq))//2-g-1); assert lk[-1]>0
    info_lead+=(lk[::4],)
    e(ts("xg3"))
    for p in range(2):
        for k in range(4): e(f"v_cvt_pk_bf16_f32 v{WR+4*p+k}, v{OA+8*p+2*k}, v{OA+8*p+2*k+1}")
    for p in range(2):
        for k in range(2): e(f"v_permlane16_swap_b32 v{WR+4*p+k}, v{WR+4*p+2+k}")
        e(f"buffer_store_dwordx4 {v(WR+4*p,4)}, v{vO}, {srd(sOUT)}, 0 offen offset:{64*p} {OST}")
    if DIAGON:
        e(ts("xst")); e(W("vm0")); e(ts("end"))
        e(f"v_mov_b32 v{t0}, 0")
        for k in range(nts[0]): e(f"v_writelane_b32 v{t0}, s{sTS+1+k if k else sTS}, {k}")
        e("s_memrealtime s[6:7]"); e("s_waitcnt lgkmcnt(0)"); e(f"v_writelane_b32 v{t0}, s100, 40"); e(f"v_writelane_b32 v{t0}, s6, 41")
        e(f"s_lshl_b32 s{sT0}, s2, 2"); e(f"s_add_u32 s{sT0}, s{sT0}, s{sW}"); e(f"s_lshl_b32 s{sT0}, s{sT0}, 8"); e(f"s_add_u32 s{sT0}, s{sT0}, {DIAG}")
        e(f"v_lshlrev_b32 v{t1}, 2, v{vL}")
        e(f"buffer_store_dword v{t0}, v{t1}, {srd(sWS)}, s{sT0} offen")
    if DBG is not None:
        e("s_memrealtime s[6:7]"); e(f"s_load_dwordx2 s[{sBSP}:{sBSP+1}], s[0:1], 88"); e("s_waitcnt lgkmcnt(0)")
        e(f"s_mov_b32 s{sBSP+2}, 256"); e(f"s_mov_b32 s{sBSP+3}, 0x20000")
        e(f"v_subrev_u32 v{t0}, s{sTS}, v{t0}"); e("s_sub_u32 s6, s6, s100"); e(f"v_writelane_b32 v{t0}, s6, 3")
        e(f"s_lshl_b32 s{sT0}, s2, 2"); e(f"s_add_u32 s{sT0}, s{sT0}, s{sW}"); e(f"s_cmp_eq_u32 s{sT0}, {DBG*4}"); e(f"s_cselect_b32 s{sT0}, 0, {OOB}")
        e(f"v_subrev_u32 v{t1}, 12, v{t1}"); e(f"v_min_u32 v{t1}, {OOB}, v{t1}")
        e(f"buffer_store_dword v{t0}, v{t1}, {srd(sBSP)}, s{sT0} offen")
    e("L_end:"); e("s_endpgm")
    for x in SLOW: e(Raw(x.text if isinstance(x,I) else x))
    st=St(); out=[]; run(C,st,out)
    ref=open("stub.txt").read()
    head=ref[:ref.index(NAME+":")].replace("grid=(4096,1,1) block=(256,1,1) lds=0","grid=(256,1,1) block=(256,1,1) lds=163840")
    tail=ref[ref.index(".section .rodata"):].replace("next_free_vgpr 256","next_free_vgpr 512")
    body="\n".join(x if x.endswith(":") else "    "+x for x in out)
    info=dict(n=len(out), maxvm=st.maxvm, nops=st.nops, peak=V.peak, lead=info_lead, ts=tsn)
    return head+NAME+":\n"+body+"\n"+tail, info

if __name__=="__main__":
    kw={}
    for x in sys.argv[2:]:
        k,val=x.split("="); kw[k]=eval(val)
    s,info=gen(**kw); open(sys.argv[1],"w").write(s); print(info)
```

```python
import sys, struct, math
from fw import *
NAME="parallel_sum__spectral_fnet__mixer_gmlp__prompt_kernel"
def fl(x): return "0x%08x" % struct.unpack("<I", struct.pack("<f", x))[0]
F2=0x1000; F3=0x80000; STATS=0x40000; Z2N=0x100000; VB=0x400000; VP=65536+256; HB=0x700000; DIAG=0xA00000; WSSZ=0xB00000
OOB=0x7ff00000; SENT=0x7f817f81
WB=0; XB=73728; STG=73728; STGW=21760; RED=114688; VL=65536; TRB=114688
sX,sWIN,sWSP,sWOUT,sOUT,sWS,sBSP = 8,12,16,20,24,28,32
sI,sJ,sW,sSH,sFH,sF0,sNOCT,sNON,sR,sXM,sWM,sT0,sT1,sT2,sT3,sSIG,sCNT,sSTM,sRM,sZ = range(36,56)
sN1,sN2,sN3,sFF,sHM = 56,57,58,59,60
sMA,sMB = 62,64
sROT,sKX,sKW = 3,4,5
sTS=66; sSC=92
def srd(b): return f"s[{b}:{b+3}]"
def v(b,k=1): return f"v{b}" if k==1 else f"v[{b}:{b+k-1}]"
def a(b,k=1): return f"a{b}" if k==1 else f"a[{b}:{b+k-1}]"
def f0(j): return 88*j - (8 if j==7 else 0)

def gen(XM=None, JX=0, VF=1, Z6=1, CR=1, RI=(), QN=8, SW='', SWN=(0,99), TI='', TK={}, TCN='', MAPB=2, NT="", DIAGON=False, SPIN=20000, PF=2, PRE=4, DBG=None, ROT=(1,4,0,1), NS=7, NP=7, GAP=(0,0,0), RW=1, FX=(105,175), PX=(0,0,69), VR=.5, FN=5, PN=15, WL=1, CN=4, P2S=False, IST=False, IFR=1.0, DEP=4, SB='w10', SC0='w11', SC='h0 w12 h1 h2 s1 s2', SD='w13 h3 h4 r0 h5 p1', SD2='h6 r1', SE='h7', SF='h8 r2 | w14 w15 | h9 h10 r3 h11 h12 r4 p2', SG='h13 h14 r5 h15 c2 z0', SG2='r6', FK=7, FA=4, TQ='H W8 W12 V J', TA=8, TB2=20, TB=63, T1=(2,2,0), T2=(48,1), TRD=(1,7,11), PFN=4, RPG={-1:0,0:0}, HL=(110,171), SK=(5,), OST='nt', SPL=1, SS='z1 z2 r7 z3 z4 z5 z6', SFR=0.9, XK=(2,3), HS=None, HN=(3,4,3,3,4,3,3,3), XW=(2,17,2,12), TS=None, WM=4, WS=1, XP='', W1=6, DR=(2,2,2), LW=1, XSP=0, SPM=1, RF=(0,2), SLK=(3,3), RX=(-1,2,-1), GS=(0,1.), FS=1., BARS=(0,1,2,3,4,5,6,7)):
    V=Alloc(256); C=[]; e=C.append
    nts=[0]; tsn=[]; SLOW=[]
    def ts(name):
        if not DIAGON or (TS and name not in TS.split() and (name[0]!='x' or ('xB' in TS and name[1]!='a') or 'x0' in TS)): return []
        if name[0]=='x':
            k=nts[0]; nts[0]+=1; tsn.append(name); assert k<25
            return [Raw(f"s_getreg_b32 s{sTS+1+k}, hwreg(HW_REG_SHADER_CYCLES)")] if 0 else [Raw(f"s_mov_b32 s{sTS+1+k}, s6"), Raw("s_memtime s[6:7]")]
        k=nts[0]; nts[0]+=1; tsn.append(name); assert k<25
        return [W("lg0"), f"s_memtime s[6:7]", "s_waitcnt lgkmcnt(0)", f"s_mov_b32 s{sTS+1+k}, s6"]
    V.at("tid",0,1)
    XF=V.at("XF",128,128)
    e("s_cmp_ge_u32 s2, 256"); e("s_cbranch_scc1 L_end")
    for s,o in ((sX,0),(sWIN,48),(sWS,96),(sWSP,56),(sBSP,64),(sWOUT,72),(sOUT,80)):
        e(f"s_load_dwordx2 s[{s}:{s+1}], s[0:1], {o}")
    if DIAGON:
        e(f"s_memtime s[{sTS}:{sTS+1}]"); nts[0]=1; tsn.append("start")
        e("s_memrealtime s[100:101]")
    vL=V.a("L"); vN=V.a("n"); vG=V.a("g"); vL16=V.a("L16")
    t0=V.a("t0",2); t1=t0+1; t2=V.a("t2",2); t3=t2+1; t4=V.a("t4",2); t5=t4+1; t6=V.a("t6",2); t7=t6+1
    pf=[f"s_getpc_b64 s[6:7]", "L_pc:", f"s_lshr_b32 s{sT3}, s2, 3", f"s_mul_i32 s{sT3}, s{sT3}, 1280", f"v_lshrrev_b32 v{t6}, 4, v0", f"v_min_u32 v{t6}, 9, v{t6}", f"v_lshl_add_u32 v{t6}, v{t6}, 7, s{sT3}", f"v_min_u32 v{t6}, L_end-L_pc, v{t6}", f"global_load_dword v{t7}, v{t6}, s[6:7]"]
    if PF==2: e(pf)
    if PF==3:
        e(["s_cmp_ge_u32 s2, 16", "s_cbranch_scc1 L_npf", f"s_getpc_b64 s[6:7]", "L_pc:", f"v_lshlrev_b32 v{t6}, 7, v0", f"v_min_u32 v{t6}, L_end-L_pc, v{t6}", Raw(f"global_load_dword v{t7}, v{t6}, s[6:7]"), "L_npf:"])
    if PF==4:
        e([f"s_getpc_b64 s[6:7]", "L_pc:", f"s_bfe_u32 s{sT3}, s2, 0x20003", f"s_lshl_b32 s{sT3}, s{sT3}, 13", f"v_lshrrev_b32 v{t6}, 2, v0", f"v_lshl_add_u32 v{t6}, v{t6}, 7, s{sT3}", f"v_min_u32 v{t6}, L_end-L_pc, v{t6}", f"global_load_dword v{t7}, v{t6}, s[6:7]"])
    e(f"v_lshrrev_b32 v{t0}, 6, v0")
    e(f"v_and_b32 v{vL}, 63, v0")
    e(f"v_readfirstlane_b32 s{sW}, v{t0}")
    if XM:
        e(f"s_and_b32 s{sT0}, s2, 7"); e(f"s_lshl_b32 s{sT0}, s{sT0}, 2"); e(f"s_lshr_b32 s{sT0}, {sum((x^k)<<(4*k) for k,x in enumerate(XM))}, s{sT0}"); e(f"s_and_b32 s{sT0}, s{sT0}, 7"); e(f"s_xor_b32 s2, s2, s{sT0}")
    if MAPB==2:
        e(f"s_bfe_u32 s{sT0}, s2, 0x20001"); e(f"s_lshl_b32 s{sT0}, s{sT0}, 3")
        e(f"s_lshr_b32 s{sT1}, s2, 5"); e(f"s_add_u32 s{sI}, s{sT0}, s{sT1}")
        e(f"s_and_b32 s{sT0}, s2, 1"); e(f"s_lshl_b32 s{sT0}, s{sT0}, 2")
        e(f"s_bfe_u32 s{sT1}, s2, 0x20003"); e(f"s_add_u32 s{sJ}, s{sT0}, s{sT1}")
        if JX: e(f"s_xor_b32 s{sJ}, s{sJ}, {JX}")
    else:
        e(f"s_and_b32 s{sT0}, s2, 7"); e(f"s_lshl_b32 s{sT0}, s{sT0}, 2")
        e(f"s_lshr_b32 s{sT1}, s2, 6"); e(f"s_add_u32 s{sI}, s{sT0}, s{sT1}")
        e(f"s_bfe_u32 s{sJ}, s2, 0x30003")
    e(f"v_and_b32 v{vN}, 15, v0"); e(f"v_bfe_u32 v{vG}, v0, 4, 2"); e(f"v_lshlrev_b32 v{vL16}, 4, v{vL}")
    e(f"s_lshr_b32 s{sSH}, s{sW}, 1"); e(f"s_and_b32 s{sFH}, s{sW}, 1")
    e(f"s_mul_i32 s{sF0}, s{sJ}, 88"); e(f"s_cmp_eq_u32 s{sJ}, 7"); e(f"s_cselect_b32 s{sT0}, 8, 0"); e(f"s_sub_u32 s{sF0}, s{sF0}, s{sT0}")
    e(f"s_cmp_lt_u32 s{sJ}, 6"); e(f"s_cselect_b32 s{sNOCT}, 11, 10")
    for s,n in ((sX,2097152),(sWIN,512*2752),(sWS,WSSZ),(sWSP,8388608),(sBSP,4096),(sWOUT,688*1024),(sOUT,2097152)):
        e(f"s_mov_b32 s{s+2}, {n}"); e(f"s_mov_b32 s{s+3}, 0x20000")
    if isinstance(ROT,tuple):
        si,mi,mj,mx=ROT
        e(f"s_lshr_b32 s{sROT}, s{sI}, {si}"); e(f"s_mul_i32 s{sROT}, s{sROT}, {mi}")
        if mj: e(f"s_mul_i32 s{sT0}, s{sJ}, {mj}"); e(f"s_add_u32 s{sROT}, s{sROT}, s{sT0}")
        if mx: e(f"s_mul_i32 s{sT0}, s2, {mx}"); e(f"s_add_u32 s{sROT}, s{sROT}, s{sT0}")
        e(f"s_and_b32 s{sROT}, s{sROT}, 7")
    elif ROT:
        if MAPB==2: e(f"s_lshl_b32 s{sROT}, s{sJ}, 1"); e(f"s_add_u32 s{sROT}, s{sROT}, s{sI}")
        else: e(f"s_lshl_b32 s{sROT}, s{sI}, 1"); e(f"s_add_u32 s{sROT}, s{sROT}, s{sJ}")
        e(f"s_and_b32 s{sROT}, s{sROT}, 7")
    else: e(f"s_mov_b32 s{sROT}, 0")
    xd0=V.a("xd0"); xd1=V.a("xd1")
    e(f"s_lshl_b32 s{sT0}, s{sFH}, 10"); e(f"s_lshl_b32 s{sT1}, s{sSH}, 5"); e(f"s_add_u32 s{sZ}, s{sT1}, s{sI}")
    e(f"s_add_u32 s{sT0}, s{sT0}, s{sZ}"); e(f"s_lshl_b32 s{sT2}, s{sT0}, 10")
    e(f"v_lshrrev_b32 v{t0}, 3, v{vL}"); e(f"v_and_b32 v{t1}, 7, v{vL}"); e(f"v_xor_b32 v{t1}, v{t1}, v{vG}")
    e(f"v_lshlrev_b32 v{t1}, 4, v{t1}"); e(f"v_lshl_add_u32 v{t1}, v{t0}, 16, v{t1}"); e(f"v_add_u32 v{xd0}, s{sT2}, v{t1}")
    e(f"v_xor_b32 v{xd1}, 64, v{xd0}"); e(f"v_add_u32 v{xd1}, {8*65536-1024}, v{xd1}")
    e(f"s_lshl_b32 s{sXM}, s{sW}, 11"); e(f"s_add_u32 s{sXM}, s{sXM}, {XB}")
    e(f"s_mul_i32 s{sWM}, s{sW}, 3072")
    wd=[V.a(f"wd{q}") for q in range(3)]
    e(f"s_mul_i32 s{sT0}, s{sW}, {16*2752}"); e(f"s_lshl_b32 s{sT1}, s{sF0}, 1"); e(f"s_add_u32 s{sT0}, s{sT0}, s{sT1}"); e(f"s_add_u32 s{sT0}, s{sT0}, 1376")
    e(f"s_lshl_b32 s{sKX}, s{sROT}, 7")
    e(f"v_mov_b32 v{t4}, {OOB}")
    for q in range(3):
        if q: e(f"v_add_u32 v{t0}, {64*q}, v{vL}")
        idx = t0 if q else vL
        e(f"v_mul_u32_u24 v{t1}, 171, v{idx}"); e(f"v_lshrrev_b32 v{t1}, 11, v{t1}")
        e(f"v_mad_i32_i24 v{t2}, v{t1}, -12, v{idx}")
        if q==1:
            e(f"v_lshrrev_b32 v{t3}, 2, v{t1}"); e(f"v_and_b32 v{t3}, 2, v{t3}"); e(f"v_xor_b32 v{t2}, v{t2}, v{t3}")
        if q==2: e(f"v_xor_b32 v{t2}, 2, v{t2}")
        e(f"v_cmp_gt_u32 vcc, s{sNOCT}, v{t2}")
        e(f"v_mul_u32_u24 v{t1}, 2752, v{t1}"); e(f"v_lshl_add_u32 v{t1}, v{t2}, 4, v{t1}")
        if q: e(f"s_sub_u32 s{sT0}, s{sT0}, 1024")
        e(f"v_add_u32 v{t1}, s{sT0}, v{t1}")
        e(f"v_cndmask_b32 v{wd[q]}, v{t4}, v{t1}, vcc")
    for n in range(1,8): e(f"s_mov_b32 s{sSC+n}, {n*(524288 if SPM else 1048576)-(n%4)*1088}")
    e("s_waitcnt lgkmcnt(0)")
    e(ts("karg"))
    adv=lambda q: [f"s_add_u32 s{sKX}, s{sKX}, 128", f"s_and_b32 s{sKX}, s{sKX}, 0x380"] if q else []
    def issue_x(kk):
        return [[f"s_add_u32 m0, s{sXM}, {kk*8192}"]+adv(kk)+
                [I(f"buffer_load_dwordx4 v{xd0}, {srd(sX)}, s{sKX} offen {NT} lds", f"st{kk}")],
                I(f"buffer_load_dwordx4 v{xd1}, {srd(sX)}, s{sKX} offen offset:1024 {NT} lds", f"st{kk}")]
    def issue_w(q):
        return [([f"v_subrev_u32 v{wd[k]}, 1376, v{wd[k]}" for k in range(3)] if q==8 else [])+(adv(q) if q>=8 else [])+[f"s_add_u32 m0, s{sWM}, {WB+(q%6)*12288}", f"s_mul_i32 s{sKW}, s{sKX}, 1376"]+
                [I(f"buffer_load_dwordx4 v{wd[0]}, {srd(sWIN)}, s{sKW} offen {NT} lds", f"st{q}")],
                I(f"buffer_load_dwordx4 v{wd[1]}, {srd(sWIN)}, s{sKW} offen offset:1024 {NT} lds", f"st{q}"),
                I(f"buffer_load_dwordx4 v{wd[2]}, {srd(sWIN)}, s{sKW} offen offset:2048 {NT} lds", f"st{q}")]
    dmas=[]; vNV=V.a('vNV')
    sent=lambda c: [f"s_add_u32 s{sSC}, s{sSC}, {32768 if c else HB}", I(f"buffer_store_dwordx4 a[188:191], v{vL16}, {srd(sWS)}, s{sSC} offen sc1",f"sent{c}")]
    vT=V.a('vT')
    def touch(n):
        r=255-n; sA=61
        if n>=10:
            u,q=divmod(n-10,4); r=255-u; o=touch(u)
            return o[:8]+[f"s_add_u32 s{sA}, s{sA}, {q<<21}"]+[x.replace("0x7c0080","0x1c0080").replace(f"a{r},",f"a{247-(n-10)},") for x in o[8:]]
        if n==7: return [f"s_and_b32 s{sA}, s{sI}, 7", f"s_lshl2_add_u32 s{sA}, s{sA}, s{sW}", f"s_mul_i32 s{sA}, s{sA}, 176", f"s_add_u32 s{sA}, s{sA}, s{sJ}", f"s_lshl_b32 s{sA}, s{sA}, 7", f"v_min_u32 v{vT}, 21, v{vL}", f"v_lshl_add_u32 v{vT}, v{vT}, 10, s{sA}"]
        if n==8: return [f"buffer_load_dword v{vT}, v{vT}, {srd(sWOUT)}, 0 offen {TCN}"]
        if n==9: return touch(3)[:-1]
        if n==5: return [x.replace(srd(sX),srd(sOUT)).replace("a251","a250") for x in touch(4)]
        if n==6: return [f"v_lshlrev_b32 v{vT}, 7, v{vL}", f"buffer_load_dword a{r}, v{vT}, {srd(sBSP)}, 0 offen {TCN}"]
        if n<2: return [f"s_and_b32 s{sA}, s{sJ}, 3", f"s_lshl_b32 s{sA}, s{sA}, 1", f"s_lshr_b32 s60, s{sJ}, 2", f"s_xor_b32 s60, s60, {n}", f"s_add_u32 s{sA}, s{sA}, s60",
                        f"s_lshl3_add_u32 s{sA}, s{sFH}, s{sA}", f"s_lshl4_add_u32 s{sA}, s{sZ}, s{sA}", f"s_lshl_b32 s{sA}, s{sA}, 8",
                        f"v_lshlrev_b32 v{vT}, 18, v{vL}", f"v_lshl_add_u32 v{vT}, v{vL}, 2, v{vT}", f"v_and_b32 v{vT}, 0x7c0080, v{vT}", f"buffer_load_dword a{r}, v{vT}, {srd(sWSP)}, s{sA} offen {TCN}"]
        if n==4: return [f"s_lshl_b32 s{sA}, s{sFH}, 10", f"s_add_u32 s{sA}, s{sA}, s{sZ}", f"s_lshl3_add_u32 s{sA}, s{sA}, s{sJ}", f"s_lshl_b32 s{sA}, s{sA}, 7",
                        f"v_lshlrev_b32 v{vT}, 16, v{vN}", f"buffer_load_dword a{r}, v{vT}, {srd(sX)}, s{sA} offen {TCN}"]
        m,sr=(11,sWIN) if n==2 else (6,sWOUT)
        return [f"s_lshl2_add_u32 s{sA}, s2, s{sW}", f"s_mul_i32 s{sA}, s{sA}, {128*m}", f"v_min_u32 v{vT}, {m-1}, v{vL}", f"v_lshl_add_u32 v{vT}, v{vT}, 7, s{sA}", f"buffer_load_dword a{r}, v{vT}, {srd(sr)}, 0 offen {TCN}"]
    def stouch(c):
        ld=lambda b,o: Raw(f"s_load_dword s56, s[{b}:{b+1}], s61 offset:{o}")
        st=128 if c.islower() else 64
        if c in 'xX':
            o=[f"s_lshl2_add_u32 s60, s{sJ}, s{sW}", "s_lshl_b32 s60, s60, 6", f"s_add_u32 s60, s60, s{sI}"]
            for d in (4,6): o+=[f"s_add_u32 s61, s{sROT}, {d}", "s_and_b32 s61, s61, 6", "s_lshl3_add_u32 s61, s60, s61", "s_lshl_b32 s61, s61, 7"]+[ld(sX,r*32768+k) for r in range(2) for k in range(0,256,st)]
            return o
        if c in 'zZ': return [f"s_lshl1_add_u32 s60, s2, s{sSH}", "s_mul_i32 s60, s60, 2752", f"s_mul_i32 s61, s{sFH}, 704", "s_add_u32 s61, s61, s60"]+[ld(sWIN,k) for k in range(0,704,st)]
        if c in 'uU': return [f"s_lshl2_add_u32 s60, s2, s{sW}", "s_min_u32 s60, s60, 916", "s_mul_i32 s61, s60, 768"]+[ld(sWOUT,k) for k in range(0,768,st)]
        if c=='b': return ["s_lshr_b32 s60, s2, 3", f"s_lshl2_add_u32 s60, s60, s{sW}", "s_and_b32 s60, s60, 63", "s_lshl_b32 s61, s60, 6", ld(sBSP,0)]
        if c in 'pP':
            return [f"s_lshl2_add_u32 s60, s2, s{sW}", "s_lshl_b32 s61, s60, 13"]+[ld(sWSP,r*2048+k+q) for r in range(4) for q in (0,512) for k in range(0,128,st)]
    sq_=[x for c in SW for x in stouch(c)]
    def stake(p):
        o=[]; n=SWN[p] if p<len(SWN) else 0
        while sq_ and n: o.append(sq_.pop(0)); n-=isinstance(o[-1],Raw)
        return [o] if o else []
    e(stake(0))
    for kk in range(PRE):
        dmas+=issue_x(kk)+issue_w(kk)
        dmas+=stake(kk+1)
        dmas+=[touch(int(t[1:].split('@')[0])) for t in TI.split() if int((t+'@').split('@')[1] or PRE-1)==kk]
        if IST: dmas.append(ts(f"d{kk}"))
        if kk==PRE-1: dmas.append(f"buffer_load_dword v{vNV}, off, {srd(sWS)}, 0 sc1")
        if kk==0 and PF==1: dmas.append(pf)
    C0=C; C=[]; e=C.append
    xa=[V.a("xa0"),V.a("xa1")]; wa=[V.a("wa0"),V.a("wa1")]
    e(f"v_lshrrev_b32 v{t0}, 1, v{vN}"); e(f"v_xor_b32 v{t0}, v{t0}, v{vG}"); e(f"v_lshlrev_b32 v{t0}, 4, v{t0}")
    e(f"v_lshl_add_u32 v{t0}, v{vN}, 7, v{t0}")
    e(f"s_lshl_b32 s{sT0}, s{sSH}, 12"); e(f"s_add_u32 s{sT0}, s{sT0}, {XB}")
    sPI=sSIG
    e(f"s_xor_b32 s{sPI}, s{sSH}, s{sFH}"); e(f"s_lshl_b32 s{sT1}, s{sPI}, 6"); e(f"v_xad_u32 v{xa[0]}, v{t0}, s{sT1}, 0")
    e(f"v_add_u32 v{xa[0]}, s{sT0}, v{xa[0]}"); e(f"v_xor_b32 v{xa[1]}, 64, v{xa[0]}")
    e(f"v_lshrrev_b32 v{t0}, 2, v{vN}"); e(f"v_lshl_add_u32 v{t0}, v{vG}, 3, v{t0}"); e(f"v_mul_u32_u24 v{t0}, 192, v{t0}")
    e(f"v_and_b32 v{t1}, 1, v{vG}"); e(f"v_xor_b32 v{t1}, s{sFH}, v{t1}"); e(f"v_lshl_add_u32 v{t0}, v{t1}, 5, v{t0}")
    e(f"v_and_b32 v{t1}, 3, v{vL}"); e(f"v_lshl_add_u32 v{t0}, v{t1}, 3, v{t0}")
    e(f"s_mul_i32 s{sT0}, s{sPI}, 6144"); e(f"s_sub_u32 s{sT1}, 6144, s{sT0}"); e(f"v_add_u32 v{wa[0]}, s{sT0}, v{t0}"); e(f"v_add_u32 v{wa[1]}, s{sT1}, v{t0}")
    e(f"v_and_b32 v{t0}, 1, v{vL}"); e(f"v_cmp_ne_u32 s[{sMA}:{sMA+1}], 0, v{t0}")
    e(f"v_and_b32 v{t0}, 2, v{vL}"); e(f"v_cmp_ne_u32 s[{sMB}:{sMB+1}], 0, v{t0}")
    e(f"s_mov_b32 s{sCNT}, {SENT}")
    for k in range(4): e(f"v_accvgpr_write_b32 a{188+k}, s{sCNT}")
    e(f"s_mul_i32 s{sCNT}, s{sI}, 12"); e(f"s_add_u32 s{sCNT}, s{sCNT}, s{sW}"); e(f"s_lshl3_add_u32 s{sCNT}, s{sCNT}, s{sJ}"); e(f"s_lshl_b32 s{sSC}, s{sCNT}, 10")
    ONES=V.a("ONES",4)
    for k in range(4): e(f"v_mov_b32 v{ONES+k}, 0x3f803f80")
    SP=V.a("SP",52)
    aFC,aFS,aAC,aAS=192,208,224,232
    e(f"s_and_b32 s{sT0}, s{sJ}, 1"); e(f"s_lshl_b32 s{sT0}, s{sT0}, 1"); e(f"s_add_u32 s{sR}, s{sT0}, s{sFH}")
    e(f"s_lshr_b32 s{sT0}, s{sJ}, 1"); e(f"s_lshl_b32 s{sT0}, s{sT0}, 6"); e(f"s_add_u32 s{sT0}, s{sT0}, s{sR}")
    e(f"v_lshl_add_u32 v{t0}, v{vN}, 2, s{sT0}")
    e(f"v_subrev_u32 v{t0}, 1, v{t0}"); e(f"v_and_b32 v{t0}, 0xff, v{t0}"); e(f"v_add_u32 v{t0}, 1, v{t0}")
    e(f"v_cvt_f32_u32 v{t0}, v{t0}"); e(f"v_mul_f32 v{t0}, {fl(-1/512)}, v{t0}")
    e(f"s_lshl_b32 s{sT0}, s{sROT}, 6"); e(f"v_lshl_add_u32 v{t1}, v{vG}, 3, s{sT0}"); e(f"v_cvt_f32_u32 v{t1}, v{t1}"); e(f"v_mul_f32 v{t1}, v{t1}, v{t0}"); e(f"v_fract_f32 v{t1}, v{t1}")
    def sincos(step, base, k0, dc, ds, u):
        b=SP+8*(u%2)
        return [f"v_fmamk_f32 v{b}, v{step}, {fl(k0)}, v{base}", f"v_add_f32 v{b+1}, v{b}, v{step}",
                f"v_cos_f32 v{b+2}, v{b}", f"v_cos_f32 v{b+3}, v{b+1}", f"v_sin_f32 v{b+4}, v{b}", f"v_sin_f32 v{b+5}, v{b+1}",
                f"v_cvt_pk_bf16_f32 v{b+2}, v{b+2}, v{b+3}", f"v_accvgpr_write_b32 a{dc}, v{b+2}",
                f"v_cvt_pk_bf16_f32 v{b+4}, v{b+4}, v{b+5}", f"v_accvgpr_write_b32 a{ds}, v{b+4}"]
    e(f"s_mul_i32 s{sT0}, s{sPI}, {fl(32.)}"); e(f"v_fma_f32 v{t2}, v{t0}, s{sT0}, v{t1}"); e(f"v_fma_f32 v{t3}, -v{t0}, s{sT0}, v{t1}")
    if CR:
        R1=SP+40; R2=SP+42
        e(f"v_fmamk_f32 v{R1}, v{t0}, {fl(32.)}, v{t3}"); e(f"v_mul_f32 v{R2}, {fl(64.)}, v{t0}"); e(f"v_sub_f32 v{R1}, v{R1}, v{t2}")
        for R in (R2,R1): e(f"v_sin_f32 v{R+1}, v{R}"); e(f"v_cos_f32 v{R}, v{R}")
        rot=lambda d,b,R: [f"v_pk_mul_f32 {v(d,2)}, {v(b+2,2)}, {v(R,2)} op_sel:[0,1] op_sel_hi:[1,1]", f"v_pk_mul_f32 {v(d+2,2)}, {v(b,2)}, {v(R,2)} op_sel:[0,1] op_sel_hi:[1,1]",
                           f"v_pk_fma_f32 {v(d,2)}, {v(b,2)}, {v(R,2)}, {v(d,2)} op_sel_hi:[1,0,1] neg_lo:[0,0,1] neg_hi:[0,0,1]", f"v_pk_fma_f32 {v(d+2,2)}, {v(b+2,2)}, {v(R,2)}, {v(d+2,2)} op_sel_hi:[1,0,1]"]
        put=lambda b,k: [f"v_cvt_pk_bf16_f32 v{b}, v{b}, v{b+1}", f"v_cvt_pk_bf16_f32 v{b+2}, v{b+2}, v{b+3}", f"v_accvgpr_write_b32 a{aFC+k}, v{b}", f"v_accvgpr_write_b32 a{aFS+k}, v{b+2}"]
        for pr in range(4):
            b=SP+8*(pr%2)+2; q=SP+16+12*(pr%2)
            e(sincos(t0,t2,2*pr,0,0,pr)[:6]); e(rot(q,b,R1)); e(rot(q+4,b,R2)); e(rot(q+8,q,R2)); e(put(b,pr)); e(put(q,4+pr)); e(put(q+4,8+pr)); e(put(q+8,12+pr))
        e(f"v_cvt_f32_u32 v{t0}, v{vN}"); e(f"v_mul_f32 v{t0}, {fl(1/32)}, v{t0}")
        e(f"v_lshlrev_b32 v{t1}, 2, v{vG}"); e(f"v_cvt_f32_u32 v{t1}, v{t1}"); e(f"v_mul_f32 v{t1}, v{t1}, v{t0}")
        e(f"v_bfe_i32 v{t2}, v{vN}, 0, 1"); e(f"v_and_b32 v{t2}, 0x80008000, v{t2}")
        for pr in range(2):
            e(sincos(t0,t1,2*pr,aAC+pr,aAS+pr,pr))
            for m,k in (("0x80000000",4),(f"v{t2}",6),("0x80000000",2)):
                for r,d in ((2,aAC),(4,aAS)): e(f"v_xor_b32 v{SP+8*pr+r}, {m}, v{SP+8*pr+r}")
                for r,d in ((2,aAC),(4,aAS)): e(f"v_accvgpr_write_b32 a{d+k+pr}, v{SP+8*pr+r}")
    else:
        for ks in range(4):
            for pr in range(4): e(sincos(t0,t2+ks%2,32*ks+2*pr,aFC+4*ks+pr,aFS+4*ks+pr,pr))
        for th in range(2):
            e(f"v_add_u32 v{t0}, {16*th}, v{vN}"); e(f"v_cvt_f32_u32 v{t0}, v{t0}"); e(f"v_mul_f32 v{t0}, {fl(1/32)}, v{t0}")
            e(f"v_lshlrev_b32 v{t1}, 2, v{vG}"); e(f"v_cvt_f32_u32 v{t1}, v{t1}"); e(f"v_mul_f32 v{t1}, v{t1}, v{t0}")
            for pr in range(4): e(sincos(t0,t1,16*(pr//2)+2*(pr%2),aAC+4*th+pr,aAS+4*th+pr,pr))
    cons=flat(C); C=C0; e=C.append
    e(dmas[0]); e(mix(cons, dmas[1:], 0, int(len(cons)*IFR)))
    e(f"s_cmp_eq_u32 s{sR}, 0"); e(f"s_cselect_b32 s{sSIG}, 1.0, -1.0")
    e(ts("init"))
    ZA=V.a("ZA",24); CS=SP; SUM=SP+12; SQ=SP+20; WF=SP+28
    def xf(ks,t): return XF+(ks*2+t)*4
    def rd_x(ks):
        kk,kp=divmod(ks,2)
        return [I(f"ds_read_b128 {v(xf(ks,t),4)}, v{xa[kp]} offset:{kk*8192+t*2048}","fr") for t in range(2)]
    def rd_w(q,kp):
        sl=q%6; b=WF+12*kp
        return [I(f"ds_read_b64_tr_b16 {v(b+4*c+2*r,2)}, v{wa[kp]} offset:{sl*12288+r*768+c*64}","fr") for c in range(3) for r in range(2)]
    def mm(d,A,B,first): return f"v_mfma_f32_16x16x32_bf16 {v(d,4)}, {A}, {B}, {'0' if first else v(d,4)}"
    EX=160768
    def att(o,k,x): o[k]=flat([o[k],x])
    def mf_z(ks,stats):
        b=WF+12*(ks%2); f=ks==0; spl=SPL&(1 if stats else 2)
        sq=lambda f: [mm(SQ+4*t, v(xf(ks,t),4), v(xf(ks,t),4), f) for t in range(2)]
        sm=lambda f: [mm(SUM+4*t, v(ONES,4), v(xf(ks,t),4), f) for t in range(2)]
        mn=lambda c: [mm(ZA+(c*2+t)*4, v(b+4*c,4), v(xf(ks,t),4), f) for t in range(2)]
        cs=lambda c,f: [mm(CS+4*c, v(b+4*c,4), v(ONES,4), f)]
        if not spl: return (sq(f)+sm(f) if stats else [])+[x for c in range(3) for x in mn(c)+cs(c,f)]
        if ks<14:
            if stats: return sq(ks==1)+sm(ks==1)+mn(0)+mn(1)+mn(2) if ks%2 else [x for c in range(3) for x in mn(c)+cs(c,f)]
            return [x for c in range(3) for x in mn(c)+(cs(c,ks<2) if (c==2)==(ks%2) else [])]
        o=mn(0)+mn(1)+mn(2); n14=13 if stats else 9
        if ks==14: o=(sq(0)+sm(0) if stats else [])+cs(0,0)+cs(1,0)+cs(2,0)+o
        sel=lambda d,q: [f"v_cndmask_b32 v{d}, v{q}, v{q+1}, s[{sMA}:{sMA+1}]", f"v_cndmask_b32 v{d+1}, v{q+2}, v{q+3}, s[{sMA}:{sMA+1}]", f"v_cndmask_b32 v{d}, v{d}, v{d+1}, s[{sMB}:{sMB+1}]"]
        vc=lambda lo,hi: [f"s_mov_b32 vcc_lo, {lo}", f"s_mov_b32 vcc_hi, {hi}"]
        x=[]
        if stats: x=vc("0x00f0000f","0xf0000f00")+sel(SQ,SQ)+sel(SQ+4,SQ+4)+[f"v_cndmask_b32 v{SUM+t}, v{SUM+4*t}, v{SQ+4*t}, vcc" for t in range(2)]+[I(f"ds_write_b64 v{t2}, {v(SUM,2)}","exw")]
        x+=vc("0xf0f0f0f0","0xf0f0f0f0")+sel(SQ,CS)+sel(SQ+2,CS+4)+[f"v_cndmask_b32 v{SQ}, v{SQ}, v{SQ+2}, vcc"]+vc("0xff00ff00","0xff00ff00")+sel(SQ+2,CS+8)+[f"v_cndmask_b32 v{SQ}, v{SQ}, v{SQ+2}, vcc", I(f"ds_write_b32 v{t3}, v{SQ}","exw")]
        g0,g1=XW[:2] if stats else XW[2:]
        for k,u in enumerate(x):
            g=g0+k*(g1-g0)//len(x)-(n14 if ks==15 else 0)
            if 0<=g<len(o): att(o,g,u)
        return o
    exad=lambda stats: [f"s_mul_i32 s{sT1}, s{sW}, 768", f"s_add_u32 s{sT1}, s{sT1}, {EX}"]+([f"v_lshl_add_u32 v{t2}, v{vL}, 3, s{sT1}"] if stats else [])+[f"s_add_u32 s{sT1}, s{sT1}, 512", f"v_lshl_add_u32 v{t3}, v{vL}, 2, s{sT1}",
                        f"s_xor_b32 s{sT1}, s{sW}, 2", f"s_mul_i32 s{sT1}, s{sT1}, 768", f"s_add_u32 s{sT1}, s{sT1}, {EX+512}", f"v_lshl_add_u32 v{t5 if stats else t2}, v{vG}, 6, s{sT1}"]+(
                        [f"s_mul_i32 s{sT1}, s{sSH}, 1536", f"s_add_u32 s{sT1}, s{sT1}, {EX}", f"v_lshrrev_b32 v{t4}, 2, v{vN}", f"v_lshl_add_u32 v{t4}, v{t4}, 4, v{vN}", f"v_lshl_add_u32 v{t4}, v{t4}, 3, s{sT1}"] if stats else [])
    exrd=lambda stats: ([f"ds_read2_b64 {v(SQ,4)}, v{t4} offset1:96", f"v_xor_b32 v{t4}, 128, v{t4}", f"ds_read2_b64 {v(SQ+4,4)}, v{t4} offset1:96"] if stats else [])+[f"ds_read_b128 {v(WF+4*c,4)}, v{t5 if stats else t2} offset:{16*c}" for c in range(3)]
    csadd=[f"v_pk_add_f32 {v(CS+2*k,2)}, {v(CS+2*k,2)}, {v(WF+2*k,2)}" for k in range(6)]
    cum=lambda stats: [sum(len(mf_z(k,stats)) for k in range(n)) for n in range(17)]
    RES=V.a("RES",8)
    pend=[]; nxt=PRE; done=[]
    def bg(spec):
        o=[]
        for t in spec.split():
            k,n=t[0],int(t[1:]); assert t not in done; done.append(t)
            if k=='w':
                assert n==nxt or f"w{n-1}" in done; o+=issue_w(n)
            elif k=='h': o+=sp_half(n)
            elif k=='r': o+=sp_read(n)
            elif k=='p': o+=poll1() if n==1 else poll2()
            elif k=='c': o+=chk2()
            elif k=='z': o+=[zdma(n,q) for q in range(4)]
            elif k=='s': assert (n==0 or f"s{n-1}" in done) and "r4" not in done; o+=[sent(n)]
            elif k=='t': o+=[touch(n)]
            elif k=='b': o+=[[f"v_and_b32 v{vBT}, 31, v{vL}", f"v_lshl_add_u32 v{vBT}, v{vBT}, 6, s{sZ}", f"v_lshlrev_b32 v{vBT}, 1, v{vBT}", f"buffer_load_ushort v{vBT}, v{vBT}, {srd(sBSP)}, 0 offen"]]
            elif k=='q':
                q,hh=divmod(n//10,2); assert "t19" not in done
                o+=[[f"s_and_b32 s60, s{sJ}, 3", f"s_lshl_b32 s60, s60, 7", f"s_add_u32 s60, s60, s{sZ}", f"s_lshl1_add_u32 s60, s60, s{sFH}", "s_lshl_b32 s60, s60, 11", f"s_xor_b32 s61, s{sXM}, {(q%2)*1024+(q//2)*256+hh*2097152+(n%2)*4194304}", "s_add_u32 s61, s61, s60"]
                    +[Raw(f"s_load_dword s7, s[{sWSP}:{sWSP+1}], s61 offset:{r*262144+c*64}") for r in range(2) for c in range(4)][:QN]]
            elif k=='n': o+=[[] for _ in range(n%100)]
        return o
    steps=[]; segs=[]; NB=cum(True); lq=[]
    for ks in range(17):
        kk,kp=divmod(ks,2); pre=[]; rd=[]
        if ks<16:
            if kp==0:
                pre=[W("vm",f"st{kk}"), "s_barrier"]
                if kk==0: pre=([Raw("s_waitcnt lgkmcnt(0)")] if SW else [])+pre+ts("st0")
                elif TS and 'xB' in TS: pre=[W("vm",f"st{kk}")]+ts(f"xa{kk}")+["s_barrier"] if 'xB1' in TS else ts(f"xa{kk}")+pre
                hi=min(kk+1+max(PRE,min(DEP,PRE+kk)), kk+5) if HS is None else HS[kk]; assert hi<=kk+6
                pend=[]
                while HN is None and nxt<hi:
                    pend+=(issue_x(nxt) if nxt<8 else [])+issue_w(nxt); nxt+=1
                for _ in range(HN[kk] if HN else 0):
                    if not lq: lq=(issue_x(nxt) if nxt<8 else [])+issue_w(nxt); nxt+=1; assert nxt<=kk+6
                    pend.append(lq.pop(0))
                    if 'B' in XP: pend[-1]=[I('s_nop 0',x.tag) if isinstance(x,I) else x for x in flat([pend[-1]])]
                assert kk==7 or nxt-bool(lq)>kk+1
                pend=flat(pend+bg(" ".join(f"s{c}" for c in range(len(SK)) if SK[c]==kk))+bg(TK.get(kk,'')))
                if kk==XK[0] and SPL&1: pend+=exad(True)
                if kk==XK[1]:
                    pend+=[f"v_lshrrev_b32 v{t0}, 1, v{vG}", f"v_lshrrev_b32 v{t1}, 1, v{vN}", f"v_xor_b32 v{t0}, v{t0}, v{t1}",
                    f"v_lshlrev_b32 v{t0}, 4, v{t0}", f"v_lshl_add_u32 v{t0}, v{vN}, 7, v{t0}", f"v_and_b32 v{t1}, 1, v{vG}",
                    f"v_lshl_add_u32 v{t0}, v{t1}, 3, v{t0}", f"s_sub_u32 s{sT0}, s{sJ}, s{sROT}", f"s_and_b32 s{sT0}, s{sT0}, 7", f"s_lshl_b32 s{sT0}, s{sT0}, 13", f"s_add_u32 s{sT0}, s{sT0}, s{sXM}", f"v_add_u32 v{t0}, s{sT0}, v{t0}",
                    f"v_xor_b32 v{t1}, 32, v{t0}", f"v_xor_b32 v{t6}, 64, v{t0}", f"v_xor_b32 v{t7}, 0x60, v{t0}"]
                if kk==7: pend+=[f"ds_read_b64 {v(RES+2*k,2)}, v{r}" for k,r in enumerate((t0,t1,t6,t7))]
                segs.append((NB[max(0,ks-1)], NB[ks+1]-1, pend))
            rd=rd_x(ks)+rd_w(kk,kp)
        if ks==16:
            assert not lq
            pre=[] if SPL&1 else [W("lg0"), W("vm","sent0"), "s_barrier"]; segs.append((NB[15], NB[16], flat(bg(SB))))
        if ks==0: e(pre); e(rd)
        else: steps.append((pre, mf_z(ks-1,True), rd, [W("lg","fr")] if ks<16 else []))
    e(gsched(steps, segs, slack=SLK[0]))
    if SPL&1: e([W("lg0"), W("vm","sent0"), "s_barrier"]+exrd(True)); assert nxt<=13 and "w13" not in done
    V.f("xd0","xd1","xa0","xa1")
    if TS and 'xB' in TS: e(ts("xa8"))
    e(ts("z2gemm"))
    vsp=V.a("vsp"); ra=[V.a(f"ra{k}") for k in range(4)]
    spinit=[f"v_xor_b32 v{t0}, v{vN}, v{vG}", f"v_lshlrev_b32 v{t0}, 4, v{t0}"]+([f"v_mul_u32_u24 v{t1}, 9, v{vG}", f"v_and_b32 v{t1}, 17, v{t1}", f"v_lshl_add_u32 v{t0}, v{t1}, 18, v{t0}"] if SPM else [f"v_lshl_add_u32 v{t0}, v{vG}, 18, v{t0}"])+[
            f"s_lshl_b32 s{sT0}, s{sZ}, 1", f"s_add_u32 s{sT0}, s{sT0}, s{sFH}", f"s_lshl_b32 s{sT0}, s{sT0}, 11", f"v_add_u32 v{vsp}, s{sT0}, v{t0}",
            f"s_mul_i32 s{sSTM}, s{sW}, {STGW}", f"s_add_u32 s{sSTM}, s{sSTM}, {STG}",
            f"v_bfe_u32 v{t0}, v{vL}, {1 if SPM else 2}, 3", f"v_mul_u32_u24 v{t0}, 1088, v{t0}"]+([f"v_lshrrev_b32 v{t1}, 3, v{vL}", f"v_bfi_b32 v{t1}, 1, v{vL}, v{t1}"] if SPM else [])+[f"v_and_b32 v{t1}, 3, v{t1 if SPM else vL}", f"v_lshl_add_u32 v{t0}, v{t1}, 8, v{t0}",
            f"v_lshl_add_u32 v{t0}, v{t1}, 4, v{t0}", f"v_lshrrev_b32 v{t1}, 5, v{vL}", f"v_lshl_add_u32 v{t0}, v{t1}, 7, v{t0}",
            f"v_add_u32 v{ra[0]}, s{sSTM}, v{t0}"]+[f"v_xor_b32 v{ra[k]}, {16*k}, v{ra[0]}" for k in range(1,4)]
    rb=[t4,t5,t6,t7]; sRX=sXM
    tab=sum(sum(((j>>b)&1)<<k for k,b in enumerate(RX) if b>=0)<<(4*j) for j in range(8))
    spinit+=[f"s_lshl_b32 s{sRX}, s{sJ}, 2", f"s_lshr_b32 s{sRX}, {tab}, s{sRX}", f"s_and_b32 s{sRX}, s{sRX}, 7"]+[x for r,m in ((sSH,RF[0]),(sFH,RF[1])) if m for x in (f"s_mul_i32 s{sT0}, s{r}, {m}", f"s_xor_b32 s{sRX}, s{sRX}, s{sT0}")]+[x for b,m in enumerate(RI) if m for x in (f"s_bfe_u32 s{sT0}, s{sI}, {0x10000+b}", f"s_mul_i32 s{sT0}, s{sT0}, {m}", f"s_xor_b32 s{sRX}, s{sRX}, s{sT0}")]+[f"s_lshl_b32 s{sRX}, s{sRX}, 8", f"v_add_u32 v{vsp}, s{sRX}, v{vsp}"]
    def sp_half(h):
        q,hh=divmod(h,2); kap,tb=divmod(q,2); o=[]
        assert h==0 or f"h{h-1}" in done
        off=lambda q: (q%2)*1024+(q//2)*256
        for k in range(4):
            n=4*hh+k
            u=[I(f"buffer_load_dwordx4 v{vsp}, {srd(sWSP)}, {f's{sSC+n}' if n else 0} offen offset:{k*1088} {NT} lds", f"sp{q}")]
            if XSP==1: u=[]
            if XSP==2: u=[I(f"buffer_load_dwordx4 v{vL16}, {srd(sWSP)}, s{sT2} offen offset:{k*1024} sc1 lds", f"sp{q}")]
            if k==0:
                if h>=5 and h%2:
                    assert f"r{(h-5)//2}" in done; u=[W("lg",f"spr{(h-5)//2}")]+u
                u=[f"s_add_u32 m0, s{sSTM}, {(h%5)*4352}"]+u
                if hh==0 and q: u=[f"v_xor_b32 v{vsp}, {off(q)^off(q-1)}, v{vsp}"]+u
            o.append(u)
        return o
    def sp_read(q):
        assert f"h{2*q+1}" in done
        h0=(2*q)%5; R=rb if h0==4 else ra
        assert h0<4 or "rb" in done
        r=[I(f"ds_read_b128 {a((q*8+x)*4,4)}, v{R[x%4]} offset:{h0*4352+(x//4)*64}", f"spr{q}") for x in range(8)]
        r[0]=[W("vm",f"sp{q}"), r[0]]
        return r
    aPL=240
    def poll1(): return [f"buffer_load_dwordx4 {a(aPL+4*k,4)}, v{vL16}, {srd(sWS)}, s{sT2} offen offset:{1024*k} sc1" for k in range(4)]
    def poll2(): return [f"buffer_load_dword v{vPC}, v{vP8}, {srd(sWS)}, s{sT2} offen sc1"]
    def slowchk(n):
        SLOW.extend([f"L_s{n}:", f"s_mov_b32 s{sCNT}, 0", f"L_l{n}:", f"buffer_load_dword v{vPC}, v{vP8}, {srd(sWS)}, s{sT2} offen sc1", "s_waitcnt vmcnt(0)",
                     f"v_cmp_ne_u32 vcc, s{sNON}, v{vPC}", f"s_cbranch_vccz L_b{n}", f"s_add_u32 s{sCNT}, s{sCNT}, 1", f"s_cmp_lt_u32 s{sCNT}, {SPIN}", f"s_cbranch_scc1 L_l{n}", f"s_branch L_b{n}"])
        return [f"v_cmp_ne_u32 vcc, s{sNON}, v{vPC}", f"s_cbranch_vccnz L_s{n}", f"L_b{n}:"]
    def chk2(): return [slowchk("s2")+["s_barrier"]+ts("s2")]
    SL=16384
    def zdma(g,o):
        if g>=24 or (g>=16 and o==3): return []
        r=[]
        if o==0: r=[f"s_add_u32 m0, s{sRM}, {(g%NS)*SL}", f"s_mov_b32 s{sKX}, {Z2N+(g%2 if 'h' in XP else g)*4096}"]
        if Z6 and g>=16 and o==2: r=[f"s_sub_u32 s{sKX}, s{sKX}, s{sN3}"]
        return r+[I(f"buffer_load_dwordx4 v{vZL}, {srd(sWS)}, s{sKX} offen offset:{o*1024} sc1 lds", f"z{g}")]
    C0=C; C=[]; e=C.append
    e(f"v_readfirstlane_b32 s{sNON}, v{vNV}")
    e(spinit)
    e(f"s_mul_i32 s{sNON}, s{sNON}, 1664525"); e(f"s_add_u32 s{sNON}, s{sNON}, 1013904223")
    e(f"s_lshr_b32 s{sN1}, s{sNON}, 8"); e(f"s_lshr_b32 s{sN2}, s{sNON}, 16"); e(f"s_lshr_b32 s{sN3}, s{sNON}, 24"); e(f"s_movk_i32 s{sFF}, 0xff")
    NM=V.a("NM",2); K1=V.a("K1",2); K0=V.a("K0",2); IR=V.a("IR",2); RS=V.a("RS",2)
    k0=-2*math.log2(math.e)*math.sqrt(2/math.pi); k1=k0*0.044715
    if SPL&1:
        for k in (1,0): e(f"v_pk_add_f32 {v(SQ+4*k,2)}, {v(SQ+4*k,2)}, {v(SQ+4*k+2,2)}")
        rSUM=lambda t: SQ+4+t; rSQ=lambda t: SQ+t
    else:
        rSUM=lambda t: SUM+4*t; rSQ=lambda t: SQ+4*t+1
        e(f"v_lshrrev_b32 v{t0}, 2, v{vN}"); e(f"v_lshl_add_u32 v{t0}, v{t0}, 4, v{vN}"); e(f"v_lshlrev_b32 v{t0}, 2, v{t0}")
        for t in range(2):
            s=SQ+4*t
            e(f"v_cndmask_b32 v{s}, v{s}, v{s+1}, s[{sMA}:{sMA+1}]"); e(f"v_cndmask_b32 v{s+2}, v{s+2}, v{s+3}, s[{sMA}:{sMA+1}]")
            e(f"v_cndmask_b32 v{s}, v{s}, v{s+2}, s[{sMB}:{sMB+1}]")
            e(f"ds_bpermute_b32 v{s+1}, v{t0}, v{s}")
    for t in range(2):
        e(f"v_mul_f32 v{NM+t}, {fl(-1/512)}, v{rSUM(t)}")
        e(f"v_mul_f32 v{t2+t}, v{NM+t}, v{NM+t}"); e(f"v_sub_f32 v{t2+t}, {fl(1e-5)}, v{t2+t}")
    for t in range(2):
        e(f"v_fmamk_f32 v{t2+t}, v{rSQ(t)}, {fl(1/512)}, v{t2+t}"); e(f"v_max_f32 v{t2+t}, {fl(1e-5)}, v{t2+t}")
    for t in range(2): e(f"v_rsq_f32 v{RS+t}, v{t2+t}")
    for t in range(2): e(f"v_sqrt_f32 v{IR+t}, v{t2+t}")
    if SPL&1: e(csadd)
    for t in range(2):
        e(f"v_mul_f32 v{K0+t}, {fl(k0)}, v{RS+t}"); e(f"v_mul_f32 v{t2+t}, v{RS+t}, v{RS+t}")
    for t in range(2):
        e(f"v_mul_f32 v{t2+t}, {fl(0.044715)}, v{t2+t}"); e(f"v_mul_f32 v{K1+t}, v{K0+t}, v{t2+t}")
    cpre=flat(C); C=C0; e=C.append
    e(mix(cpre, bg(SC0)))
    TM=SP+28
    S2=SP+40; Q2=SP+44
    def gelu(stats):
        o=[]
        for c in range(3):
            P=[(ZA+(c*2+t)*4+2*h, CS+4*c+2*h, t, TM+2*(t*2+h), h) for t in range(2) for h in range(2)]
            for z,cs,t,u,h in P: o.append(f"v_pk_fma_f32 {v(z,2)}, {v(NM,2)}, {v(cs,2)}, {v(z,2)} op_sel:[{t},0,0] op_sel_hi:[{t},1,1]")
            for z,cs,t,u,h in P: o.append(f"v_pk_mul_f32 {v(u,2)}, {v(z,2)}, {v(z,2)}")
            for z,cs,t,u,h in P: o.append(f"v_pk_fma_f32 {v(u,2)}, {v(u,2)}, {v(K1,2)}, {v(K0,2)} op_sel:[0,{t},{t}] op_sel_hi:[1,{t},{t}]")
            for z,cs,t,u,h in P: o.append(f"v_pk_mul_f32 {v(u,2)}, {v(u,2)}, {v(z,2)}")
            for z,cs,t,u,h in P: o+= [f"v_exp_f32 v{u}, v{u}", f"v_exp_f32 v{u+1}, v{u+1}"]
            for z,cs,t,u,h in P: o.append(f"v_pk_fma_f32 {v(u,2)}, {v(u,2)}, {v(IR,2)}, {v(IR,2)} op_sel:[0,{t},{t}] op_sel_hi:[1,{t},{t}]")
            for z,cs,t,u,h in P: o+= [f"v_rcp_f32 v{u}, v{u}", f"v_rcp_f32 v{u+1}, v{u+1}"]
            for z,cs,t,u,h in P: o.append(f"v_pk_mul_f32 {v(z,2)}, {v(z,2)}, {v(u,2)}")
            if stats:
                for z,cs,t,u,h in P:
                    if c==0 and h==0:
                        o.append(f"v_pk_add_f32 {v(S2+2*t,2)}, {v(z,2)}, {v(z+2,2)}"); o.append(f"v_pk_mul_f32 {v(Q2+2*t,2)}, {v(z,2)}, {v(z,2)}")
                    else:
                        if c: o.append(f"v_pk_add_f32 {v(S2+2*t,2)}, {v(S2+2*t,2)}, {v(z,2)}")
                        o.append(f"v_pk_fma_f32 {v(Q2+2*t,2)}, {v(z,2)}, {v(z,2)}, {v(Q2+2*t,2)}")
        return o
    e(mix(gelu(True), bg(SC))); done+=[f"t{n}" for n in range(20) if n!=8]
    e(f"v_add_f32 v{t0}, v{S2}, v{S2+1}"); e(f"v_add_f32 v{t2}, v{S2+2}, v{S2+3}")
    e(f"v_add_f32 v{t1}, v{Q2}, v{Q2+1}"); e(f"v_add_f32 v{t3}, v{Q2+2}, v{Q2+3}")
    e(f"v_lshlrev_b32 v{t4}, 3, v{vG}"); e(f"v_lshrrev_b32 v{t4}, v{t4}, s{sNON}")
    e(f"v_permlane32_swap_b32 v{t0}, v{t2}"); e(f"v_permlane32_swap_b32 v{t1}, v{t3}")
    e(f"v_add_f32 v{t0}, v{t0}, v{t2}"); e(f"v_add_f32 v{t1}, v{t1}, v{t3}")
    e(f"v_lshlrev_b32 v{t5}, 2, v{vG}"); e(f"v_lshl_add_u32 v{t5}, v{vN}, 4, v{t5}")
    e(f"v_permlane16_swap_b32 v{t0}, v{t1}")
    e(f"s_lshl_b32 s{sT0}, s{sI}, 1"); e(f"s_add_u32 s{sT0}, s{sT0}, s{sSH}"); e(f"s_lshl_b32 s{sT0}, s{sT0}, 12"); e(f"s_add_u32 s{sT2}, s{sT0}, {STATS}")
    e(f"s_lshl_b32 s{sT0}, s{sJ}, 1"); e(f"s_add_u32 s{sT0}, s{sT0}, s{sFH}"); e(f"s_lshl_b32 s{sT0}, s{sT0}, 8"); e(f"s_add_u32 s{sT0}, s{sT0}, s{sT2}")
    e(f"v_add_f32 v{t0}, v{t0}, v{t1}")
    e(f"v_bfi_b32 v{t0}, s{sFF}, v{t4}, v{t0}")
    e(I(f"buffer_store_dword v{t0}, v{t5}, {srd(sWS)}, s{sT0} offen sc1","stat"))
    e(ts("statpub"))
    UA=SP; RR=SP+32; TR=SP+40; TI=SP+44; TN=SP+48
    def acc(uw,ri,t): return UA+((uw*2+ri)*2+t)*4
    vVS=V.a("vVS"); vZ=V.a("vZ"); vZ2=V.a("vZ2")
    fillD=[[f"v_lshlrev_b32 v{t0}, 4, v{vG}"]+[f"ds_bpermute_b32 v{RR+4*t+r}, v{t0}, v{RS+t} offset:{4*r}" for t in range(2) for r in range(4)]]
    fillD+=[[f"v_permlane16_swap_b32 v{ZA+8*c+r}, v{ZA+8*c+4+r}" for r in range(2*h,2*h+2)] for c in range(3) for h in range(2)]
    fillD+=[[f"s_lshr_b32 s{sT0}, s{sR}, 1", f"s_bfe_u32 s{sT1}, s{sI}, 0x10002", f"s_lshl_b32 s{sT1}, s{sT1}, 1", f"s_xor_b32 s{sT0}, s{sT0}, s{sT1}", f"v_xor_b32 v{t1}, s{sT0}, v{vG}"],
            [f"v_lshlrev_b32 v{t1}, 4, v{t1}", f"v_mul_u32_u24 v{t2}, {VP}, v{vN}"],
            [f"s_lshr_b32 s{sT0}, s{sJ}, 1", f"s_lshl_b32 s{sT0}, s{sT0}, 6", f"s_add_u32 s{sT0}, s{sT0}, s{sZ}", f"s_lshl_b32 s{sT0}, s{sT0}, 2", f"s_add_u32 s{sT0}, s{sT0}, s{sR}",
             f"s_lshl_b32 s{sT0}, s{sT0}, 6", f"v_add3_u32 v{vVS}, v{t1}, v{t2}, s{sT0}"]]
    fillD+=[[f"v_lshrrev_b32 v{t1}, 5, v{vL}", f"s_lshl_b32 s{sT0}, s{sFH}, 1", f"v_add_u32 v{t1}, s{sT0}, v{t1}"],
            [f"s_bfe_u32 s{sT0}, s{sI}, 0x10001", f"v_lshl_add_u32 v{t2}, v{t1}, 1, s{sT0}", f"v_and_b32 v{t3}, 7, v{vL}"],
            [f"v_xor_b32 v{t2}, v{t2}, v{t3}", f"v_lshlrev_b32 v{t2}, 4, v{t2}"],
            [f"v_lshl_add_u32 v{t2}, v{t1}, 10, v{t2}", f"v_bfe_u32 v{t3}, v{vL}, 3, 2"],
            [f"v_mul_u32_u24 v{t3}, 98304, v{t3}", f"s_mul_i32 s{sT0}, s{sJ}, 393216", f"s_lshl_b32 s{sT1}, s{sSH}, 14", f"s_add_u32 s{sT0}, s{sT0}, s{sT1}",
             f"s_lshr_b32 s{sT1}, s{sI}, 3", f"s_lshl_b32 s{sT1}, s{sT1}, 12", f"s_add_u32 s{sT0}, s{sT0}, s{sT1}",
             f"s_and_b32 s{sT1}, s{sI}, 7", f"s_lshl_b32 s{sT1}, s{sT1}, 7", f"s_add_u32 s{sT0}, s{sT0}, s{sT1}", f"v_add3_u32 v{vZ}, v{t2}, v{t3}, s{sT0}"],
            [f"v_add_u32 v{t1}, 8, v{t1}", f"v_cmp_gt_u32 s[{sHM}:{sHM+1}], s{sNOCT}, v{t1}"],
            [f"v_mov_b32 v{t1}, {OOB}"], [f"v_cndmask_b32 v{vZ2}, v{t1}, v{vZ}, s[{sHM}:{sHM+1}]"]]
    fillD+=[f"v_mov_b32 v{t4}, s{sSIG}", f"s_mov_b32 s{sCNT}, 0"]
    bd=bg(SD); fillD=flat(mix(bd, fillD) if len(bd)>len(fillD) else mix(fillD, bd))
    fD=lambda var: gsched([([],fftv(var),[],[])], [(0,62,fillD)])
    def fftv(var):
        o=[]; seen=set()
        tab={0:[((0,0),(0,1)),((1,0),(1,1)),((0,0),(0,1)),((1,0),(1,1))],
             1:[((0,0),(0,1)),((1,1),(0,0)),((1,0),(1,1)),((0,1),(1,0))],
             3:[((0,0),(0,1)),((0,1),(1,0)),((1,0),(1,1)),((1,1),(0,0))]}[var]
        for ks in range(16):
            D,k=divmod(ks,4)
            for which,base in ((0,aFC),(1,aFS)):
                uw,ri=tab[D][which]
                for t in range(2):
                    d=acc(uw,ri,t); o.append(mm(d, v(xf(ks,t),4), a(base+4*k,4), d not in seen)); seen.add(d)
        return o
    e(f"s_cmp_eq_u32 s{sR}, 1"); e("s_cbranch_scc1 L_f1"); e(f"s_cmp_eq_u32 s{sR}, 3"); e("s_cbranch_scc1 L_f3")
    e(Var([fD(0)+["s_nop 6","s_branch L_fj"], ["L_f1:"]+fD(1)+["s_nop 6","s_branch L_fj"], ["L_f3:"]+fD(3)+["s_nop 7"]]))
    e("L_fj:")
    e(ts("fftm"))
    C0=C; C=[]; e=C.append
    for ri in range(2):
        for t in range(2):
            for h in range(2):
                u=acc(0,ri,t)+2*h; w_=acc(1,ri,t)+2*h
                e(f"v_pk_fma_f32 {v(u,2)}, {v(t4,2)}, {v(w_,2)}, {v(u,2)} op_sel_hi:[0,1,1]")
    for ri in range(2):
        for t in range(2):
            for h in range(2):
                u=acc(0,ri,t)+2*h; e(f"v_pk_mul_f32 {v(u,2)}, {v(u,2)}, {v(RR+4*t+2*h,2)}")
    for t in range(2):
        for h in range(2):
            u=acc(0,0,t)+2*h; e(f"v_cvt_pk_bf16_f32 v{TR+2*t+h}, v{u}, v{u+1}"); e(f"v_cvt_pk_bf16_f32 v{TN+2*t+h}, -v{u}, -v{u+1}")
            u=acc(0,1,t)+2*h; e(f"v_cvt_pk_bf16_f32 v{TI+2*t+h}, v{u}, v{u+1}")
    VA=SP+16
    for th in range(2):
        e(mm(VA+8*th, v(TR,4), a(aAC+4*th,4), True)); e(mm(VA+8*th+4, v(TI,4), a(aAC+4*th,4), True))
        e(mm(VA+8*th, v(TI,4), a(aAS+4*th,4), False)); e(mm(VA+8*th+4, v(TN,4), a(aAS+4*th,4), False))
    VK=SP+32
    for th in range(2):
        for r in range(4): e(f"v_cvt_pk_bf16_f32 v{VK+4*th+r}, v{VA+8*th+r}, v{VA+8*th+4+r}")
    dt=flat(C); C=C0; e=C.append
    e(mix(dt, bg(SD2)))
    for th in range(2):
        e(f"s_mov_b32 s{sT3}, {VB+th*16*VP}")
        e(I(f"buffer_store_dwordx4 {v(VK+4*th,4)}, v{vVS}, {srd(sWS)}, s{sT3} offen sc1","z2n"))
    e(ts("fft"))
    PL=SP; ZP=SP+16
    sn=[sNON,sN1,sN2,sN3]
    chk=[f"v_xor_b32 v{t0}, s{sNON}, v{PL}", f"v_xor_b32 v{t1}, s{sN1}, v{PL+1}"]
    chk+=[f"v_bitop3_b32 v{t0+k%2}, v{PL+k}, s{sn[k%4]}, v{t0+k%2} bitop3:0xbe" for k in range(2,16)]
    chk+=[f"v_bitop3_b32 v{t0}, v{t0}, v{t1}, s{sFF} bitop3:0xa8", f"v_cmp_ne_u32 vcc, 0, v{t0}"]
    assert "p1" in done
    e(W("vm","st13")); e("L_r1:"); e([f"v_accvgpr_read_b32 v{PL+k}, a{aPL+k}" for k in range(16)]); e(chk); e("s_cbranch_vccnz L_s1"); e("L_b1:")
    SLOW.extend(["L_s1:", f"s_add_u32 s{sCNT}, s{sCNT}, 1", f"s_cmp_ge_u32 s{sCNT}, {SPIN}", "s_cbranch_scc1 L_b1"]+poll1()+["s_waitcnt vmcnt(0)", "s_branch L_r1"])
    e(ts("s1"))
    C0=C; C=[]; e=C.append
    for h in range(2):
        e(f"v_pk_add_f32 {v(PL+2*h,2)}, {v(PL+2*h,2)}, {v(PL+4+2*h,2)}"); e(f"v_pk_add_f32 {v(PL+8+2*h,2)}, {v(PL+8+2*h,2)}, {v(PL+12+2*h,2)}")
    for h in range(2): e(f"v_pk_add_f32 {v(PL+2*h,2)}, {v(PL+2*h,2)}, {v(PL+8+2*h,2)}")
    e(f"v_permlane16_swap_b32 v{PL}, v{PL+2}"); e(f"v_permlane16_swap_b32 v{PL+1}, v{PL+3}")
    e(f"v_pk_add_f32 {v(PL+4,2)}, {v(PL,2)}, {v(PL+2,2)}"); e(f"v_pk_add_f32 {v(PL,2)}, {v(PL,2)}, {v(PL+2,2)}")
    e(f"v_permlane32_swap_b32 v{PL}, v{PL+4}"); e(f"v_permlane32_swap_b32 v{PL+1}, v{PL+5}")
    e(f"v_pk_add_f32 {v(PL,2)}, {v(PL,2)}, {v(PL+4,2)}")
    e(f"v_mul_f32 v{t0}, {fl(-1/688)}, v{PL}"); e(f"v_mul_f32 v{t1}, v{t0}, v{t0}"); e(f"v_sub_f32 v{t1}, {fl(1e-5)}, v{t1}")
    e(f"v_fmamk_f32 v{t1}, v{PL+1}, {fl(1/688)}, v{t1}"); e(f"v_max_f32 v{t1}, {fl(1e-5)}, v{t1}")
    e(f"v_rsq_f32 v{t2}, v{t1}"); e(f"v_mul_f32 v{t3}, v{t0}, v{t2}")
    dt=flat(C); C=C0; e=C.append
    e(mix(dt, bg(SE)))
    for c in range(3):
        for k in range(4):
            z=ZA+8*c+2*k; e(f"v_pk_fma_f32 {v(z,2)}, {v(z,2)}, {v(t2,2)}, {v(t2,2)} op_sel:[0,0,1] op_sel_hi:[1,0,1]")
        for k in range(4):
            z=ZA+8*c+2*k; e(f"v_cvt_pk_bf16_f32 v{ZP+4*c+k}, v{z}, v{z+1}")
        e(f"s_mov_b32 s{sT3}, {Z2N+c*32768}")
        e(I(f"buffer_store_dwordx4 {v(ZP+4*c,4)}, v{vZ2 if c==2 else vZ}, {srd(sWS)}, s{sT3} offen sc1","z2n"))
    e(ts("z2npub"))
    V.f("vVS","vZ","vZ2")
    vFO=V.a("vFO"); vBT=V.a("vBT")
    e(f"v_lshlrev_b32 v{t0}, 2, v0"); e(f"v_cmp_gt_u32 vcc, 32, v0"); e(f"v_mov_b32 v{t1}, {OOB}"); e(f"v_mov_b32 v{vNV}, s{sNON}"); e(f"v_cndmask_b32 v{vFO}, v{t1}, v{t0}, vcc")
    if 'b0' not in SF+SG+SG2+(SS or ''): e(bg('b0'))
    vZL=V.a("vZL"); vP8=V.a("vP8"); vPC=V.a("vPC")
    e(f"v_and_b32 v{t0}, {8 if SPM else 16}, v{vL}"); e(f"v_mul_u32_u24 v{t0}, {STGW//(8 if SPM else 16)}, v{t0}")
    for k in range(4): e(f"v_sub_u32 v{rb[k]}, v{ra[k]}, v{t0}")
    done.append("rb")
    e(f"s_lshl_b32 s{sT0}, s{sJ}, 2"); e(f"s_add_u32 s{sT0}, s{sT0}, s{sW}"); e(f"s_lshr_b32 s{sT1}, s{sRX}, 10"); e(f"s_xor_b32 s{sT1}, s{sT1}, s{sT0}"); e(f"s_mul_i32 s{sT1}, s{sT1}, 98304"); e(f"v_add_u32 v{vZL}, s{sT1}, v{vL16}")
    e(f"s_lshl_b32 s{sRM}, s{sW}, 12")
    e(f"v_and_b32 v{t0}, 7, v{vL}"); e(f"v_lshlrev_b32 v{vP8}, 7, v{t0}")
    e(f"s_lshl_b32 s{sT0}, s{sT0}, 10"); e(f"s_add_u32 s{sT2}, s{sT0}, {F2}")
    e(f"s_lshl_b32 s{sT0}, s{sJ}, 5"); e(f"s_add_u32 s{sT0}, s{sT0}, s{sI}"); e(f"s_lshl_b32 s{sT0}, s{sT0}, 7"); e(f"s_add_u32 s{sT0}, s{sT0}, {F2}")
    e("s_barrier")
    assert 4<=FA<=FK<=12
    sa,sb,sc=SF.split("|"); assert "w14" not in sa and (FA<FK or not sb.strip())
    u1=flat(bg(sa)); u2=flat(bg(sb)); u3=flat(bg(sc))
    steps=[]; NF=cum(False)
    for ks in range(17):
        kk,kp=divmod(ks,2); pre=[]; rd=[]
        if ks<16: rd=rd_w(8+kk,kp)
        if ks==FA: pre=["s_barrier"]
        if ks==FK:
            pre=[W("vm","z2n"),"s_barrier"]
            u3=[f"buffer_store_dword v{vNV}, v{vFO}, {srd(sWS)}, s{sT0} offen sc1"]+([ts("s2flag")] if DIAGON else [])+u3
        if ks==12: pre=[W("vm","st15"),"s_barrier"]
        if ks==0: e(rd)
        else: steps.append((pre, mf_z(ks-1,False), rd, [W("lg","fr")] if ks<16 else []))
    e(gsched(steps, [(0,NF[FA-1]-1,u1+(exad(False) if SPL&2 else [])), (NF[FA-1],NF[FK-1]-1,u2), (NF[FK-1],int(NF[16]*FS),u3)], slack=SLK[1]))
    if SPL&2: e([W("lg","exw"),"s_barrier"]+exrd(False))
    V.f("XF","wd0","wd1","wd2","wa0","wa1","ONES")
    e(ts("z1gemm"))
    Z1=V.a("Z1",12)
    gl=(csadd if SPL&2 else [])+gelu(False); e(mix(gl, bg(SG), int(len(gl)*GS[0]), int(len(gl)*GS[1])))
    C0=C; C=[]; e=C.append
    for c in range(3):
        for t in range(2):
            for h in range(2):
                z=ZA+(c*2+t)*4+2*h; e(f"v_cvt_pk_bf16_f32 v{Z1+4*c+2*t+h}, v{z}, v{z+1}")
    for c in range(3):
        for h in range(2): e(f"v_permlane16_swap_b32 v{Z1+4*c+h}, v{Z1+4*c+2+h}")
    dt=flat(C); C=C0; e=C.append
    e(mix(dt, bg(SG2)))
    assert all(f"r{q}" in done for q in range(7)) and "c2" in done and ("s2" in done or 's' in XP)
    V.f("vT","ZA","SP","NM","K1","K0","IR","RS","vsp","ra0","ra1","ra2","ra3")
    za=[V.a(f"za{k}") for k in range(8)]; vRW=V.a("vRW"); vRR=V.a("vRR"); vH=V.a("vH"); vH2=V.a("vH2")
    e(ts("z1done"))
    C0=C; C=[]; e=C.append
    e(f"v_and_b32 v{t0}, 1, v{vG}"); e(f"v_xor_b32 v{t0}, s{sFH}, v{t0}"); e(f"v_and_b32 v{t1}, 1, v{vL}"); e(f"v_lshl_add_u32 v{t0}, v{t0}, 1, v{t1}")
    e(f"v_mul_u32_u24 v{t0}, {1024+32}, v{t0}")
    e(f"v_lshrrev_b32 v{t1}, 2, v{vN}"); e(f"v_lshl_add_u32 v{t0}, v{t1}, 7, v{t0}")
    e(f"v_lshrrev_b32 v{t1}, 3, v{vN}"); e(f"v_lshrrev_b32 v{t2}, 1, v{vG}"); e(f"v_xor_b32 v{t1}, v{t1}, v{t2}"); e(f"v_lshl_add_u32 v{t0}, v{t1}, 4, v{t0}")
    e(f"v_bfe_u32 v{t1}, v{vL}, 1, 1"); e(f"v_lshl_add_u32 v{t0}, v{t1}, 3, v{t0}")
    e(f"s_bfe_u32 s{sT0}, s{sRX}, 0x70003"); e(f"v_xor_b32 v{t0}, s{sT0}, v{t0}")
    e(f"v_lshl_add_u32 v{za[0]}, s{sFH}, 13, v{t0}")
    for k in range(1,4): e(f"v_xor_b32 v{za[k]}, {32*k}, v{za[0]}")
    for k in range(4): e(f"v_add_u32 v{za[4+k]}, {4*SL}, v{za[k]}")
    e(f"s_lshl_b32 s{sT0}, s{sW}, 11"); e(f"s_add_u32 s{sT0}, s{sT0}, {RED}"); e(f"v_mad_u32_u24 v{vRR}, v{vL}, {4*WM}, s{sT0}")
    e(f"v_xor_b32 v{vRW}, 2048, v{vRR}")
    e(f"v_and_b32 v{t0}, 1, v{vG}"); e(f"v_lshlrev_b32 v{t0}, 13, v{t0}"); e(f"v_lshl_add_u32 v{t0}, v{vN}, 4, v{t0}")
    e(f"v_lshrrev_b32 v{t1}, 1, v{vG}"); e(f"v_lshl_add_u32 v{t0}, v{t1}, 8, v{t0}")
    e(f"s_mul_i32 s{sT0}, s{sI}, 98304"); e(f"s_lshl_b32 s{sT1}, s{sSH}, 14"); e(f"s_add_u32 s{sT0}, s{sT0}, s{sT1}"); e(f"s_lshl_b32 s{sT1}, s{sFH}, 9"); e(f"s_add_u32 s{sT0}, s{sT0}, s{sT1}")
    e(f"s_lshl_b32 s{sT1}, s{sJ}, 10"); e(f"s_add_u32 s{sT1}, s{sT1}, s{sT0}"); e(f"v_add_u32 v{vH}, s{sT1}, v{t0}")
    e(f"s_mul_i32 s{sT1}, s{sJ}, 768"); e(f"s_min_u32 s{sT1}, s{sT1}, {20*256}"); e(f"s_add_u32 s{sT1}, s{sT1}, s{sT0}"); e(f"v_add_u32 v{t0}, s{sT1}, v{t0}")
    e(f"v_mov_b32 v{t1}, {OOB}"); e(f"v_cndmask_b32 v{vH2}, v{t1}, v{t0}, s[{sHM}:{sHM+1}]")
    AC=V.a("AC0",16); AC1=V.a("AC1",16); ACS=[AC,AC1]; ZF=V.a("ZF",32); RD=V.a("RD",8); HP=V.a("HP",4); HT=V.a("HT",8); BZ=V.a("BZ",8)
    vWO=V.a("vWO"); wo=[[V.a(f"wo{r}{p}") for p in range(4)] for r in range(2)]
    e(f"v_lshrrev_b32 v{t0}, 3, v{vL}"); e(f"v_and_b32 v{t1}, 2, v{t0}"); e(f"v_and_b32 v{t2}, 7, v{vL}")
    e(f"s_lshl_b32 s{sT0}, s{sFH}, 2"); e(f"v_bitop3_b32 v{t1}, v{t1}, v{t2}, s{sT0} bitop3:0x96")
    e(f"v_lshlrev_b32 v{t1}, 4, v{t1}"); e(f"v_lshl_add_u32 v{t1}, v{t0}, 10, v{t1}")
    e(f"s_lshl_b32 s{sT0}, s{sW}, 6"); e(f"s_add_u32 s{sT0}, s{sT0}, s{sJ}"); e(f"s_lshl_b32 s{sT0}, s{sT0}, 7"); e(f"v_add_u32 v{vWO}, s{sT0}, v{t1}")
    if 'c' in XP: e(f"s_mul_i32 s{sT0}, s{sJ}, 86"); e(f"s_add_u32 s{sT0}, s{sT0}, s{sW}"); e(f"s_lshl_b32 s{sT0}, s{sT0}, 10"); e(f"v_add_u32 v{vWO}, s{sT0}, v{vL16}")
    e(f"v_lshlrev_b32 v{t0}, 12, v{vG}"); e(f"v_lshrrev_b32 v{t1}, 2, v{vN}"); e(f"v_lshl_add_u32 v{t0}, v{t1}, 7, v{t0}")
    e(f"v_and_b32 v{t1}, 3, v{vL}"); e(f"v_lshl_add_u32 v{t0}, v{t1}, 3, v{t0}"); e(f"v_lshrrev_b32 v{t1}, 3, v{vN}"); e(f"v_lshl_add_u32 v{t0}, v{t1}, 5, v{t0}")
    e(f"v_and_b32 v{t1}, 1, v{vG}"); e(f"v_lshl_add_u32 v{t0}, v{t1}, 6, v{t0}"); e(f"v_add_u32 v{wo[1][0]}, {2*SL}, v{t0}")
    for ct in range(1,4): e(f"v_xor_b32 v{wo[1][ct]}, {32*ct}, v{wo[1][0]}")
    for ct in range(4): e(f"v_add_u32 v{wo[0][ct]}, {4*SL}, v{wo[1][ct]}")
    TW=V.a("TW",16); H0=V.a("H0",32); H1=V.a("H1",32); OA=V.a("OA",16); va=[V.a(f"va{k}") for k in range(4)]; WR=H0
    vPA=V.a("vPA"); vPV=V.a("vPV"); vHL=V.a("vHL"); vHL5=V.a("vHL5")
    sMI,sRHO,sVB,sFP,sFS=sXM,sSTM,sWM,sN1,sN2
    e([f"s_cmp_ge_u32 s{sJ}, 4", f"s_cselect_b32 s{sMI}, -1, 0"]); e(f"s_and_b32 s{sT0}, s{sMI}, 0x80000000"); e(f"s_or_b32 s{sT0}, s{sT0}, {fl(1/2048)}")
    e(f"s_lshl_b32 s{sT1}, s{sFH}, 10"); e(f"s_add_u32 s{sT1}, s{sT1}, s{sZ}")
    e(f"v_lshl_add_u32 v{t0}, v{vN}, 6, s{sT1}"); e(f"v_cvt_f32_u32 v{t0}, v{t0}"); e(f"v_mul_f32 v{t0}, s{sT0}, v{t0}")
    e(f"v_lshlrev_b32 v{t1}, 2, v{vG}"); e(f"v_cvt_f32_u32 v{t1}, v{t1}"); e(f"v_mul_f32 v{t1}, v{t1}, v{t0}")
    for kv in range(4):
        for q in range(4):
            e(f"v_fmamk_f32 v{WR+q}, v{t0}, {fl(16*kv+q)}, v{t1}")
        for q in range(4): e(f"v_cos_f32 v{WR+4+q}, v{WR+q}"); e(f"v_sin_f32 v{WR+q}, v{WR+q}")
        for q in range(4): e(f"v_cvt_pk_bf16_f32 v{TW+4*kv+q}, v{WR+4+q}, v{WR+q}")
    if Z6: e(f"s_sub_u32 s{sN3}, 11, s{sNOCT}"); e(f"s_lshl_b32 s{sN3}, s{sN3}, 10")
    e(f"s_xor_b32 s{sT0}, s{sI}, s{sMI}"); e(f"s_sub_u32 s{sT0}, s{sT0}, s{sMI}"); e(f"s_and_b32 s{sT0}, s{sT0}, 31"); e(f"s_mul_i32 s{sVB}, s{sT0}, {VP}"); e(f"s_add_u32 s{sVB}, s{sVB}, {VB}")
    e(f"s_xor_b32 s{sRHO}, s{sJ}, s{sMI}"); e(f"s_and_b32 s{sRHO}, s{sRHO}, 3")
    e(f"v_and_b32 v{t4}, 1, v{vG}"); e(f"v_lshlrev_b32 v{t4}, {5 if VF else 1}, v{t4}"); e(f"v_lshlrev_b32 v{t5}, 10, v{vG}"); e(f"v_add_u32 v{t5}, {VL}, v{t5}")
    for ct in range(4):
        e(f"v_add_u32 v{t0}, {16*ct}, v{vN}"); e(f"v_xor_b32 v{t0}, s{sMI}, v{t0}"); e(f"v_subrev_u32 v{t0}, s{sMI}, v{t0}")
        if VF:
            e(f"v_and_b32 v{t1}, 0x12, v{t0}"); e(f"v_lshl_add_u32 v{t1}, v{t1}, 3, v{t5}"); e(f"v_and_b32 v{t2}, 1, v{t0}"); e(f"v_lshl_add_u32 v{t1}, v{t2}, 6, v{t1}")
            e(f"v_bitop3_b32 v{t2}, v{t0}, 44, v{t4} bitop3:0x6a"); e(f"v_add_u32 v{va[ct]}, v{t1}, v{t2}")
            continue
        e(f"v_bfe_u32 v{t1}, v{t0}, 4, 2"); e(f"v_bfe_u32 v{t2}, v{t0}, 1, 1"); e(f"v_bitop3_b32 v{t1}, v{t1}, v{t2}, v{t4} bitop3:0x96")
        e(f"v_lshl_add_u32 v{t1}, v{t1}, 4, v{t5}"); e(f"v_and_b32 v{t2}, 3, v{t0}"); e(f"v_lshl_add_u32 v{t1}, v{t2}, 6, v{t1}")
        e(f"v_and_b32 v{t2}, 12, v{t0}"); e(f"v_add_u32 v{va[ct]}, v{t1}, v{t2}")
    e(f"v_bfe_u32 v{t0}, v{vN}, 2, 1"); e(f"v_lshlrev_b32 v{t0}, 5, v{t0}"); e(f"v_lshl_add_u32 v{t0}, v{vN}, 8, v{t0}"); e(f"v_add_u32 v{vPA}, s{sRM}, v{t0}")
    e(f"s_mul_i32 s{sT0}, s{sI}, 12"); e(f"s_add_u32 s{sT0}, s{sT0}, s{sW}"); e(f"s_lshl_b32 s{sT0}, s{sT0}, 13"); e(f"v_add_u32 v{vHL}, s{sT0}, v{vL16}")
    e(f"v_cmp_gt_u32 vcc, 32, v{vL}"); e(f"v_mov_b32 v{t1}, {OOB}"); e(f"v_lshlrev_b32 v{t0}, 7, v{vL}"); e(f"v_cndmask_b32 v{vHL5}, v{t1}, v{vHL}, vcc"); e(f"v_cndmask_b32 v{vP8}, v{t1}, v{t0}, vcc")
    if VF:
        assert not PX[0]
        e(f"v_bfe_u32 v{t0}, v{vL}, 3, 1"); e(f"v_xor_b32 v{t0}, v{t0}, v{vL}"); e(f"v_lshlrev_b32 v{t1}, 3, v{vL}"); e(f"v_bfi_b32 v{t0}, 8, v{t1}, v{t0}"); e(f"v_lshlrev_b32 v{vP8}, 4, v{t0}")
    if PX[1]:
        e(f"s_and_b32 s{sT0}, s{sI}, 7"); e(f"s_lshl2_add_u32 s{sT0}, s{sT0}, s{sW}"); e(f"s_mul_i32 s{sT0}, s{sT0}, 22"); e(f"v_min_u32 v{t2}, 21, v{vL}"); e(f"v_add_lshl_u32 v{t2}, v{t2}, s{sT0}, 10")
    setup=C; C=C0; e=C.append
    assert NP>=5
    pro=[]
    for t in (SS or " ".join(f"z{g}" for g in range(NP) if f"z{g}" not in done)).split():
        u=bg(t)
        if t=="z4": assert "r7" in done; u[0]=[W("lg","spr7"),"s_barrier"]+u[0]
        if t=="r7": u=[u[k:k+2] for k in range(0,8,2)]
        pro+=u
    assert f"z{NP-1}" in done and f"z{NP}" not in done
    sm_=flat([pro[0], mix(setup, pro[1:], 0, int(len(setup)*SFR))]); tx_=lambda x: x.text if isinstance(x,I) else x if isinstance(x,str) else ""
    k7=[k for k,x in enumerate(sm_) if isinstance(x,I) and x.tag=="spr7"]
    assert not k7 or not any(tx_(x).split(",")[0].endswith(tuple(f" v{r}" for r in rb)) for x in sm_[:k7[-1]])
    e(sm_)
    nst=[f"s_cmp_eq_u32 s2, 0", f"s_cselect_b32 s{sT0}, 0, {OOB}", f"buffer_store_dword v{vNV}, v{vFO}, {srd(sWS)}, s{sT0} offen sc1"]
    def zrd(x):
        g,k=divmod(x,4); sl=g%NS; r_=za[k+4*(sl//4)]; of=(sl%4)*SL
        r=[I(f"ds_read_b64_tr_b16 {v(ZF+8*(x%4)+2*n,2)}, v{r_} offset:{of+(n//2)*4096+(n%2)*512}", f"zr{x}") for n in range(4)]
        if k==0: r[0]=[W("vm",f"z{g}")]+([] if 'b' in XP and g else ["s_barrier"])+[r[0]]
        return r
    def wo_lds(kap): return (8,9,3,5,6,2)[kap//4]*SL+(kap%4)*1024
    def wo_dma(kap):
        r=[f"s_add_u32 m0, s{sRM}, {wo_lds(kap)}"]
        if 'c' in XP: r.append(f"s_mov_b32 s{sT3}, {kap*4096}")
        elif kap<16:
            r.append(f"s_mov_b32 s{sT3}, {(f0(kap%8)+32*(kap//8))*1024}")
        elif kap<21:
            k=kap-16
            r+=[f"s_add_u32 s{sT3}, s{sW}, {4*k}", f"s_mul_i32 s{sT3}, s{sT3}, 43", f"s_lshr_b32 s{sT3}, s{sT3}, 7", f"s_lshl_b32 s{sT3}, s{sT3}, 16", f"s_add_u32 s{sT3}, s{sT3}, {(32*k+64)*1024}"]
        else: r.append(f"s_mov_b32 s{sT3}, {672*1024}")
        return r+[I(f"buffer_load_dwordx4 v{vWO}, {srd(sWOUT)}, s{sT3} offen {NT} lds", f"wo{kap}")]
    def red_wr(c):
        return [I(f"ds_write_b{32*WM} v{vRW}, {v(ACS[c%2]+8+WM*x,WM)} offset:{x*256*WM}", f"rw{c}") for x in range(8//WM)]
    def red_rd(c):
        if WM==1: return [f"ds_read2st64_b32 {v(RD+2*x,2)}, v{vRR} offset0:{2*x} offset1:{2*x+1}" for x in range(4)]
        return [f"ds_read_b{32*WM} {v(RD+WM*x,WM)}, v{vRR} offset:{x*256*WM}" for x in range(8//WM)]
    def red_own(c, pk):
        A=ACS[c%2]
        if pk: return [f"v_pk_fma_f32 {v(A+2*k,2)}, {v(A+2*k,2)}, {v(HT+2*k,2)}, {v(BZ+2*k,2)}" for k in range(4)]
        return [f"v_fma_f32 v{A+k}, v{A+k}, v{HT+k}, v{BZ+k}" for k in range(8)]
    def red_alu(c, pk):
        o=[]; A=ACS[c%2]
        if pk: o+=[f"v_pk_fma_f32 {v(A+2*k,2)}, {v(RD+2*k,2)}, {v(HT+2*k,2)}, {v(A+2*k,2)}" for k in range(4)]
        else: o+=[f"v_fmac_f32 v{A+k}, v{RD+k}, v{HT+k}" for k in range(8)]
        for k in range(4): o.append(f"v_cvt_pk_bf16_f32 v{HP+k}, v{A+2*k}, v{A+2*k+1}")
        return o
    def z1_unp(c):
        return [x for k in range(4) for x in (f"v_lshlrev_b32 v{HT+2*k}, 16, v{Z1+4*c+k}", f"v_and_b32 v{HT+2*k+1}, 0xffff0000, v{Z1+4*c+k}")]+([f"v_lshlrev_b32 v{vBT}, 16, v{vBT}"] if c==0 else [])+[f"v_mul_f32 v{BZ+k}, v{vBT}, v{HT+k}" for k in range(8)]
    def h_st(c):
        return [f"s_mov_b32 s{sT0}, {HB+c*32768}", I(f"buffer_store_dwordx4 {v(HP,4)}, v{vH2 if c==2 else vH}, {srd(sWS)}, s{sT0} offen sc1", f"h{c}")]
    vdma=[[f"s_lshl_b32 s{sT1}, s{sRHO}, 14", f"s_add_u32 m0, s{sRM}, {VL}", f"s_add_u32 s{sT1}, s{sT1}, s{sRM}", f"s_add_u32 s{sT1}, s{sT1}, s{sVB}",
           I(f"buffer_load_dwordx4 v{vP8 if VF else vL16}, {srd(sWS)}, s{sT1} offen sc1 lds","v")]]
    vdma+=[I(f"buffer_load_dwordx4 v{vP8 if VF else vL16}, {srd(sWS)}, s{sT1} offen offset:{1024*k} sc1 lds","v") for k in range(1,4)]
    vdma+=[[f"s_sub_u32 s{sT1}, s{sRHO}, s{sMI}", f"s_and_b32 s{sT1}, s{sT1}, 3", f"s_lshl_b32 s{sT1}, s{sT1}, 14", f"s_add_u32 s{sT1}, s{sT1}, s{sVB}"],
           [f"s_cmp_eq_u32 s{sJ}, 0", f"s_cselect_b32 s{sT1}, {OOB}, s{sT1}", f"buffer_load_dword v{vPV}, v{vPA}, {srd(sWS)}, s{sT1} offen sc1"]]
    def hld(c, dst, sKW=sKW):
        return [([f"s_mov_b32 s{sKW}, {HB+c*32768+k*1024}"] if k%4==0 else [])+[I(f"buffer_load_dwordx4 {v(dst+4*k,4)}, v{vHL5 if (c,k)==(2,5) else vHL}, {srd(sWS)}, s{sKW} offen offset:{(k%4)*1024} sc1", f"hl{c}")] for k in range(8 if c<2 else 6)]
    HH=[H0,H1]
    def wrd(kap, d):
        rg=0 if wo_lds(kap)>=6*SL else 1; ko=wo_lds(kap)-(2*SL if rg else 6*SL)
        return [f"ds_read_b64_tr_b16 {a(d+ct*4+2*r,2)}, v{wo[rg][ct]} offset:{ko+r*512}" for ct in range(4) for r in range(2)]
    def vrd(kv,d):
        if 'v' in XP: return wrd(kv,d)
        return [f"ds_read2st64_b32 {a(d+ct*4+2*r,2)}, v{va[ct]} offset0:{16*kv+2*r} offset1:{16*kv+2*r+1}" for ct in range(4) for r in range(2)]
    tst=[("w",k) for k in range(8)]+[("v",k) for k in range(4)]+[("w",k) for k in range(8,22)]
    def rds(n):
        if n>=26: return []
        ty,k=tst[n]; return vrd(k,16*(n%16)) if ty=="v" else wrd(k,16*(n%16))
    def mms(n):
        ty,k=tst[n]; B = v(TW+4*k,4) if ty=="v" else v(HH[k//8]+4*(k%8),4)
        return [mm(OA+4*ct, a(16*(n%16)+4*ct,4), B, False) for ct in range(4)]
    def hchk(c):
        H=HH[c]; n=8 if c<2 else 6; nm=f"h{c}"
        ck=[f"v_max3_i32 v{t0}, v{H}, v{H+4}, v{H+8}"]+[f"v_max3_i32 v{t0}, v{t0}, v{H+4*k}, v{H+4*k+4}" for k in range(3,n-1,2)]+[f"v_max_i32 v{t0}, v{t0}, v{H+4*n-4}", f"v_cmp_eq_u32 vcc, {SENT}, v{t0}"]
        SLOW.extend([f"L_s{nm}:", f"s_add_u32 s{sCNT}, s{sCNT}, 1", f"s_cmp_ge_u32 s{sCNT}, {SPIN}", f"s_cbranch_scc1 L_b{nm}"]+flat(hld(c,H,sT3))+["s_waitcnt vmcnt(0)", f"s_branch L_r{nm}"])
        return [f"s_mov_b32 s{sCNT}, 0", W("vm",f"hl{c}"), f"L_r{nm}:"]+ck+[f"s_cbranch_vccnz L_s{nm}", f"L_b{nm}:"]+ts(f"xck{c}")
    e(ts("p2pro"))
    e(zrd(0)); e(zrd(1))
    if LW: e(zrd(2))
    ex={y:[] for y in range(193)}; dx={y:[] for y in range(193)}
    def spread(units, y0, per, d=None):
        for k,u in enumerate(units): (ex if d is None else d)[min(192,y0+int(k/per))].append(u)
        return y0+int((len(units)-1)/per)
    yy=0.; LA=4+2*LW
    def put(u, lo, dr):
        nonlocal yy
        yy=max(yy,lo); y=2*int((yy+1e-6)/2)
        while any(g0<=y<g0+2*GAP[2] for g0 in GAP[:2]): y+=2; yy+=2
        dx[min(y,192)].append(u); yy+=dr
    for k in range(W1): put(wo_dma(k), 0, DR[0])
    lead=[]; hq=hld(0,H0)
    for G in range(NP,24):
        for o in range(4):
            if zdma(G,o): put([] if 'd' in XP else zdma(G,o), 8*(G-NS+2)-LA+2, DR[G>=16])
        if G>=16 and W1<8: put(wo_dma(W1), 0, DR[1]); W1+=1
        elif G>=16 and yy>=HL[0]: put(hq.pop(0), 0, DR[1])
        lead.append(8*G-LA-int(yy))
    zend=2*int((yy+1)/2); info_lead=(lead,zend)
    oa=[x for k in range(8) for x in (f"v_lshlrev_b32 v{OA+2*k}, 16, v{RES+k}", f"v_and_b32 v{OA+2*k+1}, 0xffff0000, v{RES+k}")]
    spread(oa+z1_unp(0), 3, .625)
    for c in range(2):
        b=64*(c+1)
        if 'r' in XP: continue
        yw=spread([[]] if 'w' in XP else red_wr(c), b+RW, 1/WS)
        yb=b+8-LA
        while yb<yw+2: yb+=8
        ex[yb-1].append(W("lg",f"rw{c}"))
        spread(red_own(c,False), b+RW+2, 2)
        spread(red_rd(c), yb, 1); ye=spread(red_alu(c,False), max(yb+len(red_rd(c))+1,b+RW+6), 2); dx[(ye+1)|1].append(h_st(c))
        spread(z1_unp(c+1), ye+3, .5)
    dx[PX[2]].append(nst)
    if PX[0]: dx[PX[0]].append([f"s_lshl_b32 s{sT2}, s{sRHO}, 14", f"s_add_u32 s{sT2}, s{sT2}, s{sRM}", f"s_add_u32 s{sT2}, s{sT2}, s{sVB}", f"buffer_load_dword v{vPC}, v{vP8}, {srd(sWS)}, s{sT2} offen sc1"])
    if PX[1]: dx[PX[1]].append([f"s_lshl_b32 s{sT2}, s{sJ}, 7", f"buffer_load_dword v{t3}, v{t2}, {srd(sWOUT)}, s{sT2} offen"])
    assert NS==7 and W1==8
    ex[HL[1]].append(hchk(0))
    free=lambda g: 8*(g+2)-LA+2
    grp={'H':(hq,HL[0]), 'V':(vdma[:4]+[vdma[4]+vdma[5]],max(free(18),HL[1]+1)), 'W8':([wo_dma(k) for k in range(8,12)],free(17)),
         'W12':([wo_dma(k) for k in range(12,16)],free(19)), 'W16':([wo_dma(k) for k in range(16,20)],free(20)), 'J':(hld(1,H1),0)}
    for t in TQ.split()+[t for t in ('J','W16') if t not in TQ.split()]:
        for u in grp[t][0]: put(u, grp[t][1], DR[2])
    info_lead+=(yy,len(dx[192]))
    rq=[(n,r) for n in range(26) for r in rds(n)]
    for y in range(192):
        x,q=divmod(y,2); g,k=divmod(x,4); c=g//8; d=ACS[c%2]
        if q==0 and not LW: e(W("lg",f"zr{x}"))
        if q==0 and LW and x%2==0: e(W("lg",f"zr{x+1}"))
        e(f"v_mfma_f32_32x32x16_bf16 {v(d,16)}, {v(ZF+4*(y%8),4)}, {a(((k*2+q)*8+g%8)*4,4)}, {'0' if y%64==0 else v(d,16)}")
        e(dx[y])
        if x+2+LW<96: e(zrd(x+2+LW)[1:] if q else zrd(x+2+LW)[0])
        else: e([rq.pop(0)[1] for _ in range(PFN)])
        e(ex[y])
        if P2S and q==1 and x in P2S: e(ts(f"x{x}"))
    e(ts("xp2"))
    V.f("ZF","vZL","AC1","RES",*[f"za{k}" for k in range(8)])
    H2=V.a("H2",24); HH.append(H2); WR=V.a("WR",8); vO=V.a("vO")
    rest=dx[192]; assert not ex[192]
    fin=[f"v_and_b32 v{t1}, 1, v{vG}", f"v_lshlrev_b32 v{t1}, 5, v{t1}", f"v_lshrrev_b32 v{t2}, 1, v{vG}", f"v_lshl_add_u32 v{t1}, v{t2}, 4, v{t1}",
         f"s_lshl_b32 s{sT0}, s{sFH}, 10", f"s_add_u32 s{sT0}, s{sT0}, s{sZ}", f"s_lshl_b32 s{sT0}, s{sT0}, 3", f"s_add_u32 s{sT0}, s{sT0}, s{sJ}", f"s_lshl_b32 s{sT0}, s{sT0}, 7",
         f"v_lshlrev_b32 v{t2}, 16, v{vN}", f"v_add3_u32 v{vO}, v{t2}, v{t1}, s{sT0}"]
    tx={g:[] for g in range(-1,105)}; ty={g:[] for g in range(-1,105)}
    assert not any(isinstance(x,I) and x.tag in ("wo15","v") for x in flat(rest)), "V / w8-11 must be issued inside the loop"
    tx[TRD[0]].append(red_wr(2)); tx[TB2-3].append([f"v_add_u32 v{vPA}, {VL}, v{vPA}", I(f"ds_write_b32 v{vPA}, v{vPV}","vp")])
    ty[TB2].append([W("vm","wo15"), W("lg","vp"), "s_barrier"]+ts("xb2"))
    for k,u in enumerate(red_own(2,True)): tx[TRD[0]+1+k//2].append(u)
    ty[TRD[1]].append([W("lg","rw2"), "s_barrier"]+red_rd(2)+ts("xbr"))
    ty[TRD[2]].append(red_alu(2,True)+h_st(2)+ts("xh2st"))
    g=T1[0]
    for k,u in enumerate(rest+[wo_dma(20),wo_dma(21)]):
        if k>=len(rest): g=max(g,TRD[1]+1)
        if k==T1[2]: g=max(g,TRD[2]+1)
        tx[int(g)].append(u); g+=T1[1]
    assert g-T1[1]<T2[0] and int(g-T1[1])<TB
    for k,u in enumerate(hld(2,H2)): tx[T2[0]+int(k*T2[1])].append(u)
    ty[TB].append([W("vm","wo21"), "s_barrier"]+ts("xbb"))
    ty[47].append(hchk(1)); ty[79].append(hchk(2))
    for k,u in enumerate(fin): tx[88+k].append(u)
    rdy=lambda n: -1 if n<8 else TB2+1 if n<20 else TB+1
    lk=[]
    for g in range(-1,104):
        if g>=0: e(mms(g//4)[g%4])
        e(tx[g])
        for _ in range(RPG.get(g,2)):
            if rq and rdy(rq[0][0])<=g and rq[0][0]-g//4<TA: e(rq.pop(0)[1])
        e(ty[g])
        if rq: lk.append((208-len(rq))//2-g-1); assert lk[-1]>0
    info_lead+=(lk[::4],)
    e(ts("xg3"))
    for p in range(2):
        for k in range(4): e(f"v_cvt_pk_bf16_f32 v{WR+4*p+k}, v{OA+8*p+2*k}, v{OA+8*p+2*k+1}")
    for p in range(2):
        for k in range(2): e(f"v_permlane16_swap_b32 v{WR+4*p+k}, v{WR+4*p+2+k}")
        e(f"buffer_store_dwordx4 {v(WR+4*p,4)}, v{vO}, {srd(sOUT)}, 0 offen offset:{64*p} {OST}")
    if DIAGON:
        e(ts("xst")); e(W("vm0")); e(ts("end"))
        e(f"v_mov_b32 v{t0}, 0")
        for k in range(nts[0]): e(f"v_writelane_b32 v{t0}, s{sTS+1+k if k else sTS}, {k}")
        e("s_memrealtime s[6:7]"); e("s_waitcnt lgkmcnt(0)"); e(f"v_writelane_b32 v{t0}, s100, 40"); e(f"v_writelane_b32 v{t0}, s6, 41")
        e(f"s_lshl_b32 s{sT0}, s2, 2"); e(f"s_add_u32 s{sT0}, s{sT0}, s{sW}"); e(f"s_lshl_b32 s{sT0}, s{sT0}, 8"); e(f"s_add_u32 s{sT0}, s{sT0}, {DIAG}")
        e(f"v_lshlrev_b32 v{t1}, 2, v{vL}")
        e(f"buffer_store_dword v{t0}, v{t1}, {srd(sWS)}, s{sT0} offen")
    if DBG is not None:
        e("s_memrealtime s[6:7]"); e(f"s_load_dwordx2 s[{sBSP}:{sBSP+1}], s[0:1], 88"); e("s_waitcnt lgkmcnt(0)")
        e(f"s_mov_b32 s{sBSP+2}, 256"); e(f"s_mov_b32 s{sBSP+3}, 0x20000")
        e(f"v_subrev_u32 v{t0}, s{sTS}, v{t0}"); e("s_sub_u32 s6, s6, s100"); e(f"v_writelane_b32 v{t0}, s6, 3")
        e(f"s_lshl_b32 s{sT0}, s2, 2"); e(f"s_add_u32 s{sT0}, s{sT0}, s{sW}"); e(f"s_cmp_eq_u32 s{sT0}, {DBG*4}"); e(f"s_cselect_b32 s{sT0}, 0, {OOB}")
        e(f"v_subrev_u32 v{t1}, 12, v{t1}"); e(f"v_min_u32 v{t1}, {OOB}, v{t1}")
        e(f"buffer_store_dword v{t0}, v{t1}, {srd(sBSP)}, s{sT0} offen")
    e("L_end:"); e("s_endpgm")
    for x in SLOW: e(Raw(x.text if isinstance(x,I) else x))
    st=St(); out=[]; run(C,st,out)
    ref=open("stub.txt").read()
    head=ref[:ref.index(NAME+":")].replace("grid=(4096,1,1) block=(256,1,1) lds=0","grid=(256,1,1) block=(256,1,1) lds=163840")
    tail=ref[ref.index(".section .rodata"):].replace("next_free_vgpr 256","next_free_vgpr 512")
    body="\n".join(x if x.endswith(":") else "    "+x for x in out)
    info=dict(n=len(out), maxvm=st.maxvm, nops=st.nops, peak=V.peak, lead=info_lead, ts=tsn)
    return head+NAME+":\n"+body+"\n"+tail, info

if __name__=="__main__":
    kw={}
    for x in sys.argv[2:]:
        k,val=x.split("="); kw[k]=eval(val)
    s,info=gen(**kw); open(sys.argv[1],"w").write(s); print(info)
```

```python
import sys, struct, math
from fw import *
NAME="parallel_sum__spectral_fnet__mixer_gmlp__prompt_kernel"
def fl(x): return "0x%08x" % struct.unpack("<I", struct.pack("<f", x))[0]
F2=0x1000; F3=0x80000; STATS=0x40000; Z2N=0x100000; VB=0x400000; VP=65536+256; HB=0x700000; DIAG=0xA00000; WSSZ=0xB00000
OOB=0x7ff00000; SENT=0x7f817f81
WB=0; XB=73728; STG=73728; STGW=21760; RED=114688; VL=65536; TRB=114688
sX,sWIN,sWSP,sWOUT,sOUT,sWS,sBSP = 8,12,16,20,24,28,32
sI,sJ,sW,sSH,sFH,sF0,sNOCT,sNON,sR,sXM,sWM,sT0,sT1,sT2,sT3,sSIG,sCNT,sSTM,sRM,sZ = range(36,56)
sN1,sN2,sN3,sFF,sHM = 56,57,58,59,60
sMA,sMB = 62,64
sROT,sKX,sKW = 3,4,5
sTS=66; sSC=92
def srd(b): return f"s[{b}:{b+3}]"
def v(b,k=1): return f"v{b}" if k==1 else f"v[{b}:{b+k-1}]"
def a(b,k=1): return f"a{b}" if k==1 else f"a[{b}:{b+k-1}]"
def f0(j): return 88*j - (8 if j==7 else 0)

def gen(OF=0, XM=None, JX=0, VF=1, Z6=1, CR=1, RI=(), QN=8, SW='', SWN=(0,99), TI='', TK={}, TCN='', MAPB=2, NT="", DIAGON=False, SPIN=20000, PF=2, PRE=4, DBG=None, ROT=(1,4,0,1), NS=7, NP=7, GAP=(0,0,0), RW=1, FX=(105,175), PX=(0,0,69), VR=.5, FN=5, PN=15, WL=1, CN=4, P2S=False, IST=False, IFR=1.0, DEP=4, SB='w10', SC0='w11', SC='h0 w12 h1 h2 s1 s2', SD='w13 h3 h4 r0 h5 p1', SD2='h6 r1', SE='h7', SF='h8 r2 | w14 w15 | h9 h10 r3 h11 h12 r4 p2', SG='h13 h14 r5 h15 c2 z0', SG2='r6', FK=7, FA=4, TQ='H W8 W12 V J', TA=8, TB2=20, TB=63, T1=(2,2,0), T2=(48,1), TRD=(1,7,11), PFN=4, RPG={-1:0,0:0}, HL=(110,171), SK=(5,), OST='nt', SPL=1, SS='z1 z2 r7 z3 z4 z5 z6', SFR=0.9, XK=(2,3), HS=None, HN=(3,4,3,3,4,3,3,3), XW=(2,17,2,12), TS=None, WM=4, WS=1, XP='', W1=6, DR=(2,2,2), LW=1, XSP=0, SPM=1, RF=(0,2), SLK=(3,3), RX=(-1,2,-1), GS=(0,1.), FS=1., BARS=(0,1,2,3,4,5,6,7)):
    V=Alloc(256); C=[]; e=C.append
    nts=[0]; tsn=[]; SLOW=[]
    def ts(name):
        if not DIAGON or (TS and name not in TS.split() and (name[0]!='x' or ('xB' in TS and name[1]!='a') or 'x0' in TS)): return []
        if name[0]=='x':
            k=nts[0]; nts[0]+=1; tsn.append(name); assert k<25
            return [Raw(f"s_getreg_b32 s{sTS+1+k}, hwreg(HW_REG_SHADER_CYCLES)")] if 0 else [Raw(f"s_mov_b32 s{sTS+1+k}, s6"), Raw("s_memtime s[6:7]")]
        k=nts[0]; nts[0]+=1; tsn.append(name); assert k<25
        return [W("lg0"), f"s_memtime s[6:7]", "s_waitcnt lgkmcnt(0)", f"s_mov_b32 s{sTS+1+k}, s6"]
    V.at("tid",0,1)
    XF=V.at("XF",128,128)
    e("s_cmp_ge_u32 s2, 256"); e("s_cbranch_scc1 L_end")
    for s,o in ((sX,0),(sWIN,48),(sWS,96),(sWSP,56),(sBSP,64),(sWOUT,72),(sOUT,80)):
        e(f"s_load_dwordx2 s[{s}:{s+1}], s[0:1], {o}")
    if DIAGON:
        e(f"s_memtime s[{sTS}:{sTS+1}]"); nts[0]=1; tsn.append("start")
        e("s_memrealtime s[100:101]")
    vL=V.a("L"); vN=V.a("n"); vG=V.a("g"); vL16=V.a("L16")
    t0=V.a("t0",2); t1=t0+1; t2=V.a("t2",2); t3=t2+1; t4=V.a("t4",2); t5=t4+1; t6=V.a("t6",2); t7=t6+1
    pf=[f"s_getpc_b64 s[6:7]", "L_pc:", f"s_lshr_b32 s{sT3}, s2, 3", f"s_mul_i32 s{sT3}, s{sT3}, 1280", f"v_lshrrev_b32 v{t6}, 4, v0", f"v_min_u32 v{t6}, 9, v{t6}", f"v_lshl_add_u32 v{t6}, v{t6}, 7, s{sT3}", f"v_min_u32 v{t6}, L_end-L_pc, v{t6}", f"global_load_dword v{t7}, v{t6}, s[6:7]"]
    if PF==2: e(pf)
    if PF==3:
        e(["s_cmp_ge_u32 s2, 16", "s_cbranch_scc1 L_npf", f"s_getpc_b64 s[6:7]", "L_pc:", f"v_lshlrev_b32 v{t6}, 7, v0", f"v_min_u32 v{t6}, L_end-L_pc, v{t6}", Raw(f"global_load_dword v{t7}, v{t6}, s[6:7]"), "L_npf:"])
    if PF==4:
        e([f"s_getpc_b64 s[6:7]", "L_pc:", f"s_bfe_u32 s{sT3}, s2, 0x20003", f"s_lshl_b32 s{sT3}, s{sT3}, 13", f"v_lshrrev_b32 v{t6}, 2, v0", f"v_lshl_add_u32 v{t6}, v{t6}, 7, s{sT3}", f"v_min_u32 v{t6}, L_end-L_pc, v{t6}", f"global_load_dword v{t7}, v{t6}, s[6:7]"])
    e(f"v_lshrrev_b32 v{t0}, 6, v0")
    e(f"v_and_b32 v{vL}, 63, v0")
    e(f"v_readfirstlane_b32 s{sW}, v{t0}")
    if XM:
        e(f"s_and_b32 s{sT0}, s2, 7"); e(f"s_lshl_b32 s{sT0}, s{sT0}, 2"); e(f"s_lshr_b32 s{sT0}, {sum((x^k)<<(4*k) for k,x in enumerate(XM))}, s{sT0}"); e(f"s_and_b32 s{sT0}, s{sT0}, 7"); e(f"s_xor_b32 s2, s2, s{sT0}")
    if MAPB==2:
        e(f"s_bfe_u32 s{sT0}, s2, 0x20001"); e(f"s_lshl_b32 s{sT0}, s{sT0}, 3")
        e(f"s_lshr_b32 s{sT1}, s2, 5"); e(f"s_add_u32 s{sI}, s{sT0}, s{sT1}")
        e(f"s_and_b32 s{sT0}, s2, 1"); e(f"s_lshl_b32 s{sT0}, s{sT0}, 2")
        e(f"s_bfe_u32 s{sT1}, s2, 0x20003"); e(f"s_add_u32 s{sJ}, s{sT0}, s{sT1}")
        if JX: e(f"s_xor_b32 s{sJ}, s{sJ}, {JX}")
    else:
        e(f"s_and_b32 s{sT0}, s2, 7"); e(f"s_lshl_b32 s{sT0}, s{sT0}, 2")
        e(f"s_lshr_b32 s{sT1}, s2, 6"); e(f"s_add_u32 s{sI}, s{sT0}, s{sT1}")
        e(f"s_bfe_u32 s{sJ}, s2, 0x30003")
    e(f"v_and_b32 v{vN}, 15, v0"); e(f"v_bfe_u32 v{vG}, v0, 4, 2"); e(f"v_lshlrev_b32 v{vL16}, 4, v{vL}")
    e(f"s_lshr_b32 s{sSH}, s{sW}, 1"); e(f"s_and_b32 s{sFH}, s{sW}, 1")
    e(f"s_mul_i32 s{sF0}, s{sJ}, 88"); e(f"s_cmp_eq_u32 s{sJ}, 7"); e(f"s_cselect_b32 s{sT0}, 8, 0"); e(f"s_sub_u32 s{sF0}, s{sF0}, s{sT0}")
    e(f"s_cmp_lt_u32 s{sJ}, 6"); e(f"s_cselect_b32 s{sNOCT}, 11, 10")
    for s,n in ((sX,2097152),(sWIN,512*2752),(sWS,WSSZ),(sWSP,8388608),(sBSP,4096),(sWOUT,688*1024),(sOUT,2097152)):
        e(f"s_mov_b32 s{s+2}, {n}"); e(f"s_mov_b32 s{s+3}, 0x20000")
    if isinstance(ROT,tuple):
        si,mi,mj,mx=ROT
        e(f"s_lshr_b32 s{sROT}, s{sI}, {si}"); e(f"s_mul_i32 s{sROT}, s{sROT}, {mi}")
        if mj: e(f"s_mul_i32 s{sT0}, s{sJ}, {mj}"); e(f"s_add_u32 s{sROT}, s{sROT}, s{sT0}")
        if mx: e(f"s_mul_i32 s{sT0}, s2, {mx}"); e(f"s_add_u32 s{sROT}, s{sROT}, s{sT0}")
        e(f"s_and_b32 s{sROT}, s{sROT}, 7")
    elif ROT:
        if MAPB==2: e(f"s_lshl_b32 s{sROT}, s{sJ}, 1"); e(f"s_add_u32 s{sROT}, s{sROT}, s{sI}")
        else: e(f"s_lshl_b32 s{sROT}, s{sI}, 1"); e(f"s_add_u32 s{sROT}, s{sROT}, s{sJ}")
        e(f"s_and_b32 s{sROT}, s{sROT}, 7")
    else: e(f"s_mov_b32 s{sROT}, 0")
    xd0=V.a("xd0"); xd1=V.a("xd1")
    e(f"s_lshl_b32 s{sT0}, s{sFH}, 10"); e(f"s_lshl_b32 s{sT1}, s{sSH}, 5"); e(f"s_add_u32 s{sZ}, s{sT1}, s{sI}")
    e(f"s_add_u32 s{sT0}, s{sT0}, s{sZ}"); e(f"s_lshl_b32 s{sT2}, s{sT0}, 10")
    e(f"v_lshrrev_b32 v{t0}, 3, v{vL}"); e(f"v_and_b32 v{t1}, 7, v{vL}"); e(f"v_xor_b32 v{t1}, v{t1}, v{vG}")
    e(f"v_lshlrev_b32 v{t1}, 4, v{t1}"); e(f"v_lshl_add_u32 v{t1}, v{t0}, 16, v{t1}"); e(f"v_add_u32 v{xd0}, s{sT2}, v{t1}")
    e(f"v_xor_b32 v{xd1}, 64, v{xd0}"); e(f"v_add_u32 v{xd1}, {8*65536-1024}, v{xd1}")
    e(f"s_lshl_b32 s{sXM}, s{sW}, 11"); e(f"s_add_u32 s{sXM}, s{sXM}, {XB}")
    e(f"s_mul_i32 s{sWM}, s{sW}, 3072")
    wd=[V.a(f"wd{q}") for q in range(3)]
    e(f"s_mul_i32 s{sT0}, s{sW}, {16*2752}"); e(f"s_lshl_b32 s{sT1}, s{sF0}, 1"); e(f"s_add_u32 s{sT0}, s{sT0}, s{sT1}"); e(f"s_add_u32 s{sT0}, s{sT0}, 1376")
    e(f"s_lshl_b32 s{sKX}, s{sROT}, 7")
    e(f"v_mov_b32 v{t4}, {OOB}")
    for q in range(3):
        if q: e(f"v_add_u32 v{t0}, {64*q}, v{vL}")
        idx = t0 if q else vL
        e(f"v_mul_u32_u24 v{t1}, 171, v{idx}"); e(f"v_lshrrev_b32 v{t1}, 11, v{t1}")
        e(f"v_mad_i32_i24 v{t2}, v{t1}, -12, v{idx}")
        if q==1:
            e(f"v_lshrrev_b32 v{t3}, 2, v{t1}"); e(f"v_and_b32 v{t3}, 2, v{t3}"); e(f"v_xor_b32 v{t2}, v{t2}, v{t3}")
        if q==2: e(f"v_xor_b32 v{t2}, 2, v{t2}")
        e(f"v_cmp_gt_u32 vcc, s{sNOCT}, v{t2}")
        e(f"v_mul_u32_u24 v{t1}, 2752, v{t1}"); e(f"v_lshl_add_u32 v{t1}, v{t2}, 4, v{t1}")
        if q: e(f"s_sub_u32 s{sT0}, s{sT0}, 1024")
        e(f"v_add_u32 v{t1}, s{sT0}, v{t1}")
        e(f"v_cndmask_b32 v{wd[q]}, v{t4}, v{t1}, vcc")
    for n in range(1,8): e(f"s_mov_b32 s{sSC+n}, {n*(524288 if SPM else 1048576)-(n%4)*1088}")
    e("s_waitcnt lgkmcnt(0)")
    e(ts("karg"))
    adv=lambda q: [f"s_add_u32 s{sKX}, s{sKX}, 128", f"s_and_b32 s{sKX}, s{sKX}, 0x380"] if q else []
    def issue_x(kk):
        return [[f"s_add_u32 m0, s{sXM}, {kk*8192}"]+adv(kk)+
                [I(f"buffer_load_dwordx4 v{xd0}, {srd(sX)}, s{sKX} offen {NT} lds", f"st{kk}")],
                I(f"buffer_load_dwordx4 v{xd1}, {srd(sX)}, s{sKX} offen offset:1024 {NT} lds", f"st{kk}")]
    def issue_w(q):
        return [([f"v_subrev_u32 v{wd[k]}, 1376, v{wd[k]}" for k in range(3)] if q==8 else [])+(adv(q) if q>=8 else [])+[f"s_add_u32 m0, s{sWM}, {WB+(q%6)*12288}", f"s_mul_i32 s{sKW}, s{sKX}, 1376"]+
                [I(f"buffer_load_dwordx4 v{wd[0]}, {srd(sWIN)}, s{sKW} offen {NT} lds", f"st{q}")],
                I(f"buffer_load_dwordx4 v{wd[1]}, {srd(sWIN)}, s{sKW} offen offset:1024 {NT} lds", f"st{q}"),
                I(f"buffer_load_dwordx4 v{wd[2]}, {srd(sWIN)}, s{sKW} offen offset:2048 {NT} lds", f"st{q}")]
    dmas=[]; vNV=V.a('vNV')
    sent=lambda c: [f"s_add_u32 s{sSC}, s{sSC}, {32768 if c else HB}", I(f"buffer_store_dwordx4 a[188:191], v{vL16}, {srd(sWS)}, s{sSC} offen sc1",f"sent{c}")]
    vT=V.a('vT')
    def touch(n):
        r=255-n; sA=61
        if n>=10:
            u,q=divmod(n-10,4); r=255-u; o=touch(u)
            return o[:8]+[f"s_add_u32 s{sA}, s{sA}, {q<<21}"]+[x.replace("0x7c0080","0x1c0080").replace(f"a{r},",f"a{247-(n-10)},") for x in o[8:]]
        if n==7: return [f"s_and_b32 s{sA}, s{sI}, 7", f"s_lshl2_add_u32 s{sA}, s{sA}, s{sW}", f"s_mul_i32 s{sA}, s{sA}, 176", f"s_add_u32 s{sA}, s{sA}, s{sJ}", f"s_lshl_b32 s{sA}, s{sA}, 7", f"v_min_u32 v{vT}, 21, v{vL}", f"v_lshl_add_u32 v{vT}, v{vT}, 10, s{sA}"]
        if n==8: return [f"buffer_load_dword v{vT}, v{vT}, {srd(sWOUT)}, 0 offen {TCN}"]
        if n==9: return touch(3)[:-1]
        if n==5: return [x.replace(srd(sX),srd(sOUT)).replace("a251","a250") for x in touch(4)]
        if n==6: return [f"v_lshlrev_b32 v{vT}, 7, v{vL}", f"buffer_load_dword a{r}, v{vT}, {srd(sBSP)}, 0 offen {TCN}"]
        if n<2: return [f"s_and_b32 s{sA}, s{sJ}, 3", f"s_lshl_b32 s{sA}, s{sA}, 1", f"s_lshr_b32 s60, s{sJ}, 2", f"s_xor_b32 s60, s60, {n}", f"s_add_u32 s{sA}, s{sA}, s60",
                        f"s_lshl3_add_u32 s{sA}, s{sFH}, s{sA}", f"s_lshl4_add_u32 s{sA}, s{sZ}, s{sA}", f"s_lshl_b32 s{sA}, s{sA}, 8",
                        f"v_lshlrev_b32 v{vT}, 18, v{vL}", f"v_lshl_add_u32 v{vT}, v{vL}, 2, v{vT}", f"v_and_b32 v{vT}, 0x7c0080, v{vT}", f"buffer_load_dword a{r}, v{vT}, {srd(sWSP)}, s{sA} offen {TCN}"]
        if n==4: return [f"s_lshl_b32 s{sA}, s{sFH}, 10", f"s_add_u32 s{sA}, s{sA}, s{sZ}", f"s_lshl3_add_u32 s{sA}, s{sA}, s{sJ}", f"s_lshl_b32 s{sA}, s{sA}, 7",
                        f"v_lshlrev_b32 v{vT}, 16, v{vN}", f"buffer_load_dword a{r}, v{vT}, {srd(sX)}, s{sA} offen {TCN}"]
        m,sr=(11,sWIN) if n==2 else (6,sWOUT)
        return [f"s_lshl2_add_u32 s{sA}, s2, s{sW}", f"s_mul_i32 s{sA}, s{sA}, {128*m}", f"v_min_u32 v{vT}, {m-1}, v{vL}", f"v_lshl_add_u32 v{vT}, v{vT}, 7, s{sA}", f"buffer_load_dword a{r}, v{vT}, {srd(sr)}, 0 offen {TCN}"]
    def stouch(c):
        ld=lambda b,o: Raw(f"s_load_dword s56, s[{b}:{b+1}], s61 offset:{o}")
        st=128 if c.islower() else 64
        if c in 'xX':
            o=[f"s_lshl2_add_u32 s60, s{sJ}, s{sW}", "s_lshl_b32 s60, s60, 6", f"s_add_u32 s60, s60, s{sI}"]
            for d in (4,6): o+=[f"s_add_u32 s61, s{sROT}, {d}", "s_and_b32 s61, s61, 6", "s_lshl3_add_u32 s61, s60, s61", "s_lshl_b32 s61, s61, 7"]+[ld(sX,r*32768+k) for r in range(2) for k in range(0,256,st)]
            return o
        if c in 'zZ': return [f"s_lshl1_add_u32 s60, s2, s{sSH}", "s_mul_i32 s60, s60, 2752", f"s_mul_i32 s61, s{sFH}, 704", "s_add_u32 s61, s61, s60"]+[ld(sWIN,k) for k in range(0,704,st)]
        if c in 'uU': return [f"s_lshl2_add_u32 s60, s2, s{sW}", "s_min_u32 s60, s60, 916", "s_mul_i32 s61, s60, 768"]+[ld(sWOUT,k) for k in range(0,768,st)]
        if c=='b': return ["s_lshr_b32 s60, s2, 3", f"s_lshl2_add_u32 s60, s60, s{sW}", "s_and_b32 s60, s60, 63", "s_lshl_b32 s61, s60, 6", ld(sBSP,0)]
        if c in 'pP':
            return [f"s_lshl2_add_u32 s60, s2, s{sW}", "s_lshl_b32 s61, s60, 13"]+[ld(sWSP,r*2048+k+q) for r in range(4) for q in (0,512) for k in range(0,128,st)]
    sq_=[x for c in SW for x in stouch(c)]
    def stake(p):
        o=[]; n=SWN[p] if p<len(SWN) else 0
        while sq_ and n: o.append(sq_.pop(0)); n-=isinstance(o[-1],Raw)
        return [o] if o else []
    e(stake(0))
    for kk in range(PRE):
        dmas+=issue_x(kk)+issue_w(kk)
        dmas+=stake(kk+1)
        dmas+=[touch(int(t[1:].split('@')[0])) for t in TI.split() if int((t+'@').split('@')[1] or PRE-1)==kk]
        if IST: dmas.append(ts(f"d{kk}"))
        if kk==PRE-1: dmas.append(f"buffer_load_dword v{vNV}, off, {srd(sWS)}, 0 sc1")
        if kk==0 and PF==1: dmas.append(pf)
    C0=C; C=[]; e=C.append
    xa=[V.a("xa0"),V.a("xa1")]; wa=[V.a("wa0"),V.a("wa1")]
    e(f"v_lshrrev_b32 v{t0}, 1, v{vN}"); e(f"v_xor_b32 v{t0}, v{t0}, v{vG}"); e(f"v_lshlrev_b32 v{t0}, 4, v{t0}")
    e(f"v_lshl_add_u32 v{t0}, v{vN}, 7, v{t0}")
    e(f"s_lshl_b32 s{sT0}, s{sSH}, 12"); e(f"s_add_u32 s{sT0}, s{sT0}, {XB}")
    sPI=sSIG
    e(f"s_xor_b32 s{sPI}, s{sSH}, s{sFH}"); e(f"s_lshl_b32 s{sT1}, s{sPI}, 6"); e(f"v_xad_u32 v{xa[0]}, v{t0}, s{sT1}, 0")
    e(f"v_add_u32 v{xa[0]}, s{sT0}, v{xa[0]}"); e(f"v_xor_b32 v{xa[1]}, 64, v{xa[0]}")
    e(f"v_lshrrev_b32 v{t0}, 2, v{vN}"); e(f"v_lshl_add_u32 v{t0}, v{vG}, 3, v{t0}"); e(f"v_mul_u32_u24 v{t0}, 192, v{t0}")
    e(f"v_and_b32 v{t1}, 1, v{vG}"); e(f"v_xor_b32 v{t1}, s{sFH}, v{t1}"); e(f"v_lshl_add_u32 v{t0}, v{t1}, 5, v{t0}")
    e(f"v_and_b32 v{t1}, 3, v{vL}"); e(f"v_lshl_add_u32 v{t0}, v{t1}, 3, v{t0}")
    e(f"s_mul_i32 s{sT0}, s{sPI}, 6144"); e(f"s_sub_u32 s{sT1}, 6144, s{sT0}"); e(f"v_add_u32 v{wa[0]}, s{sT0}, v{t0}"); e(f"v_add_u32 v{wa[1]}, s{sT1}, v{t0}")
    e(f"v_and_b32 v{t0}, 1, v{vL}"); e(f"v_cmp_ne_u32 s[{sMA}:{sMA+1}], 0, v{t0}")
    e(f"v_and_b32 v{t0}, 2, v{vL}"); e(f"v_cmp_ne_u32 s[{sMB}:{sMB+1}], 0, v{t0}")
    e(f"s_mov_b32 s{sCNT}, {SENT}")
    for k in range(4): e(f"v_accvgpr_write_b32 a{188+k}, s{sCNT}")
    e(f"s_mul_i32 s{sCNT}, s{sI}, 12"); e(f"s_add_u32 s{sCNT}, s{sCNT}, s{sW}"); e(f"s_lshl3_add_u32 s{sCNT}, s{sCNT}, s{sJ}"); e(f"s_lshl_b32 s{sSC}, s{sCNT}, 10")
    ONES=V.a("ONES",4)
    for k in range(4): e(f"v_mov_b32 v{ONES+k}, 0x3f803f80")
    SP=V.a("SP",52)
    aFC,aFS,aAC,aAS=192,208,224,232
    e(f"s_and_b32 s{sT0}, s{sJ}, 1"); e(f"s_lshl_b32 s{sT0}, s{sT0}, 1"); e(f"s_add_u32 s{sR}, s{sT0}, s{sFH}")
    e(f"s_lshr_b32 s{sT0}, s{sJ}, 1"); e(f"s_lshl_b32 s{sT0}, s{sT0}, 6"); e(f"s_add_u32 s{sT0}, s{sT0}, s{sR}")
    e(f"v_lshl_add_u32 v{t0}, v{vN}, 2, s{sT0}")
    e(f"v_subrev_u32 v{t0}, 1, v{t0}"); e(f"v_and_b32 v{t0}, 0xff, v{t0}"); e(f"v_add_u32 v{t0}, 1, v{t0}")
    e(f"v_cvt_f32_u32 v{t0}, v{t0}"); e(f"v_mul_f32 v{t0}, {fl(-1/512)}, v{t0}")
    e(f"s_lshl_b32 s{sT0}, s{sROT}, 6"); e(f"v_lshl_add_u32 v{t1}, v{vG}, 3, s{sT0}"); e(f"v_cvt_f32_u32 v{t1}, v{t1}"); e(f"v_mul_f32 v{t1}, v{t1}, v{t0}"); e(f"v_fract_f32 v{t1}, v{t1}")
    def sincos(step, base, k0, dc, ds, u):
        b=SP+8*(u%2)
        return [f"v_fmamk_f32 v{b}, v{step}, {fl(k0)}, v{base}", f"v_add_f32 v{b+1}, v{b}, v{step}",
                f"v_cos_f32 v{b+2}, v{b}", f"v_cos_f32 v{b+3}, v{b+1}", f"v_sin_f32 v{b+4}, v{b}", f"v_sin_f32 v{b+5}, v{b+1}",
                f"v_cvt_pk_bf16_f32 v{b+2}, v{b+2}, v{b+3}", f"v_accvgpr_write_b32 a{dc}, v{b+2}",
                f"v_cvt_pk_bf16_f32 v{b+4}, v{b+4}, v{b+5}", f"v_accvgpr_write_b32 a{ds}, v{b+4}"]
    e(f"s_mul_i32 s{sT0}, s{sPI}, {fl(32.)}"); e(f"v_fma_f32 v{t2}, v{t0}, s{sT0}, v{t1}"); e(f"v_fma_f32 v{t3}, -v{t0}, s{sT0}, v{t1}")
    if CR:
        R1=SP+40; R2=SP+42
        e(f"v_fmamk_f32 v{R1}, v{t0}, {fl(32.)}, v{t3}"); e(f"v_mul_f32 v{R2}, {fl(64.)}, v{t0}"); e(f"v_sub_f32 v{R1}, v{R1}, v{t2}")
        for R in (R2,R1): e(f"v_sin_f32 v{R+1}, v{R}"); e(f"v_cos_f32 v{R}, v{R}")
        rot=lambda d,b,R: [f"v_pk_mul_f32 {v(d,2)}, {v(b+2,2)}, {v(R,2)} op_sel:[0,1] op_sel_hi:[1,1]", f"v_pk_mul_f32 {v(d+2,2)}, {v(b,2)}, {v(R,2)} op_sel:[0,1] op_sel_hi:[1,1]",
                           f"v_pk_fma_f32 {v(d,2)}, {v(b,2)}, {v(R,2)}, {v(d,2)} op_sel_hi:[1,0,1] neg_lo:[0,0,1] neg_hi:[0,0,1]", f"v_pk_fma_f32 {v(d+2,2)}, {v(b+2,2)}, {v(R,2)}, {v(d+2,2)} op_sel_hi:[1,0,1]"]
        put=lambda b,k: [f"v_cvt_pk_bf16_f32 v{b}, v{b}, v{b+1}", f"v_cvt_pk_bf16_f32 v{b+2}, v{b+2}, v{b+3}", f"v_accvgpr_write_b32 a{aFC+k}, v{b}", f"v_accvgpr_write_b32 a{aFS+k}, v{b+2}"]
        for pr in range(4):
            b=SP+8*(pr%2)+2; q=SP+16+12*(pr%2)
            e(sincos(t0,t2,2*pr,0,0,pr)[:6]); e(rot(q,b,R1)); e(rot(q+4,b,R2)); e(rot(q+8,q,R2)); e(put(b,pr)); e(put(q,4+pr)); e(put(q+4,8+pr)); e(put(q+8,12+pr))
        e(f"v_cvt_f32_u32 v{t0}, v{vN}"); e(f"v_mul_f32 v{t0}, {fl(1/32)}, v{t0}")
        e(f"v_lshlrev_b32 v{t1}, 2, v{vG}"); e(f"v_cvt_f32_u32 v{t1}, v{t1}"); e(f"v_mul_f32 v{t1}, v{t1}, v{t0}")
        e(f"v_bfe_i32 v{t2}, v{vN}, 0, 1"); e(f"v_and_b32 v{t2}, 0x80008000, v{t2}")
        for pr in range(2):
            e(sincos(t0,t1,2*pr,aAC+pr,aAS+pr,pr))
            for m,k in (("0x80000000",4),(f"v{t2}",6),("0x80000000",2)):
                for r,d in ((2,aAC),(4,aAS)): e(f"v_xor_b32 v{SP+8*pr+r}, {m}, v{SP+8*pr+r}")
                for r,d in ((2,aAC),(4,aAS)): e(f"v_accvgpr_write_b32 a{d+k+pr}, v{SP+8*pr+r}")
    else:
        for ks in range(4):
            for pr in range(4): e(sincos(t0,t2+ks%2,32*ks+2*pr,aFC+4*ks+pr,aFS+4*ks+pr,pr))
        for th in range(2):
            e(f"v_add_u32 v{t0}, {16*th}, v{vN}"); e(f"v_cvt_f32_u32 v{t0}, v{t0}"); e(f"v_mul_f32 v{t0}, {fl(1/32)}, v{t0}")
            e(f"v_lshlrev_b32 v{t1}, 2, v{vG}"); e(f"v_cvt_f32_u32 v{t1}, v{t1}"); e(f"v_mul_f32 v{t1}, v{t1}, v{t0}")
            for pr in range(4): e(sincos(t0,t1,16*(pr//2)+2*(pr%2),aAC+4*th+pr,aAS+4*th+pr,pr))
    cons=flat(C); C=C0; e=C.append
    e(dmas[0]); e(mix(cons, dmas[1:], 0, int(len(cons)*IFR)))
    e(f"s_cmp_eq_u32 s{sR}, 0"); e(f"s_cselect_b32 s{sSIG}, 1.0, -1.0")
    e(ts("init"))
    ZA=V.a("ZA",24); CS=SP; SUM=SP+12; SQ=SP+20; WF=SP+28
    def xf(ks,t): return XF+(ks*2+t)*4
    def rd_x(ks):
        kk,kp=divmod(ks,2)
        return [I(f"ds_read_b128 {v(xf(ks,t),4)}, v{xa[kp]} offset:{kk*8192+t*2048}","fr") for t in range(2)]
    def rd_w(q,kp):
        sl=q%6; b=WF+12*kp
        return [I(f"ds_read_b64_tr_b16 {v(b+4*c+2*r,2)}, v{wa[kp]} offset:{sl*12288+r*768+c*64}","fr") for c in range(3) for r in range(2)]
    def mm(d,A,B,first): return f"v_mfma_f32_16x16x32_bf16 {v(d,4)}, {A}, {B}, {'0' if first else v(d,4)}"
    EX=160768
    def att(o,k,x): o[k]=flat([o[k],x])
    def mf_z(ks,stats):
        b=WF+12*(ks%2); f=ks==0; spl=SPL&(1 if stats else 2)
        sq=lambda f: [mm(SQ+4*t, v(xf(ks,t),4), v(xf(ks,t),4), f) for t in range(2)]
        sm=lambda f: [mm(SUM+4*t, v(ONES,4), v(xf(ks,t),4), f) for t in range(2)]
        mn=lambda c: [mm(ZA+(c*2+t)*4, v(b+4*c,4), v(xf(ks,t),4), f) for t in range(2)]
        cs=lambda c,f: [mm(CS+4*c, v(b+4*c,4), v(ONES,4), f)]
        if not spl: return (sq(f)+sm(f) if stats else [])+[x for c in range(3) for x in mn(c)+cs(c,f)]
        if ks<14:
            if stats: return sq(ks==1)+sm(ks==1)+mn(0)+mn(1)+mn(2) if ks%2 else [x for c in range(3) for x in mn(c)+cs(c,f)]
            return [x for c in range(3) for x in mn(c)+(cs(c,ks<2) if (c==2)==(ks%2) else [])]
        o=mn(0)+mn(1)+mn(2); n14=13 if stats else 9
        if ks==14: o=(sq(0)+sm(0) if stats else [])+cs(0,0)+cs(1,0)+cs(2,0)+o
        sel=lambda d,q: [f"v_cndmask_b32 v{d}, v{q}, v{q+1}, s[{sMA}:{sMA+1}]", f"v_cndmask_b32 v{d+1}, v{q+2}, v{q+3}, s[{sMA}:{sMA+1}]", f"v_cndmask_b32 v{d}, v{d}, v{d+1}, s[{sMB}:{sMB+1}]"]
        vc=lambda lo,hi: [f"s_mov_b32 vcc_lo, {lo}", f"s_mov_b32 vcc_hi, {hi}"]
        x=[]
        if stats: x=vc("0x00f0000f","0xf0000f00")+sel(SQ,SQ)+sel(SQ+4,SQ+4)+[f"v_cndmask_b32 v{SUM+t}, v{SUM+4*t}, v{SQ+4*t}, vcc" for t in range(2)]+[I(f"ds_write_b64 v{t2}, {v(SUM,2)}","exw")]
        x+=vc("0xf0f0f0f0","0xf0f0f0f0")+sel(SQ,CS)+sel(SQ+2,CS+4)+[f"v_cndmask_b32 v{SQ}, v{SQ}, v{SQ+2}, vcc"]+vc("0xff00ff00","0xff00ff00")+sel(SQ+2,CS+8)+[f"v_cndmask_b32 v{SQ}, v{SQ}, v{SQ+2}, vcc", I(f"ds_write_b32 v{t3}, v{SQ}","exw")]
        g0,g1=XW[:2] if stats else XW[2:]
        for k,u in enumerate(x):
            g=g0+k*(g1-g0)//len(x)-(n14 if ks==15 else 0)
            if 0<=g<len(o): att(o,g,u)
        return o
    exad=lambda stats: [f"s_mul_i32 s{sT1}, s{sW}, 768", f"s_add_u32 s{sT1}, s{sT1}, {EX}"]+([f"v_lshl_add_u32 v{t2}, v{vL}, 3, s{sT1}"] if stats else [])+[f"s_add_u32 s{sT1}, s{sT1}, 512", f"v_lshl_add_u32 v{t3}, v{vL}, 2, s{sT1}",
                        f"s_xor_b32 s{sT1}, s{sW}, 2", f"s_mul_i32 s{sT1}, s{sT1}, 768", f"s_add_u32 s{sT1}, s{sT1}, {EX+512}", f"v_lshl_add_u32 v{t5 if stats else t2}, v{vG}, 6, s{sT1}"]+(
                        [f"s_mul_i32 s{sT1}, s{sSH}, 1536", f"s_add_u32 s{sT1}, s{sT1}, {EX}", f"v_lshrrev_b32 v{t4}, 2, v{vN}", f"v_lshl_add_u32 v{t4}, v{t4}, 4, v{vN}", f"v_lshl_add_u32 v{t4}, v{t4}, 3, s{sT1}"] if stats else [])
    exrd=lambda stats: ([f"ds_read2_b64 {v(SQ,4)}, v{t4} offset1:96", f"v_xor_b32 v{t4}, 128, v{t4}", f"ds_read2_b64 {v(SQ+4,4)}, v{t4} offset1:96"] if stats else [])+[f"ds_read_b128 {v(WF+4*c,4)}, v{t5 if stats else t2} offset:{16*c}" for c in range(3)]
    csadd=[f"v_pk_add_f32 {v(CS+2*k,2)}, {v(CS+2*k,2)}, {v(WF+2*k,2)}" for k in range(6)]
    cum=lambda stats: [sum(len(mf_z(k,stats)) for k in range(n)) for n in range(17)]
    RES=V.a("RES",8)
    pend=[]; nxt=PRE; done=[]
    def bg(spec):
        o=[]
        for t in spec.split():
            k,n=t[0],int(t[1:]); assert t not in done; done.append(t)
            if k=='w':
                assert n==nxt or f"w{n-1}" in done; o+=issue_w(n)
            elif k=='h': o+=sp_half(n)
            elif k=='r': o+=sp_read(n)
            elif k=='p': o+=poll1() if n==1 else poll2()
            elif k=='c': o+=chk2()
            elif k=='z': o+=[zdma(n,q) for q in range(4)]
            elif k=='s':
                assert n==0 or f"s{n-1}" in done
                u=sent(n)
                if "r4" in done:
                    assert "r7" not in done; u=[u[0], I(u[1].text.replace("188:191","252:255"),u[1].tag)]
                    if "a252" not in done: done.append("a252"); u=[f"s_mov_b32 s{sN1}, {SENT}"]+[f"v_accvgpr_write_b32 a{252+x}, s{sN1}" for x in range(4)]+u
                o+=[u]
            elif k=='t': o+=[touch(n)]
            elif t=='u0': assert "rb" in done; o+=[[(Raw(x.text.replace("s56,","s7,").replace("s61",f"s{sN1}")) if isinstance(x,Raw) else x.replace("s60",f"s{sN1}").replace("s61",f"s{sN1}")) for x in stouch('U')]]
            elif t=='b1': assert "p2" not in done and "w15" in done and FK>=9; o+=[[f"s_lshl_b32 s{sN2}, s{sW}, 10", f"s_add_u32 m0, s{sN2}, 65536", I(f"buffer_load_dwordx4 v{vL16}, {srd(sBSP)}, s{sN2} offen lds","bl")]]
            elif t=='b2': assert "c2" in done and "r7" not in done; o+=[[f"v_and_b32 v{vBT}, 31, v{vL}", f"v_lshl_add_u32 v{vBT}, v{vBT}, 6, s{sZ}", f"v_lshl_add_u32 v{vBT}, v{vBT}, 1, 64", f"ds_read_u16 v{vBT}, v{vBT} offset:65472"]]
            elif k=='b': o+=[[f"v_and_b32 v{vBT}, 31, v{vL}", f"v_lshl_add_u32 v{vBT}, v{vBT}, 6, s{sZ}", f"v_lshlrev_b32 v{vBT}, 1, v{vBT}", f"buffer_load_ushort v{vBT}, v{vBT}, {srd(sBSP)}, 0 offen"]]
            elif k=='q':
                q,hh=divmod(n//10,2); assert "t19" not in done
                o+=[[f"s_and_b32 s60, s{sJ}, 3", f"s_lshl_b32 s60, s60, 7", f"s_add_u32 s60, s60, s{sZ}", f"s_lshl1_add_u32 s60, s60, s{sFH}", "s_lshl_b32 s60, s60, 11", f"s_xor_b32 s61, s{sXM}, {(q%2)*1024+(q//2)*256+hh*2097152+(n%2)*4194304}", "s_add_u32 s61, s61, s60"]
                    +[Raw(f"s_load_dword s7, s[{sWSP}:{sWSP+1}], s61 offset:{r*262144+c*64}") for r in range(2) for c in range(4)][:QN]]
            elif k=='n': o+=[[] for _ in range(n%100)]
        return o
    steps=[]; segs=[]; NB=cum(True); lq=[]
    for ks in range(17):
        kk,kp=divmod(ks,2); pre=[]; rd=[]
        if ks<16:
            if kp==0:
                pre=[W("vm",f"st{kk}"), "s_barrier"]
                if kk==0: pre=([Raw("s_waitcnt lgkmcnt(0)")] if SW else [])+pre+ts("st0")
                elif TS and 'xB' in TS: pre=[W("vm",f"st{kk}")]+ts(f"xa{kk}")+["s_barrier"] if 'xB1' in TS else ts(f"xa{kk}")+pre
                hi=min(kk+1+max(PRE,min(DEP,PRE+kk)), kk+5) if HS is None else HS[kk]; assert hi<=kk+6
                pend=[]
                while HN is None and nxt<hi:
                    pend+=(issue_x(nxt) if nxt<8 else [])+issue_w(nxt); nxt+=1
                for _ in range(HN[kk] if HN else 0):
                    if not lq: lq=(issue_x(nxt) if nxt<8 else [])+issue_w(nxt); nxt+=1; assert nxt<=kk+6
                    pend.append(lq.pop(0))
                    if 'B' in XP: pend[-1]=[I('s_nop 0',x.tag) if isinstance(x,I) else x for x in flat([pend[-1]])]
                assert kk==7 or nxt-bool(lq)>kk+1
                pend=flat(pend+bg(" ".join(f"s{c}" for c in range(len(SK)) if SK[c]==kk))+bg(TK.get(kk,'')))
                if kk==XK[0] and SPL&1: pend+=exad(True)
                if kk==XK[1]:
                    pend+=[f"v_lshrrev_b32 v{t0}, 1, v{vG}", f"v_lshrrev_b32 v{t1}, 1, v{vN}", f"v_xor_b32 v{t0}, v{t0}, v{t1}",
                    f"v_lshlrev_b32 v{t0}, 4, v{t0}", f"v_lshl_add_u32 v{t0}, v{vN}, 7, v{t0}", f"v_and_b32 v{t1}, 1, v{vG}",
                    f"v_lshl_add_u32 v{t0}, v{t1}, 3, v{t0}", f"s_sub_u32 s{sT0}, s{sJ}, s{sROT}", f"s_and_b32 s{sT0}, s{sT0}, 7", f"s_lshl_b32 s{sT0}, s{sT0}, 13", f"s_add_u32 s{sT0}, s{sT0}, s{sXM}", f"v_add_u32 v{t0}, s{sT0}, v{t0}",
                    f"v_xor_b32 v{t1}, 32, v{t0}", f"v_xor_b32 v{t6}, 64, v{t0}", f"v_xor_b32 v{t7}, 0x60, v{t0}"]
                if kk==7: pend+=[f"ds_read_b64 {v(RES+2*k,2)}, v{r}" for k,r in enumerate((t0,t1,t6,t7))]
                segs.append((NB[max(0,ks-1)], NB[ks+1]-1, pend))
            rd=rd_x(ks)+rd_w(kk,kp)
        if ks==16:
            assert not lq
            pre=[] if SPL&1 else [W("lg0"), W("vm","sent0"), "s_barrier"]; segs.append((NB[15], NB[16], flat(bg(SB))))
        if ks==0: e(pre); e(rd)
        else: steps.append((pre, mf_z(ks-1,True), rd, [W("lg","fr")] if ks<16 else []))
    e(gsched(steps, segs, slack=SLK[0]))
    if SPL&1: e([W("lg0"), W("vm","sent0"), "s_barrier"]+exrd(True)); assert nxt<=13 and "w13" not in done
    V.f("xd0","xd1","xa0","xa1")
    if TS and 'xB' in TS: e(ts("xa8"))
    e(ts("z2gemm"))
    vsp=V.a("vsp"); ra=[V.a(f"ra{k}") for k in range(4)]
    spinit=[f"v_xor_b32 v{t0}, v{vN}, v{vG}", f"v_lshlrev_b32 v{t0}, 4, v{t0}"]+([f"v_mul_u32_u24 v{t1}, 9, v{vG}", f"v_and_b32 v{t1}, 17, v{t1}", f"v_lshl_add_u32 v{t0}, v{t1}, 18, v{t0}"] if SPM else [f"v_lshl_add_u32 v{t0}, v{vG}, 18, v{t0}"])+[
            f"s_lshl_b32 s{sT0}, s{sZ}, 1", f"s_add_u32 s{sT0}, s{sT0}, s{sFH}", f"s_lshl_b32 s{sT0}, s{sT0}, 11", f"v_add_u32 v{vsp}, s{sT0}, v{t0}",
            f"s_mul_i32 s{sSTM}, s{sW}, {STGW}", f"s_add_u32 s{sSTM}, s{sSTM}, {STG}",
            f"v_bfe_u32 v{t0}, v{vL}, {1 if SPM else 2}, 3", f"v_mul_u32_u24 v{t0}, 1088, v{t0}"]+([f"v_lshrrev_b32 v{t1}, 3, v{vL}", f"v_bfi_b32 v{t1}, 1, v{vL}, v{t1}"] if SPM else [])+[f"v_and_b32 v{t1}, 3, v{t1 if SPM else vL}", f"v_lshl_add_u32 v{t0}, v{t1}, 8, v{t0}",
            f"v_lshl_add_u32 v{t0}, v{t1}, 4, v{t0}", f"v_lshrrev_b32 v{t1}, 5, v{vL}", f"v_lshl_add_u32 v{t0}, v{t1}, 7, v{t0}",
            f"v_add_u32 v{ra[0]}, s{sSTM}, v{t0}"]+[f"v_xor_b32 v{ra[k]}, {16*k}, v{ra[0]}" for k in range(1,4)]
    rb=[t4,t5,t6,t7]; sRX=sXM
    tab=sum(sum(((j>>b)&1)<<k for k,b in enumerate(RX) if b>=0)<<(4*j) for j in range(8))
    spinit+=[f"s_lshl_b32 s{sRX}, s{sJ}, 2", f"s_lshr_b32 s{sRX}, {tab}, s{sRX}", f"s_and_b32 s{sRX}, s{sRX}, 7"]+[x for r,m in ((sSH,RF[0]),(sFH,RF[1])) if m for x in (f"s_mul_i32 s{sT0}, s{r}, {m}", f"s_xor_b32 s{sRX}, s{sRX}, s{sT0}")]+[x for b,m in enumerate(RI) if m for x in (f"s_bfe_u32 s{sT0}, s{sI}, {0x10000+b}", f"s_mul_i32 s{sT0}, s{sT0}, {m}", f"s_xor_b32 s{sRX}, s{sRX}, s{sT0}")]+[f"s_lshl_b32 s{sRX}, s{sRX}, 8", f"v_add_u32 v{vsp}, s{sRX}, v{vsp}"]
    def sp_half(h):
        q,hh=divmod(h,2); kap,tb=divmod(q,2); o=[]
        assert h==0 or f"h{h-1}" in done
        off=lambda q: (q%2)*1024+(q//2)*256
        for k in range(4):
            n=4*hh+k
            u=[I(f"buffer_load_dwordx4 v{vsp}, {srd(sWSP)}, {f's{sSC+n}' if n else 0} offen offset:{k*1088} {NT} lds", f"sp{q}")]
            if XSP==1: u=[]
            if XSP==2: u=[I(f"buffer_load_dwordx4 v{vL16}, {srd(sWSP)}, s{sT2} offen offset:{k*1024} sc1 lds", f"sp{q}")]
            if k==0:
                if h>=5 and h%2:
                    assert f"r{(h-5)//2}" in done; u=[W("lg",f"spr{(h-5)//2}")]+u
                u=[f"s_add_u32 m0, s{sSTM}, {(h%5)*4352}"]+u
                if hh==0 and q: u=[f"v_xor_b32 v{vsp}, {off(q)^off(q-1)}, v{vsp}"]+u
            o.append(u)
        return o
    def sp_read(q):
        assert f"h{2*q+1}" in done
        h0=(2*q)%5; R=rb if h0==4 else ra
        assert h0<4 or "rb" in done
        r=[I(f"ds_read_b128 {a((q*8+x)*4,4)}, v{R[x%4]} offset:{h0*4352+(x//4)*64}", f"spr{q}") for x in range(8)]
        r[0]=[W("vm",f"sp{q}"), r[0]]
        return r
    aPL=240
    def poll1(): return [f"buffer_load_dwordx4 {a(aPL+4*k,4)}, v{vL16}, {srd(sWS)}, s{sT2} offen offset:{1024*k} sc1" for k in range(4)]
    def poll2(): return [f"buffer_load_dword v{vPC}, v{vP8}, {srd(sWS)}, s{sT2} offen sc1"]
    def slowchk(n):
        SLOW.extend([f"L_s{n}:", f"s_mov_b32 s{sCNT}, 0", f"L_l{n}:", f"buffer_load_dword v{vPC}, v{vP8}, {srd(sWS)}, s{sT2} offen sc1", "s_waitcnt vmcnt(0)",
                     f"v_cmp_ne_u32 vcc, s{sNON}, v{vPC}", f"s_cbranch_vccz L_b{n}", f"s_add_u32 s{sCNT}, s{sCNT}, 1", f"s_cmp_lt_u32 s{sCNT}, {SPIN}", f"s_cbranch_scc1 L_l{n}", f"s_branch L_b{n}"])
        return [f"v_cmp_ne_u32 vcc, s{sNON}, v{vPC}", f"s_cbranch_vccnz L_s{n}", f"L_b{n}:"]
    def chk2(): return [([W("vm","bl")] if "b1" in done else [])+slowchk("s2")+["s_barrier"]+ts("s2")]
    SL=16384
    def zdma(g,o):
        if g>=24 or (g>=16 and o==3): return []
        r=[]
        if o==0: r=[f"s_add_u32 m0, s{sRM}, {(g%NS)*SL}", f"s_mov_b32 s{sKX}, {Z2N+(g%2 if 'h' in XP else g)*4096}"]
        if Z6 and g>=16 and o==2: r=[f"s_sub_u32 s{sKX}, s{sKX}, s{sN3}"]
        return r+[I(f"buffer_load_dwordx4 v{vZL}, {srd(sWS)}, s{sKX} offen offset:{o*1024} sc1 lds", f"z{g}")]
    C0=C; C=[]; e=C.append
    e(f"v_readfirstlane_b32 s{sNON}, v{vNV}")
    e(spinit)
    e(f"s_mul_i32 s{sNON}, s{sNON}, 1664525"); e(f"s_add_u32 s{sNON}, s{sNON}, 1013904223")
    e(f"s_lshr_b32 s{sN1}, s{sNON}, 8"); e(f"s_lshr_b32 s{sN2}, s{sNON}, 16"); e(f"s_lshr_b32 s{sN3}, s{sNON}, 24"); e(f"s_movk_i32 s{sFF}, 0xff")
    NM=V.a("NM",2); K1=V.a("K1",2); K0=V.a("K0",2); IR=V.a("IR",2); RS=V.a("RS",2)
    k0=-2*math.log2(math.e)*math.sqrt(2/math.pi); k1=k0*0.044715
    if SPL&1:
        for k in (1,0): e(f"v_pk_add_f32 {v(SQ+4*k,2)}, {v(SQ+4*k,2)}, {v(SQ+4*k+2,2)}")
        rSUM=lambda t: SQ+4+t; rSQ=lambda t: SQ+t
    else:
        rSUM=lambda t: SUM+4*t; rSQ=lambda t: SQ+4*t+1
        e(f"v_lshrrev_b32 v{t0}, 2, v{vN}"); e(f"v_lshl_add_u32 v{t0}, v{t0}, 4, v{vN}"); e(f"v_lshlrev_b32 v{t0}, 2, v{t0}")
        for t in range(2):
            s=SQ+4*t
            e(f"v_cndmask_b32 v{s}, v{s}, v{s+1}, s[{sMA}:{sMA+1}]"); e(f"v_cndmask_b32 v{s+2}, v{s+2}, v{s+3}, s[{sMA}:{sMA+1}]")
            e(f"v_cndmask_b32 v{s}, v{s}, v{s+2}, s[{sMB}:{sMB+1}]")
            e(f"ds_bpermute_b32 v{s+1}, v{t0}, v{s}")
    for t in range(2):
        e(f"v_mul_f32 v{NM+t}, {fl(-1/512)}, v{rSUM(t)}")
        e(f"v_mul_f32 v{t2+t}, v{NM+t}, v{NM+t}"); e(f"v_sub_f32 v{t2+t}, {fl(1e-5)}, v{t2+t}")
    for t in range(2):
        e(f"v_fmamk_f32 v{t2+t}, v{rSQ(t)}, {fl(1/512)}, v{t2+t}"); e(f"v_max_f32 v{t2+t}, {fl(1e-5)}, v{t2+t}")
    for t in range(2): e(f"v_rsq_f32 v{RS+t}, v{t2+t}")
    for t in range(2): e(f"v_sqrt_f32 v{IR+t}, v{t2+t}")
    if SPL&1: e(csadd)
    for t in range(2):
        e(f"v_mul_f32 v{K0+t}, {fl(k0)}, v{RS+t}"); e(f"v_mul_f32 v{t2+t}, v{RS+t}, v{RS+t}")
    for t in range(2):
        e(f"v_mul_f32 v{t2+t}, {fl(0.044715)}, v{t2+t}"); e(f"v_mul_f32 v{K1+t}, v{K0+t}, v{t2+t}")
    cpre=flat(C); C=C0; e=C.append
    e(mix(cpre, bg(SC0)))
    TM=SP+28
    S2=SP+40; Q2=SP+44
    def gelu(stats):
        o=[]
        for c in range(3):
            P=[(ZA+(c*2+t)*4+2*h, CS+4*c+2*h, t, TM+2*(t*2+h), h) for t in range(2) for h in range(2)]
            for z,cs,t,u,h in P: o.append(f"v_pk_fma_f32 {v(z,2)}, {v(NM,2)}, {v(cs,2)}, {v(z,2)} op_sel:[{t},0,0] op_sel_hi:[{t},1,1]")
            for z,cs,t,u,h in P: o.append(f"v_pk_mul_f32 {v(u,2)}, {v(z,2)}, {v(z,2)}")
            for z,cs,t,u,h in P: o.append(f"v_pk_fma_f32 {v(u,2)}, {v(u,2)}, {v(K1,2)}, {v(K0,2)} op_sel:[0,{t},{t}] op_sel_hi:[1,{t},{t}]")
            for z,cs,t,u,h in P: o.append(f"v_pk_mul_f32 {v(u,2)}, {v(u,2)}, {v(z,2)}")
            for z,cs,t,u,h in P: o+= [f"v_exp_f32 v{u}, v{u}", f"v_exp_f32 v{u+1}, v{u+1}"]
            for z,cs,t,u,h in P: o.append(f"v_pk_fma_f32 {v(u,2)}, {v(u,2)}, {v(IR,2)}, {v(IR,2)} op_sel:[0,{t},{t}] op_sel_hi:[1,{t},{t}]")
            for z,cs,t,u,h in P: o+= [f"v_rcp_f32 v{u}, v{u}", f"v_rcp_f32 v{u+1}, v{u+1}"]
            for z,cs,t,u,h in P: o.append(f"v_pk_mul_f32 {v(z,2)}, {v(z,2)}, {v(u,2)}")
            if stats:
                for z,cs,t,u,h in P:
                    if c==0 and h==0:
                        o.append(f"v_pk_add_f32 {v(S2+2*t,2)}, {v(z,2)}, {v(z+2,2)}"); o.append(f"v_pk_mul_f32 {v(Q2+2*t,2)}, {v(z,2)}, {v(z,2)}")
                    else:
                        if c: o.append(f"v_pk_add_f32 {v(S2+2*t,2)}, {v(S2+2*t,2)}, {v(z,2)}")
                        o.append(f"v_pk_fma_f32 {v(Q2+2*t,2)}, {v(z,2)}, {v(z,2)}, {v(Q2+2*t,2)}")
        return o
    e(mix(gelu(True), bg(SC))); done+=[f"t{n}" for n in range(20) if n!=8]
    e(f"v_add_f32 v{t0}, v{S2}, v{S2+1}"); e(f"v_add_f32 v{t2}, v{S2+2}, v{S2+3}")
    e(f"v_add_f32 v{t1}, v{Q2}, v{Q2+1}"); e(f"v_add_f32 v{t3}, v{Q2+2}, v{Q2+3}")
    e(f"v_lshlrev_b32 v{t4}, 3, v{vG}"); e(f"v_lshrrev_b32 v{t4}, v{t4}, s{sNON}")
    e(f"v_permlane32_swap_b32 v{t0}, v{t2}"); e(f"v_permlane32_swap_b32 v{t1}, v{t3}")
    e(f"v_add_f32 v{t0}, v{t0}, v{t2}"); e(f"v_add_f32 v{t1}, v{t1}, v{t3}")
    e(f"v_lshlrev_b32 v{t5}, 2, v{vG}"); e(f"v_lshl_add_u32 v{t5}, v{vN}, 4, v{t5}")
    e(f"v_permlane16_swap_b32 v{t0}, v{t1}")
    e(f"s_lshl_b32 s{sT0}, s{sI}, 1"); e(f"s_add_u32 s{sT0}, s{sT0}, s{sSH}"); e(f"s_lshl_b32 s{sT0}, s{sT0}, 12"); e(f"s_add_u32 s{sT2}, s{sT0}, {STATS}")
    e(f"s_lshl_b32 s{sT0}, s{sJ}, 1"); e(f"s_add_u32 s{sT0}, s{sT0}, s{sFH}"); e(f"s_lshl_b32 s{sT0}, s{sT0}, 8"); e(f"s_add_u32 s{sT0}, s{sT0}, s{sT2}")
    e(f"v_add_f32 v{t0}, v{t0}, v{t1}")
    e(f"v_bfi_b32 v{t0}, s{sFF}, v{t4}, v{t0}")
    e(I(f"buffer_store_dword v{t0}, v{t5}, {srd(sWS)}, s{sT0} offen sc1","stat"))
    e(ts("statpub"))
    UA=SP; RR=SP+32; TR=SP+40; TI=SP+44; TN=SP+48
    def acc(uw,ri,t): return UA+((uw*2+ri)*2+t)*4
    vVS=V.a("vVS"); vZ=V.a("vZ"); vZ2=V.a("vZ2")
    fillD=[[f"v_lshlrev_b32 v{t0}, 4, v{vG}"]+[f"ds_bpermute_b32 v{RR+4*t+r}, v{t0}, v{RS+t} offset:{4*r}" for t in range(2) for r in range(4)]]
    fillD+=[[f"v_permlane16_swap_b32 v{ZA+8*c+r}, v{ZA+8*c+4+r}" for r in range(2*h,2*h+2)] for c in range(3) for h in range(2)]
    fillD+=[[f"s_lshr_b32 s{sT0}, s{sR}, 1", f"s_bfe_u32 s{sT1}, s{sI}, 0x10002", f"s_lshl_b32 s{sT1}, s{sT1}, 1", f"s_xor_b32 s{sT0}, s{sT0}, s{sT1}", f"v_xor_b32 v{t1}, s{sT0}, v{vG}"],
            [f"v_lshlrev_b32 v{t1}, 4, v{t1}", f"v_mul_u32_u24 v{t2}, {VP}, v{vN}"],
            [f"s_lshr_b32 s{sT0}, s{sJ}, 1", f"s_lshl_b32 s{sT0}, s{sT0}, 6", f"s_add_u32 s{sT0}, s{sT0}, s{sZ}", f"s_lshl_b32 s{sT0}, s{sT0}, 2", f"s_add_u32 s{sT0}, s{sT0}, s{sR}",
             f"s_lshl_b32 s{sT0}, s{sT0}, 6", f"v_add3_u32 v{vVS}, v{t1}, v{t2}, s{sT0}"]]
    fillD+=[[f"v_lshrrev_b32 v{t1}, 5, v{vL}", f"s_lshl_b32 s{sT0}, s{sFH}, 1", f"v_add_u32 v{t1}, s{sT0}, v{t1}"],
            [f"s_bfe_u32 s{sT0}, s{sI}, 0x10001", f"v_lshl_add_u32 v{t2}, v{t1}, 1, s{sT0}", f"v_and_b32 v{t3}, 7, v{vL}"],
            [f"v_xor_b32 v{t2}, v{t2}, v{t3}", f"v_lshlrev_b32 v{t2}, 4, v{t2}"],
            [f"v_lshl_add_u32 v{t2}, v{t1}, 10, v{t2}", f"v_bfe_u32 v{t3}, v{vL}, 3, 2"],
            [f"v_mul_u32_u24 v{t3}, 98304, v{t3}", f"s_mul_i32 s{sT0}, s{sJ}, 393216", f"s_lshl_b32 s{sT1}, s{sSH}, 14", f"s_add_u32 s{sT0}, s{sT0}, s{sT1}",
             f"s_lshr_b32 s{sT1}, s{sI}, 3", f"s_lshl_b32 s{sT1}, s{sT1}, 12", f"s_add_u32 s{sT0}, s{sT0}, s{sT1}",
             f"s_and_b32 s{sT1}, s{sI}, 7", f"s_lshl_b32 s{sT1}, s{sT1}, 7", f"s_add_u32 s{sT0}, s{sT0}, s{sT1}", f"v_add3_u32 v{vZ}, v{t2}, v{t3}, s{sT0}"],
            [f"v_add_u32 v{t1}, 8, v{t1}", f"v_cmp_gt_u32 s[{sHM}:{sHM+1}], s{sNOCT}, v{t1}"],
            [f"v_mov_b32 v{t1}, {OOB}"], [f"v_cndmask_b32 v{vZ2}, v{t1}, v{vZ}, s[{sHM}:{sHM+1}]"]]
    fillD+=[f"v_mov_b32 v{t4}, s{sSIG}", f"s_mov_b32 s{sCNT}, 0"]
    bd=bg(SD); fillD=flat(mix(bd, fillD) if len(bd)>len(fillD) else mix(fillD, bd))
    fD=lambda var: gsched([([],fftv(var),[],[])], [(0,62,fillD)])
    def fftv(var):
        o=[]; seen=set()
        tab={0:[((0,0),(0,1)),((1,0),(1,1)),((0,0),(0,1)),((1,0),(1,1))],
             1:[((0,0),(0,1)),((1,1),(0,0)),((1,0),(1,1)),((0,1),(1,0))],
             3:[((0,0),(0,1)),((0,1),(1,0)),((1,0),(1,1)),((1,1),(0,0))]}[var]
        for ks in range(16):
            D,k=divmod(ks,4)
            for which,base in ((0,aFC),(1,aFS)):
                uw,ri=tab[D][which]
                for t in range(2):
                    d=acc(uw,ri,t); o.append(mm(d, v(xf(ks,t),4), a(base+4*k,4), d not in seen)); seen.add(d)
        return o
    e(f"s_cmp_eq_u32 s{sR}, 1"); e("s_cbranch_scc1 L_f1"); e(f"s_cmp_eq_u32 s{sR}, 3"); e("s_cbranch_scc1 L_f3")
    e(Var([fD(0)+["s_nop 6","s_branch L_fj"], ["L_f1:"]+fD(1)+["s_nop 6","s_branch L_fj"], ["L_f3:"]+fD(3)+["s_nop 7"]]))
    e("L_fj:")
    e(ts("fftm"))
    C0=C; C=[]; e=C.append
    for ri in range(2):
        for t in range(2):
            for h in range(2):
                u=acc(0,ri,t)+2*h; w_=acc(1,ri,t)+2*h
                e(f"v_pk_fma_f32 {v(u,2)}, {v(t4,2)}, {v(w_,2)}, {v(u,2)} op_sel_hi:[0,1,1]")
    for ri in range(2):
        for t in range(2):
            for h in range(2):
                u=acc(0,ri,t)+2*h; e(f"v_pk_mul_f32 {v(u,2)}, {v(u,2)}, {v(RR+4*t+2*h,2)}")
    for t in range(2):
        for h in range(2):
            u=acc(0,0,t)+2*h; e(f"v_cvt_pk_bf16_f32 v{TR+2*t+h}, v{u}, v{u+1}"); e(f"v_cvt_pk_bf16_f32 v{TN+2*t+h}, -v{u}, -v{u+1}")
            u=acc(0,1,t)+2*h; e(f"v_cvt_pk_bf16_f32 v{TI+2*t+h}, v{u}, v{u+1}")
    VA=SP+16
    for th in range(2):
        e(mm(VA+8*th, v(TR,4), a(aAC+4*th,4), True)); e(mm(VA+8*th+4, v(TI,4), a(aAC+4*th,4), True))
        e(mm(VA+8*th, v(TI,4), a(aAS+4*th,4), False)); e(mm(VA+8*th+4, v(TN,4), a(aAS+4*th,4), False))
    VK=SP+32
    for th in range(2):
        for r in range(4): e(f"v_cvt_pk_bf16_f32 v{VK+4*th+r}, v{VA+8*th+r}, v{VA+8*th+4+r}")
    dt=flat(C); C=C0; e=C.append
    e(mix(dt, bg(SD2)))
    for th in range(2):
        e(f"s_mov_b32 s{sT3}, {VB+th*16*VP}")
        e(I(f"buffer_store_dwordx4 {v(VK+4*th,4)}, v{vVS}, {srd(sWS)}, s{sT3} offen sc1","z2n"))
    e(ts("fft"))
    PL=SP; ZP=SP+16
    sn=[sNON,sN1,sN2,sN3]
    chk=[f"v_xor_b32 v{t0}, s{sNON}, v{PL}", f"v_xor_b32 v{t1}, s{sN1}, v{PL+1}"]
    chk+=[f"v_bitop3_b32 v{t0+k%2}, v{PL+k}, s{sn[k%4]}, v{t0+k%2} bitop3:0xbe" for k in range(2,16)]
    chk+=[f"v_bitop3_b32 v{t0}, v{t0}, v{t1}, s{sFF} bitop3:0xa8", f"v_cmp_ne_u32 vcc, 0, v{t0}"]
    assert "p1" in done
    e(W("vm","st13")); e("L_r1:"); e([f"v_accvgpr_read_b32 v{PL+k}, a{aPL+k}" for k in range(16)]); e(chk); e("s_cbranch_vccnz L_s1"); e("L_b1:")
    SLOW.extend(["L_s1:", f"s_add_u32 s{sCNT}, s{sCNT}, 1", f"s_cmp_ge_u32 s{sCNT}, {SPIN}", "s_cbranch_scc1 L_b1"]+poll1()+["s_waitcnt vmcnt(0)", "s_branch L_r1"])
    e(ts("s1"))
    C0=C; C=[]; e=C.append
    for h in range(2):
        e(f"v_pk_add_f32 {v(PL+2*h,2)}, {v(PL+2*h,2)}, {v(PL+4+2*h,2)}"); e(f"v_pk_add_f32 {v(PL+8+2*h,2)}, {v(PL+8+2*h,2)}, {v(PL+12+2*h,2)}")
    for h in range(2): e(f"v_pk_add_f32 {v(PL+2*h,2)}, {v(PL+2*h,2)}, {v(PL+8+2*h,2)}")
    e(f"v_permlane16_swap_b32 v{PL}, v{PL+2}"); e(f"v_permlane16_swap_b32 v{PL+1}, v{PL+3}")
    e(f"v_pk_add_f32 {v(PL+4,2)}, {v(PL,2)}, {v(PL+2,2)}"); e(f"v_pk_add_f32 {v(PL,2)}, {v(PL,2)}, {v(PL+2,2)}")
    e(f"v_permlane32_swap_b32 v{PL}, v{PL+4}"); e(f"v_permlane32_swap_b32 v{PL+1}, v{PL+5}")
    e(f"v_pk_add_f32 {v(PL,2)}, {v(PL,2)}, {v(PL+4,2)}")
    e(f"v_mul_f32 v{t0}, {fl(-1/688)}, v{PL}"); e(f"v_mul_f32 v{t1}, v{t0}, v{t0}"); e(f"v_sub_f32 v{t1}, {fl(1e-5)}, v{t1}")
    e(f"v_fmamk_f32 v{t1}, v{PL+1}, {fl(1/688)}, v{t1}"); e(f"v_max_f32 v{t1}, {fl(1e-5)}, v{t1}")
    e(f"v_rsq_f32 v{t2}, v{t1}"); e(f"v_mul_f32 v{t3}, v{t0}, v{t2}")
    dt=flat(C); C=C0; e=C.append
    e(mix(dt, bg(SE)))
    for c in range(3):
        for k in range(4):
            z=ZA+8*c+2*k; e(f"v_pk_fma_f32 {v(z,2)}, {v(z,2)}, {v(t2,2)}, {v(t2,2)} op_sel:[0,0,1] op_sel_hi:[1,0,1]")
        for k in range(4):
            z=ZA+8*c+2*k; e(f"v_cvt_pk_bf16_f32 v{ZP+4*c+k}, v{z}, v{z+1}")
        e(f"s_mov_b32 s{sT3}, {Z2N+c*32768}")
        e(I(f"buffer_store_dwordx4 {v(ZP+4*c,4)}, v{vZ2 if c==2 else vZ}, {srd(sWS)}, s{sT3} offen sc1","z2n"))
    e(ts("z2npub"))
    V.f("vVS","vZ","vZ2")
    vFO=V.a("vFO"); vBT=V.a("vBT")
    e(f"v_lshlrev_b32 v{t0}, 2, v0"); e(f"v_cmp_gt_u32 vcc, 32, v0"); e(f"v_mov_b32 v{t1}, {OOB}"); e(f"v_mov_b32 v{vNV}, s{sNON}"); e(f"v_cndmask_b32 v{vFO}, v{t1}, v{t0}, vcc")
    if 'b' not in SF+SG+SG2+(SS or ''): e(bg('b0'))
    vZL=V.a("vZL"); vP8=V.a("vP8"); vPC=V.a("vPC")
    e(f"v_and_b32 v{t0}, {8 if SPM else 16}, v{vL}"); e(f"v_mul_u32_u24 v{t0}, {STGW//(8 if SPM else 16)}, v{t0}")
    for k in range(4): e(f"v_sub_u32 v{rb[k]}, v{ra[k]}, v{t0}")
    done.append("rb")
    e(f"s_lshl_b32 s{sT0}, s{sJ}, 2"); e(f"s_add_u32 s{sT0}, s{sT0}, s{sW}"); e(f"s_lshr_b32 s{sT1}, s{sRX}, 10"); e(f"s_xor_b32 s{sT1}, s{sT1}, s{sT0}"); e(f"s_mul_i32 s{sT1}, s{sT1}, 98304"); e(f"v_add_u32 v{vZL}, s{sT1}, v{vL16}")
    e(f"s_lshl_b32 s{sRM}, s{sW}, 12")
    e(f"v_and_b32 v{t0}, 7, v{vL}"); e(f"v_lshlrev_b32 v{vP8}, 7, v{t0}")
    e(f"s_lshl_b32 s{sT0}, s{sT0}, 10"); e(f"s_add_u32 s{sT2}, s{sT0}, {F2}")
    e(f"s_lshl_b32 s{sT0}, s{sJ}, 5"); e(f"s_add_u32 s{sT0}, s{sT0}, s{sI}"); e(f"s_lshl_b32 s{sT0}, s{sT0}, 7"); e(f"s_add_u32 s{sT0}, s{sT0}, {F2}")
    e("s_barrier")
    assert 4<=FA<=FK<=12
    sa,sb,sc=SF.split("|"); assert "w14" not in sa and (FA<FK or not sb.strip())
    u1=flat(bg(sa)); u2=flat(bg(sb)); u3=flat(bg(sc))
    steps=[]; NF=cum(False)
    for ks in range(17):
        kk,kp=divmod(ks,2); pre=[]; rd=[]
        if ks<16: rd=rd_w(8+kk,kp)
        if ks==FA: pre=["s_barrier"]
        if ks==FK:
            pre=[W("vm","z2n"),"s_barrier"]
            u3=[f"buffer_store_dword v{vNV}, v{vFO}, {srd(sWS)}, s{sT0} offen sc1"]+([ts("s2flag")] if DIAGON else [])+u3
        if ks==12: pre=[W("vm","st15"),"s_barrier"]
        if ks==0: e(rd)
        else: steps.append((pre, mf_z(ks-1,False), rd, [W("lg","fr")] if ks<16 else []))
    e(gsched(steps, [(0,NF[FA-1]-1,u1+(exad(False) if SPL&2 else [])), (NF[FA-1],NF[FK-1]-1,u2), (NF[FK-1],int(NF[16]*FS),u3)], slack=SLK[1]))
    if SPL&2: e([W("lg","exw"),"s_barrier"]+exrd(False))
    V.f("XF","wd0","wd1","wd2","wa0","wa1","ONES")
    e(ts("z1gemm"))
    Z1=V.a("Z1",12)
    gl=(csadd if SPL&2 else [])+gelu(False); e(mix(gl, bg(SG), int(len(gl)*GS[0]), int(len(gl)*GS[1])))
    C0=C; C=[]; e=C.append
    for c in range(3):
        for t in range(2):
            for h in range(2):
                z=ZA+(c*2+t)*4+2*h; e(f"v_cvt_pk_bf16_f32 v{Z1+4*c+2*t+h}, v{z}, v{z+1}")
    for c in range(3):
        for h in range(2): e(f"v_permlane16_swap_b32 v{Z1+4*c+h}, v{Z1+4*c+2+h}")
    dt=flat(C); C=C0; e=C.append
    e(mix(dt, bg(SG2)))
    assert all(f"r{q}" in done for q in range(7)) and "c2" in done and ("s2" in done or 's' in XP)
    V.f("vT","ZA","SP","NM","K1","K0","IR","RS","vsp","ra0","ra1","ra2","ra3")
    za=[V.a(f"za{k}") for k in range(8)]; vRW=V.a("vRW"); vRR=V.a("vRR"); vH=V.a("vH"); vH2=V.a("vH2")
    e(ts("z1done"))
    C0=C; C=[]; e=C.append
    e(f"v_and_b32 v{t0}, 1, v{vG}"); e(f"v_xor_b32 v{t0}, s{sFH}, v{t0}"); e(f"v_and_b32 v{t1}, 1, v{vL}"); e(f"v_lshl_add_u32 v{t0}, v{t0}, 1, v{t1}")
    e(f"v_mul_u32_u24 v{t0}, {1024+32}, v{t0}")
    e(f"v_lshrrev_b32 v{t1}, 2, v{vN}"); e(f"v_lshl_add_u32 v{t0}, v{t1}, 7, v{t0}")
    e(f"v_lshrrev_b32 v{t1}, 3, v{vN}"); e(f"v_lshrrev_b32 v{t2}, 1, v{vG}"); e(f"v_xor_b32 v{t1}, v{t1}, v{t2}"); e(f"v_lshl_add_u32 v{t0}, v{t1}, 4, v{t0}")
    e(f"v_bfe_u32 v{t1}, v{vL}, 1, 1"); e(f"v_lshl_add_u32 v{t0}, v{t1}, 3, v{t0}")
    e(f"s_bfe_u32 s{sT0}, s{sRX}, 0x70003"); e(f"v_xor_b32 v{t0}, s{sT0}, v{t0}")
    e(f"v_lshl_add_u32 v{za[0]}, s{sFH}, 13, v{t0}")
    for k in range(1,4): e(f"v_xor_b32 v{za[k]}, {32*k}, v{za[0]}")
    for k in range(4): e(f"v_add_u32 v{za[4+k]}, {4*SL}, v{za[k]}")
    e(f"s_lshl_b32 s{sT0}, s{sW}, 11"); e(f"s_add_u32 s{sT0}, s{sT0}, {RED}"); e(f"v_mad_u32_u24 v{vRR}, v{vL}, {4*WM}, s{sT0}")
    e(f"v_xor_b32 v{vRW}, 2048, v{vRR}")
    e(f"v_and_b32 v{t0}, 1, v{vG}"); e(f"v_lshlrev_b32 v{t0}, 13, v{t0}"); e(f"v_lshl_add_u32 v{t0}, v{vN}, 4, v{t0}")
    e(f"v_lshrrev_b32 v{t1}, 1, v{vG}"); e(f"v_lshl_add_u32 v{t0}, v{t1}, 8, v{t0}")
    e(f"s_mul_i32 s{sT0}, s{sI}, 98304"); e(f"s_lshl_b32 s{sT1}, s{sSH}, 14"); e(f"s_add_u32 s{sT0}, s{sT0}, s{sT1}"); e(f"s_lshl_b32 s{sT1}, s{sFH}, 9"); e(f"s_add_u32 s{sT0}, s{sT0}, s{sT1}")
    e(f"s_lshl_b32 s{sT1}, s{sJ}, 10"); e(f"s_add_u32 s{sT1}, s{sT1}, s{sT0}"); e(f"v_add_u32 v{vH}, s{sT1}, v{t0}")
    e(f"s_mul_i32 s{sT1}, s{sJ}, 768"); e(f"s_min_u32 s{sT1}, s{sT1}, {20*256}"); e(f"s_add_u32 s{sT1}, s{sT1}, s{sT0}"); e(f"v_add_u32 v{t0}, s{sT1}, v{t0}")
    e(f"v_mov_b32 v{t1}, {OOB}"); e(f"v_cndmask_b32 v{vH2}, v{t1}, v{t0}, s[{sHM}:{sHM+1}]")
    AC=V.a("AC0",16); AC1=V.a("AC1",16); ACS=[AC,AC1]; ZF=V.a("ZF",32); RD=V.a("RD",8); HP=V.a("HP",4); HT=V.a("HT",8); BZ=V.a("BZ",8)
    vWO=V.a("vWO"); wo=[[V.a(f"wo{r}{p}") for p in range(4)] for r in range(2)]
    e(f"v_lshrrev_b32 v{t0}, 3, v{vL}"); e(f"v_and_b32 v{t1}, 2, v{t0}"); e(f"v_and_b32 v{t2}, 7, v{vL}")
    e(f"s_lshl_b32 s{sT0}, s{sFH}, 2"); e(f"v_bitop3_b32 v{t1}, v{t1}, v{t2}, s{sT0} bitop3:0x96")
    e(f"v_lshlrev_b32 v{t1}, 4, v{t1}"); e(f"v_lshl_add_u32 v{t1}, v{t0}, 10, v{t1}")
    e(f"s_lshl_b32 s{sT0}, s{sW}, 6"); e(f"s_add_u32 s{sT0}, s{sT0}, s{sJ}"); e(f"s_lshl_b32 s{sT0}, s{sT0}, 7"); e(f"v_add_u32 v{vWO}, s{sT0}, v{t1}")
    if 'c' in XP: e(f"s_mul_i32 s{sT0}, s{sJ}, 86"); e(f"s_add_u32 s{sT0}, s{sT0}, s{sW}"); e(f"s_lshl_b32 s{sT0}, s{sT0}, 10"); e(f"v_add_u32 v{vWO}, s{sT0}, v{vL16}")
    e(f"v_lshlrev_b32 v{t0}, 12, v{vG}"); e(f"v_lshrrev_b32 v{t1}, 2, v{vN}"); e(f"v_lshl_add_u32 v{t0}, v{t1}, 7, v{t0}")
    e(f"v_and_b32 v{t1}, 3, v{vL}"); e(f"v_lshl_add_u32 v{t0}, v{t1}, 3, v{t0}"); e(f"v_lshrrev_b32 v{t1}, 3, v{vN}"); e(f"v_lshl_add_u32 v{t0}, v{t1}, 5, v{t0}")
    e(f"v_and_b32 v{t1}, 1, v{vG}"); e(f"v_lshl_add_u32 v{t0}, v{t1}, 6, v{t0}"); e(f"v_add_u32 v{wo[1][0]}, {2*SL}, v{t0}")
    for ct in range(1,4): e(f"v_xor_b32 v{wo[1][ct]}, {32*ct}, v{wo[1][0]}")
    for ct in range(4): e(f"v_add_u32 v{wo[0][ct]}, {4*SL}, v{wo[1][ct]}")
    TW=V.a("TW",16); H0=V.a("H0",32); H1=V.a("H1",32); OA=V.a("OA",16); va=[V.a(f"va{k}") for k in range(4)]; WR=H0
    vPA=V.a("vPA"); vPV=V.a("vPV"); vHL=V.a("vHL"); vHL5=V.a("vHL5")
    sMI,sRHO,sVB,sFP,sFS=sXM,sSTM,sWM,sN1,sN2
    e([f"s_cmp_ge_u32 s{sJ}, 4", f"s_cselect_b32 s{sMI}, -1, 0"]); e(f"s_and_b32 s{sT0}, s{sMI}, 0x80000000"); e(f"s_or_b32 s{sT0}, s{sT0}, {fl(1/2048)}")
    e(f"s_lshl_b32 s{sT1}, s{sFH}, 10"); e(f"s_add_u32 s{sT1}, s{sT1}, s{sZ}")
    e(f"v_lshl_add_u32 v{t0}, v{vN}, 6, s{sT1}"); e(f"v_cvt_f32_u32 v{t0}, v{t0}"); e(f"v_mul_f32 v{t0}, s{sT0}, v{t0}")
    e(f"v_lshlrev_b32 v{t1}, 2, v{vG}"); e(f"v_cvt_f32_u32 v{t1}, v{t1}"); e(f"v_mul_f32 v{t1}, v{t1}, v{t0}")
    for kv in range(4):
        for q in range(4):
            e(f"v_fmamk_f32 v{WR+q}, v{t0}, {fl(16*kv+q)}, v{t1}")
        for q in range(4): e(f"v_cos_f32 v{WR+4+q}, v{WR+q}"); e(f"v_sin_f32 v{WR+q}, v{WR+q}")
        for q in range(4): e(f"v_cvt_pk_bf16_f32 v{TW+4*kv+q}, v{WR+4+q}, v{WR+q}")
    if Z6: e(f"s_sub_u32 s{sN3}, 11, s{sNOCT}"); e(f"s_lshl_b32 s{sN3}, s{sN3}, 10")
    e(f"s_xor_b32 s{sT0}, s{sI}, s{sMI}"); e(f"s_sub_u32 s{sT0}, s{sT0}, s{sMI}"); e(f"s_and_b32 s{sT0}, s{sT0}, 31"); e(f"s_mul_i32 s{sVB}, s{sT0}, {VP}"); e(f"s_add_u32 s{sVB}, s{sVB}, {VB}")
    e(f"s_xor_b32 s{sRHO}, s{sJ}, s{sMI}"); e(f"s_and_b32 s{sRHO}, s{sRHO}, 3")
    e(f"v_and_b32 v{t4}, 1, v{vG}"); e(f"v_lshlrev_b32 v{t4}, {5 if VF else 1}, v{t4}"); e(f"v_lshlrev_b32 v{t5}, 10, v{vG}"); e(f"v_add_u32 v{t5}, {VL}, v{t5}")
    for ct in range(4):
        e(f"v_add_u32 v{t0}, {16*ct}, v{vN}"); e(f"v_xor_b32 v{t0}, s{sMI}, v{t0}"); e(f"v_subrev_u32 v{t0}, s{sMI}, v{t0}")
        if VF:
            e(f"v_and_b32 v{t1}, 0x12, v{t0}"); e(f"v_lshl_add_u32 v{t1}, v{t1}, 3, v{t5}"); e(f"v_and_b32 v{t2}, 1, v{t0}"); e(f"v_lshl_add_u32 v{t1}, v{t2}, 6, v{t1}")
            e(f"v_bitop3_b32 v{t2}, v{t0}, 44, v{t4} bitop3:0x6a"); e(f"v_add_u32 v{va[ct]}, v{t1}, v{t2}")
            continue
        e(f"v_bfe_u32 v{t1}, v{t0}, 4, 2"); e(f"v_bfe_u32 v{t2}, v{t0}, 1, 1"); e(f"v_bitop3_b32 v{t1}, v{t1}, v{t2}, v{t4} bitop3:0x96")
        e(f"v_lshl_add_u32 v{t1}, v{t1}, 4, v{t5}"); e(f"v_and_b32 v{t2}, 3, v{t0}"); e(f"v_lshl_add_u32 v{t1}, v{t2}, 6, v{t1}")
        e(f"v_and_b32 v{t2}, 12, v{t0}"); e(f"v_add_u32 v{va[ct]}, v{t1}, v{t2}")
    e(f"v_bfe_u32 v{t0}, v{vN}, 2, 1"); e(f"v_lshlrev_b32 v{t0}, 5, v{t0}"); e(f"v_lshl_add_u32 v{t0}, v{vN}, 8, v{t0}"); e(f"v_add_u32 v{vPA}, s{sRM}, v{t0}")
    e(f"s_mul_i32 s{sT0}, s{sI}, 12"); e(f"s_add_u32 s{sT0}, s{sT0}, s{sW}"); e(f"s_lshl_b32 s{sT0}, s{sT0}, 13"); e(f"v_add_u32 v{vHL}, s{sT0}, v{vL16}")
    e(f"v_cmp_gt_u32 vcc, 32, v{vL}"); e(f"v_mov_b32 v{t1}, {OOB}"); e(f"v_lshlrev_b32 v{t0}, 7, v{vL}"); e(f"v_cndmask_b32 v{vHL5}, v{t1}, v{vHL}, vcc"); e(f"v_cndmask_b32 v{vP8}, v{t1}, v{t0}, vcc")
    if VF:
        assert not PX[0]
        e(f"v_bfe_u32 v{t0}, v{vL}, 3, 1"); e(f"v_xor_b32 v{t0}, v{t0}, v{vL}"); e(f"v_lshlrev_b32 v{t1}, 3, v{vL}"); e(f"v_bfi_b32 v{t0}, 8, v{t1}, v{t0}"); e(f"v_lshlrev_b32 v{vP8}, 4, v{t0}")
    if PX[1]:
        e(f"s_and_b32 s{sT0}, s{sI}, 7"); e(f"s_lshl2_add_u32 s{sT0}, s{sT0}, s{sW}"); e(f"s_mul_i32 s{sT0}, s{sT0}, 22"); e(f"v_min_u32 v{t2}, 21, v{vL}"); e(f"v_add_lshl_u32 v{t2}, v{t2}, s{sT0}, 10")
    setup=C; C=C0; e=C.append
    assert NP>=5
    pro=[]
    for t in (SS or " ".join(f"z{g}" for g in range(NP) if f"z{g}" not in done)).split():
        u=bg(t)
        if t=="z4": assert "r7" in done; u[0]=[W("lg","spr7"),"s_barrier"]+u[0]
        if t=="r7": u=[u[k:k+2] for k in range(0,8,2)]
        pro+=u
    assert f"z{NP-1}" in done and f"z{NP}" not in done
    sm_=flat([pro[0], mix(setup, pro[1:], 0, int(len(setup)*SFR))]); tx_=lambda x: x.text if isinstance(x,I) else x if isinstance(x,str) else ""
    k7=[k for k,x in enumerate(sm_) if isinstance(x,I) and x.tag=="spr7"]
    assert not k7 or not any(tx_(x).split(",")[0].endswith(tuple(f" v{r}" for r in rb)) for x in sm_[:k7[-1]])
    e(sm_)
    nst=[f"s_cmp_eq_u32 s2, 0", f"s_cselect_b32 s{sT0}, 0, {OOB}", f"buffer_store_dword v{vNV}, v{vFO}, {srd(sWS)}, s{sT0} offen sc1"]
    def zrd(x):
        g,k=divmod(x,4); sl=g%NS; r_=za[k+4*(sl//4)]; of=(sl%4)*SL
        r=[I(f"ds_read_b64_tr_b16 {v(ZF+8*(x%4)+2*n,2)}, v{r_} offset:{of+(n//2)*4096+(n%2)*512}", f"zr{x}") for n in range(4)]
        if k==0: r[0]=[W("vm",f"z{g}")]+([] if 'b' in XP and g else ["s_barrier"])+[r[0]]
        return r
    def wo_lds(kap): return (8,9,3,5,6,2)[kap//4]*SL+(kap%4)*1024
    def wo_dma(kap):
        r=[f"s_add_u32 m0, s{sRM}, {wo_lds(kap)}"]
        if 'c' in XP: r.append(f"s_mov_b32 s{sT3}, {kap*4096}")
        elif kap<16:
            r.append(f"s_mov_b32 s{sT3}, {(f0(kap%8)+32*(kap//8))*1024}")
        elif kap<21:
            k=kap-16
            r+=[f"s_add_u32 s{sT3}, s{sW}, {4*k}", f"s_mul_i32 s{sT3}, s{sT3}, 43", f"s_lshr_b32 s{sT3}, s{sT3}, 7", f"s_lshl_b32 s{sT3}, s{sT3}, 16", f"s_add_u32 s{sT3}, s{sT3}, {(32*k+64)*1024}"]
        else: r.append(f"s_mov_b32 s{sT3}, {672*1024}")
        return r+[I(f"buffer_load_dwordx4 v{vWO}, {srd(sWOUT)}, s{sT3} offen {NT} lds", f"wo{kap}")]
    def red_wr(c):
        return [I(f"ds_write_b{32*WM} v{vRW}, {v(ACS[c%2]+8+WM*x,WM)} offset:{x*256*WM}", f"rw{c}") for x in range(8//WM)]
    def red_rd(c):
        if WM==1: return [f"ds_read2st64_b32 {v(RD+2*x,2)}, v{vRR} offset0:{2*x} offset1:{2*x+1}" for x in range(4)]
        return [f"ds_read_b{32*WM} {v(RD+WM*x,WM)}, v{vRR} offset:{x*256*WM}" for x in range(8//WM)]
    def red_own(c, pk):
        A=ACS[c%2]
        if pk: return [f"v_pk_fma_f32 {v(A+2*k,2)}, {v(A+2*k,2)}, {v(HT+2*k,2)}, {v(BZ+2*k,2)}" for k in range(4)]
        return [f"v_fma_f32 v{A+k}, v{A+k}, v{HT+k}, v{BZ+k}" for k in range(8)]
    def red_alu(c, pk):
        o=[]; A=ACS[c%2]
        if pk: o+=[f"v_pk_fma_f32 {v(A+2*k,2)}, {v(RD+2*k,2)}, {v(HT+2*k,2)}, {v(A+2*k,2)}" for k in range(4)]
        else: o+=[f"v_fmac_f32 v{A+k}, v{RD+k}, v{HT+k}" for k in range(8)]
        for k in range(4): o.append(f"v_cvt_pk_bf16_f32 v{HP+k}, v{A+2*k}, v{A+2*k+1}")
        return o
    def z1_unp(c):
        return [x for k in range(4) for x in (f"v_lshlrev_b32 v{HT+2*k}, 16, v{Z1+4*c+k}", f"v_and_b32 v{HT+2*k+1}, 0xffff0000, v{Z1+4*c+k}")]+([f"v_lshlrev_b32 v{vBT}, 16, v{vBT}"] if c==0 else [])+[f"v_mul_f32 v{BZ+k}, v{vBT}, v{HT+k}" for k in range(8)]
    def h_st(c):
        return [f"s_mov_b32 s{sT0}, {HB+c*32768}", I(f"buffer_store_dwordx4 {v(HP,4)}, v{vH2 if c==2 else vH}, {srd(sWS)}, s{sT0} offen sc1", f"h{c}")]
    vdma=[[f"s_lshl_b32 s{sT1}, s{sRHO}, 14", f"s_add_u32 m0, s{sRM}, {VL}", f"s_add_u32 s{sT1}, s{sT1}, s{sRM}", f"s_add_u32 s{sT1}, s{sT1}, s{sVB}",
           I(f"buffer_load_dwordx4 v{vP8 if VF else vL16}, {srd(sWS)}, s{sT1} offen sc1 lds","v")]]
    vdma+=[I(f"buffer_load_dwordx4 v{vP8 if VF else vL16}, {srd(sWS)}, s{sT1} offen offset:{1024*k} sc1 lds","v") for k in range(1,4)]
    vdma+=[[f"s_sub_u32 s{sT1}, s{sRHO}, s{sMI}", f"s_and_b32 s{sT1}, s{sT1}, 3", f"s_lshl_b32 s{sT1}, s{sT1}, 14", f"s_add_u32 s{sT1}, s{sT1}, s{sVB}"],
           [f"s_cmp_eq_u32 s{sJ}, 0", f"s_cselect_b32 s{sT1}, {OOB}, s{sT1}", f"buffer_load_dword v{vPV}, v{vPA}, {srd(sWS)}, s{sT1} offen sc1"]]
    def hld(c, dst, sKW=sKW):
        return [([f"s_mov_b32 s{sKW}, {HB+c*32768+k*1024}"] if k%4==0 else [])+[I(f"buffer_load_dwordx4 {v(dst+4*k,4)}, v{vHL5 if (c,k)==(2,5) else vHL}, {srd(sWS)}, s{sKW} offen offset:{(k%4)*1024} sc1", f"hl{c}")] for k in range(8 if c<2 else 6)]
    HH=[H0,H1]
    def wrd(kap, d):
        rg=0 if wo_lds(kap)>=6*SL else 1; ko=wo_lds(kap)-(2*SL if rg else 6*SL)
        return [f"ds_read_b64_tr_b16 {a(d+ct*4+2*r,2)}, v{wo[rg][ct]} offset:{ko+r*512}" for ct in range(4) for r in range(2)]
    def vrd(kv,d):
        if 'v' in XP: return wrd(kv,d)
        return [f"ds_read2st64_b32 {a(d+ct*4+2*r,2)}, v{va[ct]} offset0:{16*kv+2*r} offset1:{16*kv+2*r+1}" for ct in range(4) for r in range(2)]
    tst=[("w",k) for k in range(8)]+[("v",k) for k in range(4)]+[("w",k) for k in range(8,22)]
    def rds(n):
        if n>=26: return []
        ty,k=tst[n]; return vrd(k,16*(n%16)) if ty=="v" else wrd(k,16*(n%16))
    def mms(n):
        ty,k=tst[n]; B = v(TW+4*k,4) if ty=="v" else v(HH[k//8]+4*(k%8),4)
        return [mm(OA+4*ct, a(16*(n%16)+4*ct,4), B, False) for ct in range(4)]
    def hchk(c):
        H=HH[c]; n=8 if c<2 else 6; nm=f"h{c}"
        ck=[f"v_max3_i32 v{t0}, v{H}, v{H+4}, v{H+8}"]+[f"v_max3_i32 v{t0}, v{t0}, v{H+4*k}, v{H+4*k+4}" for k in range(3,n-1,2)]+[f"v_max_i32 v{t0}, v{t0}, v{H+4*n-4}", f"v_cmp_eq_u32 vcc, {SENT}, v{t0}"]
        SLOW.extend([f"L_s{nm}:", f"s_add_u32 s{sCNT}, s{sCNT}, 1", f"s_cmp_ge_u32 s{sCNT}, {SPIN}", f"s_cbranch_scc1 L_b{nm}"]+flat(hld(c,H,sT3))+["s_waitcnt vmcnt(0)", f"s_branch L_r{nm}"])
        return [f"s_mov_b32 s{sCNT}, 0", W("vm",f"hl{c}"), f"L_r{nm}:"]+ck+[f"s_cbranch_vccnz L_s{nm}", f"L_b{nm}:"]+ts(f"xck{c}")
    e(ts("p2pro"))
    e(zrd(0)); e(zrd(1))
    if LW: e(zrd(2))
    ex={y:[] for y in range(193)}; dx={y:[] for y in range(193)}
    def spread(units, y0, per, d=None):
        for k,u in enumerate(units): (ex if d is None else d)[min(192,y0+int(k/per))].append(u)
        return y0+int((len(units)-1)/per)
    yy=0.; LA=4+2*LW
    def put(u, lo, dr):
        nonlocal yy
        yy=max(yy,lo); y=2*int((yy+1e-6)/2)
        while any(g0<=y<g0+2*GAP[2] for g0 in GAP[:2]): y+=2; yy+=2
        dx[min(y,192)].append(u); yy+=dr
    for k in range(W1): put(wo_dma(k), 0, DR[0])
    lead=[]; hq=hld(0,H0)
    for G in range(NP,24):
        for o in range(4):
            if zdma(G,o): put([] if 'd' in XP else zdma(G,o), 8*(G-NS+2)-LA+2, DR[G>=16])
        if G>=16 and W1<8: put(wo_dma(W1), 0, DR[1]); W1+=1
        elif G>=16 and yy>=HL[0]: put(hq.pop(0), 0, DR[1])
        lead.append(8*G-LA-int(yy))
    zend=2*int((yy+1)/2); info_lead=(lead,zend)
    oa=[x for k in range(8) for x in (f"v_lshlrev_b32 v{OA+2*k}, 16, v{RES+k}", f"v_and_b32 v{OA+2*k+1}, 0xffff0000, v{RES+k}")]
    spread(oa+z1_unp(0), 3, .625)
    for c in range(2):
        b=64*(c+1)
        if 'r' in XP: continue
        yw=spread([[]] if 'w' in XP else red_wr(c), b+RW, 1/WS)
        yb=b+8-LA
        while yb<yw+2: yb+=8
        ex[yb-1].append(W("lg",f"rw{c}"))
        spread(red_own(c,False), b+RW+2, 2)
        spread(red_rd(c), yb, 1); ye=spread(red_alu(c,False), max(yb+len(red_rd(c))+1,b+RW+6), 2); dx[(ye+1)|1].append(h_st(c))
        spread(z1_unp(c+1), ye+3, .5)
    dx[PX[2]].append(nst)
    if PX[0]: dx[PX[0]].append([f"s_lshl_b32 s{sT2}, s{sRHO}, 14", f"s_add_u32 s{sT2}, s{sT2}, s{sRM}", f"s_add_u32 s{sT2}, s{sT2}, s{sVB}", f"buffer_load_dword v{vPC}, v{vP8}, {srd(sWS)}, s{sT2} offen sc1"])
    if PX[1]: dx[PX[1]].append([f"s_lshl_b32 s{sT2}, s{sJ}, 7", f"buffer_load_dword v{t3}, v{t2}, {srd(sWOUT)}, s{sT2} offen"])
    assert NS==7 and W1==8
    ex[HL[1]].append(hchk(0))
    free=lambda g: 8*(g+2)-LA+2
    grp={'H':(hq,HL[0]), 'V':(vdma[:4]+[vdma[4]+vdma[5]],max(free(18),HL[1]+1)), 'W8':([wo_dma(k) for k in range(8,12)],free(17)),
         'W12':([wo_dma(k) for k in range(12,16)],free(19)), 'W16':([wo_dma(k) for k in range(16,20)],free(20)), 'J':(hld(1,H1),0)}
    for t in TQ.split()+[t for t in ('J','W16') if t not in TQ.split()]:
        for u in grp[t][0]: put(u, grp[t][1], DR[2])
    info_lead+=(yy,len(dx[192]))
    rq=[(n,r) for n in range(26) for r in rds(n)]
    for y in range(192):
        x,q=divmod(y,2); g,k=divmod(x,4); c=g//8; d=ACS[c%2]
        if q==0 and not LW: e(W("lg",f"zr{x}"))
        if q==0 and LW and x%2==0: e(W("lg",f"zr{x+1}"))
        e(f"v_mfma_f32_32x32x16_bf16 {v(d,16)}, {v(ZF+4*(y%8),4)}, {a(((k*2+q)*8+g%8)*4,4)}, {'0' if y%64==0 else v(d,16)}")
        e(dx[y])
        if x+2+LW<96: e(zrd(x+2+LW)[1:] if q else zrd(x+2+LW)[0])
        else: e([rq.pop(0)[1] for _ in range(PFN)])
        e(ex[y])
        if P2S and q==1 and x in P2S: e(ts(f"x{x}"))
    e(ts("xp2"))
    V.f("ZF","vZL","AC1","RES",*[f"za{k}" for k in range(8)])
    H2=V.a("H2",24); HH.append(H2); WR=V.a("WR",8); vO=V.a("vO")
    rest=dx[192]; assert not ex[192]
    fin=[f"v_and_b32 v{t1}, 1, v{vG}", f"v_lshlrev_b32 v{t1}, 5, v{t1}", f"v_lshrrev_b32 v{t2}, 1, v{vG}", f"v_lshl_add_u32 v{t1}, v{t2}, 4, v{t1}",
         f"s_lshl_b32 s{sT0}, s{sFH}, 10", f"s_add_u32 s{sT0}, s{sT0}, s{sZ}", f"s_lshl_b32 s{sT0}, s{sT0}, 3", f"s_add_u32 s{sT0}, s{sT0}, s{sJ}", f"s_lshl_b32 s{sT0}, s{sT0}, 7",
         ]+([f"v_mul_u32_u24 v{t2}, 0x10008, v{vN}", f"v_and_b32 v{t2}, 0x70040, v{t2}", f"s_mov_b32 s{sT1}, 524288"] if OF else [f"v_lshlrev_b32 v{t2}, 16, v{vN}"])+[f"v_add3_u32 v{vO}, v{t2}, v{t1}, s{sT0}"]
    tx={g:[] for g in range(-1,105)}; ty={g:[] for g in range(-1,105)}
    assert not any(isinstance(x,I) and x.tag in ("wo15","v") for x in flat(rest)), "V / w8-11 must be issued inside the loop"
    tx[TRD[0]].append(red_wr(2)); tx[TB2-3].append([f"v_add_u32 v{vPA}, {VL}, v{vPA}", I(f"ds_write_b32 v{vPA}, v{vPV}","vp")])
    ty[TB2].append([W("vm","wo15"), W("lg","vp"), "s_barrier"]+ts("xb2"))
    for k,u in enumerate(red_own(2,True)): tx[TRD[0]+1+k//2].append(u)
    ty[TRD[1]].append([W("lg","rw2"), "s_barrier"]+red_rd(2)+ts("xbr"))
    ty[TRD[2]].append(red_alu(2,True)+h_st(2)+ts("xh2st"))
    g=T1[0]
    for k,u in enumerate(rest+[wo_dma(20),wo_dma(21)]):
        if k>=len(rest): g=max(g,TRD[1]+1)
        if k==T1[2]: g=max(g,TRD[2]+1)
        tx[int(g)].append(u); g+=T1[1]
    assert g-T1[1]<T2[0] and int(g-T1[1])<TB
    for k,u in enumerate(hld(2,H2)): tx[T2[0]+int(k*T2[1])].append(u)
    ty[TB].append([W("vm","wo21"), "s_barrier"]+ts("xbb"))
    ty[47].append(hchk(1)); ty[79].append(hchk(2))
    for k,u in enumerate(fin): tx[88+k].append(u)
    rdy=lambda n: -1 if n<8 else TB2+1 if n<20 else TB+1
    lk=[]
    for g in range(-1,104):
        if g>=0: e(mms(g//4)[g%4])
        e(tx[g])
        for _ in range(RPG.get(g,2)):
            if rq and rdy(rq[0][0])<=g and rq[0][0]-g//4<TA: e(rq.pop(0)[1])
        e(ty[g])
        if rq: lk.append((208-len(rq))//2-g-1); assert lk[-1]>0
    info_lead+=(lk[::4],)
    e(ts("xg3"))
    for p in range(2):
        for k in range(4): e(f"v_cvt_pk_bf16_f32 v{WR+4*p+k}, v{OA+8*p+2*k}, v{OA+8*p+2*k+1}")
    for p in range(2):
        for k in range(2): e(f"v_permlane16_swap_b32 v{WR+4*p+k}, v{WR+4*p+2+k}")
        if not OF: e(f"buffer_store_dwordx4 {v(WR+4*p,4)}, v{vO}, {srd(sOUT)}, 0 offen offset:{64*p} {OST}")
        elif p==0: e([f"v_mov_b32 v{OA+k}, v{WR+k}" for k in range(4)])
    if OF:
        e("s_nop 1")
        for k in range(4): e(f"v_mov_b32_dpp v{OA+k}, v{WR+4+k} row_ror:8 row_mask:0xf bank_mask:0xc")
        e(f"buffer_store_dwordx4 {v(OA,4)}, v{vO}, {srd(sOUT)}, 0 offen {OST}")
        for k in range(4): e(f"v_mov_b32_dpp v{WR+4+k}, v{WR+k} row_ror:8 row_mask:0xf bank_mask:0x3")
        e(f"buffer_store_dwordx4 {v(WR+4,4)}, v{vO}, {srd(sOUT)}, s{sT1} offen {OST}")
    if DIAGON:
        e(ts("xst")); e(W("vm0")); e(ts("end"))
        e(f"v_mov_b32 v{t0}, 0")
        for k in range(nts[0]): e(f"v_writelane_b32 v{t0}, s{sTS+1+k if k else sTS}, {k}")
        e("s_memrealtime s[6:7]"); e("s_waitcnt lgkmcnt(0)"); e(f"v_writelane_b32 v{t0}, s100, 40"); e(f"v_writelane_b32 v{t0}, s6, 41")
        e(f"s_lshl_b32 s{sT0}, s2, 2"); e(f"s_add_u32 s{sT0}, s{sT0}, s{sW}"); e(f"s_lshl_b32 s{sT0}, s{sT0}, 8"); e(f"s_add_u32 s{sT0}, s{sT0}, {DIAG}")
        e(f"v_lshlrev_b32 v{t1}, 2, v{vL}")
        e(f"buffer_store_dword v{t0}, v{t1}, {srd(sWS)}, s{sT0} offen")
    if DBG is not None:
        e("s_memrealtime s[6:7]"); e(f"s_load_dwordx2 s[{sBSP}:{sBSP+1}], s[0:1], 88"); e("s_waitcnt lgkmcnt(0)")
        e(f"s_mov_b32 s{sBSP+2}, 256"); e(f"s_mov_b32 s{sBSP+3}, 0x20000")
        e(f"v_subrev_u32 v{t0}, s{sTS}, v{t0}"); e("s_sub_u32 s6, s6, s100"); e(f"v_writelane_b32 v{t0}, s6, 3")
        e(f"s_lshl_b32 s{sT0}, s2, 2"); e(f"s_add_u32 s{sT0}, s{sT0}, s{sW}"); e(f"s_cmp_eq_u32 s{sT0}, {DBG*4}"); e(f"s_cselect_b32 s{sT0}, 0, {OOB}")
        e(f"v_subrev_u32 v{t1}, 12, v{t1}"); e(f"v_min_u32 v{t1}, {OOB}, v{t1}")
        e(f"buffer_store_dword v{t0}, v{t1}, {srd(sBSP)}, s{sT0} offen")
    e("L_end:"); e("s_endpgm")
    for x in SLOW: e(Raw(x.text if isinstance(x,I) else x))
    st=St(); out=[]; run(C,st,out)
    ref=open("stub.txt").read()
    head=ref[:ref.index(NAME+":")].replace("grid=(4096,1,1) block=(256,1,1) lds=0","grid=(256,1,1) block=(256,1,1) lds=163840")
    tail=ref[ref.index(".section .rodata"):].replace("next_free_vgpr 256","next_free_vgpr 512")
    body="\n".join(x if x.endswith(":") else "    "+x for x in out)
    info=dict(n=len(out), maxvm=st.maxvm, nops=st.nops, peak=V.peak, lead=info_lead, ts=tsn)
    return head+NAME+":\n"+body+"\n"+tail, info

if __name__=="__main__":
    kw={}
    for x in sys.argv[2:]:
        k,val=x.split("="); kw[k]=eval(val)
    s,info=gen(**kw); open(sys.argv[1],"w").write(s); print(info)
```

```python
import sys, struct, math
from fw import *
NAME="parallel_sum__spectral_fnet__mixer_gmlp__prompt_kernel"
def fl(x): return "0x%08x" % struct.unpack("<I", struct.pack("<f", x))[0]
F2=0x1000; F3=0x80000; STATS=0x40000; Z2N=0x100000; VB=0x400000; VP=65536+256; HB=0x700000; DIAG=0xA00000; WSSZ=0xB00000
OOB=0x7ff00000; SENT=0x7f817f81
WB=0; XB=73728; STG=73728; STGW=21760; RED=114688; VL=65536; TRB=114688
sX,sWIN,sWSP,sWOUT,sOUT,sWS,sBSP = 8,12,16,20,24,28,32
sI,sJ,sW,sSH,sFH,sF0,sNOCT,sNON,sR,sXM,sWM,sT0,sT1,sT2,sT3,sSIG,sCNT,sSTM,sRM,sZ = range(36,56)
sN1,sN2,sN3,sFF,sHM = 56,57,58,59,60
sMA,sMB = 62,64
sROT,sKX,sKW = 3,4,5
sTS=66; sSC=92
def srd(b): return f"s[{b}:{b+3}]"
def v(b,k=1): return f"v{b}" if k==1 else f"v[{b}:{b+k-1}]"
def a(b,k=1): return f"a{b}" if k==1 else f"a[{b}:{b+k-1}]"
def f0(j): return 88*j - (8 if j==7 else 0)

def gen(TR_=0, OF=0, XM=None, JX=0, VF=1, Z6=1, CR=1, RI=(), QN=8, SW='', SWN=(0,99), TI='', TK={}, TCN='', MAPB=2, NT="", DIAGON=False, SPIN=20000, PF=2, PRE=4, DBG=None, ROT=(1,4,0,1), NS=7, NP=7, GAP=(0,0,0), RW=1, FX=(105,175), PX=(0,0,69), VR=.5, FN=5, PN=15, WL=1, CN=4, P2S=False, IST=False, IFR=1.0, DEP=4, SB='w10', SC0='w11', SC='h0 w12 h1 h2 s1 s2', SD='w13 h3 h4 r0 h5 p1', SD2='h6 r1', SE='h7', SF='h8 r2 | w14 w15 | h9 h10 r3 h11 h12 r4 p2', SG='h13 h14 r5 h15 c2 z0', SG2='r6', FK=7, FA=4, TQ='H W8 W12 V J', TA=8, TB2=20, TB=63, T1=(2,2,0), T2=(48,1), TRD=(1,7,11), PFN=4, RPG={-1:0,0:0}, HL=(110,171), SK=(5,), OST='nt', SPL=1, SS='z1 z2 r7 z3 z4 z5 z6', SFR=0.9, XK=(2,3), HS=None, HN=(3,4,3,3,4,3,3,3), XW=(2,17,2,12), TS=None, WM=4, WS=1, XP='', W1=6, DR=(2,2,2), LW=1, XSP=0, SPM=1, RF=(0,2), SLK=(3,3), RX=(-1,2,-1), GS=(0,1.), FS=1., BARS=(0,1,2,3,4,5,6,7)):
    V=Alloc(256); C=[]; e=C.append
    nts=[0]; tsn=[]; SLOW=[]
    def ts(name):
        if not DIAGON or (TS and name not in TS.split() and (name[0]!='x' or ('xB' in TS and name[1]!='a') or 'x0' in TS)): return []
        if name[0]=='x':
            k=nts[0]; nts[0]+=1; tsn.append(name); assert k<25
            return [Raw(f"s_getreg_b32 s{sTS+1+k}, hwreg(HW_REG_SHADER_CYCLES)")] if 0 else [Raw(f"s_mov_b32 s{sTS+1+k}, s6"), Raw("s_memtime s[6:7]")]
        k=nts[0]; nts[0]+=1; tsn.append(name); assert k<25
        return [W("lg0"), f"s_memtime s[6:7]", "s_waitcnt lgkmcnt(0)", f"s_mov_b32 s{sTS+1+k}, s6"]
    V.at("tid",0,1)
    XF=V.at("XF",128,128)
    e("s_cmp_ge_u32 s2, 256"); e("s_cbranch_scc1 L_end")
    for s,o in ((sX,0),(sWIN,48),(sWS,96),(sWSP,56),(sBSP,64),(sWOUT,72),(sOUT,80)):
        e(f"s_load_dwordx2 s[{s}:{s+1}], s[0:1], {o}")
    if DIAGON:
        e(f"s_memtime s[{sTS}:{sTS+1}]"); nts[0]=1; tsn.append("start")
        e("s_memrealtime s[100:101]")
    vL=V.a("L"); vN=V.a("n"); vG=V.a("g"); vL16=V.a("L16")
    t0=V.a("t0",2); t1=t0+1; t2=V.a("t2",2); t3=t2+1; t4=V.a("t4",2); t5=t4+1; t6=V.a("t6",2); t7=t6+1
    pf=[f"s_getpc_b64 s[6:7]", "L_pc:", f"s_lshr_b32 s{sT3}, s2, 3", f"s_mul_i32 s{sT3}, s{sT3}, 1280", f"v_lshrrev_b32 v{t6}, 4, v0", f"v_min_u32 v{t6}, 9, v{t6}", f"v_lshl_add_u32 v{t6}, v{t6}, 7, s{sT3}", f"v_min_u32 v{t6}, L_end-L_pc, v{t6}", f"global_load_dword v{t7}, v{t6}, s[6:7]"]
    if PF==2: e(pf)
    if PF==3:
        e(["s_cmp_ge_u32 s2, 16", "s_cbranch_scc1 L_npf", f"s_getpc_b64 s[6:7]", "L_pc:", f"v_lshlrev_b32 v{t6}, 7, v0", f"v_min_u32 v{t6}, L_end-L_pc, v{t6}", Raw(f"global_load_dword v{t7}, v{t6}, s[6:7]"), "L_npf:"])
    if PF==4:
        e([f"s_getpc_b64 s[6:7]", "L_pc:", f"s_bfe_u32 s{sT3}, s2, 0x20003", f"s_lshl_b32 s{sT3}, s{sT3}, 13", f"v_lshrrev_b32 v{t6}, 2, v0", f"v_lshl_add_u32 v{t6}, v{t6}, 7, s{sT3}", f"v_min_u32 v{t6}, L_end-L_pc, v{t6}", f"global_load_dword v{t7}, v{t6}, s[6:7]"])
    e(f"v_lshrrev_b32 v{t0}, 6, v0")
    e(f"v_and_b32 v{vL}, 63, v0")
    e(f"v_readfirstlane_b32 s{sW}, v{t0}")
    if XM:
        e(f"s_and_b32 s{sT0}, s2, 7"); e(f"s_lshl_b32 s{sT0}, s{sT0}, 2"); e(f"s_lshr_b32 s{sT0}, {sum((x^k)<<(4*k) for k,x in enumerate(XM))}, s{sT0}"); e(f"s_and_b32 s{sT0}, s{sT0}, 7"); e(f"s_xor_b32 s2, s2, s{sT0}")
    if MAPB==2:
        e(f"s_bfe_u32 s{sT0}, s2, 0x20001"); e(f"s_lshl_b32 s{sT0}, s{sT0}, 3")
        e(f"s_lshr_b32 s{sT1}, s2, 5"); e(f"s_add_u32 s{sI}, s{sT0}, s{sT1}")
        e(f"s_and_b32 s{sT0}, s2, 1"); e(f"s_lshl_b32 s{sT0}, s{sT0}, 2")
        e(f"s_bfe_u32 s{sT1}, s2, 0x20003"); e(f"s_add_u32 s{sJ}, s{sT0}, s{sT1}")
        if JX: e(f"s_xor_b32 s{sJ}, s{sJ}, {JX}")
    else:
        e(f"s_and_b32 s{sT0}, s2, 7"); e(f"s_lshl_b32 s{sT0}, s{sT0}, 2")
        e(f"s_lshr_b32 s{sT1}, s2, 6"); e(f"s_add_u32 s{sI}, s{sT0}, s{sT1}")
        e(f"s_bfe_u32 s{sJ}, s2, 0x30003")
    e(f"v_and_b32 v{vN}, 15, v0"); e(f"v_bfe_u32 v{vG}, v0, 4, 2"); e(f"v_lshlrev_b32 v{vL16}, 4, v{vL}")
    e(f"s_lshr_b32 s{sSH}, s{sW}, 1"); e(f"s_and_b32 s{sFH}, s{sW}, 1")
    e(f"s_mul_i32 s{sF0}, s{sJ}, 88"); e(f"s_cmp_eq_u32 s{sJ}, 7"); e(f"s_cselect_b32 s{sT0}, 8, 0"); e(f"s_sub_u32 s{sF0}, s{sF0}, s{sT0}")
    e(f"s_cmp_lt_u32 s{sJ}, 6"); e(f"s_cselect_b32 s{sNOCT}, 11, 10")
    for s,n in ((sX,2097152),(sWIN,512*2752),(sWS,WSSZ),(sWSP,8388608),(sBSP,4096),(sWOUT,688*1024),(sOUT,2097152)):
        e(f"s_mov_b32 s{s+2}, {n}"); e(f"s_mov_b32 s{s+3}, 0x20000")
    if isinstance(ROT,tuple):
        si,mi,mj,mx=ROT
        e(f"s_lshr_b32 s{sROT}, s{sI}, {si}"); e(f"s_mul_i32 s{sROT}, s{sROT}, {mi}")
        if mj: e(f"s_mul_i32 s{sT0}, s{sJ}, {mj}"); e(f"s_add_u32 s{sROT}, s{sROT}, s{sT0}")
        if mx: e(f"s_mul_i32 s{sT0}, s2, {mx}"); e(f"s_add_u32 s{sROT}, s{sROT}, s{sT0}")
        e(f"s_and_b32 s{sROT}, s{sROT}, 7")
    elif ROT:
        if MAPB==2: e(f"s_lshl_b32 s{sROT}, s{sJ}, 1"); e(f"s_add_u32 s{sROT}, s{sROT}, s{sI}")
        else: e(f"s_lshl_b32 s{sROT}, s{sI}, 1"); e(f"s_add_u32 s{sROT}, s{sROT}, s{sJ}")
        e(f"s_and_b32 s{sROT}, s{sROT}, 7")
    else: e(f"s_mov_b32 s{sROT}, 0")
    xd0=V.a("xd0"); xd1=V.a("xd1")
    e(f"s_lshl_b32 s{sT0}, s{sFH}, 10"); e(f"s_lshl_b32 s{sT1}, s{sSH}, 5"); e(f"s_add_u32 s{sZ}, s{sT1}, s{sI}")
    e(f"s_add_u32 s{sT0}, s{sT0}, s{sZ}"); e(f"s_lshl_b32 s{sT2}, s{sT0}, 10")
    e(f"v_lshrrev_b32 v{t0}, 3, v{vL}"); e(f"v_and_b32 v{t1}, 7, v{vL}"); e(f"v_xor_b32 v{t1}, v{t1}, v{vG}")
    e(f"v_lshlrev_b32 v{t1}, 4, v{t1}"); e(f"v_lshl_add_u32 v{t1}, v{t0}, 16, v{t1}"); e(f"v_add_u32 v{xd0}, s{sT2}, v{t1}")
    e(f"v_xor_b32 v{xd1}, 64, v{xd0}"); e(f"v_add_u32 v{xd1}, {8*65536-1024}, v{xd1}")
    e(f"s_lshl_b32 s{sXM}, s{sW}, 11"); e(f"s_add_u32 s{sXM}, s{sXM}, {XB}")
    e(f"s_mul_i32 s{sWM}, s{sW}, 3072")
    wd=[V.a(f"wd{q}") for q in range(3)]
    e(f"s_mul_i32 s{sT0}, s{sW}, {16*2752}"); e(f"s_lshl_b32 s{sT1}, s{sF0}, 1"); e(f"s_add_u32 s{sT0}, s{sT0}, s{sT1}"); e(f"s_add_u32 s{sT0}, s{sT0}, 1376")
    e(f"s_lshl_b32 s{sKX}, s{sROT}, 7")
    e(f"v_mov_b32 v{t4}, {OOB}")
    for q in range(3):
        if q: e(f"v_add_u32 v{t0}, {64*q}, v{vL}")
        idx = t0 if q else vL
        e(f"v_mul_u32_u24 v{t1}, 171, v{idx}"); e(f"v_lshrrev_b32 v{t1}, 11, v{t1}")
        e(f"v_mad_i32_i24 v{t2}, v{t1}, -12, v{idx}")
        if q==1:
            e(f"v_lshrrev_b32 v{t3}, 2, v{t1}"); e(f"v_and_b32 v{t3}, 2, v{t3}"); e(f"v_xor_b32 v{t2}, v{t2}, v{t3}")
        if q==2: e(f"v_xor_b32 v{t2}, 2, v{t2}")
        e(f"v_cmp_gt_u32 vcc, s{sNOCT}, v{t2}")
        e(f"v_mul_u32_u24 v{t1}, 2752, v{t1}"); e(f"v_lshl_add_u32 v{t1}, v{t2}, 4, v{t1}")
        if q: e(f"s_sub_u32 s{sT0}, s{sT0}, 1024")
        e(f"v_add_u32 v{t1}, s{sT0}, v{t1}")
        e(f"v_cndmask_b32 v{wd[q]}, v{t4}, v{t1}, vcc")
    for n in range(1,8): e(f"s_mov_b32 s{sSC+n}, {n*(524288 if SPM else 1048576)-(n%4)*1088}")
    e("s_waitcnt lgkmcnt(0)")
    e(ts("karg"))
    adv=lambda q: [f"s_add_u32 s{sKX}, s{sKX}, 128", f"s_and_b32 s{sKX}, s{sKX}, 0x380"] if q else []
    def issue_x(kk):
        return [[f"s_add_u32 m0, s{sXM}, {kk*8192}"]+adv(kk)+
                [I(f"buffer_load_dwordx4 v{xd0}, {srd(sX)}, s{sKX} offen {NT} lds", f"st{kk}")],
                I(f"buffer_load_dwordx4 v{xd1}, {srd(sX)}, s{sKX} offen offset:1024 {NT} lds", f"st{kk}")]
    def issue_w(q):
        return [([f"v_subrev_u32 v{wd[k]}, 1376, v{wd[k]}" for k in range(3)] if q==8 else [])+(adv(q) if q>=8 else [])+[f"s_add_u32 m0, s{sWM}, {WB+(q%6)*12288}", f"s_mul_i32 s{sKW}, s{sKX}, 1376"]+
                [I(f"buffer_load_dwordx4 v{wd[0]}, {srd(sWIN)}, s{sKW} offen {NT} lds", f"st{q}")],
                I(f"buffer_load_dwordx4 v{wd[1]}, {srd(sWIN)}, s{sKW} offen offset:1024 {NT} lds", f"st{q}"),
                I(f"buffer_load_dwordx4 v{wd[2]}, {srd(sWIN)}, s{sKW} offen offset:2048 {NT} lds", f"st{q}")]
    dmas=[]; vNV=V.a('vNV')
    sent=lambda c: [f"s_add_u32 s{sSC}, s{sSC}, {32768 if c else HB}", I(f"buffer_store_dwordx4 a[188:191], v{vL16}, {srd(sWS)}, s{sSC} offen sc1",f"sent{c}")]
    vT=V.a('vT')
    def touch(n):
        r=255-n; sA=61
        if n>=10:
            u,q=divmod(n-10,4); r=255-u; o=touch(u)
            return o[:8]+[f"s_add_u32 s{sA}, s{sA}, {q<<21}"]+[x.replace("0x7c0080","0x1c0080").replace(f"a{r},",f"a{247-(n-10)},") for x in o[8:]]
        if n==7: return [f"s_and_b32 s{sA}, s{sI}, 7", f"s_lshl2_add_u32 s{sA}, s{sA}, s{sW}", f"s_mul_i32 s{sA}, s{sA}, 176", f"s_add_u32 s{sA}, s{sA}, s{sJ}", f"s_lshl_b32 s{sA}, s{sA}, 7", f"v_min_u32 v{vT}, 21, v{vL}", f"v_lshl_add_u32 v{vT}, v{vT}, 10, s{sA}"]
        if n==8: return [f"buffer_load_dword v{vT}, v{vT}, {srd(sWOUT)}, 0 offen {TCN}"]
        if n==9: return touch(3)[:-1]
        if n==5: return [x.replace(srd(sX),srd(sOUT)).replace("a251","a250") for x in touch(4)]
        if n==6: return [f"v_lshlrev_b32 v{vT}, 7, v{vL}", f"buffer_load_dword a{r}, v{vT}, {srd(sBSP)}, 0 offen {TCN}"]
        if n<2: return [f"s_and_b32 s{sA}, s{sJ}, 3", f"s_lshl_b32 s{sA}, s{sA}, 1", f"s_lshr_b32 s60, s{sJ}, 2", f"s_xor_b32 s60, s60, {n}", f"s_add_u32 s{sA}, s{sA}, s60",
                        f"s_lshl3_add_u32 s{sA}, s{sFH}, s{sA}", f"s_lshl4_add_u32 s{sA}, s{sZ}, s{sA}", f"s_lshl_b32 s{sA}, s{sA}, 8",
                        f"v_lshlrev_b32 v{vT}, 18, v{vL}", f"v_lshl_add_u32 v{vT}, v{vL}, 2, v{vT}", f"v_and_b32 v{vT}, 0x7c0080, v{vT}", f"buffer_load_dword a{r}, v{vT}, {srd(sWSP)}, s{sA} offen {TCN}"]
        if n==4: return [f"s_lshl_b32 s{sA}, s{sFH}, 10", f"s_add_u32 s{sA}, s{sA}, s{sZ}", f"s_lshl3_add_u32 s{sA}, s{sA}, s{sJ}", f"s_lshl_b32 s{sA}, s{sA}, 7",
                        f"v_lshlrev_b32 v{vT}, 16, v{vN}", f"buffer_load_dword a{r}, v{vT}, {srd(sX)}, s{sA} offen {TCN}"]
        m,sr=(11,sWIN) if n==2 else (6,sWOUT)
        return [f"s_lshl2_add_u32 s{sA}, s2, s{sW}", f"s_mul_i32 s{sA}, s{sA}, {128*m}", f"v_min_u32 v{vT}, {m-1}, v{vL}", f"v_lshl_add_u32 v{vT}, v{vT}, 7, s{sA}", f"buffer_load_dword a{r}, v{vT}, {srd(sr)}, 0 offen {TCN}"]
    def stouch(c):
        ld=lambda b,o: Raw(f"s_load_dword s56, s[{b}:{b+1}], s61 offset:{o}")
        st=128 if c.islower() else 64
        if c in 'xX':
            o=[f"s_lshl2_add_u32 s60, s{sJ}, s{sW}", "s_lshl_b32 s60, s60, 6", f"s_add_u32 s60, s60, s{sI}"]
            for d in (4,6): o+=[f"s_add_u32 s61, s{sROT}, {d}", "s_and_b32 s61, s61, 6", "s_lshl3_add_u32 s61, s60, s61", "s_lshl_b32 s61, s61, 7"]+[ld(sX,r*32768+k) for r in range(2) for k in range(0,256,st)]
            return o
        if c in 'zZ': return [f"s_lshl1_add_u32 s60, s2, s{sSH}", "s_mul_i32 s60, s60, 2752", f"s_mul_i32 s61, s{sFH}, 704", "s_add_u32 s61, s61, s60"]+[ld(sWIN,k) for k in range(0,704,st)]
        if c in 'uU': return [f"s_lshl2_add_u32 s60, s2, s{sW}", "s_min_u32 s60, s60, 916", "s_mul_i32 s61, s60, 768"]+[ld(sWOUT,k) for k in range(0,768,st)]
        if c=='b': return ["s_lshr_b32 s60, s2, 3", f"s_lshl2_add_u32 s60, s60, s{sW}", "s_and_b32 s60, s60, 63", "s_lshl_b32 s61, s60, 6", ld(sBSP,0)]
        if c in 'pP':
            return [f"s_lshl2_add_u32 s60, s2, s{sW}", "s_lshl_b32 s61, s60, 13"]+[ld(sWSP,r*2048+k+q) for r in range(4) for q in (0,512) for k in range(0,128,st)]
    sq_=[x for c in SW for x in stouch(c)]
    def stake(p):
        o=[]; n=SWN[p] if p<len(SWN) else 0
        while sq_ and n: o.append(sq_.pop(0)); n-=isinstance(o[-1],Raw)
        return [o] if o else []
    e(stake(0))
    for kk in range(PRE):
        dmas+=issue_x(kk)+issue_w(kk)
        dmas+=stake(kk+1)
        dmas+=[touch(int(t[1:].split('@')[0])) for t in TI.split() if int((t+'@').split('@')[1] or PRE-1)==kk]
        if IST: dmas.append(ts(f"d{kk}"))
        if kk==PRE-1: dmas.append(f"buffer_load_dword v{vNV}, off, {srd(sWS)}, 0 sc1")
        if kk==0 and PF==1: dmas.append(pf)
    C0=C; C=[]; e=C.append
    xa=[V.a("xa0"),V.a("xa1")]; wa=[V.a("wa0"),V.a("wa1")]
    e(f"v_lshrrev_b32 v{t0}, 1, v{vN}"); e(f"v_xor_b32 v{t0}, v{t0}, v{vG}"); e(f"v_lshlrev_b32 v{t0}, 4, v{t0}")
    e(f"v_lshl_add_u32 v{t0}, v{vN}, 7, v{t0}")
    e(f"s_lshl_b32 s{sT0}, s{sSH}, 12"); e(f"s_add_u32 s{sT0}, s{sT0}, {XB}")
    sPI=sSIG
    e(f"s_xor_b32 s{sPI}, s{sSH}, s{sFH}"); e(f"s_lshl_b32 s{sT1}, s{sPI}, 6"); e(f"v_xad_u32 v{xa[0]}, v{t0}, s{sT1}, 0")
    e(f"v_add_u32 v{xa[0]}, s{sT0}, v{xa[0]}"); e(f"v_xor_b32 v{xa[1]}, 64, v{xa[0]}")
    e(f"v_lshrrev_b32 v{t0}, 2, v{vN}"); e(f"v_lshl_add_u32 v{t0}, v{vG}, 3, v{t0}"); e(f"v_mul_u32_u24 v{t0}, 192, v{t0}")
    e(f"v_and_b32 v{t1}, 1, v{vG}"); e(f"v_xor_b32 v{t1}, s{sFH}, v{t1}"); e(f"v_lshl_add_u32 v{t0}, v{t1}, 5, v{t0}")
    e(f"v_and_b32 v{t1}, 3, v{vL}"); e(f"v_lshl_add_u32 v{t0}, v{t1}, 3, v{t0}")
    e(f"s_mul_i32 s{sT0}, s{sPI}, 6144"); e(f"s_sub_u32 s{sT1}, 6144, s{sT0}"); e(f"v_add_u32 v{wa[0]}, s{sT0}, v{t0}"); e(f"v_add_u32 v{wa[1]}, s{sT1}, v{t0}")
    e(f"v_and_b32 v{t0}, 1, v{vL}"); e(f"v_cmp_ne_u32 s[{sMA}:{sMA+1}], 0, v{t0}")
    e(f"v_and_b32 v{t0}, 2, v{vL}"); e(f"v_cmp_ne_u32 s[{sMB}:{sMB+1}], 0, v{t0}")
    e(f"s_mov_b32 s{sCNT}, {SENT}")
    for k in range(4): e(f"v_accvgpr_write_b32 a{188+k}, s{sCNT}")
    e(f"s_mul_i32 s{sCNT}, s{sI}, 12"); e(f"s_add_u32 s{sCNT}, s{sCNT}, s{sW}"); e(f"s_lshl3_add_u32 s{sCNT}, s{sCNT}, s{sJ}"); e(f"s_lshl_b32 s{sSC}, s{sCNT}, 10")
    ONES=V.a("ONES",4)
    for k in range(4): e(f"v_mov_b32 v{ONES+k}, 0x3f803f80")
    SP=V.a("SP",52)
    aFC,aFS,aAC,aAS=192,208,224,232
    e(f"s_and_b32 s{sT0}, s{sJ}, 1"); e(f"s_lshl_b32 s{sT0}, s{sT0}, 1"); e(f"s_add_u32 s{sR}, s{sT0}, s{sFH}")
    e(f"s_lshr_b32 s{sT0}, s{sJ}, 1"); e(f"s_lshl_b32 s{sT0}, s{sT0}, 6"); e(f"s_add_u32 s{sT0}, s{sT0}, s{sR}")
    e(f"v_lshl_add_u32 v{t0}, v{vN}, 2, s{sT0}")
    e(f"v_subrev_u32 v{t0}, 1, v{t0}"); e(f"v_and_b32 v{t0}, 0xff, v{t0}"); e(f"v_add_u32 v{t0}, 1, v{t0}")
    e(f"v_cvt_f32_u32 v{t0}, v{t0}"); e(f"v_mul_f32 v{t0}, {fl(-1/512)}, v{t0}")
    e(f"s_lshl_b32 s{sT0}, s{sROT}, 6"); e(f"v_lshl_add_u32 v{t1}, v{vG}, 3, s{sT0}"); e(f"v_cvt_f32_u32 v{t1}, v{t1}"); e(f"v_mul_f32 v{t1}, v{t1}, v{t0}"); e(f"v_fract_f32 v{t1}, v{t1}")
    def sincos(step, base, k0, dc, ds, u):
        b=SP+8*(u%2)
        return [f"v_fmamk_f32 v{b}, v{step}, {fl(k0)}, v{base}", f"v_add_f32 v{b+1}, v{b}, v{step}",
                f"v_cos_f32 v{b+2}, v{b}", f"v_cos_f32 v{b+3}, v{b+1}", f"v_sin_f32 v{b+4}, v{b}", f"v_sin_f32 v{b+5}, v{b+1}",
                f"v_cvt_pk_bf16_f32 v{b+2}, v{b+2}, v{b+3}", f"v_accvgpr_write_b32 a{dc}, v{b+2}",
                f"v_cvt_pk_bf16_f32 v{b+4}, v{b+4}, v{b+5}", f"v_accvgpr_write_b32 a{ds}, v{b+4}"]
    e(f"s_mul_i32 s{sT0}, s{sPI}, {fl(32.)}"); e(f"v_fma_f32 v{t2}, v{t0}, s{sT0}, v{t1}"); e(f"v_fma_f32 v{t3}, -v{t0}, s{sT0}, v{t1}")
    if CR:
        R1=SP+40; R2=SP+42
        e(f"v_fmamk_f32 v{R1}, v{t0}, {fl(32.)}, v{t3}"); e(f"v_mul_f32 v{R2}, {fl(64.)}, v{t0}"); e(f"v_sub_f32 v{R1}, v{R1}, v{t2}")
        for R in (R2,R1): e(f"v_sin_f32 v{R+1}, v{R}"); e(f"v_cos_f32 v{R}, v{R}")
        rot=lambda d,b,R: [f"v_pk_mul_f32 {v(d,2)}, {v(b+2,2)}, {v(R,2)} op_sel:[0,1] op_sel_hi:[1,1]", f"v_pk_mul_f32 {v(d+2,2)}, {v(b,2)}, {v(R,2)} op_sel:[0,1] op_sel_hi:[1,1]",
                           f"v_pk_fma_f32 {v(d,2)}, {v(b,2)}, {v(R,2)}, {v(d,2)} op_sel_hi:[1,0,1] neg_lo:[0,0,1] neg_hi:[0,0,1]", f"v_pk_fma_f32 {v(d+2,2)}, {v(b+2,2)}, {v(R,2)}, {v(d+2,2)} op_sel_hi:[1,0,1]"]
        put=lambda b,k: [f"v_cvt_pk_bf16_f32 v{b}, v{b}, v{b+1}", f"v_cvt_pk_bf16_f32 v{b+2}, v{b+2}, v{b+3}", f"v_accvgpr_write_b32 a{aFC+k}, v{b}", f"v_accvgpr_write_b32 a{aFS+k}, v{b+2}"]
        for pr in range(4):
            b=SP+8*(pr%2)+2; q=SP+16+12*(pr%2)
            e(sincos(t0,t2,2*pr,0,0,pr)[:6]); e(rot(q,b,R1)); e(rot(q+4,b,R2)); e(rot(q+8,q,R2)); e(put(b,pr)); e(put(q,4+pr)); e(put(q+4,8+pr)); e(put(q+8,12+pr))
        e(f"v_cvt_f32_u32 v{t0}, v{vN}"); e(f"v_mul_f32 v{t0}, {fl(1/32)}, v{t0}")
        e(f"v_lshlrev_b32 v{t1}, 2, v{vG}"); e(f"v_cvt_f32_u32 v{t1}, v{t1}"); e(f"v_mul_f32 v{t1}, v{t1}, v{t0}")
        e(f"v_bfe_i32 v{t2}, v{vN}, 0, 1"); e(f"v_and_b32 v{t2}, 0x80008000, v{t2}")
        for pr in range(2):
            e(sincos(t0,t1,2*pr,aAC+pr,aAS+pr,pr))
            for m,k in (("0x80000000",4),(f"v{t2}",6),("0x80000000",2)):
                for r,d in ((2,aAC),(4,aAS)): e(f"v_xor_b32 v{SP+8*pr+r}, {m}, v{SP+8*pr+r}")
                for r,d in ((2,aAC),(4,aAS)): e(f"v_accvgpr_write_b32 a{d+k+pr}, v{SP+8*pr+r}")
    else:
        for ks in range(4):
            for pr in range(4): e(sincos(t0,t2+ks%2,32*ks+2*pr,aFC+4*ks+pr,aFS+4*ks+pr,pr))
        for th in range(2):
            e(f"v_add_u32 v{t0}, {16*th}, v{vN}"); e(f"v_cvt_f32_u32 v{t0}, v{t0}"); e(f"v_mul_f32 v{t0}, {fl(1/32)}, v{t0}")
            e(f"v_lshlrev_b32 v{t1}, 2, v{vG}"); e(f"v_cvt_f32_u32 v{t1}, v{t1}"); e(f"v_mul_f32 v{t1}, v{t1}, v{t0}")
            for pr in range(4): e(sincos(t0,t1,16*(pr//2)+2*(pr%2),aAC+4*th+pr,aAS+4*th+pr,pr))
    cons=flat(C); C=C0; e=C.append
    e(dmas[0]); e(mix(cons, dmas[1:], 0, int(len(cons)*IFR)))
    e(f"s_cmp_eq_u32 s{sR}, 0"); e(f"s_cselect_b32 s{sSIG}, 1.0, -1.0")
    e(ts("init"))
    ZA=V.a("ZA",24); CS=SP; SUM=SP+12; SQ=SP+20; WF=SP+28
    def xf(ks,t): return XF+(ks*2+t)*4
    def rd_x(ks):
        kk,kp=divmod(ks,2)
        return [I(f"ds_read_b128 {v(xf(ks,t),4)}, v{xa[kp]} offset:{kk*8192+t*2048}","fr") for t in range(2)]
    def rd_w(q,kp):
        sl=q%6; b=WF+12*kp
        return [I(f"ds_read_b64_tr_b16 {v(b+4*c+2*r,2)}, v{wa[kp]} offset:{sl*12288+r*768+c*64}","fr") for c in range(3) for r in range(2)]
    def mm(d,A,B,first): return f"v_mfma_f32_16x16x32_bf16 {v(d,4)}, {A}, {B}, {'0' if first else v(d,4)}"
    EX=160768
    def att(o,k,x): o[k]=flat([o[k],x])
    def mf_z(ks,stats):
        b=WF+12*(ks%2); f=ks==0; spl=SPL&(1 if stats else 2)
        sq=lambda f: [mm(SQ+4*t, v(xf(ks,t),4), v(xf(ks,t),4), f) for t in range(2)]
        sm=lambda f: [mm(SUM+4*t, v(ONES,4), v(xf(ks,t),4), f) for t in range(2)]
        mn=lambda c: [mm(ZA+(c*2+t)*4, v(b+4*c,4), v(xf(ks,t),4), f) for t in range(2)]
        cs=lambda c,f: [mm(CS+4*c, v(b+4*c,4), v(ONES,4), f)]
        if not spl: return (sq(f)+sm(f) if stats else [])+[x for c in range(3) for x in mn(c)+cs(c,f)]
        if ks<14:
            if stats: return sq(ks==1)+sm(ks==1)+mn(0)+mn(1)+mn(2) if ks%2 else [x for c in range(3) for x in mn(c)+cs(c,f)]
            return [x for c in range(3) for x in mn(c)+(cs(c,ks<2) if (c==2)==(ks%2) else [])]
        o=mn(0)+mn(1)+mn(2); n14=13 if stats else 9
        if ks==14: o=(sq(0)+sm(0) if stats else [])+cs(0,0)+cs(1,0)+cs(2,0)+o
        sel=lambda d,q: [f"v_cndmask_b32 v{d}, v{q}, v{q+1}, s[{sMA}:{sMA+1}]", f"v_cndmask_b32 v{d+1}, v{q+2}, v{q+3}, s[{sMA}:{sMA+1}]", f"v_cndmask_b32 v{d}, v{d}, v{d+1}, s[{sMB}:{sMB+1}]"]
        vc=lambda lo,hi: [f"s_mov_b32 vcc_lo, {lo}", f"s_mov_b32 vcc_hi, {hi}"]
        x=[]
        if stats: x=vc("0x00f0000f","0xf0000f00")+sel(SQ,SQ)+sel(SQ+4,SQ+4)+[f"v_cndmask_b32 v{SUM+t}, v{SUM+4*t}, v{SQ+4*t}, vcc" for t in range(2)]+[I(f"ds_write_b64 v{t2}, {v(SUM,2)}","exw")]
        x+=vc("0xf0f0f0f0","0xf0f0f0f0")+sel(SQ,CS)+sel(SQ+2,CS+4)+[f"v_cndmask_b32 v{SQ}, v{SQ}, v{SQ+2}, vcc"]+vc("0xff00ff00","0xff00ff00")+sel(SQ+2,CS+8)+[f"v_cndmask_b32 v{SQ}, v{SQ}, v{SQ+2}, vcc", I(f"ds_write_b32 v{t3}, v{SQ}","exw")]
        g0,g1=XW[:2] if stats else XW[2:]
        for k,u in enumerate(x):
            g=g0+k*(g1-g0)//len(x)-(n14 if ks==15 else 0)
            if 0<=g<len(o): att(o,g,u)
        return o
    exad=lambda stats: [f"s_mul_i32 s{sT1}, s{sW}, 768", f"s_add_u32 s{sT1}, s{sT1}, {EX}"]+([f"v_lshl_add_u32 v{t2}, v{vL}, 3, s{sT1}"] if stats else [])+[f"s_add_u32 s{sT1}, s{sT1}, 512", f"v_lshl_add_u32 v{t3}, v{vL}, 2, s{sT1}",
                        f"s_xor_b32 s{sT1}, s{sW}, 2", f"s_mul_i32 s{sT1}, s{sT1}, 768", f"s_add_u32 s{sT1}, s{sT1}, {EX+512}", f"v_lshl_add_u32 v{t5 if stats else t2}, v{vG}, 6, s{sT1}"]+(
                        [f"s_mul_i32 s{sT1}, s{sSH}, 1536", f"s_add_u32 s{sT1}, s{sT1}, {EX}", f"v_lshrrev_b32 v{t4}, 2, v{vN}", f"v_lshl_add_u32 v{t4}, v{t4}, 4, v{vN}", f"v_lshl_add_u32 v{t4}, v{t4}, 3, s{sT1}"] if stats else [])
    exrd=lambda stats: ([f"ds_read2_b64 {v(SQ,4)}, v{t4} offset1:96", f"v_xor_b32 v{t4}, 128, v{t4}", f"ds_read2_b64 {v(SQ+4,4)}, v{t4} offset1:96"] if stats else [])+[f"ds_read_b128 {v(WF+4*c,4)}, v{t5 if stats else t2} offset:{16*c}" for c in range(3)]
    csadd=[f"v_pk_add_f32 {v(CS+2*k,2)}, {v(CS+2*k,2)}, {v(WF+2*k,2)}" for k in range(6)]
    cum=lambda stats: [sum(len(mf_z(k,stats)) for k in range(n)) for n in range(17)]
    RES=V.a("RES",8)
    pend=[]; nxt=PRE; done=[]
    def bg(spec):
        o=[]
        for t in spec.split():
            k,n=t[0],int(t[1:]); assert t not in done; done.append(t)
            if k=='w':
                assert n==nxt or f"w{n-1}" in done; o+=issue_w(n)
            elif k=='h': o+=sp_half(n)
            elif k=='r': o+=sp_read(n)
            elif k=='p': o+=poll1() if n==1 else poll2()
            elif k=='c': o+=chk2()
            elif k=='z': o+=[zdma(n,q) for q in range(4)]
            elif k=='s':
                assert n==0 or f"s{n-1}" in done
                u=sent(n)
                if "r4" in done:
                    assert "r7" not in done; u=[u[0], I(u[1].text.replace("188:191","252:255"),u[1].tag)]
                    if "a252" not in done: done.append("a252"); u=[f"s_mov_b32 s{sN1}, {SENT}"]+[f"v_accvgpr_write_b32 a{252+x}, s{sN1}" for x in range(4)]+u
                o+=[u]
            elif k=='t': o+=[touch(n)]
            elif t=='u0': assert "rb" in done; o+=[[(Raw(x.text.replace("s56,","s7,").replace("s61",f"s{sN1}")) if isinstance(x,Raw) else x.replace("s60",f"s{sN1}").replace("s61",f"s{sN1}")) for x in stouch('U')]]
            elif t=='b1': assert "p2" not in done and "w15" in done and FK>=9; o+=[[f"s_lshl_b32 s{sN2}, s{sW}, 10", f"s_add_u32 m0, s{sN2}, 65536", I(f"buffer_load_dwordx4 v{vL16}, {srd(sBSP)}, s{sN2} offen lds","bl")]]
            elif t=='b2': assert "c2" in done and "r7" not in done; o+=[[f"v_and_b32 v{vBT}, 31, v{vL}", f"v_lshl_add_u32 v{vBT}, v{vBT}, 6, s{sZ}", f"v_lshl_add_u32 v{vBT}, v{vBT}, 1, 64", f"ds_read_u16 v{vBT}, v{vBT} offset:65472"]]
            elif k=='b': o+=[[f"v_and_b32 v{vBT}, 31, v{vL}", f"v_lshl_add_u32 v{vBT}, v{vBT}, 6, s{sZ}", f"v_lshlrev_b32 v{vBT}, 1, v{vBT}", f"buffer_load_ushort v{vBT}, v{vBT}, {srd(sBSP)}, 0 offen"]]
            elif k=='q':
                q,hh=divmod(n//10,2); assert "t19" not in done
                o+=[[f"s_and_b32 s60, s{sJ}, 3", f"s_lshl_b32 s60, s60, 7", f"s_add_u32 s60, s60, s{sZ}", f"s_lshl1_add_u32 s60, s60, s{sFH}", "s_lshl_b32 s60, s60, 11", f"s_xor_b32 s61, s{sXM}, {(q%2)*1024+(q//2)*256+hh*2097152+(n%2)*4194304}", "s_add_u32 s61, s61, s60"]
                    +[Raw(f"s_load_dword s7, s[{sWSP}:{sWSP+1}], s61 offset:{r*262144+c*64}") for r in range(2) for c in range(4)][:QN]]
            elif k=='n': o+=[[] for _ in range(n%100)]
        return o
    steps=[]; segs=[]; NB=cum(True); lq=[]
    for ks in range(17):
        kk,kp=divmod(ks,2); pre=[]; rd=[]
        if ks<16:
            if kp==0:
                pre=[W("vm",f"st{kk}"), "s_barrier"]
                if kk==0: pre=([Raw("s_waitcnt lgkmcnt(0)")] if SW else [])+pre+ts("st0")
                elif TS and 'xB' in TS: pre=[W("vm",f"st{kk}")]+ts(f"xa{kk}")+["s_barrier"] if 'xB1' in TS else ts(f"xa{kk}")+pre
                hi=min(kk+1+max(PRE,min(DEP,PRE+kk)), kk+5) if HS is None else HS[kk]; assert hi<=kk+6
                pend=[]
                while HN is None and nxt<hi:
                    pend+=(issue_x(nxt) if nxt<8 else [])+issue_w(nxt); nxt+=1
                for _ in range(HN[kk] if HN else 0):
                    if not lq: lq=(issue_x(nxt) if nxt<8 else [])+issue_w(nxt); nxt+=1; assert nxt<=kk+6
                    pend.append(lq.pop(0))
                    if 'B' in XP: pend[-1]=[I('s_nop 0',x.tag) if isinstance(x,I) else x for x in flat([pend[-1]])]
                assert kk==7 or nxt-bool(lq)>kk+1
                pend=flat(pend+bg(" ".join(f"s{c}" for c in range(len(SK)) if SK[c]==kk))+bg(TK.get(kk,'')))
                if kk==XK[0] and SPL&1: pend+=exad(True)
                if kk==XK[1]:
                    pend+=[f"v_lshrrev_b32 v{t0}, 1, v{vG}", f"v_lshrrev_b32 v{t1}, 1, v{vN}", f"v_xor_b32 v{t0}, v{t0}, v{t1}",
                    f"v_lshlrev_b32 v{t0}, 4, v{t0}", f"v_lshl_add_u32 v{t0}, v{vN}, 7, v{t0}", f"v_and_b32 v{t1}, 1, v{vG}",
                    f"v_lshl_add_u32 v{t0}, v{t1}, 3, v{t0}", f"s_sub_u32 s{sT0}, s{sJ}, s{sROT}", f"s_and_b32 s{sT0}, s{sT0}, 7", f"s_lshl_b32 s{sT0}, s{sT0}, 13", f"s_add_u32 s{sT0}, s{sT0}, s{sXM}", f"v_add_u32 v{t0}, s{sT0}, v{t0}",
                    f"v_xor_b32 v{t1}, 32, v{t0}", f"v_xor_b32 v{t6}, 64, v{t0}", f"v_xor_b32 v{t7}, 0x60, v{t0}"]
                if kk==7: pend+=[f"ds_read_b64 {v(RES+2*k,2)}, v{r}" for k,r in enumerate((t0,t1,t6,t7))]
                segs.append((NB[max(0,ks-1)], NB[ks+1]-1, pend))
            rd=rd_x(ks)+rd_w(kk,kp)
        if ks==16:
            assert not lq
            pre=[] if SPL&1 else [W("lg0"), W("vm","sent0"), "s_barrier"]; segs.append((NB[15], NB[16], flat(bg(SB))))
        if ks==0: e(pre); e(rd)
        else: steps.append((pre, mf_z(ks-1,True), rd, [W("lg","fr")] if ks<16 else []))
    e(gsched(steps, segs, slack=SLK[0]))
    if SPL&1: e([W("lg0"), W("vm","sent0"), "s_barrier"]+exrd(True)); assert nxt<=13 and "w13" not in done
    V.f("xd0","xd1","xa0","xa1")
    if TS and 'xB' in TS: e(ts("xa8"))
    e(ts("z2gemm"))
    vsp=V.a("vsp"); ra=[V.a(f"ra{k}") for k in range(4)]
    spinit=[f"v_xor_b32 v{t0}, v{vN}, v{vG}", f"v_lshlrev_b32 v{t0}, 4, v{t0}"]+([f"v_mul_u32_u24 v{t1}, 9, v{vG}", f"v_and_b32 v{t1}, 17, v{t1}", f"v_lshl_add_u32 v{t0}, v{t1}, 18, v{t0}"] if SPM else [f"v_lshl_add_u32 v{t0}, v{vG}, 18, v{t0}"])+[
            f"s_lshl_b32 s{sT0}, s{sZ}, 1", f"s_add_u32 s{sT0}, s{sT0}, s{sFH}", f"s_lshl_b32 s{sT0}, s{sT0}, 11", f"v_add_u32 v{vsp}, s{sT0}, v{t0}",
            f"s_mul_i32 s{sSTM}, s{sW}, {STGW}", f"s_add_u32 s{sSTM}, s{sSTM}, {STG}",
            f"v_bfe_u32 v{t0}, v{vL}, {1 if SPM else 2}, 3", f"v_mul_u32_u24 v{t0}, 1088, v{t0}"]+([f"v_lshrrev_b32 v{t1}, 3, v{vL}", f"v_bfi_b32 v{t1}, 1, v{vL}, v{t1}"] if SPM else [])+[f"v_and_b32 v{t1}, 3, v{t1 if SPM else vL}", f"v_lshl_add_u32 v{t0}, v{t1}, 8, v{t0}",
            f"v_lshl_add_u32 v{t0}, v{t1}, 4, v{t0}", f"v_lshrrev_b32 v{t1}, 5, v{vL}", f"v_lshl_add_u32 v{t0}, v{t1}, 7, v{t0}",
            f"v_add_u32 v{ra[0]}, s{sSTM}, v{t0}"]+[f"v_xor_b32 v{ra[k]}, {16*k}, v{ra[0]}" for k in range(1,4)]
    rb=[t4,t5,t6,t7]; sRX=sXM
    tab=sum(sum(((j>>b)&1)<<k for k,b in enumerate(RX) if b>=0)<<(4*j) for j in range(8))
    spinit+=[f"s_lshl_b32 s{sRX}, s{sJ}, 2", f"s_lshr_b32 s{sRX}, {tab}, s{sRX}", f"s_and_b32 s{sRX}, s{sRX}, 7"]+[x for r,m in ((sSH,RF[0]),(sFH,RF[1])) if m for x in (f"s_mul_i32 s{sT0}, s{r}, {m}", f"s_xor_b32 s{sRX}, s{sRX}, s{sT0}")]+[x for b,m in enumerate(RI) if m for x in (f"s_bfe_u32 s{sT0}, s{sI}, {0x10000+b}", f"s_mul_i32 s{sT0}, s{sT0}, {m}", f"s_xor_b32 s{sRX}, s{sRX}, s{sT0}")]+[f"s_lshl_b32 s{sRX}, s{sRX}, 8", f"v_add_u32 v{vsp}, s{sRX}, v{vsp}"]
    def sp_half(h):
        q,hh=divmod(h,2); kap,tb=divmod(q,2); o=[]
        assert h==0 or f"h{h-1}" in done
        off=lambda q: (q%2)*1024+(q//2)*256
        for k in range(4):
            n=4*hh+k
            u=[I(f"buffer_load_dwordx4 v{vsp}, {srd(sWSP)}, {f's{sSC+n}' if n else 0} offen offset:{k*1088} {NT} lds", f"sp{q}")]
            if XSP==1: u=[]
            if XSP==2: u=[I(f"buffer_load_dwordx4 v{vL16}, {srd(sWSP)}, s{sT2} offen offset:{k*1024} sc1 lds", f"sp{q}")]
            if k==0:
                if h>=5 and h%2:
                    assert f"r{(h-5)//2}" in done; u=[W("lg",f"spr{(h-5)//2}")]+u
                u=[f"s_add_u32 m0, s{sSTM}, {(h%5)*4352}"]+u
                if hh==0 and q: u=[f"v_xor_b32 v{vsp}, {off(q)^off(q-1)}, v{vsp}"]+u
            o.append(u)
        return o
    def sp_read(q):
        assert f"h{2*q+1}" in done
        h0=(2*q)%5; R=rb if h0==4 else ra
        assert h0<4 or "rb" in done
        r=[I(f"ds_read_b128 {a((q*8+x)*4,4)}, v{R[x%4]} offset:{h0*4352+(x//4)*64}", f"spr{q}") for x in range(8)]
        r[0]=[W("vm",f"sp{q}"), r[0]]
        return r
    aPL=240
    def poll1(): return [f"buffer_load_dwordx4 {a(aPL+4*k,4)}, v{vL16}, {srd(sWS)}, s{sT2} offen offset:{1024*k} sc1" for k in range(4)]
    def poll2(): return [f"buffer_load_dword v{vPC}, v{vP8}, {srd(sWS)}, s{sT2} offen sc1"]
    def slowchk(n):
        SLOW.extend([f"L_s{n}:", f"s_mov_b32 s{sCNT}, 0", f"L_l{n}:", f"buffer_load_dword v{vPC}, v{vP8}, {srd(sWS)}, s{sT2} offen sc1", "s_waitcnt vmcnt(0)",
                     f"v_cmp_ne_u32 vcc, s{sNON}, v{vPC}", f"s_cbranch_vccz L_b{n}", f"s_add_u32 s{sCNT}, s{sCNT}, 1", f"s_cmp_lt_u32 s{sCNT}, {SPIN}", f"s_cbranch_scc1 L_l{n}", f"s_branch L_b{n}"])
        return [f"v_cmp_ne_u32 vcc, s{sNON}, v{vPC}", f"s_cbranch_vccnz L_s{n}", f"L_b{n}:"]
    def chk2(): return [([W("vm","bl")] if "b1" in done else [])+slowchk("s2")+["s_barrier"]+ts("s2")]
    SL=16384
    def zdma(g,o):
        if g>=24 or (g>=16 and o==3): return []
        r=[]
        if o==0: r=[f"s_add_u32 m0, s{sRM}, {(g%NS)*SL}", f"s_mov_b32 s{sKX}, {Z2N+(g%2 if 'h' in XP else g)*4096}"]
        if Z6 and g>=16 and o==2: r=[f"s_sub_u32 s{sKX}, s{sKX}, s{sN3}"]
        return r+[I(f"buffer_load_dwordx4 v{vZL}, {srd(sWS)}, s{sKX} offen offset:{o*1024} sc1 lds", f"z{g}")]
    C0=C; C=[]; e=C.append
    e(f"v_readfirstlane_b32 s{sNON}, v{vNV}")
    e(spinit)
    e(f"s_mul_i32 s{sNON}, s{sNON}, 1664525"); e(f"s_add_u32 s{sNON}, s{sNON}, 1013904223")
    e(f"s_lshr_b32 s{sN1}, s{sNON}, 8"); e(f"s_lshr_b32 s{sN2}, s{sNON}, 16"); e(f"s_lshr_b32 s{sN3}, s{sNON}, 24"); e(f"s_movk_i32 s{sFF}, 0xff")
    NM=V.a("NM",2); K1=V.a("K1",2); K0=V.a("K0",2); IR=V.a("IR",2); RS=V.a("RS",2)
    k0=-2*math.log2(math.e)*math.sqrt(2/math.pi); k1=k0*0.044715
    if SPL&1:
        for k in (1,0): e(f"v_pk_add_f32 {v(SQ+4*k,2)}, {v(SQ+4*k,2)}, {v(SQ+4*k+2,2)}")
        rSUM=lambda t: SQ+4+t; rSQ=lambda t: SQ+t
    else:
        rSUM=lambda t: SUM+4*t; rSQ=lambda t: SQ+4*t+1
        e(f"v_lshrrev_b32 v{t0}, 2, v{vN}"); e(f"v_lshl_add_u32 v{t0}, v{t0}, 4, v{vN}"); e(f"v_lshlrev_b32 v{t0}, 2, v{t0}")
        for t in range(2):
            s=SQ+4*t
            e(f"v_cndmask_b32 v{s}, v{s}, v{s+1}, s[{sMA}:{sMA+1}]"); e(f"v_cndmask_b32 v{s+2}, v{s+2}, v{s+3}, s[{sMA}:{sMA+1}]")
            e(f"v_cndmask_b32 v{s}, v{s}, v{s+2}, s[{sMB}:{sMB+1}]")
            e(f"ds_bpermute_b32 v{s+1}, v{t0}, v{s}")
    for t in range(2):
        e(f"v_mul_f32 v{NM+t}, {fl(-1/512)}, v{rSUM(t)}")
        e(f"v_mul_f32 v{t2+t}, v{NM+t}, v{NM+t}"); e(f"v_sub_f32 v{t2+t}, {fl(1e-5)}, v{t2+t}")
    for t in range(2):
        e(f"v_fmamk_f32 v{t2+t}, v{rSQ(t)}, {fl(1/512)}, v{t2+t}"); e(f"v_max_f32 v{t2+t}, {fl(1e-5)}, v{t2+t}")
    for t in range(2): e(f"v_rsq_f32 v{RS+t}, v{t2+t}")
    for t in range(2): e(f"v_sqrt_f32 v{IR+t}, v{t2+t}")
    if SPL&1: e(csadd)
    for t in range(2):
        e(f"v_mul_f32 v{K0+t}, {fl(k0)}, v{RS+t}"); e(f"v_mul_f32 v{t2+t}, v{RS+t}, v{RS+t}")
    for t in range(2):
        e(f"v_mul_f32 v{t2+t}, {fl(0.044715)}, v{t2+t}"); e(f"v_mul_f32 v{K1+t}, v{K0+t}, v{t2+t}")
    cpre=flat(C); C=C0; e=C.append
    e(mix(cpre, bg(SC0)))
    TM=SP+28
    S2=SP+40; Q2=SP+44
    def gelu(stats):
        o=[]
        for c in range(3):
            P=[(ZA+(c*2+t)*4+2*h, CS+4*c+2*h, t, TM+2*(t*2+h), h) for t in range(2) for h in range(2)]
            for z,cs,t,u,h in P: o.append(f"v_pk_fma_f32 {v(z,2)}, {v(NM,2)}, {v(cs,2)}, {v(z,2)} op_sel:[{t},0,0] op_sel_hi:[{t},1,1]")
            for z,cs,t,u,h in P: o.append(f"v_pk_mul_f32 {v(u,2)}, {v(z,2)}, {v(z,2)}")
            for z,cs,t,u,h in P: o.append(f"v_pk_fma_f32 {v(u,2)}, {v(u,2)}, {v(K1,2)}, {v(K0,2)} op_sel:[0,{t},{t}] op_sel_hi:[1,{t},{t}]")
            for z,cs,t,u,h in P: o.append(f"v_pk_mul_f32 {v(u,2)}, {v(u,2)}, {v(z,2)}")
            for z,cs,t,u,h in P: o+= [f"v_exp_f32 v{u}, v{u}", f"v_exp_f32 v{u+1}, v{u+1}"]
            for z,cs,t,u,h in P: o.append(f"v_pk_fma_f32 {v(u,2)}, {v(u,2)}, {v(IR,2)}, {v(IR,2)} op_sel:[0,{t},{t}] op_sel_hi:[1,{t},{t}]")
            for z,cs,t,u,h in P: o+= [f"v_rcp_f32 v{u}, v{u}", f"v_rcp_f32 v{u+1}, v{u+1}"]
            for z,cs,t,u,h in P: o.append(f"v_pk_mul_f32 {v(z,2)}, {v(z,2)}, {v(u,2)}")
            if stats:
                for z,cs,t,u,h in P:
                    if c==0 and h==0:
                        o.append(f"v_pk_add_f32 {v(S2+2*t,2)}, {v(z,2)}, {v(z+2,2)}"); o.append(f"v_pk_mul_f32 {v(Q2+2*t,2)}, {v(z,2)}, {v(z,2)}")
                    else:
                        if c: o.append(f"v_pk_add_f32 {v(S2+2*t,2)}, {v(S2+2*t,2)}, {v(z,2)}")
                        o.append(f"v_pk_fma_f32 {v(Q2+2*t,2)}, {v(z,2)}, {v(z,2)}, {v(Q2+2*t,2)}")
        return o
    e(mix(gelu(True), bg(SC))); done+=[f"t{n}" for n in range(20) if n!=8]
    e(f"v_add_f32 v{t0}, v{S2}, v{S2+1}"); e(f"v_add_f32 v{t2}, v{S2+2}, v{S2+3}")
    e(f"v_add_f32 v{t1}, v{Q2}, v{Q2+1}"); e(f"v_add_f32 v{t3}, v{Q2+2}, v{Q2+3}")
    e(f"v_lshlrev_b32 v{t4}, 3, v{vG}"); e(f"v_lshrrev_b32 v{t4}, v{t4}, s{sNON}")
    e(f"v_permlane32_swap_b32 v{t0}, v{t2}"); e(f"v_permlane32_swap_b32 v{t1}, v{t3}")
    e(f"v_add_f32 v{t0}, v{t0}, v{t2}"); e(f"v_add_f32 v{t1}, v{t1}, v{t3}")
    e(f"v_lshlrev_b32 v{t5}, 2, v{vG}"); e(f"v_lshl_add_u32 v{t5}, v{vN}, 4, v{t5}")
    e(f"v_permlane16_swap_b32 v{t0}, v{t1}")
    e(f"s_lshl_b32 s{sT0}, s{sI}, 1"); e(f"s_add_u32 s{sT0}, s{sT0}, s{sSH}"); e(f"s_lshl_b32 s{sT0}, s{sT0}, 12"); e(f"s_add_u32 s{sT2}, s{sT0}, {STATS}")
    e(f"s_lshl_b32 s{sT0}, s{sJ}, 1"); e(f"s_add_u32 s{sT0}, s{sT0}, s{sFH}"); e(f"s_lshl_b32 s{sT0}, s{sT0}, 8"); e(f"s_add_u32 s{sT0}, s{sT0}, s{sT2}")
    e(f"v_add_f32 v{t0}, v{t0}, v{t1}")
    e(f"v_bfi_b32 v{t0}, s{sFF}, v{t4}, v{t0}")
    e(I(f"buffer_store_dword v{t0}, v{t5}, {srd(sWS)}, s{sT0} offen sc1","stat"))
    e(ts("statpub"))
    UA=SP; RR=SP+32; TR=SP+40; TI=SP+44; TN=SP+48
    def acc(uw,ri,t): return UA+((uw*2+ri)*2+t)*4
    vVS=V.a("vVS"); vZ=V.a("vZ"); vZ2=V.a("vZ2")
    fillD=[[f"v_lshlrev_b32 v{t0}, 4, v{vG}"]+[f"ds_bpermute_b32 v{RR+4*t+r}, v{t0}, v{RS+t} offset:{4*r}" for t in range(2) for r in range(4)]]
    fillD+=[[f"v_permlane16_swap_b32 v{ZA+8*c+r}, v{ZA+8*c+4+r}" for r in range(2*h,2*h+2)] for c in range(3) for h in range(2)]
    fillD+=[[f"s_lshr_b32 s{sT0}, s{sR}, 1", f"s_bfe_u32 s{sT1}, s{sI}, 0x10002", f"s_lshl_b32 s{sT1}, s{sT1}, 1", f"s_xor_b32 s{sT0}, s{sT0}, s{sT1}", f"v_xor_b32 v{t1}, s{sT0}, v{vG}"],
            [f"v_lshlrev_b32 v{t1}, 4, v{t1}", f"v_mul_u32_u24 v{t2}, {VP}, v{vN}"],
            [f"s_lshr_b32 s{sT0}, s{sJ}, 1", f"s_lshl_b32 s{sT0}, s{sT0}, 6", f"s_add_u32 s{sT0}, s{sT0}, s{sZ}", f"s_lshl_b32 s{sT0}, s{sT0}, 2", f"s_add_u32 s{sT0}, s{sT0}, s{sR}",
             f"s_lshl_b32 s{sT0}, s{sT0}, 6", f"v_add3_u32 v{vVS}, v{t1}, v{t2}, s{sT0}"]]
    fillD+=[[f"v_lshrrev_b32 v{t1}, 5, v{vL}", f"s_lshl_b32 s{sT0}, s{sFH}, 1", f"v_add_u32 v{t1}, s{sT0}, v{t1}"],
            [f"s_bfe_u32 s{sT0}, s{sI}, 0x10001", f"v_lshl_add_u32 v{t2}, v{t1}, 1, s{sT0}", f"v_and_b32 v{t3}, 7, v{vL}"],
            [f"v_xor_b32 v{t2}, v{t2}, v{t3}", f"v_lshlrev_b32 v{t2}, 4, v{t2}"],
            [f"v_lshl_add_u32 v{t2}, v{t1}, 10, v{t2}", f"v_bfe_u32 v{t3}, v{vL}, 3, 2"],
            [f"v_mul_u32_u24 v{t3}, 98304, v{t3}", f"s_mul_i32 s{sT0}, s{sJ}, 393216", f"s_lshl_b32 s{sT1}, s{sSH}, 14", f"s_add_u32 s{sT0}, s{sT0}, s{sT1}",
             f"s_lshr_b32 s{sT1}, s{sI}, 3", f"s_lshl_b32 s{sT1}, s{sT1}, 12", f"s_add_u32 s{sT0}, s{sT0}, s{sT1}",
             f"s_and_b32 s{sT1}, s{sI}, 7", f"s_lshl_b32 s{sT1}, s{sT1}, 7", f"s_add_u32 s{sT0}, s{sT0}, s{sT1}", f"v_add3_u32 v{vZ}, v{t2}, v{t3}, s{sT0}"],
            [f"v_add_u32 v{t1}, 8, v{t1}", f"v_cmp_gt_u32 s[{sHM}:{sHM+1}], s{sNOCT}, v{t1}"],
            [f"v_mov_b32 v{t1}, {OOB}"], [f"v_cndmask_b32 v{vZ2}, v{t1}, v{vZ}, s[{sHM}:{sHM+1}]"]]
    fillD+=[f"v_mov_b32 v{t4}, s{sSIG}", f"s_mov_b32 s{sCNT}, 0"]
    bd=bg(SD); fillD=flat(mix(bd, fillD) if len(bd)>len(fillD) else mix(fillD, bd))
    fD=lambda var: gsched([([],fftv(var),[],[])], [(0,62,fillD)])
    def fftv(var):
        o=[]; seen=set()
        tab={0:[((0,0),(0,1)),((1,0),(1,1)),((0,0),(0,1)),((1,0),(1,1))],
             1:[((0,0),(0,1)),((1,1),(0,0)),((1,0),(1,1)),((0,1),(1,0))],
             3:[((0,0),(0,1)),((0,1),(1,0)),((1,0),(1,1)),((1,1),(0,0))]}[var]
        for ks in range(16):
            D,k=divmod(ks,4)
            for which,base in ((0,aFC),(1,aFS)):
                uw,ri=tab[D][which]
                for t in range(2):
                    d=acc(uw,ri,t); o.append(mm(d, v(xf(ks,t),4), a(base+4*k,4), d not in seen)); seen.add(d)
        return o
    e(f"s_cmp_eq_u32 s{sR}, 1"); e("s_cbranch_scc1 L_f1"); e(f"s_cmp_eq_u32 s{sR}, 3"); e("s_cbranch_scc1 L_f3")
    e(Var([fD(0)+["s_nop 6","s_branch L_fj"], ["L_f1:"]+fD(1)+["s_nop 6","s_branch L_fj"], ["L_f3:"]+fD(3)+["s_nop 7"]]))
    e("L_fj:")
    e(ts("fftm"))
    C0=C; C=[]; e=C.append
    for ri in range(2):
        for t in range(2):
            for h in range(2):
                u=acc(0,ri,t)+2*h; w_=acc(1,ri,t)+2*h
                e(f"v_pk_fma_f32 {v(u,2)}, {v(t4,2)}, {v(w_,2)}, {v(u,2)} op_sel_hi:[0,1,1]")
    for ri in range(2):
        for t in range(2):
            for h in range(2):
                u=acc(0,ri,t)+2*h; e(f"v_pk_mul_f32 {v(u,2)}, {v(u,2)}, {v(RR+4*t+2*h,2)}")
    for t in range(2):
        for h in range(2):
            u=acc(0,0,t)+2*h; e(f"v_cvt_pk_bf16_f32 v{TR+2*t+h}, v{u}, v{u+1}"); e(f"v_cvt_pk_bf16_f32 v{TN+2*t+h}, -v{u}, -v{u+1}")
            u=acc(0,1,t)+2*h; e(f"v_cvt_pk_bf16_f32 v{TI+2*t+h}, v{u}, v{u+1}")
    VA=SP+16
    for th in range(2):
        e(mm(VA+8*th, v(TR,4), a(aAC+4*th,4), True)); e(mm(VA+8*th+4, v(TI,4), a(aAC+4*th,4), True))
        e(mm(VA+8*th, v(TI,4), a(aAS+4*th,4), False)); e(mm(VA+8*th+4, v(TN,4), a(aAS+4*th,4), False))
    VK=SP+32
    for th in range(2):
        for r in range(4): e(f"v_cvt_pk_bf16_f32 v{VK+4*th+r}, v{VA+8*th+r}, v{VA+8*th+4+r}")
    dt=flat(C); C=C0; e=C.append
    e(mix(dt, bg(SD2)))
    for th in range(2):
        e(f"s_mov_b32 s{sT3}, {VB+th*16*VP}")
        e(I(f"buffer_store_dwordx4 {v(VK+4*th,4)}, v{vVS}, {srd(sWS)}, s{sT3} offen sc1","z2n"))
    e(ts("fft"))
    PL=SP; ZP=SP+16
    sn=[sNON,sN1,sN2,sN3]
    chk=[f"v_xor_b32 v{t0}, s{sNON}, v{PL}", f"v_xor_b32 v{t1}, s{sN1}, v{PL+1}"]
    chk+=[f"v_bitop3_b32 v{t0+k%2}, v{PL+k}, s{sn[k%4]}, v{t0+k%2} bitop3:0xbe" for k in range(2,16)]
    chk+=[f"v_bitop3_b32 v{t0}, v{t0}, v{t1}, s{sFF} bitop3:0xa8", f"v_cmp_ne_u32 vcc, 0, v{t0}"]
    assert "p1" in done
    e(W("vm","st13")); e("L_r1:"); e([f"v_accvgpr_read_b32 v{PL+k}, a{aPL+k}" for k in range(16)]); e(chk); e("s_cbranch_vccnz L_s1"); e("L_b1:")
    SLOW.extend(["L_s1:", f"s_add_u32 s{sCNT}, s{sCNT}, 1", f"s_cmp_ge_u32 s{sCNT}, {SPIN}", "s_cbranch_scc1 L_b1"]+poll1()+["s_waitcnt vmcnt(0)", "s_branch L_r1"])
    e(ts("s1"))
    C0=C; C=[]; e=C.append
    for h in range(2):
        e(f"v_pk_add_f32 {v(PL+2*h,2)}, {v(PL+2*h,2)}, {v(PL+4+2*h,2)}"); e(f"v_pk_add_f32 {v(PL+8+2*h,2)}, {v(PL+8+2*h,2)}, {v(PL+12+2*h,2)}")
    for h in range(2): e(f"v_pk_add_f32 {v(PL+2*h,2)}, {v(PL+2*h,2)}, {v(PL+8+2*h,2)}")
    e(f"v_permlane16_swap_b32 v{PL}, v{PL+2}"); e(f"v_permlane16_swap_b32 v{PL+1}, v{PL+3}")
    e(f"v_pk_add_f32 {v(PL+4,2)}, {v(PL,2)}, {v(PL+2,2)}"); e(f"v_pk_add_f32 {v(PL,2)}, {v(PL,2)}, {v(PL+2,2)}")
    e(f"v_permlane32_swap_b32 v{PL}, v{PL+4}"); e(f"v_permlane32_swap_b32 v{PL+1}, v{PL+5}")
    e(f"v_pk_add_f32 {v(PL,2)}, {v(PL,2)}, {v(PL+4,2)}")
    e(f"v_mul_f32 v{t0}, {fl(-1/688)}, v{PL}"); e(f"v_mul_f32 v{t1}, v{t0}, v{t0}"); e(f"v_sub_f32 v{t1}, {fl(1e-5)}, v{t1}")
    e(f"v_fmamk_f32 v{t1}, v{PL+1}, {fl(1/688)}, v{t1}"); e(f"v_max_f32 v{t1}, {fl(1e-5)}, v{t1}")
    e(f"v_rsq_f32 v{t2}, v{t1}"); e(f"v_mul_f32 v{t3}, v{t0}, v{t2}")
    dt=flat(C); C=C0; e=C.append
    e(mix(dt, bg(SE)))
    for c in range(3):
        for k in range(4):
            z=ZA+8*c+2*k; e(f"v_pk_fma_f32 {v(z,2)}, {v(z,2)}, {v(t2,2)}, {v(t2,2)} op_sel:[0,0,1] op_sel_hi:[1,0,1]")
        for k in range(4):
            z=ZA+8*c+2*k; e(f"v_cvt_pk_bf16_f32 v{ZP+4*c+k}, v{z}, v{z+1}")
        e(f"s_mov_b32 s{sT3}, {Z2N+c*32768}")
        e(I(f"buffer_store_dwordx4 {v(ZP+4*c,4)}, v{vZ2 if c==2 else vZ}, {srd(sWS)}, s{sT3} offen sc1","z2n"))
    e(ts("z2npub"))
    V.f("vVS","vZ","vZ2")
    vFO=V.a("vFO"); vBT=V.a("vBT")
    e(f"v_lshlrev_b32 v{t0}, 2, v0"); e(f"v_cmp_gt_u32 vcc, 32, v0"); e(f"v_mov_b32 v{t1}, {OOB}"); e(f"v_mov_b32 v{vNV}, s{sNON}"); e(f"v_cndmask_b32 v{vFO}, v{t1}, v{t0}, vcc")
    if 'b' not in SF+SG+SG2+(SS or ''): e(bg('b0'))
    vZL=V.a("vZL"); vP8=V.a("vP8"); vPC=V.a("vPC")
    e(f"v_and_b32 v{t0}, {8 if SPM else 16}, v{vL}"); e(f"v_mul_u32_u24 v{t0}, {STGW//(8 if SPM else 16)}, v{t0}")
    for k in range(4): e(f"v_sub_u32 v{rb[k]}, v{ra[k]}, v{t0}")
    done.append("rb")
    e(f"s_lshl_b32 s{sT0}, s{sJ}, 2"); e(f"s_add_u32 s{sT0}, s{sT0}, s{sW}"); e(f"s_lshr_b32 s{sT1}, s{sRX}, 10"); e(f"s_xor_b32 s{sT1}, s{sT1}, s{sT0}"); e(f"s_mul_i32 s{sT1}, s{sT1}, 98304"); e(f"v_add_u32 v{vZL}, s{sT1}, v{vL16}")
    e(f"s_lshl_b32 s{sRM}, s{sW}, 12")
    e(f"v_and_b32 v{t0}, 7, v{vL}"); e(f"v_lshlrev_b32 v{vP8}, 7, v{t0}")
    e(f"s_lshl_b32 s{sT0}, s{sT0}, 10"); e(f"s_add_u32 s{sT2}, s{sT0}, {F2}")
    e(f"s_lshl_b32 s{sT0}, s{sJ}, 5"); e(f"s_add_u32 s{sT0}, s{sT0}, s{sI}"); e(f"s_lshl_b32 s{sT0}, s{sT0}, 7"); e(f"s_add_u32 s{sT0}, s{sT0}, {F2}")
    e("s_barrier")
    assert 4<=FA<=FK<=12
    sa,sb,sc=SF.split("|"); assert "w14" not in sa and (FA<FK or not sb.strip())
    u1=flat(bg(sa)); u2=flat(bg(sb)); u3=flat(bg(sc))
    steps=[]; NF=cum(False)
    for ks in range(17):
        kk,kp=divmod(ks,2); pre=[]; rd=[]
        if ks<16: rd=rd_w(8+kk,kp)
        if ks==FA: pre=["s_barrier"]
        if ks==FK:
            pre=[W("vm","z2n"),"s_barrier"]
            u3=[f"buffer_store_dword v{vNV}, v{vFO}, {srd(sWS)}, s{sT0} offen sc1"]+([ts("s2flag")] if DIAGON else [])+u3
        if ks==12: pre=[W("vm","st15"),"s_barrier"]
        if ks==0: e(rd)
        else: steps.append((pre, mf_z(ks-1,False), rd, [W("lg","fr")] if ks<16 else []))
    e(gsched(steps, [(0,NF[FA-1]-1,u1+(exad(False) if SPL&2 else [])), (NF[FA-1],NF[FK-1]-1,u2), (NF[FK-1],int(NF[16]*FS),u3)], slack=SLK[1]))
    if SPL&2: e([W("lg","exw"),"s_barrier"]+exrd(False))
    V.f("XF","wd0","wd1","wd2","wa0","wa1","ONES")
    e(ts("z1gemm"))
    Z1=V.a("Z1",12)
    gl=(csadd if SPL&2 else [])+gelu(False); e(mix(gl, bg(SG), int(len(gl)*GS[0]), int(len(gl)*GS[1])))
    C0=C; C=[]; e=C.append
    for c in range(3):
        for t in range(2):
            for h in range(2):
                z=ZA+(c*2+t)*4+2*h; e(f"v_cvt_pk_bf16_f32 v{Z1+4*c+2*t+h}, v{z}, v{z+1}")
    for c in range(3):
        for h in range(2): e(f"v_permlane16_swap_b32 v{Z1+4*c+h}, v{Z1+4*c+2+h}")
    dt=flat(C); C=C0; e=C.append
    e(mix(dt, bg(SG2)))
    assert all(f"r{q}" in done for q in range(7)) and "c2" in done and ("s2" in done or 's' in XP)
    V.f("vT","ZA","SP","NM","K1","K0","IR","RS","vsp","ra0","ra1","ra2","ra3")
    za=[V.a(f"za{k}") for k in range(8)]; vRW=V.a("vRW"); vRR=V.a("vRR"); vH=V.a("vH"); vH2=V.a("vH2")
    e(ts("z1done"))
    C0=C; C=[]; e=C.append
    e(f"v_and_b32 v{t0}, 1, v{vG}"); e(f"v_xor_b32 v{t0}, s{sFH}, v{t0}"); e(f"v_and_b32 v{t1}, 1, v{vL}"); e(f"v_lshl_add_u32 v{t0}, v{t0}, 1, v{t1}")
    e(f"v_mul_u32_u24 v{t0}, {1024+32}, v{t0}")
    e(f"v_lshrrev_b32 v{t1}, 2, v{vN}"); e(f"v_lshl_add_u32 v{t0}, v{t1}, 7, v{t0}")
    e(f"v_lshrrev_b32 v{t1}, 3, v{vN}"); e(f"v_lshrrev_b32 v{t2}, 1, v{vG}"); e(f"v_xor_b32 v{t1}, v{t1}, v{t2}"); e(f"v_lshl_add_u32 v{t0}, v{t1}, 4, v{t0}")
    e(f"v_bfe_u32 v{t1}, v{vL}, 1, 1"); e(f"v_lshl_add_u32 v{t0}, v{t1}, 3, v{t0}")
    e(f"s_bfe_u32 s{sT0}, s{sRX}, 0x70003"); e(f"v_xor_b32 v{t0}, s{sT0}, v{t0}")
    e(f"v_lshl_add_u32 v{za[0]}, s{sFH}, 13, v{t0}")
    for k in range(1,4): e(f"v_xor_b32 v{za[k]}, {32*k}, v{za[0]}")
    for k in range(4): e(f"v_add_u32 v{za[4+k]}, {4*SL}, v{za[k]}")
    e(f"s_lshl_b32 s{sT0}, s{sW}, 11"); e(f"s_add_u32 s{sT0}, s{sT0}, {RED}"); e(f"v_mad_u32_u24 v{vRR}, v{vL}, {4*WM}, s{sT0}")
    e(f"v_xor_b32 v{vRW}, 2048, v{vRR}")
    e(f"v_and_b32 v{t0}, 1, v{vG}"); e(f"v_lshlrev_b32 v{t0}, 13, v{t0}"); e(f"v_lshl_add_u32 v{t0}, v{vN}, 4, v{t0}")
    e(f"v_lshrrev_b32 v{t1}, 1, v{vG}"); e(f"v_lshl_add_u32 v{t0}, v{t1}, 8, v{t0}")
    e(f"s_mul_i32 s{sT0}, s{sI}, 98304"); e(f"s_lshl_b32 s{sT1}, s{sSH}, 14"); e(f"s_add_u32 s{sT0}, s{sT0}, s{sT1}"); e(f"s_lshl_b32 s{sT1}, s{sFH}, 9"); e(f"s_add_u32 s{sT0}, s{sT0}, s{sT1}")
    e(f"s_lshl_b32 s{sT1}, s{sJ}, 10"); e(f"s_add_u32 s{sT1}, s{sT1}, s{sT0}"); e(f"v_add_u32 v{vH}, s{sT1}, v{t0}")
    e(f"s_mul_i32 s{sT1}, s{sJ}, 768"); e(f"s_min_u32 s{sT1}, s{sT1}, {20*256}"); e(f"s_add_u32 s{sT1}, s{sT1}, s{sT0}"); e(f"v_add_u32 v{t0}, s{sT1}, v{t0}")
    e(f"v_mov_b32 v{t1}, {OOB}"); e(f"v_cndmask_b32 v{vH2}, v{t1}, v{t0}, s[{sHM}:{sHM+1}]")
    AC=V.a("AC0",16); AC1=V.a("AC1",16); ACS=[AC,AC1]; ZF=V.a("ZF",32); RD=V.a("RD",8); HP=V.a("HP",4); HT=V.a("HT",8); BZ=V.a("BZ",8)
    vWO=V.a("vWO"); wo=[[V.a(f"wo{r}{p}") for p in range(4)] for r in range(2)]
    e(f"v_lshrrev_b32 v{t0}, 3, v{vL}"); e(f"v_and_b32 v{t1}, 2, v{t0}"); e(f"v_and_b32 v{t2}, 7, v{vL}")
    e(f"s_lshl_b32 s{sT0}, s{sFH}, 2"); e(f"v_bitop3_b32 v{t1}, v{t1}, v{t2}, s{sT0} bitop3:0x96")
    e(f"v_lshlrev_b32 v{t1}, 4, v{t1}"); e(f"v_lshl_add_u32 v{t1}, v{t0}, 10, v{t1}")
    e(f"s_lshl_b32 s{sT0}, s{sW}, 6"); e(f"s_add_u32 s{sT0}, s{sT0}, s{sJ}"); e(f"s_lshl_b32 s{sT0}, s{sT0}, 7"); e(f"v_add_u32 v{vWO}, s{sT0}, v{t1}")
    if 'c' in XP: e(f"s_mul_i32 s{sT0}, s{sJ}, 86"); e(f"s_add_u32 s{sT0}, s{sT0}, s{sW}"); e(f"s_lshl_b32 s{sT0}, s{sT0}, 10"); e(f"v_add_u32 v{vWO}, s{sT0}, v{vL16}")
    e(f"v_lshlrev_b32 v{t0}, 12, v{vG}"); e(f"v_lshrrev_b32 v{t1}, 2, v{vN}"); e(f"v_lshl_add_u32 v{t0}, v{t1}, 7, v{t0}")
    e(f"v_and_b32 v{t1}, 3, v{vL}"); e(f"v_lshl_add_u32 v{t0}, v{t1}, 3, v{t0}"); e(f"v_lshrrev_b32 v{t1}, 3, v{vN}"); e(f"v_lshl_add_u32 v{t0}, v{t1}, 5, v{t0}")
    e(f"v_and_b32 v{t1}, 1, v{vG}"); e(f"v_lshl_add_u32 v{t0}, v{t1}, 6, v{t0}"); e(f"v_add_u32 v{wo[1][0]}, {2*SL}, v{t0}")
    for ct in range(1,4): e(f"v_xor_b32 v{wo[1][ct]}, {32*ct}, v{wo[1][0]}")
    for ct in range(4): e(f"v_add_u32 v{wo[0][ct]}, {4*SL}, v{wo[1][ct]}")
    TW=V.a("TW",16); H0=V.a("H0",32); H1=V.a("H1",32); OA=V.a("OA",16); va=[V.a(f"va{k}") for k in range(4)]; WR=H0
    vPA=V.a("vPA"); vPV=V.a("vPV"); vHL=V.a("vHL"); vHL5=V.a("vHL5")
    sMI,sRHO,sVB,sFP,sFS=sXM,sSTM,sWM,sN1,sN2
    e([f"s_cmp_ge_u32 s{sJ}, 4", f"s_cselect_b32 s{sMI}, -1, 0"]); e(f"s_and_b32 s{sT0}, s{sMI}, 0x80000000"); e(f"s_or_b32 s{sT0}, s{sT0}, {fl(1/2048)}")
    e(f"s_lshl_b32 s{sT1}, s{sFH}, 10"); e(f"s_add_u32 s{sT1}, s{sT1}, s{sZ}")
    e(f"v_lshl_add_u32 v{t0}, v{vN}, 6, s{sT1}"); e(f"v_cvt_f32_u32 v{t0}, v{t0}"); e(f"v_mul_f32 v{t0}, s{sT0}, v{t0}")
    e(f"v_lshlrev_b32 v{t1}, 2, v{vG}"); e(f"v_cvt_f32_u32 v{t1}, v{t1}"); e(f"v_mul_f32 v{t1}, v{t1}, v{t0}")
    if TR_:
        R=WR+16; assert WR%2==0
        e(f"v_mul_f32 v{R}, {fl(16.)}, v{t0}")
        for q in range(4): e(f"v_fmamk_f32 v{WR+2*q}, v{t0}, {fl(q)}, v{t1}")
        for b in (R,WR,WR+2,WR+4,WR+6): e(f"v_sin_f32 v{b+1}, v{b}"); e(f"v_cos_f32 v{b}, v{b}")
        for kv in range(4):
            A=WR+8*(kv%2); B=WR+8-8*(kv%2)
            if kv<3:
                for q in range(4): e(f"v_pk_mul_f32 {v(B+2*q,2)}, {v(A+2*q,2)}, {v(R,2)} op_sel:[1,1] op_sel_hi:[0,1]")
            for q in range(4): e(f"v_cvt_pk_bf16_f32 v{TW+4*kv+q}, v{A+2*q}, v{A+2*q+1}")
            if kv<3:
                for q in range(4): e(f"v_pk_fma_f32 {v(B+2*q,2)}, {v(A+2*q,2)}, {v(R,2)}, {v(B+2*q,2)} op_sel_hi:[1,0,1] neg_lo:[0,0,1]")
    for kv in range(0 if TR_ else 4):
        for q in range(4):
            e(f"v_fmamk_f32 v{WR+q}, v{t0}, {fl(16*kv+q)}, v{t1}")
        for q in range(4): e(f"v_cos_f32 v{WR+4+q}, v{WR+q}"); e(f"v_sin_f32 v{WR+q}, v{WR+q}")
        for q in range(4): e(f"v_cvt_pk_bf16_f32 v{TW+4*kv+q}, v{WR+4+q}, v{WR+q}")
    if Z6: e(f"s_sub_u32 s{sN3}, 11, s{sNOCT}"); e(f"s_lshl_b32 s{sN3}, s{sN3}, 10")
    e(f"s_xor_b32 s{sT0}, s{sI}, s{sMI}"); e(f"s_sub_u32 s{sT0}, s{sT0}, s{sMI}"); e(f"s_and_b32 s{sT0}, s{sT0}, 31"); e(f"s_mul_i32 s{sVB}, s{sT0}, {VP}"); e(f"s_add_u32 s{sVB}, s{sVB}, {VB}")
    e(f"s_xor_b32 s{sRHO}, s{sJ}, s{sMI}"); e(f"s_and_b32 s{sRHO}, s{sRHO}, 3")
    e(f"v_and_b32 v{t4}, 1, v{vG}"); e(f"v_lshlrev_b32 v{t4}, {5 if VF else 1}, v{t4}"); e(f"v_lshlrev_b32 v{t5}, 10, v{vG}"); e(f"v_add_u32 v{t5}, {VL}, v{t5}")
    for ct in range(4):
        e(f"v_add_u32 v{t0}, {16*ct}, v{vN}"); e(f"v_xor_b32 v{t0}, s{sMI}, v{t0}"); e(f"v_subrev_u32 v{t0}, s{sMI}, v{t0}")
        if VF:
            e(f"v_and_b32 v{t1}, 0x12, v{t0}"); e(f"v_lshl_add_u32 v{t1}, v{t1}, 3, v{t5}"); e(f"v_and_b32 v{t2}, 1, v{t0}"); e(f"v_lshl_add_u32 v{t1}, v{t2}, 6, v{t1}")
            e(f"v_bitop3_b32 v{t2}, v{t0}, 44, v{t4} bitop3:0x6a"); e(f"v_add_u32 v{va[ct]}, v{t1}, v{t2}")
            continue
        e(f"v_bfe_u32 v{t1}, v{t0}, 4, 2"); e(f"v_bfe_u32 v{t2}, v{t0}, 1, 1"); e(f"v_bitop3_b32 v{t1}, v{t1}, v{t2}, v{t4} bitop3:0x96")
        e(f"v_lshl_add_u32 v{t1}, v{t1}, 4, v{t5}"); e(f"v_and_b32 v{t2}, 3, v{t0}"); e(f"v_lshl_add_u32 v{t1}, v{t2}, 6, v{t1}")
        e(f"v_and_b32 v{t2}, 12, v{t0}"); e(f"v_add_u32 v{va[ct]}, v{t1}, v{t2}")
    e(f"v_bfe_u32 v{t0}, v{vN}, 2, 1"); e(f"v_lshlrev_b32 v{t0}, 5, v{t0}"); e(f"v_lshl_add_u32 v{t0}, v{vN}, 8, v{t0}"); e(f"v_add_u32 v{vPA}, s{sRM}, v{t0}")
    e(f"s_mul_i32 s{sT0}, s{sI}, 12"); e(f"s_add_u32 s{sT0}, s{sT0}, s{sW}"); e(f"s_lshl_b32 s{sT0}, s{sT0}, 13"); e(f"v_add_u32 v{vHL}, s{sT0}, v{vL16}")
    e(f"v_cmp_gt_u32 vcc, 32, v{vL}"); e(f"v_mov_b32 v{t1}, {OOB}"); e(f"v_lshlrev_b32 v{t0}, 7, v{vL}"); e(f"v_cndmask_b32 v{vHL5}, v{t1}, v{vHL}, vcc"); e(f"v_cndmask_b32 v{vP8}, v{t1}, v{t0}, vcc")
    if VF:
        assert not PX[0]
        e(f"v_bfe_u32 v{t0}, v{vL}, 3, 1"); e(f"v_xor_b32 v{t0}, v{t0}, v{vL}"); e(f"v_lshlrev_b32 v{t1}, 3, v{vL}"); e(f"v_bfi_b32 v{t0}, 8, v{t1}, v{t0}"); e(f"v_lshlrev_b32 v{vP8}, 4, v{t0}")
    if PX[1]:
        e(f"s_and_b32 s{sT0}, s{sI}, 7"); e(f"s_lshl2_add_u32 s{sT0}, s{sT0}, s{sW}"); e(f"s_mul_i32 s{sT0}, s{sT0}, 22"); e(f"v_min_u32 v{t2}, 21, v{vL}"); e(f"v_add_lshl_u32 v{t2}, v{t2}, s{sT0}, 10")
    setup=C; C=C0; e=C.append
    assert NP>=5
    pro=[]
    for t in (SS or " ".join(f"z{g}" for g in range(NP) if f"z{g}" not in done)).split():
        u=bg(t)
        if t=="z4": assert "r7" in done; u[0]=[W("lg","spr7"),"s_barrier"]+u[0]
        if t=="r7": u=[u[k:k+2] for k in range(0,8,2)]
        pro+=u
    assert f"z{NP-1}" in done and f"z{NP}" not in done
    sm_=flat([pro[0], mix(setup, pro[1:], 0, int(len(setup)*SFR))]); tx_=lambda x: x.text if isinstance(x,I) else x if isinstance(x,str) else ""
    k7=[k for k,x in enumerate(sm_) if isinstance(x,I) and x.tag=="spr7"]
    assert not k7 or not any(tx_(x).split(",")[0].endswith(tuple(f" v{r}" for r in rb)) for x in sm_[:k7[-1]])
    e(sm_)
    nst=[f"s_cmp_eq_u32 s2, 0", f"s_cselect_b32 s{sT0}, 0, {OOB}", f"buffer_store_dword v{vNV}, v{vFO}, {srd(sWS)}, s{sT0} offen sc1"]
    def zrd(x):
        g,k=divmod(x,4); sl=g%NS; r_=za[k+4*(sl//4)]; of=(sl%4)*SL
        r=[I(f"ds_read_b64_tr_b16 {v(ZF+8*(x%4)+2*n,2)}, v{r_} offset:{of+(n//2)*4096+(n%2)*512}", f"zr{x}") for n in range(4)]
        if k==0: r[0]=[W("vm",f"z{g}")]+([] if 'b' in XP and g else ["s_barrier"])+[r[0]]
        return r
    def wo_lds(kap): return (8,9,3,5,6,2)[kap//4]*SL+(kap%4)*1024
    def wo_dma(kap):
        r=[f"s_add_u32 m0, s{sRM}, {wo_lds(kap)}"]
        if 'c' in XP: r.append(f"s_mov_b32 s{sT3}, {kap*4096}")
        elif kap<16:
            r.append(f"s_mov_b32 s{sT3}, {(f0(kap%8)+32*(kap//8))*1024}")
        elif kap<21:
            k=kap-16
            r+=[f"s_add_u32 s{sT3}, s{sW}, {4*k}", f"s_mul_i32 s{sT3}, s{sT3}, 43", f"s_lshr_b32 s{sT3}, s{sT3}, 7", f"s_lshl_b32 s{sT3}, s{sT3}, 16", f"s_add_u32 s{sT3}, s{sT3}, {(32*k+64)*1024}"]
        else: r.append(f"s_mov_b32 s{sT3}, {672*1024}")
        return r+[I(f"buffer_load_dwordx4 v{vWO}, {srd(sWOUT)}, s{sT3} offen {NT} lds", f"wo{kap}")]
    def red_wr(c):
        return [I(f"ds_write_b{32*WM} v{vRW}, {v(ACS[c%2]+8+WM*x,WM)} offset:{x*256*WM}", f"rw{c}") for x in range(8//WM)]
    def red_rd(c):
        if WM==1: return [f"ds_read2st64_b32 {v(RD+2*x,2)}, v{vRR} offset0:{2*x} offset1:{2*x+1}" for x in range(4)]
        return [f"ds_read_b{32*WM} {v(RD+WM*x,WM)}, v{vRR} offset:{x*256*WM}" for x in range(8//WM)]
    def red_own(c, pk):
        A=ACS[c%2]
        if pk: return [f"v_pk_fma_f32 {v(A+2*k,2)}, {v(A+2*k,2)}, {v(HT+2*k,2)}, {v(BZ+2*k,2)}" for k in range(4)]
        return [f"v_fma_f32 v{A+k}, v{A+k}, v{HT+k}, v{BZ+k}" for k in range(8)]
    def red_alu(c, pk):
        o=[]; A=ACS[c%2]
        if pk: o+=[f"v_pk_fma_f32 {v(A+2*k,2)}, {v(RD+2*k,2)}, {v(HT+2*k,2)}, {v(A+2*k,2)}" for k in range(4)]
        else: o+=[f"v_fmac_f32 v{A+k}, v{RD+k}, v{HT+k}" for k in range(8)]
        for k in range(4): o.append(f"v_cvt_pk_bf16_f32 v{HP+k}, v{A+2*k}, v{A+2*k+1}")
        return o
    def z1_unp(c):
        return [x for k in range(4) for x in (f"v_lshlrev_b32 v{HT+2*k}, 16, v{Z1+4*c+k}", f"v_and_b32 v{HT+2*k+1}, 0xffff0000, v{Z1+4*c+k}")]+([f"v_lshlrev_b32 v{vBT}, 16, v{vBT}"] if c==0 else [])+[f"v_mul_f32 v{BZ+k}, v{vBT}, v{HT+k}" for k in range(8)]
    def h_st(c):
        return [f"s_mov_b32 s{sT0}, {HB+c*32768}", I(f"buffer_store_dwordx4 {v(HP,4)}, v{vH2 if c==2 else vH}, {srd(sWS)}, s{sT0} offen sc1", f"h{c}")]
    vdma=[[f"s_lshl_b32 s{sT1}, s{sRHO}, 14", f"s_add_u32 m0, s{sRM}, {VL}", f"s_add_u32 s{sT1}, s{sT1}, s{sRM}", f"s_add_u32 s{sT1}, s{sT1}, s{sVB}",
           I(f"buffer_load_dwordx4 v{vP8 if VF else vL16}, {srd(sWS)}, s{sT1} offen sc1 lds","v")]]
    vdma+=[I(f"buffer_load_dwordx4 v{vP8 if VF else vL16}, {srd(sWS)}, s{sT1} offen offset:{1024*k} sc1 lds","v") for k in range(1,4)]
    vdma+=[[f"s_sub_u32 s{sT1}, s{sRHO}, s{sMI}", f"s_and_b32 s{sT1}, s{sT1}, 3", f"s_lshl_b32 s{sT1}, s{sT1}, 14", f"s_add_u32 s{sT1}, s{sT1}, s{sVB}"],
           [f"s_cmp_eq_u32 s{sJ}, 0", f"s_cselect_b32 s{sT1}, {OOB}, s{sT1}", f"buffer_load_dword v{vPV}, v{vPA}, {srd(sWS)}, s{sT1} offen sc1"]]
    def hld(c, dst, sKW=sKW):
        return [([f"s_mov_b32 s{sKW}, {HB+c*32768+k*1024}"] if k%4==0 else [])+[I(f"buffer_load_dwordx4 {v(dst+4*k,4)}, v{vHL5 if (c,k)==(2,5) else vHL}, {srd(sWS)}, s{sKW} offen offset:{(k%4)*1024} sc1", f"hl{c}")] for k in range(8 if c<2 else 6)]
    HH=[H0,H1]
    def wrd(kap, d):
        rg=0 if wo_lds(kap)>=6*SL else 1; ko=wo_lds(kap)-(2*SL if rg else 6*SL)
        return [f"ds_read_b64_tr_b16 {a(d+ct*4+2*r,2)}, v{wo[rg][ct]} offset:{ko+r*512}" for ct in range(4) for r in range(2)]
    def vrd(kv,d):
        if 'v' in XP: return wrd(kv,d)
        return [f"ds_read2st64_b32 {a(d+ct*4+2*r,2)}, v{va[ct]} offset0:{16*kv+2*r} offset1:{16*kv+2*r+1}" for ct in range(4) for r in range(2)]
    tst=[("w",k) for k in range(8)]+[("v",k) for k in range(4)]+[("w",k) for k in range(8,22)]
    def rds(n):
        if n>=26: return []
        ty,k=tst[n]; return vrd(k,16*(n%16)) if ty=="v" else wrd(k,16*(n%16))
    def mms(n):
        ty,k=tst[n]; B = v(TW+4*k,4) if ty=="v" else v(HH[k//8]+4*(k%8),4)
        return [mm(OA+4*ct, a(16*(n%16)+4*ct,4), B, False) for ct in range(4)]
    def hchk(c):
        H=HH[c]; n=8 if c<2 else 6; nm=f"h{c}"
        ck=[f"v_max3_i32 v{t0}, v{H}, v{H+4}, v{H+8}"]+[f"v_max3_i32 v{t0}, v{t0}, v{H+4*k}, v{H+4*k+4}" for k in range(3,n-1,2)]+[f"v_max_i32 v{t0}, v{t0}, v{H+4*n-4}", f"v_cmp_eq_u32 vcc, {SENT}, v{t0}"]
        SLOW.extend([f"L_s{nm}:", f"s_add_u32 s{sCNT}, s{sCNT}, 1", f"s_cmp_ge_u32 s{sCNT}, {SPIN}", f"s_cbranch_scc1 L_b{nm}"]+flat(hld(c,H,sT3))+["s_waitcnt vmcnt(0)", f"s_branch L_r{nm}"])
        return [f"s_mov_b32 s{sCNT}, 0", W("vm",f"hl{c}"), f"L_r{nm}:"]+ck+[f"s_cbranch_vccnz L_s{nm}", f"L_b{nm}:"]+ts(f"xck{c}")
    e(ts("p2pro"))
    e(zrd(0)); e(zrd(1))
    if LW: e(zrd(2))
    ex={y:[] for y in range(193)}; dx={y:[] for y in range(193)}
    def spread(units, y0, per, d=None):
        for k,u in enumerate(units): (ex if d is None else d)[min(192,y0+int(k/per))].append(u)
        return y0+int((len(units)-1)/per)
    yy=0.; LA=4+2*LW
    def put(u, lo, dr):
        nonlocal yy
        yy=max(yy,lo); y=2*int((yy+1e-6)/2)
        while any(g0<=y<g0+2*GAP[2] for g0 in GAP[:2]): y+=2; yy+=2
        dx[min(y,192)].append(u); yy+=dr
    for k in range(W1): put(wo_dma(k), 0, DR[0])
    lead=[]; hq=hld(0,H0)
    for G in range(NP,24):
        for o in range(4):
            if zdma(G,o): put([] if 'd' in XP else zdma(G,o), 8*(G-NS+2)-LA+2, DR[G>=16])
        if G>=16 and W1<8: put(wo_dma(W1), 0, DR[1]); W1+=1
        elif G>=16 and yy>=HL[0]: put(hq.pop(0), 0, DR[1])
        lead.append(8*G-LA-int(yy))
    zend=2*int((yy+1)/2); info_lead=(lead,zend)
    oa=[x for k in range(8) for x in (f"v_lshlrev_b32 v{OA+2*k}, 16, v{RES+k}", f"v_and_b32 v{OA+2*k+1}, 0xffff0000, v{RES+k}")]
    spread(oa+z1_unp(0), 3, .625)
    for c in range(2):
        b=64*(c+1)
        if 'r' in XP: continue
        yw=spread([[]] if 'w' in XP else red_wr(c), b+RW, 1/WS)
        yb=b+8-LA
        while yb<yw+2: yb+=8
        ex[yb-1].append(W("lg",f"rw{c}"))
        spread(red_own(c,False), b+RW+2, 2)
        spread(red_rd(c), yb, 1); ye=spread(red_alu(c,False), max(yb+len(red_rd(c))+1,b+RW+6), 2); dx[(ye+1)|1].append(h_st(c))
        spread(z1_unp(c+1), ye+3, .5)
    dx[PX[2]].append(nst)
    if PX[0]: dx[PX[0]].append([f"s_lshl_b32 s{sT2}, s{sRHO}, 14", f"s_add_u32 s{sT2}, s{sT2}, s{sRM}", f"s_add_u32 s{sT2}, s{sT2}, s{sVB}", f"buffer_load_dword v{vPC}, v{vP8}, {srd(sWS)}, s{sT2} offen sc1"])
    if PX[1]: dx[PX[1]].append([f"s_lshl_b32 s{sT2}, s{sJ}, 7", f"buffer_load_dword v{t3}, v{t2}, {srd(sWOUT)}, s{sT2} offen"])
    assert NS==7 and W1==8
    ex[HL[1]].append(hchk(0))
    free=lambda g: 8*(g+2)-LA+2
    grp={'H':(hq,HL[0]), 'V':(vdma[:4]+[vdma[4]+vdma[5]],max(free(18),HL[1]+1)), 'W8':([wo_dma(k) for k in range(8,12)],free(17)),
         'W12':([wo_dma(k) for k in range(12,16)],free(19)), 'W16':([wo_dma(k) for k in range(16,20)],free(20)), 'J':(hld(1,H1),0)}
    for t in TQ.split()+[t for t in ('J','W16') if t not in TQ.split()]:
        for u in grp[t][0]: put(u, grp[t][1], DR[2])
    info_lead+=(yy,len(dx[192]))
    rq=[(n,r) for n in range(26) for r in rds(n)]
    for y in range(192):
        x,q=divmod(y,2); g,k=divmod(x,4); c=g//8; d=ACS[c%2]
        if q==0 and not LW: e(W("lg",f"zr{x}"))
        if q==0 and LW and x%2==0: e(W("lg",f"zr{x+1}"))
        e(f"v_mfma_f32_32x32x16_bf16 {v(d,16)}, {v(ZF+4*(y%8),4)}, {a(((k*2+q)*8+g%8)*4,4)}, {'0' if y%64==0 else v(d,16)}")
        e(dx[y])
        if x+2+LW<96: e(zrd(x+2+LW)[1:] if q else zrd(x+2+LW)[0])
        else: e([rq.pop(0)[1] for _ in range(PFN)])
        e(ex[y])
        if P2S and q==1 and x in P2S: e(ts(f"x{x}"))
    e(ts("xp2"))
    V.f("ZF","vZL","AC1","RES",*[f"za{k}" for k in range(8)])
    H2=V.a("H2",24); HH.append(H2); WR=V.a("WR",8); vO=V.a("vO")
    rest=dx[192]; assert not ex[192]
    fin=[f"v_and_b32 v{t1}, 1, v{vG}", f"v_lshlrev_b32 v{t1}, 5, v{t1}", f"v_lshrrev_b32 v{t2}, 1, v{vG}", f"v_lshl_add_u32 v{t1}, v{t2}, 4, v{t1}",
         f"s_lshl_b32 s{sT0}, s{sFH}, 10", f"s_add_u32 s{sT0}, s{sT0}, s{sZ}", f"s_lshl_b32 s{sT0}, s{sT0}, 3", f"s_add_u32 s{sT0}, s{sT0}, s{sJ}", f"s_lshl_b32 s{sT0}, s{sT0}, 7",
         ]+([f"v_mul_u32_u24 v{t2}, 0x10008, v{vN}", f"v_and_b32 v{t2}, 0x70040, v{t2}", f"s_mov_b32 s{sT1}, 524288"] if OF else [f"v_lshlrev_b32 v{t2}, 16, v{vN}"])+[f"v_add3_u32 v{vO}, v{t2}, v{t1}, s{sT0}"]
    tx={g:[] for g in range(-1,105)}; ty={g:[] for g in range(-1,105)}
    assert not any(isinstance(x,I) and x.tag in ("wo15","v") for x in flat(rest)), "V / w8-11 must be issued inside the loop"
    tx[TRD[0]].append(red_wr(2)); tx[TB2-3].append([f"v_add_u32 v{vPA}, {VL}, v{vPA}", I(f"ds_write_b32 v{vPA}, v{vPV}","vp")])
    ty[TB2].append([W("vm","wo15"), W("lg","vp"), "s_barrier"]+ts("xb2"))
    for k,u in enumerate(red_own(2,True)): tx[TRD[0]+1+k//2].append(u)
    ty[TRD[1]].append([W("lg","rw2"), "s_barrier"]+red_rd(2)+ts("xbr"))
    ty[TRD[2]].append(red_alu(2,True)+h_st(2)+ts("xh2st"))
    g=T1[0]
    for k,u in enumerate(rest+[wo_dma(20),wo_dma(21)]):
        if k>=len(rest): g=max(g,TRD[1]+1)
        if k==T1[2]: g=max(g,TRD[2]+1)
        tx[int(g)].append(u); g+=T1[1]
    assert g-T1[1]<T2[0] and int(g-T1[1])<TB
    for k,u in enumerate(hld(2,H2)): tx[T2[0]+int(k*T2[1])].append(u)
    ty[TB].append([W("vm","wo21"), "s_barrier"]+ts("xbb"))
    ty[47].append(hchk(1)); ty[79].append(hchk(2))
    for k,u in enumerate(fin): tx[88+k].append(u)
    rdy=lambda n: -1 if n<8 else TB2+1 if n<20 else TB+1
    lk=[]
    for g in range(-1,104):
        if g>=0: e(mms(g//4)[g%4])
        e(tx[g])
        for _ in range(RPG.get(g,2)):
            if rq and rdy(rq[0][0])<=g and rq[0][0]-g//4<TA: e(rq.pop(0)[1])
        e(ty[g])
        if rq: lk.append((208-len(rq))//2-g-1); assert lk[-1]>0
    info_lead+=(lk[::4],)
    e(ts("xg3"))
    for p in range(2):
        for k in range(4): e(f"v_cvt_pk_bf16_f32 v{WR+4*p+k}, v{OA+8*p+2*k}, v{OA+8*p+2*k+1}")
    for p in range(2):
        for k in range(2): e(f"v_permlane16_swap_b32 v{WR+4*p+k}, v{WR+4*p+2+k}")
        if not OF: e(f"buffer_store_dwordx4 {v(WR+4*p,4)}, v{vO}, {srd(sOUT)}, 0 offen offset:{64*p} {OST}")
        elif p==0: e([f"v_mov_b32 v{OA+k}, v{WR+k}" for k in range(4)])
    if OF:
        e("s_nop 1")
        for k in range(4): e(f"v_mov_b32_dpp v{OA+k}, v{WR+4+k} row_ror:8 row_mask:0xf bank_mask:0xc")
        e(f"buffer_store_dwordx4 {v(OA,4)}, v{vO}, {srd(sOUT)}, 0 offen {OST}")
        for k in range(4): e(f"v_mov_b32_dpp v{WR+4+k}, v{WR+k} row_ror:8 row_mask:0xf bank_mask:0x3")
        e(f"buffer_store_dwordx4 {v(WR+4,4)}, v{vO}, {srd(sOUT)}, s{sT1} offen {OST}")
    if DIAGON:
        e(ts("xst")); e(W("vm0")); e(ts("end"))
        e(f"v_mov_b32 v{t0}, 0")
        for k in range(nts[0]): e(f"v_writelane_b32 v{t0}, s{sTS+1+k if k else sTS}, {k}")
        e("s_memrealtime s[6:7]"); e("s_waitcnt lgkmcnt(0)"); e(f"v_writelane_b32 v{t0}, s100, 40"); e(f"v_writelane_b32 v{t0}, s6, 41")
        e(f"s_lshl_b32 s{sT0}, s2, 2"); e(f"s_add_u32 s{sT0}, s{sT0}, s{sW}"); e(f"s_lshl_b32 s{sT0}, s{sT0}, 8"); e(f"s_add_u32 s{sT0}, s{sT0}, {DIAG}")
        e(f"v_lshlrev_b32 v{t1}, 2, v{vL}")
        e(f"buffer_store_dword v{t0}, v{t1}, {srd(sWS)}, s{sT0} offen")
    if DBG is not None:
        e("s_memrealtime s[6:7]"); e(f"s_load_dwordx2 s[{sBSP}:{sBSP+1}], s[0:1], 88"); e("s_waitcnt lgkmcnt(0)")
        e(f"s_mov_b32 s{sBSP+2}, 256"); e(f"s_mov_b32 s{sBSP+3}, 0x20000")
        e(f"v_subrev_u32 v{t0}, s{sTS}, v{t0}"); e("s_sub_u32 s6, s6, s100"); e(f"v_writelane_b32 v{t0}, s6, 3")
        e(f"s_lshl_b32 s{sT0}, s2, 2"); e(f"s_add_u32 s{sT0}, s{sT0}, s{sW}"); e(f"s_cmp_eq_u32 s{sT0}, {DBG*4}"); e(f"s_cselect_b32 s{sT0}, 0, {OOB}")
        e(f"v_subrev_u32 v{t1}, 12, v{t1}"); e(f"v_min_u32 v{t1}, {OOB}, v{t1}")
        e(f"buffer_store_dword v{t0}, v{t1}, {srd(sBSP)}, s{sT0} offen")
    e("L_end:"); e("s_endpgm")
    for x in SLOW: e(Raw(x.text if isinstance(x,I) else x))
    st=St(); out=[]; run(C,st,out)
    ref=open("stub.txt").read()
    head=ref[:ref.index(NAME+":")].replace("grid=(4096,1,1) block=(256,1,1) lds=0","grid=(256,1,1) block=(256,1,1) lds=163840")
    tail=ref[ref.index(".section .rodata"):].replace("next_free_vgpr 256","next_free_vgpr 512")
    body="\n".join(x if x.endswith(":") else "    "+x for x in out)
    info=dict(n=len(out), maxvm=st.maxvm, nops=st.nops, peak=V.peak, lead=info_lead, ts=tsn)
    return head+NAME+":\n"+body+"\n"+tail, info

if __name__=="__main__":
    kw={}
    for x in sys.argv[2:]:
        k,val=x.split("="); kw[k]=eval(val)
    s,info=gen(**kw); open(sys.argv[1],"w").write(s); print(info)
```
